```python
import torch

def _softmax(x, axis=-1):
    return torch.softmax(x, dim=axis)
def _gelu(x):
    return torch.nn.functional.gelu(x, approximate="tanh")
def _silu(x):
    return torch.nn.functional.silu(x)
def _sigmoid(x):
    return torch.sigmoid(x)
def _layernorm(x, axis=-1, eps=1e-5):
    m = x.mean(dim=axis, keepdim=True)
    v = x.var(dim=axis, keepdim=True, unbiased=False)
    return (x - m) / torch.sqrt(v + eps)
def _scatter_add(tgt, idx, src, axis=0):
    return tgt.clone().index_add_(axis, idx, src)
def _segment_sum(src, seg, n):
    out = torch.zeros((n,) + src.shape[1:], dtype=src.dtype)
    return out.index_add_(0, seg, src)
def _pad(x, pw):
    flat = tuple(v for pair in reversed(pw) for v in pair)
    return torch.nn.functional.pad(x, flat)

kernel_name = 'sequential_preLN__sliding_block__glu_gated_swiglu__prompt'

def setup_inputs():

    _w = (lambda a: (lambda t: t.to(torch.bfloat16) if t.is_floating_point() else t)(torch.as_tensor(a)))
    def _A_setup():
        B, S, D = 1, 2048, 640
        return {
            "x": _w((lambda *s: torch.randn(*s, dtype=torch.bfloat16) * 0.05)(B, S, D)),
            "wqkv": _w((lambda *s: torch.randn(*s, dtype=torch.bfloat16) * 0.05)(D, 3 * D)),
            "wo": _w((lambda *s: torch.randn(*s, dtype=torch.bfloat16) * 0.05)(D, D)),
        }
    _A_in = _A_setup()

    def _B_setup():
        B, S, D, F = 1, 2048, 640, 1536
        return {
            "x": _w((lambda *s: torch.randn(*s, dtype=torch.bfloat16) * 0.05)(B, S, D)),
            "w1": _w((lambda *s: torch.randn(*s, dtype=torch.bfloat16) * 0.8)(D, F) * (2.0 / D) ** 0.5),
            "w3": _w((lambda *s: torch.randn(*s, dtype=torch.bfloat16) * 0.8)(D, F) * (2.0 / D) ** 0.5),
            "w2": _w((lambda *s: torch.randn(*s, dtype=torch.bfloat16) * 0.8)(F, D) * (2.0 / F) ** 0.5),
        }
    _B_in = _B_setup()

    return {
        "A_x": _A_in["x"],
        "A_wqkv": _A_in["wqkv"],
        "A_wo": _A_in["wo"],
        "B_x": _B_in["x"],
        "B_w1": _B_in["w1"],
        "B_w3": _B_in["w3"],
        "B_w2": _B_in["w2"],
    }

def reference(A_x, A_wqkv, A_wo, B_x, B_w1, B_w3, B_w2):
    def _A_ref(x, wqkv, wo):
        B, S, D = x.shape
        H = 32; Dh = D // H; W = 256
        qkv = (lambda x, *d: x.permute(*d))((x @ wqkv).reshape(B, S, 3, H, Dh), 2, 0, 3, 1, 4)
        q, k, v = qkv[0], qkv[1], qkv[2]
        scores = torch.einsum("bhqd,bhkd->bhqk", q, k) * (Dh ** -0.5)
        idx = torch.arange(S)
        mask = (idx[:, None] - idx[None, :] >= 0) & (idx[:, None] - idx[None, :] < W)
        scores = torch.where(mask[None, None], scores, -1e9)
        p = _softmax(scores, axis=-1)
        o = torch.einsum("bhqk,bhkd->bhqd", p, v)
        return (lambda x, *d: x.permute(*d))(o, 0, 2, 1, 3).reshape(B, S, D) @ wo

    def _B_ref(x, w1, w3, w2):
        gate = torch.einsum("bsd,df->bsf", x, w1)
        up = torch.einsum("bsd,df->bsf", x, w3)
        h = _silu(gate) * up
        out = torch.einsum("bsf,fd->bsd", h, w2)
        return out

    x = A_x
    h = x + _A_ref(_layernorm(x, axis=-1), A_wqkv, A_wo)
    h2 = h + _B_ref(_layernorm(h, axis=-1), B_w1, B_w3, B_w2)
    return h2
```

```python
import re

def v(n, c=1):
    return f"v{n}" if c == 1 else f"v[{n}:{n+c-1}]"
def a(n, c=1):
    return f"a{n}" if c == 1 else f"a[{n}:{n+c-1}]"
def s(n, c=1):
    return f"s{n}" if c == 1 else f"s[{n}:{n+c-1}]"

REG_RE = re.compile(r"^(-|abs\(|\|)?([vas])(\d+|\[(\d+):(\d+)\])\)?\|?$")

def parse_reg(tok):
    tok = tok.strip()
    neg = tok.lstrip("-")
    if neg.startswith("abs(") and neg.endswith(")"):
        neg = neg[4:-1]
    if neg.startswith("|") and neg.endswith("|"):
        neg = neg[1:-1]
    if neg == "vcc": return {("s", 106), ("s", 107)}
    if neg == "vcc_lo": return {("s", 106)}
    if neg == "vcc_hi": return {("s", 107)}
    if neg == "exec": return {("s", 126), ("s", 127)}
    if neg == "exec_lo": return {("s", 126)}
    if neg == "exec_hi": return {("s", 127)}
    if neg == "m0": return {("s", 124)}
    m = re.match(r"^([vas])(\d+)$", neg)
    if m: return {(m.group(1), int(m.group(2)))}
    m = re.match(r"^([vas])\[(\d+):(\d+)\]$", neg)
    if m: return {(m.group(1), i) for i in range(int(m.group(2)), int(m.group(3)) + 1)}
    return set()

TRANS = ("v_exp_f32", "v_log_f32", "v_rcp_f32", "v_rsq_f32", "v_sqrt_f32", "v_sin_f32", "v_cos_f32", "v_rcp_iflag_f32")
EXEC = {("s", 126), ("s", 127)}
VCC = {("s", 106), ("s", 107)}
M0 = {("s", 124)}

class Ins:
    __slots__ = ("text", "op", "ops", "mods", "dst", "src", "cls", "label", "target", "srcA", "srcB", "srcC", "passes", "lds", "width")
    def __init__(self, text):
        self.text = text
        t = text.split(";")[0].strip()
        self.label = None; self.target = None
        self.dst = set(); self.src = set(); self.cls = "other"; self.op = ""; self.ops = []; self.mods = ""
        self.srcA = self.srcB = self.srcC = set(); self.passes = 0; self.lds = False; self.width = 0
        if t.endswith(":"):
            self.label = t[:-1]; self.cls = "label"; return
        if t.startswith(".") or not t:
            self.cls = "dir"; return
        parts = t.split(None, 1)
        op = parts[0]; self.op = op
        rest = parts[1] if len(parts) > 1 else ""
        rest = re.sub(r"(op_sel(_hi)?|neg_lo|neg_hi):\[([^\]]*)\]", lambda m: m.group(1) + ":" + m.group(3).replace(",", "_"), rest)
        ops = [x.strip() for x in re.split(r",(?![^\(]*\))", rest)] if rest else []
        mods = ""
        if ops:
            lp = ops[-1].split(None, 1)
            if len(lp) > 1 and not ops[-1].startswith("hwreg") and not ops[-1].startswith("vmcnt") and not ops[-1].startswith("lgkmcnt"):
                ops[-1] = lp[0]; mods = lp[1]
        self.ops = ops; self.mods = mods
        R = [parse_reg(o) for o in ops]
        base = re.sub(r"_(e32|e64|dpp|sdwa)$", "", op)
        if op.startswith("v_mfma"):
            self.cls = "mfma"
            self.dst = R[0]; self.srcA = R[1]; self.srcB = R[2]; self.srcC = R[3]
            self.src = R[1] | R[2] | R[3]
            self.passes = 8 if "32x32x16" in op else 4 if "16x16x32" in op else None
            assert self.passes, op
        elif op.startswith("v_"):
            self.cls = "valu"
            if base.startswith("v_cmp"):
                self.dst = R[0]; self.src = set().union(*R[1:])
                if base.startswith("v_cmpx"): self.dst = self.dst | EXEC
            elif base.startswith("v_permlane") and "swap" in base:
                self.dst = R[0] | R[1]; self.src = R[0] | R[1]
            elif base in ("v_add_co_u32", "v_sub_co_u32", "v_subrev_co_u32", "v_addc_co_u32", "v_subb_co_u32", "v_mad_u64_u32"):
                self.dst = R[0] | R[1]; self.src = set().union(*R[2:])
            elif base in ("v_nop",):
                pass
            else:
                self.dst = R[0]; self.src = set().union(*R[1:]) if len(R) > 1 else set()
                if base.startswith("v_fmac") or base.startswith("v_dot2c") or base.startswith("v_writelane") or "dpp" in op or "row_" in mods or "quad_perm" in mods:
                    self.src = self.src | R[0]
        elif op.startswith("buffer_") or op.startswith("global_"):
            self.cls = "vmem"
            if op in ("buffer_wbl2", "buffer_inv"):
                pass
            elif "lds" in mods.split() or op.startswith("global_load_lds"):
                self.lds = True
                self.src = set().union(*R) | M0
            elif "_load" in op:
                self.dst = R[0]; self.src = set().union(*R[1:])
            elif "atomic" in op:
                self.src = set().union(*R)
                if "sc0" in mods.split():
                    self.dst = R[0]
            else:
                self.src = set().union(*R)
                m = re.search(r"dwordx(\d)", op)
                self.width = int(m.group(1)) if m else 1
        elif op.startswith("ds_"):
            self.cls = "ds"
            if op.startswith("ds_read") or op.startswith("ds_bpermute") or op.startswith("ds_permute") or op.startswith("ds_swizzle") or "_rtn" in op:
                self.dst = R[0]; self.src = set().union(*R[1:])
            else:
                self.src = set().union(*R)
        elif op.startswith("s_"):
            if op.startswith("s_load") or op.startswith("s_buffer_load") or op in ("s_memtime", "s_memrealtime") or op.startswith("s_atomic"):
                self.cls = "smem"
                self.dst = R[0]; self.src = set().union(*R[1:]) if len(R) > 1 else set()
                if op.startswith("s_atomic"): self.src |= R[0]
            elif op in ("s_branch",) or op.startswith("s_cbranch"):
                self.cls = "branch"; self.target = ops[0]
            elif op in ("s_waitcnt", "s_barrier", "s_nop", "s_endpgm", "s_setprio", "s_sleep"):
                self.cls = op
            elif op.startswith("s_cmp") or op.startswith("s_bitcmp"):
                self.cls = "salu"; self.src = set().union(*R)
            else:
                self.cls = "salu"
                self.dst = R[0]; self.src = set().union(*R[1:]) if len(R) > 1 else set()
                if "saveexec" in op: self.dst = self.dst | EXEC; self.src = self.src | EXEC
                if op.startswith("s_addk") or op.startswith("s_mulk") or op.startswith("s_cmov"): self.src |= R[0]
        else:
            raise ValueError("unknown instruction: " + text)

    def states(self):
        if self.cls in ("label", "dir"): return 0
        if self.cls == "s_nop": return int(self.ops[0], 0) + 1
        return 1

def is_sgpr(r): return r[0] == "s"
def vg(rs): return {r for r in rs if r[0] in "va"}
def sg(rs): return {r for r in rs if r[0] == "s"}

def need(p, c):
    n = 0
    pb = re.sub(r"_(e32|e64|dpp|sdwa)$", "", p.op); cb = re.sub(r"_(e32|e64|dpp|sdwa)$", "", c.op)
    if p.cls == "valu":
        sw = sg(p.dst)
        if sw:
            if c.cls == "vmem" and (sw & c.src): n = max(n, 5)
            if c.cls == "valu" and (sw & c.src):
                n = max(n, 4 if cb in ("v_readlane_b32", "v_writelane_b32") else 2)
            if sw & EXEC:
                if c.cls == "mfma": n = max(n, 4)
                if c.cls == "valu" and ("dpp" in c.op or "row_" in c.mods or "quad_perm" in c.mods): n = max(n, 5)
                if c.cls == "valu" and (cb.startswith("v_readlane") or cb.startswith("v_readfirstlane") or cb.startswith("v_permlane")): n = max(n, 4)
            if c.cls in ("salu", "branch", "smem") and (sw & c.src): n = max(n, 1)
        vw = vg(p.dst)
        if vw:
            if c.cls == "mfma" and (vw & c.src): n = max(n, 2)
            if c.cls == "valu" and (vw & c.src):
                if "dpp" in c.op or "row_" in c.mods or "quad_perm" in c.mods: n = max(n, 2)
                if cb.startswith("v_permlane"): n = max(n, 2)
                if cb.startswith("v_readlane") or cb.startswith("v_readfirstlane"): n = max(n, 1)
                if pb in TRANS and cb not in TRANS: n = max(n, 1)
                if "sdwa" in p.op or ("op_sel" in p.mods and not pb.startswith("v_pk_")): n = max(n, 1)
            if pb.startswith("v_dot"):
                if c.cls in ("valu", "mfma", "vmem", "ds") and (vw & (c.src | c.dst)):
                    same_acc = (cb == pb and c.cls == "valu" and not (vw & set().union(*[parse_reg(o) for o in c.ops[1:3]])))
                    if not same_acc: n = max(n, 3)
    if p.cls == "salu":
        if (p.dst & M0) and ((c.cls == "vmem" and c.lds) or "addtid" in c.op): n = max(n, 1)
    if p.cls == "vmem" and p.width >= 3:
        data = parse_reg(p.ops[0]) if p.op.startswith("buffer") else parse_reg(p.ops[1])
        if data & c.dst:
            n = max(n, 2 if c.cls in ("valu",) else 1)
    if p.cls == "mfma":
        P = p.passes
        if c.cls == "mfma":
            if p.dst & c.srcC:
                if p.dst == c.srcC and c.passes == P: pass
                else: n = max(n, P + 2)
            if p.dst & (c.srcA | c.srcB): n = max(n, P + 4)
            if (p.dst & c.dst) and not (p.dst == c.srcC and c.passes == P): n = max(n, P + 4)
        elif c.cls in ("valu", "vmem", "ds"):
            if p.dst & (c.src | c.dst): n = max(n, P + 4)
            if c.cls == "valu" and (p.srcC & c.dst): n = max(n, P - 1)
    return n

def fix_hazards(lines, verbose=False):
    ins = [Ins(l) for l in lines]
    total = 0
    def build():
        labels = {x.label: i for i, x in enumerate(ins) if x.label}
        preds = [[] for _ in ins]
        for i, x in enumerate(ins):
            if i + 1 < len(ins) and not (x.op in ("s_branch", "s_endpgm")):
                preds[i + 1].append(i)
            if x.cls == "branch" and x.target in labels:
                preds[labels[x.target]].append(i)
        return preds
    preds = build()
    ci = 0
    while ci < len(ins):
        c = ins[ci]
        if c.cls in ("label", "dir", "s_nop", "s_waitcnt", "s_barrier", "s_endpgm"):
            ci += 1; continue
        worst = 0
        stack = [(p, 0) for p in preds[ci]]
        seen = {}
        while stack:
            pi, d = stack.pop()
            if d >= 14: continue
            if pi in seen and seen[pi] <= d: continue
            seen[pi] = d
            p = ins[pi]
            if p.cls in ("valu", "salu", "vmem", "mfma"):
                r = need(p, c)
                if r - d > worst:
                    worst = r - d; wp = p
            nd = d + p.states()
            for q in preds[pi]: stack.append((q, nd))
        if worst > 0:
            if verbose: print(f"  nop {worst}: [{wp.text.strip()}] -> [{c.text.strip()}]")
            ins.insert(ci, Ins(f"s_nop {worst-1}"))
            total += worst
            preds = build()
            ci += 1
        ci += 1
    return [x.text for x in ins], total

def check_waitcnt(lines, name=""):
    ins = [Ins(l) for l in lines]
    labels = {x.label: i for i, x in enumerate(ins) if x.label}
    errors = set()
    import sys
    sys.setrecursionlimit(10000)
    seen = set()
    stack = [(0, (), (), ())]
    while stack:
        pc, vm, lg, taken = stack.pop()
        vm = list(vm); lg = list(lg)
        while pc < len(ins):
            x = ins[pc]
            if x.cls in ("label",):
                key = (pc, tuple(vm), tuple(lg))
                if key in seen: break
                seen.add(key)
            if x.cls == "s_endpgm": break
            if x.cls == "s_waitcnt":
                t = x.text.split(";")[0]
                m = re.search(r"vmcnt\((\d+)\)", t)
                if m:
                    n = int(m.group(1))
                    while len(vm) > n: vm.pop(0)
                m = re.search(r"lgkmcnt\((\d+)\)", t)
                if m:
                    n = int(m.group(1))
                    if n == 0: lg = []
                    elif not any(k == "smem" for k, _ in lg):
                        while len(lg) > n: lg.pop(0)
            else:
                touched = x.src | x.dst
                for k, d in vm + lg:
                    if d & touched and 'dummy' not in x.text:
                        errors.add(f"{name}: line {pc}: '{x.text.strip()}' touches pending {k} dst {sorted(d & touched)[:4]}")
                if x.cls == "vmem" and x.op not in ("buffer_wbl2", "buffer_inv"):
                    vm.append(("vm", frozenset(x.dst)))
                    if len(vm) > 63: errors.add(f"{name}: line {pc}: vmcnt overflow >63")
                elif x.cls == "ds":
                    lg.append(("ds", frozenset(x.dst)))
                    if len(lg) > 15: lg_over = True
                elif x.cls == "smem":
                    lg.append(("smem", frozenset(x.dst)))
            if x.cls == "branch":
                tgt = labels.get(x.target)
                if x.op == "s_branch":
                    pc = tgt; continue
                cnt = taken.count(pc)
                if cnt < 2:
                    stack.append((tgt, tuple(vm), tuple(lg), taken + (pc,)))
            pc += 1
    return sorted(errors)

class Kern:
    def __init__(self, name, grid, block, lds, nvgpr, nagpr=0, nsgpr=96):
        self.name = name; self.grid = grid; self.block = block; self.lds = lds
        self.nvgpr = nvgpr; self.nagpr = nagpr; self.nsgpr = nsgpr
        self.L = []
    def e(self, *lines):
        for l in lines:
            for x in l.split("\n"):
                x = x.strip()
                if x: self.L.append(x)
    def label(self, n): self.L.append(f"{self.name}_{n}:")
    def lab(self, n): return f"{self.name}_{n}"
    def finish(self, verbose=False):
        body, tot = fix_hazards(self.L, verbose)
        errs = check_waitcnt(body, self.name)
        for e in errs: print("WAITCNT ERROR:", e)
        mv = ma = ms = -1
        for l in body:
            x = Ins(l)
            for r in x.src | x.dst:
                if r[0] == "v": mv = max(mv, r[1])
                elif r[0] == "a": ma = max(ma, r[1])
                elif r[1] < 102: ms = max(ms, r[1])
        assert mv < self.nvgpr, (self.name, mv, self.nvgpr)
        assert ma < self.nagpr, (self.name, ma, self.nagpr)
        assert ms < self.nsgpr, (self.name, ms)
        print(f"{self.name}: {len(body)} lines, nops inserted {tot}, max v{mv} a{ma} s{ms}")
        txt = [f".globl {self.name}", ".p2align 8", f".type {self.name},@function", f"{self.name}:"]
        txt += [("" if l.endswith(":") else "    ") + l for l in body]
        return "\n".join(txt), len(errs)
    def launch_line(self):
        g = self.grid; b = self.block
        return f"; @launch kernel={self.name} grid=({g},1,1) block=({b},1,1) lds={self.lds}"
    def desc(self):
        acc = (self.nvgpr + 3) // 4 * 4
        nfv = acc + self.nagpr if self.nagpr else self.nvgpr
        return f""".p2align 6
.amdhsa_kernel {self.name}
  .amdhsa_next_free_vgpr {nfv}
  .amdhsa_next_free_sgpr {self.nsgpr}
  .amdhsa_accum_offset {acc}
  .amdhsa_group_segment_fixed_size 0
  .amdhsa_kernarg_size 80
  .amdhsa_user_sgpr_count 2
  .amdhsa_user_sgpr_kernarg_segment_ptr 1
  .amdhsa_system_sgpr_workgroup_id_x 1
  .amdhsa_float_denorm_mode_32 3
.end_amdhsa_kernel"""

def interleave(main, fill, lead=0):
    out = []
    n = len(main); m = len(fill)
    fi = 0
    for i, x in enumerate(main):
        out.append(x)
        want = (m * (i + 1) + n - 1) // n if n else m
        while fi < want:
            f = fill[fi]; fi += 1
            if isinstance(f, (list, tuple)): out.extend(f)
            else: out.append(f)
    while fi < m:
        f = fill[fi]; fi += 1
        if isinstance(f, (list, tuple)): out.extend(f)
        else: out.append(f)
    return out

def write_file(path, kerns, header, verbose=False):
    parts = [header]
    for k in kerns: parts.append(k.launch_line())
    parts.append('.amdgcn_target "amdgcn-amd-amdhsa--gfx950"')
    parts.append(".text")
    nerr = 0
    done = set()
    for k in kerns:
        if k.name in done: continue
        done.add(k.name)
        t, e = k.finish(verbose); nerr += e
        parts.append(t)
    parts.append(".fill 64, 4, 0xbf800000")
    parts.append('.section .rodata,"a"')
    done = set()
    for k in kerns:
        if k.name in done: continue
        done.add(k.name)
        parts.append(k.desc())
    open(path, "w").write("\n".join(parts) + "\n")
    return nerr
```

```python
import sys, struct
from asmlib import *

NAME = "sequential_preLN__sliding_block__glu_gated_swiglu__prompt"
WS_Q = 0
WS_K = 2621440
WS_V = 5242880
WS_O = 7864320
WS_H = 10485760
WS_A = 13107200
WS_WO = 19398656
WS_W13 = 20217856
WS_W2 = 24150016
WS_ST = 26116096
WS_CS = 26247168
WS_END = WS_CS + 16 * 6 * 256
X_BYTES = 2048 * 1280

def f32(x): return "0x%08x" % struct.unpack("<I", struct.pack("<f", x))[0]
ONES = "0x3f803f80"
NEGBIG = f32(-1e30)

def srd(k, d, base, size):
    k.e(f"s_mov_b32 s{d}, s{base}", f"s_mov_b32 s{d+1}, s{base+1}", f"s_mov_b32 s{d+2}, {size}", f"s_mov_b32 s{d+3}, 0x20000")

def code_prefetch(k, nbytes, block, vtmp, vdst, spair):
    k.e(f"s_getpc_b64 s[{spair}:{spair+1}]")
    k.label("pc")
    k.e(f"v_lshlrev_b32 v{vtmp}, 7, v0")
    k.e(f"v_min_u32 v{vtmp}, {k.lab('end')}-{k.lab('pc')}, v{vtmp}")
    k.e(f"global_load_dword v{vdst}, v{vtmp}, s[{spair}:{spair+1}] ; dummy")
    assert nbytes <= block * 128

def ln_stats(k, sx, sxx, t0, t1, Mout, Rout, SD=None):
    k.e(f"v_mul_f32 v{sx}, {f32(1/640)}, v{sx}")
    k.e(f"v_mul_f32 v{sxx}, {f32(1/640)}, v{sxx}")
    k.e(f"v_fma_f32 v{t0}, -v{sx}, v{sx}, v{sxx}")
    k.e(f"v_max_f32 v{t0}, 0, v{t0}")
    k.e(f"v_cvt_pk_bf16_f32 v{t1}, v{sx}, v{t0}")
    k.e(f"v_lshlrev_b32 v{Mout}, 16, v{t1}")
    k.e(f"v_and_b32 v{t0}, 0xffff0000, v{t1}")
    k.e(f"v_add_f32 v{t0}, {f32(1e-5)}, v{t0}")
    k.e(f"v_cvt_pk_bf16_f32 v{t0}, v{t0}, v{t0}")
    k.e(f"v_lshlrev_b32 v{t0}, 16, v{t0}")
    k.e(f"v_sqrt_f32 v{t0}, v{t0}")
    k.e(f"v_cvt_pk_bf16_f32 v{t0}, v{t0}, v{t0}")
    k.e(f"v_lshlrev_b32 v{t0}, 16, v{t0}")
    if SD is not None: k.e(f"v_mov_b32 v{SD}, v{t0}")
    k.e(f"v_rcp_f32 v{Rout}, v{t0}")

def half_sum(k, x, t):
    k.e(f"v_mov_b32 v{t}, v{x}")
    k.e(f"v_permlane32_swap_b32 v{t}, v{x}")
    k.e(f"v_add_f32 v{x}, v{t}, v{x}")

def split3(k, cs, d0, d1, t0, t1):
    k.e(f"v_cvt_pk_bf16_f32 v{t0}, v{cs}, v{cs}")
    k.e(f"v_lshlrev_b32 v{t0}, 16, v{t0}")
    k.e(f"v_sub_f32 v{t0}, v{cs}, v{t0}")
    k.e(f"v_cvt_pk_bf16_f32 v{d0}, v{cs}, v{t0}")
    k.e(f"v_and_b32 v{t1}, 0xffff0000, v{d0}")
    k.e(f"v_sub_f32 v{t0}, v{t0}, v{t1}")
    k.e(f"v_cvt_pk_bf16_f32 v{d1}, v{t0}, 0")

def k1():
    k = Kern("k1_qkv_kernel", 240, 256, 163840, nvgpr=200)
    NST = 5
    L, T0, T1, T2, T3 = 1, 2, 3, 4, 5
    VXO, VWO = 8, 12
    AX, AW = 16, 40
    SX, SXX, CS = 46, 48, 50
    AST = 52
    PF = 60
    ACC = 64
    FR = 128
    EX = 176
    k.e("s_cmp_ge_u32 s2, 240", f"s_cbranch_scc1 {k.lab('end')}")
    k.e("s_load_dwordx4 s[4:7], s[0:1], 0", "s_load_dwordx2 s[8:9], s[0:1], 72")
    code_prefetch(k, 24576, 256, T0, PF, 10)
    k.e("s_and_b32 s31, s2, 7", "s_lshr_b32 s32, s2, 3",
        "s_and_b32 s33, s31, 1", "s_mul_i32 s33, s33, 30", "s_add_u32 s33, s33, s32",
        "s_lshr_b32 s25, s33, 2",
        "s_and_b32 s33, s33, 3", "s_lshr_b32 s31, s31, 1", "s_lshl_b32 s31, s31, 2", "s_add_u32 s26, s31, s33")
    k.e(f"v_lshrrev_b32 v{T0}, 6, v0", f"v_and_b32 v{L}, 63, v0", f"v_readfirstlane_b32 s24, v{T0}")
    k.e(f"s_mov_b32 s30, {ONES}")
    k.e("s_lshl_b32 s29, s24, 12")
    k.e("s_mul_i32 s27, s26, 163840")
    k.e("s_lshl_b32 s28, s25, 8")
    k.e(f"v_lshrrev_b32 v{T0}, 3, v{L}",
        f"s_lshl_b32 s31, s24, 5", f"v_add_u32 v{T0}, s31, v{T0}",
        f"v_mul_u32_u24 v{T0}, 1280, v{T0}",
        f"v_and_b32 v{T1}, 7, v{L}", f"v_lshrrev_b32 v{T2}, 4, v{L}",
        f"v_xor_b32 v{T1}, v{T1}, v{T2}", f"v_lshlrev_b32 v{T1}, 4, v{T1}",
        f"v_add_u32 v{VXO}, v{T0}, v{T1}",
        f"v_xor_b32 v{T0}, 64, v{VXO}",
        f"v_add_u32 v{VXO+1}, {10240-1024}, v{T0}",
        f"v_add_u32 v{VXO+2}, {2*(10240-1024)}, v{VXO}",
        f"v_add_u32 v{VXO+3}, {3*(10240-1024)}, v{T0}")
    k.e(f"s_lshl_b32 s31, s24, 4", f"v_add_u32 v{T0}, s31, v{T2}",
        f"v_mul_u32_u24 v{T0}, 3840, v{T0}",
        f"v_and_b32 v{T1}, 15, v{L}", f"v_lshlrev_b32 v{T3}, 2, v{T2}",
        f"v_xor_b32 v{T1}, v{T1}, v{T3}", f"v_lshlrev_b32 v{T1}, 4, v{T1}",
        f"v_add_u32 v{VWO}, v{T0}, v{T1}")
    for j in range(1, 4): k.e(f"v_add_u32 v{VWO+j}, {j*(15360-1024)}, v{VWO}")
    k.e("s_waitcnt lgkmcnt(0)")
    srd(k, 12, 4, X_BYTES); srd(k, 16, 6, 640 * 3840); srd(k, 20, 8, WS_END)

    def dma(st):
        sl = st % NST
        o = [f"s_add_u32 m0, s29, {sl*32768}"]
        o += [f"buffer_load_dwordx4 v{VXO+i}, s[12:15], s27 offen offset:{1024*i} lds" for i in range(4)]
        o += [f"s_add_u32 m0, s29, {sl*32768+16384}"]
        o += [f"buffer_load_dwordx4 v{VWO+i}, s[16:19], s28 offen offset:{1024*i} lds" for i in range(4)]
        o += ["s_add_u32 s27, s27, 128", "s_add_u32 s28, s28, 245760"]
        return o
    for st in range(NST): k.e(*dma(st))
    k.e("s_lshr_b32 s31, s24, 1", "s_and_b32 s32, s24, 1", "s_lshl_b32 s32, s32, 1", "s_add_u32 s34, s32, s31",
        "s_xor_b32 s35, s34, 1",
        "s_xor_b32 s36, s24, 1")
    H, TK = 6, 7
    k.e(f"v_lshrrev_b32 v{H}, 5, v{L}", f"v_and_b32 v{TK}, 31, v{L}")
    k.e(f"v_lshlrev_b32 v{T0}, 7, v{TK}", f"v_add_u32 v{T0}, s29, v{T0}",
        f"v_bfe_u32 v{T1}, v{TK}, 1, 3", f"v_xor_b32 v{T1}, v{T1}, v{H}")
    for ks in range(4):
        k.e(f"v_xor_b32 v{T2}, {2*ks}, v{T1}", f"v_lshl_add_u32 v{AX+ks}, v{T2}, 4, v{T0}",
            f"v_xor_b32 v{AX+4+ks}, 4096, v{AX+ks}")
    for st in (1, 2):
        for i in range(8): k.e(f"v_add_u32 v{AX+8*st+i}, {65536*st}, v{AX+i}")
    k.e(f"v_bfe_u32 v{T0}, v{L}, 2, 2",
        f"v_lshl_add_u32 v{T1}, v{H}, 3, v{T0}", f"v_lshlrev_b32 v{T1}, 8, v{T1}",
        f"v_bfe_u32 v{T2}, v{L}, 4, 1", f"v_lshl_add_u32 v{T1}, v{T2}, 5, v{T1}",
        f"v_and_b32 v{T2}, 3, v{L}", f"v_lshl_add_u32 v{T1}, v{T2}, 3, v{T1}",
        f"v_xor_b32 v{T2}, s34, v{T0}", f"v_lshl_add_u32 v{AW}, v{T2}, 6, v{T1}",
        f"v_xor_b32 v{AW+1}, 64, v{AW}")
    for st in (1, 2):
        for i in range(2): k.e(f"v_add_u32 v{AW+2*st+i}, {65536*st}, v{AW+i}")
    for r in (SX, SX+1, SXX, SXX+1, CS, CS+1): k.e(f"v_mov_b32 v{r}, 0")
    k.e("s_lshl_b32 s31, s26, 2", "s_add_u32 s37, s31, s24", "s_mul_i32 s37, s37, 1280",
        "s_add_u32 s38, s31, s36", "s_mul_i32 s38, s38, 1280")

    def reads(g):
        st, ks = divmod(g, 4)
        sl = st % NST; S = sl // 2; ob = (sl % 2) * 32768
        b = FR + 16 * (g % 3)
        o = []
        for t in range(2):
            o.append(f"ds_read_b128 v[{b+4*t}:{b+4*t+3}], v{AX+8*S+4*t+ks} offset:{ob}")
        for f in range(2):
            for u in range(2):
                o.append(f"ds_read_b64_tr_b16 v[{b+8+4*f+2*u}:{b+8+4*f+2*u+1}], v{AW+2*S+f} offset:{ob+16384+ks*4096+u*1024}")
        return o

    def mainloop(vmode):
        k.e("s_waitcnt vmcnt(32)", "s_barrier")
        k.e(*reads(0)); k.e(*reads(1))
        for g in range(40):
            b = FR + 16 * (g % 3)
            fill = []
            if g % 4 == 2 and g // 4 + 1 <= 9:
                sn = g // 4 + 1
                allow = 8 * min(3, 9 - sn)
                k.e(f"s_waitcnt vmcnt({allow}) lgkmcnt(0)", "s_barrier")
                if g + 2 < 40: fill += reads(g + 2)
                if sn + 4 <= 9:
                    d = dma(sn + 4)
                    fill += [[d[0], d[1]], d[2], d[3], d[4], [d[5], d[6]], d[7], d[8], [d[9], d[10], d[11]]]
            else:
                k.e(f"s_waitcnt lgkmcnt({6 if g + 1 < 40 else 0})")
                if g + 2 < 40: fill += reads(g + 2)
            for i in range(4):
                fill.append(f"v_dot2c_f32_bf16 v{SX+(i&1)}, s30, v{b+i}")
                fill.append(f"v_dot2c_f32_bf16 v{SXX+(i&1)}, v{b+i}, v{b+i}")
                fill.append(f"v_dot2c_f32_bf16 v{CS+(i&1)}, s30, v{b+8+i}")
            mf = []
            for t in range(2):
                for f in range(2):
                    d = ACC + 32 * t + 16 * f
                    xa, wa = v(b + 4 * t, 4), v(b + 8 + 4 * f, 4)
                    A, B = (xa, wa) if vmode else (wa, xa)
                    c = "0" if g == 0 else v(d, 16)
                    mf.append(f"v_mfma_f32_32x32x16_bf16 {v(d,16)}, {A}, {B}, {c}")
            k.e(*interleave(mf, fill))
        M, R = EX, EX + 1
        k.e(f"v_add_f32 v{SX}, v{SX}, v{SX+1}", f"v_add_f32 v{SXX}, v{SXX}, v{SXX+1}", f"v_add_f32 v{CS}, v{CS}, v{CS+1}")
        half_sum(k, SX, T0); half_sum(k, SXX, T1); half_sum(k, CS, T2)
        ln_stats(k, SX, SXX, T0, T1, M, R)
        k.e(f"v_lshlrev_b32 v{T0}, 2, v{TK}", f"s_lshl_b32 s31, s24, 7", f"v_add_u32 v{T1}, s31, v{T0}",
            f"s_lshl_b32 s32, s34, 7", f"v_add_u32 v{T2}, s32, v{T0}")
        k.e(f"ds_write_b32 v{T1}, v{M}", f"ds_write_b32 v{T1}, v{R} offset:512", f"ds_write_b32 v{T2}, v{CS} offset:1024")
        k.e("s_waitcnt lgkmcnt(0)", "s_barrier")
        M1, R1, CS1 = EX + 2, EX + 3, EX + 4
        k.e(f"v_xor_b32 v{T1}, 128, v{T1}", f"v_xor_b32 v{T2}, 128, v{T2}")
        k.e(f"ds_read_b32 v{M1}, v{T1}", f"ds_read_b32 v{R1}, v{T1} offset:512", f"ds_read_b32 v{CS1}, v{T2} offset:1024")
        RD = FR
        if vmode:
            k.e(f"v_lshlrev_b32 v{T0}, 4, v{H}", f"v_add_u32 v{T0}, s31, v{T0}", f"v_xor_b32 v{T3}, 128, v{T0}")
            for t in range(2):
                for q in range(4):
                    k.e(f"ds_read_b128 v[{RD+16*t+4*q}:{RD+16*t+4*q+3}], v{T0 if t == 0 else T3} offset:{512+32*q}")
        XO, WO = EX + 8, EX + 16
        k.e(f"v_cmp_gt_u32 vcc, 32, v{L}")
        def xop(Mr, d):
            k.e(f"v_cvt_pk_bf16_f32 v{d}, -v{Mr}, -v{Mr}", f"v_cndmask_b32 v{d}, 0, v{d}, vcc",
                f"v_and_b32 v{d+1}, 0xffff, v{d}", f"v_mov_b32 v{d+2}, 0", f"v_mov_b32 v{d+3}, 0")
        xop(M, XO)
        split3(k, CS, WO, WO + 1, T0 if not vmode else T1, T2)
        k.e(f"v_mov_b32 v{WO+2}, 0", f"v_mov_b32 v{WO+3}, 0", f"v_mov_b32 v{WO+6}, 0", f"v_mov_b32 v{WO+7}, 0")
        k.e("s_waitcnt lgkmcnt(0)")
        xop(M1, XO + 4)
        split3(k, CS1, WO + 4, WO + 5, T1, T2)
        for t in range(2):
            for f in range(2):
                d = ACC + 32 * t + 16 * f
                xa, wa = v(XO + 4 * t, 4), v(WO + 4 * f, 4)
                A, B = (xa, wa) if vmode else (wa, xa)
                k.e(f"v_mfma_f32_32x32x16_bf16 {v(d,16)}, {A}, {B}, {v(d,16)}")
        for t in range(2):
            so = "s37" if t == 0 else "s38"
            for f in range(2):
                d = ACC + 32 * t + 16 * f
                for r in range(16):
                    rr = (RD + 16 * t + r) if vmode else (R if t == 0 else R1)
                    k.e(f"v_mul_f32 v{d+r}, v{d+r}, v{rr}")
                for j in range(8):
                    k.e(f"v_cvt_pk_bf16_f32 v{d+j}, v{d+2*j}, v{d+2*j+1}")
                if vmode:
                    for u in range(2):
                        k.e(f"buffer_store_dwordx4 v[{d+4*u}:{d+4*u+3}], v{AST+f}, s[20:23], {so} offen offset:{640*u}")
                else:
                    for q in range(4):
                        k.e(f"buffer_store_dwordx2 v[{d+2*q}:{d+2*q+1}], v{AST+4*f+q}, s[20:23], {so} offen")
        k.e("s_endpgm")

    k.e("s_cmp_ge_u32 s25, 10", f"s_cbranch_scc1 {k.lab('vpath')}")
    for f in range(2):
        k.e(f"s_lshl_b32 s31, s25, 5", f"s_lshl_b32 s32, s{34+f}, 3", "s_add_u32 s31, s31, s32")
        for q in range(4):
            d = AST + 4 * f + q
            k.e(f"v_add_u32 v{T0}, s31, v{H}")
            if q: k.e(f"v_add_u32 v{T0}, {2*q}, v{T0}")
            k.e(f"v_mul_u32_u24 v{T1}, 205, v{T0}", f"v_lshrrev_b32 v{T1}, 10, v{T1}",
                f"v_mul_u32_u24 v{T2}, 5, v{T1}", f"v_sub_u32 v{T2}, v{T0}, v{T2}",
                f"v_mul_u32_u24 v{d}, 81920, v{T1}",
                f"v_lshrrev_b32 v{T3}, 1, v{T2}", f"v_lshl_add_u32 v{d}, v{T3}, 9, v{d}",
                f"v_and_b32 v{T3}, 1, v{T2}", f"v_lshl_add_u32 v{d}, v{T3}, 3, v{d}",
                f"v_lshrrev_b32 v{T3}, 2, v{T2}", f"v_sub_u32 v{T3}, 4, v{T3}",
                f"v_lshlrev_b32 v{T3}, v{T3}, v{TK}", f"v_add_u32 v{d}, v{d}, v{T3}")
    mainloop(False)
    k.label("vpath")
    for f in range(2):
        d = AST + f
        k.e("s_sub_u32 s31, s25, 10", "s_lshl_b32 s31, s31, 7", f"s_lshl_b32 s32, s{34+f}, 5", "s_add_u32 s31, s31, s32")
        k.e(f"v_add_u32 v{T0}, s31, v{TK}",
            f"v_mul_u32_u24 v{T1}, 3277, v{T0}", f"v_lshrrev_b32 v{T1}, 16, v{T1}",
            f"v_mul_u32_u24 v{T2}, 20, v{T1}", f"v_sub_u32 v{T2}, v{T0}, v{T2}",
            f"v_mul_u32_u24 v{d}, 81920, v{T1}", f"v_lshl_add_u32 v{d}, v{T2}, 4, v{d}",
            f"v_mul_u32_u24 v{T3}, 320, v{H}", f"v_add_u32 v{d}, v{d}, v{T3}",
            f"v_add_u32 v{d}, {WS_V}, v{d}")
    mainloop(True)
    k.label("end")
    k.e("s_endpgm")
    return k

def k2():
    LDS_PP = 40960
    LDS_CS = LDS_PP + 8 * 8192
    k = Kern("k2_attn_kernel", 256, 512, LDS_CS + 2048, nvgpr=224)
    L, T0, T1, T2, T3, H, TK = 1, 2, 3, 4, 5, 6, 7
    AK, AKE, AV, L16 = 8, 9, 10, 11
    PF = 12
    QM, QE = 16, 20
    KB = 24
    VB = 48
    MX, MC = 60, 61
    PPA = 62
    O = 64
    SB = 80
    k.e("s_cmp_ge_u32 s2, 256", f"s_cbranch_scc1 {k.lab('end')}")
    k.e("s_load_dwordx2 s[8:9], s[0:1], 72", "s_load_dwordx2 s[4:5], s[0:1], 16",
        "s_load_dwordx4 s[40:43], s[0:1], 32", "s_load_dwordx2 s[44:45], s[0:1], 48")
    code_prefetch(k, 16384, 512, T0, PF, 10)
    k.e(f"v_lshrrev_b32 v{T0}, 6, v0", f"v_and_b32 v{L}, 63, v0", f"v_readfirstlane_b32 s24, v{T0}")
    k.e("s_and_b32 s31, s2, 7", "s_lshr_b32 s32, s2, 3",
        "s_lshr_b32 s33, s32, 3", "s_lshl_b32 s25, s31, 2", "s_add_u32 s25, s25, s33",
        "s_and_b32 s26, s32, 7")
    k.e(f"v_lshlrev_b32 v{L16}, 4, v{L}", f"v_lshrrev_b32 v{H}, 5, v{L}", f"v_and_b32 v{TK}, 31, v{L}")
    k.e("s_lshl_b32 s27, s25, 6", "s_lshl_b32 s28, s26, 3", "s_add_u32 s27, s27, s28", "s_mul_i32 s27, s27, 1280",
        "s_cmp_eq_u32 s26, 0", "s_cselect_b32 s28, 10240, 0")
    k.e("s_waitcnt lgkmcnt(0)")
    srd(k, 20, 8, WS_END)
    for i in range(5):
        k.e(f"s_add_u32 s33, s24, {8*i}",
            "s_cmp_ge_u32 s33, 20", f"s_cselect_b32 s34, {WS_V - 20480 - WS_K}, 0", "s_cselect_b32 s35, 20, 0",
            "s_sub_u32 s35, s33, s35",
            "s_cmp_lt_u32 s35, 10", "s_cselect_b32 s35, s28, 0",
            "s_lshl_b32 s33, s33, 10", "s_mov_b32 m0, s33",
            "s_add_u32 s34, s34, s33", "s_add_u32 s34, s34, s35", "s_add_u32 s34, s34, s27", f"s_add_u32 s34, s34, {WS_K - 10240}",
            f"buffer_load_dwordx4 v{L16}, s[20:23], s34 offen lds")
    k.e("s_mul_i32 s33, s24, 1280", "s_add_u32 s34, s27, s33",
        f"buffer_load_dwordx4 v[{QM}:{QM+3}], v{L16}, s[20:23], s34 offen",
        f"v_lshlrev_b32 v{T0}, 3, v{TK}",
        f"buffer_load_dwordx2 v[{QE}:{QE+1}], v{T0}, s[20:23], s34 offen offset:1024")
    k.e(f"v_add_u32 v{AK}, s33, v{L16}", f"v_add_u32 v{AKE}, s33, v{T0}",
        f"v_mul_u32_u24 v{T1}, 320, v{H}", f"v_lshl_add_u32 v{T1}, v{TK}, 4, v{T1}", f"v_add_u32 v{AV}, s33, v{T1}")
    k.e("s_mov_b32 s46, 0", "s_lshl_b32 s47, s24, 13", f"s_add_u32 s47, s47, {LDS_PP}")
    k.e("s_cmp_ge_u32 s32, 12", f"s_cbranch_scc1 {k.lab('pp_rows')}")
    k.e("s_mov_b32 s46, 1", "s_mul_i32 s48, s31, 12", "s_add_u32 s48, s48, s32",
        "s_cmp_ge_u32 s48, 48", "s_cselect_b32 s12, s42, s40", "s_cselect_b32 s13, s43, s41",
        "s_cselect_b32 s49, 48, 0", "s_cselect_b32 s50, 3, 0", "s_sub_u32 s48, s48, s49",
        f"s_mov_b32 s14, {640*3072}", "s_mov_b32 s15, 0x20000")
    k.e(f"v_lshrrev_b32 v{T1}, 2, v{L}", f"v_mul_u32_u24 v{T1}, 3072, v{T1}", f"v_and_b32 v{T2}, 3, v{L}",
        f"v_lshl_add_u32 v{PPA}, v{T2}, 4, v{T1}",
        f"s_mul_i32 s49, s24, {80*3072}", "s_lshl_b32 s51, s48, 6", "s_add_u32 s49, s49, s51")
    for i in range(5):
        k.e(f"s_add_u32 m0, s47, {1024*i}",
            f"buffer_load_dwordx4 v{PPA}, s[12:15], s49 offen lds")
        if i < 4: k.e(f"s_add_u32 s49, s49, {16*3072}")
    k.e("s_mul_i32 s51, s48, 43", "s_lshr_b32 s51, s51, 7",
        "s_mul_i32 s52, s51, 3", "s_sub_u32 s52, s48, s52", "s_add_u32 s52, s52, s50",
        "s_mul_i32 s53, s51, 6", "s_add_u32 s53, s53, s52", "s_lshl_b32 s53, s53, 8", f"s_add_u32 s53, s53, {WS_CS}",
        "s_mul_i32 s51, s51, 40", "s_mul_i32 s54, s24, 5", "s_add_u32 s51, s51, s54", "s_mul_i32 s51, s51, 6144",
        "s_lshl_b32 s52, s52, 10", "s_add_u32 s51, s51, s52", f"s_add_u32 s51, s51, {WS_W13}")
    for i in range(3): k.e(f"buffer_load_dword v{PF}, v{L16}, s[20:23], 0 offen ; dummy")
    k.e(f"s_branch {k.lab('pp_done')}")
    k.label("pp_rows")
    k.e("s_cmp_ge_u32 s32, 18", f"s_cbranch_scc1 {k.lab('pp_wo')}")
    k.e("s_mul_i32 s48, s31, 6", "s_add_u32 s48, s48, s32", "s_sub_u32 s48, s48, 12",
        "s_mov_b32 s12, s44", "s_mov_b32 s13, s45", f"s_mov_b32 s14, {1536*1280}",
        "s_lshl_b32 s49, s48, 5", "s_mov_b32 s54, 16", "s_mov_b32 s55, 4", "s_mov_b32 s56, 8",
        "s_mul_i32 s51, s24, 48", "s_add_u32 s51, s51, s48", "s_mul_i32 s51, s51, 5120", f"s_add_u32 s51, s51, {WS_W2}",
        f"s_branch {k.lab('pp_rows_go')}")
    k.label("pp_wo")
    k.e("s_mul_i32 s48, s31, 3", "s_add_u32 s48, s48, s32", "s_sub_u32 s48, s48, 18",
        "s_mov_b32 s12, s4", "s_mov_b32 s13, s5", f"s_mov_b32 s14, {640*1280}",
        "s_mul_i32 s49, s48, 40", "s_mov_b32 s54, 20", "s_mov_b32 s55, 4", "s_mov_b32 s56, 8",
        "s_mul_i32 s51, s24, 20", "s_add_u32 s51, s51, s48", "s_mul_i32 s51, s51, 5120", f"s_add_u32 s51, s51, {WS_WO}",
        "s_cmp_ge_u32 s32, 21", f"s_cbranch_scc1 {k.lab('pp_none')}",
        "s_cmp_ge_u32 s48, 20", f"s_cbranch_scc1 {k.lab('pp_none')}",
        "s_cmp_lt_u32 s48, 16", f"s_cbranch_scc1 {k.lab('pp_rows_go')}",
        "s_sub_u32 s49, s48, 16", "s_mul_i32 s49, s49, 160", "s_add_u32 s49, s49, 16",
        "s_mov_b32 s54, 80", "s_mov_b32 s55, 40", "s_mov_b32 s56, 20")
    k.label("pp_rows_go")
    k.e("s_mov_b32 s46, 2", "s_mov_b32 s15, 0x20000")
    k.e(f"v_lshrrev_b32 v{T1}, 4, v{L}", f"v_mul_u32_u24 v{T1}, 1280, v{T1}", f"v_and_b32 v{T2}, 15, v{L}",
        f"v_lshl_add_u32 v{PPA}, v{T2}, 4, v{T1}", "s_mul_i32 s57, s24, 160", f"v_add_u32 v{PPA}, s57, v{PPA}")
    k.e("s_mov_b32 s58, 0x03ff03ff", "s_mov_b32 s59, 0x03ff03ff", "s_mov_b64 exec, s[58:59]")
    for i in range(8):
        k.e("s_mov_b32 s57, s49")
        if i >> 2: k.e("s_add_u32 s57, s57, s54")
        if (i >> 1) & 1: k.e("s_add_u32 s57, s57, s55")
        if i & 1: k.e("s_add_u32 s57, s57, s56")
        k.e("s_mul_i32 s57, s57, 1280", f"s_add_u32 m0, s47, {1024*i}",
            f"buffer_load_dwordx4 v{PPA}, s[12:15], s57 offen lds")
    k.e("s_mov_b64 exec, -1", f"s_branch {k.lab('pp_done')}")
    k.label("pp_none")
    for i in range(8): k.e(f"buffer_load_dword v{PF}, v{L16}, s[20:23], 0 offen ; dummy")
    k.label("pp_done")
    k.e("s_lshl_b32 s33, s26, 3", "s_add_u32 s33, s33, s24", f"s_mov_b32 s34, {NEGBIG}")
    k.e(f"v_lshlrev_b32 v{T1}, 2, v{H}", f"v_sub_u32 v{T1}, v{TK}, v{T1}",
        f"v_mov_b32 v{T2}, s34",
        "s_cmp_ge_u32 s33, 8", "s_cselect_b32 s35, 0, s34", f"v_mov_b32 v{T3}, s35")
    for r in range(16):
        kk = (r & 3) + 8 * (r >> 2)
        k.e(f"v_cmp_le_i32 vcc, {kk}, v{T1}",
            f"v_cndmask_b32 v{SB+128+r}, v{T2}, 0, vcc" if False else f"v_cndmask_b32_e64 v{SB+128+r}, v{T2}, 0, vcc",
            f"v_cndmask_b32 v{SB+r}, v{T3}, v{T2}, vcc")
    for i in range(1, 8):
        k.e(f"s_cmp_ge_u32 s33, {8-i}", "s_cselect_b32 s35, 0, s34")
        for r in range(16): k.e(f"v_mov_b32 v{SB+16*i+r}, s35")
    for b in range(3):
        k.e(f"v_mov_b32 v{KB+8*b+6}, 0", f"v_mov_b32 v{KB+8*b+7}, 0")
        for r in range(4): k.e(f"v_mov_b32 v{VB+4*b+r}, {ONES}")
    k.e(f"v_mov_b32 v{QE+2}, 0", f"v_mov_b32 v{QE+3}, 0")
    k.e("s_mov_b32 s36, 0x000fffff", "s_mov_b32 s37, 0x000fffff")
    k.e("s_waitcnt vmcnt(8)", "s_barrier")
    k.e(f"v_cmp_gt_u32 vcc, 32, v{L}", f"v_cndmask_b32 v{QE}, 0, v{QE}, vcc", f"v_cndmask_b32 v{QE+1}, 0, v{QE+1}, vcc")
    def kread(i):
        b = KB + 8 * (i % 3)
        return [f"ds_read_b128 v[{b}:{b+3}], v{AK} offset:{1280*i}", f"ds_read_b64 v[{b+4}:{b+5}], v{AKE} offset:{1280*i+1024}"]
    def vread(n):
        b = VB + 4 * (n % 3)
        return ["s_mov_b64 exec, s[36:37]", f"ds_read_b128 v[{b}:{b+3}], v{AV} offset:{20480+640*n}", "s_mov_b64 exec, -1"]
    def maxops(i):
        sb = SB + 16 * i
        o = []
        if i == 0:
            o.append(f"v_max_f32 v{MX}, v{sb}, v{sb+1}")
            o.append(f"v_max_f32 v{MC}, v{sb+2}, v{sb+3}")
            rs = list(range(4, 16))
        else:
            rs = list(range(16))
        for j in range(0, len(rs), 2):
            d = MX if (j // 2) % 2 == 0 else MC
            o.append(f"v_max3_f32 v{d}, v{sb+rs[j]}, v{sb+rs[j+1]}, v{d}")
        return o
    k.e(*kread(0)); k.e(*kread(1))
    for i in range(9):
        b = KB + 8 * (i % 3); sb = SB + 16 * i
        k.e(f"s_waitcnt lgkmcnt({2 if i < 8 else 0})")
        mf = [f"v_mfma_f32_32x32x16_bf16 {v(sb,16)}, {v(b,4)}, {v(QM,4)}, {v(sb,16)}",
              f"v_mfma_f32_32x32x16_bf16 {v(sb,16)}, {v(b+4,4)}, {v(QE,4)}, {v(sb,16)}"]
        fill = []
        if i + 2 < 9: fill += kread(i + 2)
        if i >= 2: fill += maxops(i - 2)
        k.e(*interleave(mf, fill))
    k.e(*vread(0)); k.e(*vread(1))
    k.e(*maxops(7)); k.e(*maxops(8))
    k.e(f"v_max_f32 v{MX}, v{MX}, v{MC}", f"v_mov_b32 v{MC}, v{MX}", f"v_permlane32_swap_b32 v{MC}, v{MX}",
        f"v_max_f32 v{MX}, v{MX}, v{MC}")
    CSC = (20 ** -0.5) * 1.4426950408889634
    k.e(f"s_mov_b32 s38, {f32(CSC)}", f"v_mul_f32 v{MC}, s38, v{MX}")
    def soft(i, u):
        sb = SB + 16 * i + 8 * u
        o = []
        for r in range(8): o.append(f"v_fma_f32 v{sb+r}, v{sb+r}, s38, -v{MC}")
        for r in range(8): o.append(f"v_exp_f32 v{sb+r}, v{sb+r}")
        for j in range(4): o.append(f"v_cvt_pk_bf16_f32 v{sb+j}, v{sb+2*j}, v{sb+2*j+1}")
        return o
    k.e(*soft(0, 0))
    for n in range(18):
        i, u = divmod(n, 2)
        sb = SB + 16 * i + 8 * u
        b = VB + 4 * (n % 3)
        nxt = soft(*divmod(n + 1, 2)) if n + 1 < 18 else []
        k.e(*nxt[:4])
        k.e(f"s_waitcnt lgkmcnt({1 if n < 17 else 0})")
        k.e(f"v_mfma_f32_32x32x16_bf16 {v(O,16)}, {v(b,4)}, {v(sb,4)}, {'0' if n == 0 else v(O,16)}")
        if n + 2 < 18: k.e(*vread(n + 2))
        k.e(*nxt[4:])
    k.e(f"v_lshrrev_b32 v{T0}, 4, v{TK}", f"v_mul_u32_u24 v{T0}, 20480, v{T0}", f"v_and_b32 v{T1}, 15, v{L}",
        f"v_lshl_add_u32 v{T0}, v{T1}, 4, v{T0}",
        f"v_lshl_add_u32 v{T1}, v{H}, 8, v{T0}")
    k.e("s_mul_i32 s34, s33, 40960", f"s_add_u32 s34, s34, {WS_O}",
        "s_lshl_b32 s35, s25, 9", "s_add_u32 s35, s35, s34",
        "s_lshr_b32 s38, s25, 1", "s_lshl_b32 s38, s38, 8", "s_and_b32 s39, s25, 1", "s_lshl_b32 s39, s39, 3",
        "s_add_u32 s38, s38, s39", "s_add_u32 s38, s38, s34", f"s_add_u32 s38, s38, {16*1024}")
    k.e(f"v_rcp_f32 v{T2}, v{O+12}")
    for r in range(12): k.e(f"v_mul_f32 v{O+r}, v{O+r}, v{T2}")
    for j in range(6): k.e(f"v_cvt_pk_bf16_f32 v{O+j}, v{O+2*j}, v{O+2*j+1}")
    k.e(f"buffer_store_dwordx4 v[{O}:{O+3}], v{T1}, s[20:23], s35 offen")
    k.e("s_mov_b32 exec_hi, 0", f"buffer_store_dwordx2 v[{O+4}:{O+5}], v{T0}, s[20:23], s38 offen", "s_mov_b64 exec, -1")
    k.e("s_cmp_eq_u32 s46, 0", f"s_cbranch_scc1 {k.lab('end')}")
    k.e("s_waitcnt vmcnt(2)")
    k.e(f"v_bfe_u32 v{T0}, v{L}, 2, 2", f"v_and_b32 v{T1}, 3, v{L}")
    k.e("s_cmp_eq_u32 s46, 2", f"s_cbranch_scc1 {k.lab('pp2_rows')}")
    k.e(f"v_lshl_add_u32 v{T2}, v{H}, 3, v{T0}", f"v_lshlrev_b32 v{T2}, 6, v{T2}", f"v_lshl_add_u32 v{T2}, v{T1}, 3, v{T2}",
        f"v_bfe_u32 v{T3}, v{L}, 4, 1", f"v_lshl_add_u32 v{T2}, v{T3}, 5, v{T2}", f"v_add_u32 v{T2}, s47, v{T2}")
    for i in range(5):
        for u in range(2):
            k.e(f"ds_read_b64_tr_b16 v[{SB+4*i+2*u}:{SB+4*i+2*u+1}], v{T2} offset:{1024*i+256*u}")
    k.e(f"v_mov_b32 v{MX}, 0", f"s_mov_b32 s30, {ONES}", "s_waitcnt lgkmcnt(0)")
    for i in range(5):
        k.e(f"buffer_store_dwordx4 v[{SB+4*i}:{SB+4*i+3}], v{L16}, s[20:23], s51 offen")
        if i < 4: k.e("s_add_u32 s51, s51, 6144")
    for i in range(20): k.e(f"v_dot2c_f32_bf16 v{MX}, s30, v{SB+i}")
    k.e(f"v_lshlrev_b32 v{T0}, 2, v0", f"ds_write_b32 v{T0}, v{MX} offset:{0}" if False else f"v_add_u32 v{T0}, {LDS_CS}, v{T0}",
        f"ds_write_b32 v{T0}, v{MX}", "s_waitcnt lgkmcnt(0)", "s_barrier")
    k.e("s_cmp_lg_u32 s24, 0", f"s_cbranch_scc1 {k.lab('end')}")
    for i in range(8): k.e(f"ds_read_b32 v{SB+32+i}, v{T0} offset:{256*i}")
    k.e("s_waitcnt lgkmcnt(0)")
    for i in range(1, 8): k.e(f"v_add_f32 v{SB+32}, v{SB+32}, v{SB+32+i}")
    half_sum(k, SB + 32, T1)
    split3(k, SB + 32, SB + 40, SB + 41, T1, T2)
    k.e(f"v_lshlrev_b32 v{T0}, 3, v{TK}", "s_mov_b32 exec_hi, 0",
        f"buffer_store_dwordx2 v[{SB+40}:{SB+41}], v{T0}, s[20:23], s53 offen", "s_endpgm")
    k.label("pp2_rows")
    k.e(f"v_lshrrev_b32 v{T2}, 4, v{L}", f"v_lshl_add_u32 v{T2}, v{T2}, 3, v{T0}", f"v_lshlrev_b32 v{T2}, 8, v{T2}",
        f"v_lshl_add_u32 v{T2}, v{T1}, 3, v{T2}", f"v_add_u32 v{T2}, s47, v{T2}")
    for f in range(5):
        for u in range(2):
            k.e(f"ds_read_b64_tr_b16 v[{SB+4*f+2*u}:{SB+4*f+2*u+1}], v{T2} offset:{1024*u+32*f}")
    k.e("s_waitcnt lgkmcnt(0)")
    for f in range(5):
        k.e(f"buffer_store_dwordx4 v[{SB+4*f}:{SB+4*f+3}], v{L16}, s[20:23], s51 offen")
        if f < 4: k.e("s_add_u32 s51, s51, 1024")
    k.label("end")
    k.e("s_endpgm")
    return k

def k35(which):
    is3 = which == 3
    NKS = 20 if is3 else 48
    PER = NKS // 4
    DEPTH = 5 if is3 else 6
    name = "k3_oproj_kernel" if is3 else "k5_down_kernel"
    k = Kern(name, 256, 256, 61440, nvgpr=128, nagpr=36 * DEPTH)
    L, T0, T1, T2, T3, L16, L16B = 1, 2, 3, 4, 5, 6, 7
    PF = 8
    RES = 12
    AO = 22
    ACC = 32
    WS_ACT = WS_O if is3 else WS_A
    WS_W = WS_WO if is3 else WS_W2
    k.e("s_cmp_ge_u32 s2, 256", f"s_cbranch_scc1 {k.lab('end')}")
    k.e("s_load_dwordx2 s[8:9], s[0:1], 72", f"s_load_dwordx2 s[4:5], s[0:1], {0 if is3 else 56}")
    code_prefetch(k, 8192, 256, T0, PF, 10)
    k.e(f"v_lshrrev_b32 v{T0}, 6, v0", f"v_and_b32 v{L}, 63, v0", f"v_readfirstlane_b32 s24, v{T0}")
    k.e("s_and_b32 s31, s2, 7", "s_lshr_b32 s32, s2, 3",
        "s_lshr_b32 s26, s31, 1", "s_lshl_b32 s26, s26, 3", "s_lshr_b32 s33, s32, 2", "s_add_u32 s26, s26, s33",
        "s_and_b32 s25, s31, 1", "s_lshl_b32 s25, s25, 2", "s_and_b32 s33, s32, 3", "s_add_u32 s25, s25, s33")
    k.e(f"v_lshlrev_b32 v{L16}, 4, v{L}", f"v_add_u32 v{L16B}, 4096, v{L16}")
    k.e(f"s_mul_i32 s34, s24, {PER}")
    for j in range(4):
        k.e(f"s_add_u32 s33, s24, {j}", "s_and_b32 s33, s33, 3", "s_lshl_b32 s35, s26, 2", "s_add_u32 s33, s33, s35",
            f"s_mul_i32 s33, s33, {NKS}", "s_add_u32 s33, s33, s34", "s_lshl_b32 s33, s33, 10", f"s_add_u32 s{40+j}, s33, {WS_ACT}")
    k.e(f"s_mul_i32 s33, s25, {NKS}", "s_add_u32 s33, s33, s34", "s_mul_i32 s33, s33, 5120", f"s_add_u32 s44, s33, {WS_W}")
    k.e("s_waitcnt lgkmcnt(0)")
    srd(k, 20, 8, WS_END); srd(k, 12, 4, X_BYTES)
    def loads(i):
        b = 36 * (i % DEPTH)
        o = []
        for f in range(5):
            o.append(f"buffer_load_dwordx4 {a(b+16+4*f,4)}, v{L16B if f == 4 else L16}, s[20:23], s44 offen offset:{1024*(f%4)}")
        for j in range(4):
            o.append(f"buffer_load_dwordx4 {a(b+4*j,4)}, v{L16}, s[20:23], s{40+j} offen offset:{1024*(i%4)}")
        o.append("s_add_u32 s44, s44, 5120")
        if i % 4 == 3:
            for j in range(4): o.append(f"s_add_u32 s{40+j}, s{40+j}, 4096")
        return o
    for i in range(DEPTH): k.e(*loads(i))
    TOK, G = 23, 24
    k.e(f"v_and_b32 v{TOK}, 15, v{L}", f"v_lshrrev_b32 v{G}, 4, v{L}")
    NAT, HFA = (T0, AO) if is3 else (AO, T0)
    k.e("s_lshl_b32 s33, s26, 6", "s_lshl_b32 s34, s24, 4", "s_add_u32 s33, s33, s34", "s_mov_b32 s45, s33",
        f"v_add_u32 v{NAT}, s33, v{TOK}", f"v_mul_u32_u24 v{NAT}, 1280, v{NAT}", f"v_lshl_add_u32 v{NAT}, v{G}, 3, v{NAT}",
        "s_mul_i32 s33, s25, 160", f"v_add_u32 v{NAT}, s33, v{NAT}")
    k.e("s_lshl_b32 s33, s26, 1", "s_lshr_b32 s34, s24, 1", "s_add_u32 s33, s33, s34", "s_mul_i32 s33, s33, 40960",
        "s_mul_i32 s34, s25, 5120", "s_add_u32 s33, s33, s34", "s_and_b32 s34, s24, 1", "s_lshl_b32 s34, s34, 8",
        "s_add_u32 s33, s33, s34", f"s_add_u32 s33, s33, {WS_H}",
        f"v_lshrrev_b32 v{T1}, 1, v{G}", f"v_lshlrev_b32 v{T1}, 9, v{T1}", f"v_lshl_add_u32 v{T1}, v{TOK}, 4, v{T1}",
        f"v_and_b32 v{T2}, 1, v{G}", f"v_lshl_add_u32 v{T1}, v{T2}, 3, v{T1}", f"v_add_u32 v{HFA}, s33, v{T1}",
        "s_movk_i32 s46, 4096")
    for f in range(5):
        if is3: k.e(f"buffer_load_dwordx2 v[{RES+2*f}:{RES+2*f+1}], v{NAT}, s[12:15], 0 offen offset:{32*f}")
        else: k.e(f"buffer_load_dwordx2 v[{RES+2*f}:{RES+2*f+1}], v{HFA}, s[20:23], {'s46' if f == 4 else '0'} offen offset:{1024*(f%4)}")
    for i in range(PER):
        b = 36 * (i % DEPTH)
        issued = min(PER, i + DEPTH)
        later = 9 * (min(DEPTH, issued) - 1 - i) + 5 + 9 * max(0, issued - DEPTH) if i < DEPTH else 9 * (issued - 1 - i)
        k.e(f"s_waitcnt vmcnt({later})")
        mf = []
        for j in range(4):
            for f in range(5):
                d = ACC + 20 * j + 4 * f
                mf.append(f"v_mfma_f32_16x16x32_bf16 {v(d,4)}, {a(b+16+4*f,4)}, {a(b+4*j,4)}, {'0' if i == 0 else v(d,4)}")
        k.e(*mf)
        if i + DEPTH < PER: k.e(*loads(i + DEPTH))
    for j in range(1, 4):
        k.e(f"s_add_u32 s33, s24, {j}", "s_and_b32 s33, s33, 3", "s_mul_i32 s33, s33, 15360", f"v_add_u32 v{T1}, s33, v{L16}")
        for f in range(5):
            d = ACC + 20 * j + 4 * f
            k.e(f"ds_write_b128 v{T1}, {v(d,4)} offset:{(j-1)*5120+f*1024}")
    k.e("s_mul_i32 s33, s24, 15360", f"v_add_u32 v{T1}, s33, v{L16}")
    k.e("s_waitcnt lgkmcnt(0)", "s_barrier")
    for j in range(1, 4):
        for f in range(5):
            d = ACC + 20 * j + 4 * f
            k.e(f"ds_read_b128 {v(d,4)}, v{T1} offset:{(j-1)*5120+f*1024}")
    k.e("s_waitcnt vmcnt(0) lgkmcnt(0)")
    for r in range(20):
        k.e(f"v_add_f32 v{ACC+r}, v{ACC+r}, v{ACC+20+r}", f"v_add_f32 v{ACC+40+r}, v{ACC+40+r}, v{ACC+60+r}")
    for r in range(20): k.e(f"v_add_f32 v{ACC+r}, v{ACC+r}, v{ACC+40+r}")
    Y = ACC + 20
    for j in range(10):
        k.e(f"v_cvt_pk_bf16_f32 v{Y+j}, v{ACC+2*j}, v{ACC+2*j+1}")
    for j in range(10):
        k.e(f"v_lshlrev_b32 v{ACC+2*j}, 16, v{Y+j}", f"v_and_b32 v{ACC+2*j+1}, 0xffff0000, v{Y+j}",
            f"v_lshlrev_b32 v{T2}, 16, v{RES+j}", f"v_and_b32 v{T3}, 0xffff0000, v{RES+j}",
            f"v_add_f32 v{ACC+2*j}, v{ACC+2*j}, v{T2}", f"v_add_f32 v{ACC+2*j+1}, v{ACC+2*j+1}, v{T3}",
            f"v_cvt_pk_bf16_f32 v{Y+j}, v{ACC+2*j}, v{ACC+2*j+1}")
    for f in range(5):
        if is3: k.e(f"buffer_store_dwordx2 v[{Y+2*f}:{Y+2*f+1}], v{AO}, s[20:23], {'s46' if f == 4 else '0'} offen offset:{1024*(f%4)}")
        else: k.e(f"buffer_store_dwordx2 v[{Y+2*f}:{Y+2*f+1}], v{AO}, s[12:15], 0 offen offset:{32*f}")
    if is3:
        S1, S2 = ACC + 40, ACC + 41
        k.e(f"v_mov_b32 v{S1}, 0", f"v_mov_b32 v{S2}, 0", f"s_mov_b32 s30, {ONES}")
        for j in range(10):
            k.e(f"v_dot2c_f32_bf16 v{S1}, s30, v{Y+j}", f"v_dot2c_f32_bf16 v{S2}, v{Y+j}, v{Y+j}")
        for x in (S1, S2):
            k.e(f"v_mov_b32 v{T2}, v{x}", f"v_permlane16_swap_b32 v{T2}, v{x}", f"v_add_f32 v{x}, v{T2}, v{x}")
            half_sum(k, x, T2)
        k.e(f"v_add_u32 v{T1}, s45, v{TOK}", f"v_lshlrev_b32 v{T1}, 6, v{T1}", "s_lshl_b32 s33, s25, 3", f"s_add_u32 s33, s33, {WS_ST}",
            "s_mov_b32 exec_hi, 0", "s_mov_b32 exec_lo, 0xffff", f"buffer_store_dwordx2 v[{S1}:{S2}], v{T1}, s[20:23], s33 offen")
    k.label("end")
    k.e("s_endpgm")
    return k

def k4():
    NST = 6
    k = Kern("k4_up_kernel", 256, 256, NST * 24576, nvgpr=232, nagpr=72)
    L, T0, T1, T2, T3, L16, H, TK = 1, 2, 3, 4, 5, 6, 7, 8
    PF = 12
    AL = 9
    STT = 16
    CSF = 24
    XO = 40
    ACC = 44
    RING = 140
    k.nvgpr = 236
    k.e("s_cmp_ge_u32 s2, 256", f"s_cbranch_scc1 {k.lab('end')}")
    k.e("s_load_dwordx2 s[8:9], s[0:1], 72")
    code_prefetch(k, 16384, 256, T0, PF, 10)
    k.e(f"v_lshrrev_b32 v{T0}, 6, v0", f"v_and_b32 v{L}, 63, v0", f"v_readfirstlane_b32 s24, v{T0}")
    k.e("s_and_b32 s31, s2, 7", "s_lshr_b32 s32, s2, 3",
        "s_lshr_b32 s26, s31, 2", "s_lshl_b32 s26, s26, 3", "s_lshr_b32 s33, s32, 2", "s_add_u32 s26, s26, s33",
        "s_and_b32 s25, s31, 3", "s_lshl_b32 s25, s25, 2", "s_and_b32 s33, s32, 3", "s_add_u32 s25, s25, s33")
    k.e(f"v_lshlrev_b32 v{L16}, 4, v{L}", f"v_lshrrev_b32 v{H}, 5, v{L}", f"v_and_b32 v{TK}, 31, v{L}")
    k.e("s_lshl_b32 s33, s26, 2", "s_add_u32 s27, s33, s24", "s_mul_i32 s40, s27, 40960", f"s_add_u32 s40, s40, {WS_H}",
        "s_mul_i32 s29, s24, 6144", "s_mul_i32 s41, s25, 245760", "s_add_u32 s41, s41, s29", f"s_add_u32 s41, s41, {WS_W13}",
        "s_add_u32 s42, s41, 4096")
    k.e("s_waitcnt lgkmcnt(0)")
    srd(k, 20, 8, WS_END)
    k.e("s_lshl_b32 s33, s27, 11", f"s_add_u32 s33, s33, {WS_ST}",
        f"v_lshlrev_b32 v{T0}, 6, v{TK}", f"v_lshl_add_u32 v{T0}, v{H}, 5, v{T0}",
        f"buffer_load_dwordx4 v[{STT}:{STT+3}], v{T0}, s[20:23], s33 offen",
        f"buffer_load_dwordx4 v[{STT+4}:{STT+7}], v{T0}, s[20:23], s33 offen offset:16",
        "s_mul_i32 s33, s25, 1536", f"s_add_u32 s33, s33, {WS_CS}", f"v_lshlrev_b32 v{T0}, 3, v{TK}")
    for t in range(6):
        k.e(f"buffer_load_dwordx2 v[{CSF+2*t}:{CSF+2*t+1}], v{T0}, s[20:23], s33 offen offset:{256*t}")
    def dma(st):
        sl = st % NST
        o = [f"s_add_u32 m0, s29, {sl*24576}"]
        o += [f"buffer_load_dwordx4 v{L16}, s[20:23], s41 offen offset:{1024*i} lds" for i in range(4)]
        o += [f"s_add_u32 m0, s29, {sl*24576+4096}"]
        o += [f"buffer_load_dwordx4 v{L16}, s[20:23], s42 offen offset:{1024*i} lds" for i in range(2)]
        o += [f"buffer_load_dwordx4 {v(RING+16*sl+4*i,4)}, v{L16}, s[20:23], s40 offen offset:{1024*i}" for i in range(4)]
        o += ["s_add_u32 s41, s41, 24576", "s_add_u32 s42, s42, 24576", "s_add_u32 s40, s40, 4096"]
        return o
    for st in range(5): k.e(*dma(st))
    k.e(f"v_mov_b32 v{AL}, v{L16}", f"v_add_u32 v{AL+1}, 49152, v{L16}", f"v_add_u32 v{AL+2}, 98304, v{L16}")
    k.e(f"v_mov_b32 v{CSF+12}, 0", f"v_mov_b32 v{CSF+13}, 0")
    M, R, SD = STT + 4, STT + 5, STT + 6
    k.e("s_waitcnt vmcnt(56)")
    k.e(f"v_add_f32 v{STT}, v{STT}, v{STT+2}", f"v_add_f32 v{STT+1}, v{STT+1}, v{STT+3}",
        f"v_add_f32 v{STT+4}, v{STT+4}, v{STT+6}", f"v_add_f32 v{STT+5}, v{STT+5}, v{STT+7}",
        f"v_add_f32 v{STT}, v{STT}, v{STT+4}", f"v_add_f32 v{STT+1}, v{STT+1}, v{STT+5}")
    half_sum(k, STT, T0); half_sum(k, STT + 1, T1)
    ln_stats(k, STT, STT + 1, T0, T1, M, R, SD)
    k.e(f"v_cmp_gt_u32 vcc, 32, v{L}",
        f"v_cvt_pk_bf16_f32 v{XO}, -v{M}, -v{M}", f"v_cndmask_b32 v{XO}, 0, v{XO}, vcc",
        f"v_and_b32 v{XO+1}, 0xffff, v{XO}", f"v_mov_b32 v{XO+2}, 0", f"v_mov_b32 v{XO+3}, 0")
    RN, IR2 = STT, STT + 1
    k.e(f"v_mul_f32 v{RN}, {f32(-1.4426950408889634)}, v{R}", f"v_mul_f32 v{IR2}, v{SD}, v{SD}")
    k.e("s_waitcnt vmcnt(50)")
    k.e(*dma(5))
    for t in range(6):
        k.e(f"v_mfma_f32_32x32x16_bf16 {v(ACC+16*t,16)}, {v(CSF+2*t,4)}, {v(XO,4)}, 0")
    def reads(g):
        st, ks = divmod(g, 4)
        sl = st % NST
        b = 24 * (g % 3)
        return [f"ds_read_b128 {a(b+4*t,4)}, v{AL+sl//2} offset:{(sl%2)*24576+ks*6144+t*1024}" for t in range(6)]
    k.e("s_waitcnt vmcnt(50)", "s_barrier")
    k.e(*reads(0)); k.e(*reads(1))
    for g in range(40):
        st, ks = divmod(g, 4)
        b = 24 * (g % 3)
        fill = []
        if ks == 2 and st + 1 <= 9:
            sn = st + 1
            allow = 10 * min(4, 9 - sn)
            k.e(f"s_waitcnt vmcnt({allow}) lgkmcnt(0)", "s_barrier")
            fill += reads(g + 2)
        else:
            k.e(f"s_waitcnt lgkmcnt({6 if g + 1 < 40 else 0})")
            if g + 2 < 40: fill += reads(g + 2)
        if ks == 0 and st >= 1 and st - 1 + NST <= 9:
            d = dma(st - 1 + NST)
            fill += [[d[0], d[1]], d[2], d[3], d[4], [d[5], d[6]], d[7], d[8], d[9], d[10], [d[11], d[12], d[13], d[14]]]
        mf = [f"v_mfma_f32_32x32x16_bf16 {v(ACC+16*t,16)}, {a(b+4*t,4)}, {v(RING+16*(st%NST)+4*ks,4)}, {v(ACC+16*t,16)}" for t in range(6)]
        k.e(*interleave(mf, fill))
    k.e(f"v_lshrrev_b32 v{T0}, 4, v{TK}", f"v_mul_u32_u24 v{T0}, 49152, v{T0}", f"v_and_b32 v{T1}, 15, v{L}",
        f"v_lshl_add_u32 v{T0}, v{T1}, 4, v{T0}", f"v_lshl_add_u32 v{T0}, v{H}, 8, v{T0}",
        "s_mul_i32 s33, s27, 98304", "s_mul_i32 s34, s25, 3072", "s_add_u32 s33, s33, s34", f"s_add_u32 s33, s33, {WS_A}")
    E = RING
    for t in range(3):
        G_, U_ = ACC + 16 * t, ACC + 16 * (t + 3)
        for r in range(16): k.e(f"v_mul_f32 v{E+r}, v{G_+r}, v{RN}")
        for r in range(16): k.e(f"v_exp_f32 v{E+r}, v{E+r}")
        for r in range(16): k.e(f"v_mul_f32 v{G_+r}, v{G_+r}, v{U_+r}")
        for r in range(16): k.e(f"v_fma_f32 v{E+r}, v{E+r}, v{IR2}, v{IR2}")
        for r in range(16): k.e(f"v_rcp_f32 v{E+r}, v{E+r}")
        for r in range(16): k.e(f"v_mul_f32 v{G_+r}, v{G_+r}, v{E+r}")
        for j in range(8): k.e(f"v_cvt_pk_bf16_f32 v{G_+j}, v{G_+2*j}, v{G_+2*j+1}")
        for u in range(2):
            k.e(f"buffer_store_dwordx4 {v(G_+4*u,4)}, v{T0}, s[20:23], s33 offen offset:{1024*t+512*u}")
    k.label("end")
    k.e("s_endpgm")
    return k

HEADER = open("cdna_kernels/" + NAME + ".s.ref").read().split("; Override launch geometry")[0].rstrip()

if __name__ == "__main__":
    out = sys.argv[1] if len(sys.argv) > 1 else "cdna_kernels/" + NAME + ".s"
    ks = [k1(), k2(), k35(3), k4(), k35(5)]
    n = write_file(out, ks, HEADER, verbose="-v" in sys.argv)
    print("errors:", n)
```

```python
import sys
from asmlib import *
from gen2 import *
import gen2 as G

LK, LV, LQ = 106496, 131072, 151552

def push_flags(k, base_sgpr, vaddr, mask_lo, wave=0):
    k.e(f"v_mov_b32 v{T3}, s{TAG}", f"s_cmp_eq_u32 s24, {wave}", f"s_cselect_b32 exec_lo, {mask_lo}, 0", "s_mov_b32 exec_hi, 0",
        f"buffer_store_dword v{T3}, v{vaddr}, s[20:23], s{base_sgpr} offen sc1", "s_mov_b64 exec, -1")

WV = 88
def wv_offsets(k, d=WV, sh=0, mul=0):
    for i in range(5):
        k.e(f"v_add_u32 v{T0}, {64*i}, v{L}", f"v_mul_u32_u24 v{T1}, 6554, v{T0}", f"v_lshrrev_b32 v{T1}, 16, v{T1}")
        if mul: k.e(f"v_lshrrev_b32 v{T2}, {sh}, v{T1}", f"v_mul_u32_u24 v{T2}, {1280*mul}, v{T2}")
        k.e(f"v_mul_u32_u24 v{T1}, {1280-160}, v{T1}", f"v_lshl_add_u32 v{d+i}, v{T0}, 4, v{T1}")
        if mul: k.e(f"v_add_u32 v{d+i}, v{d+i}, v{T2}")
        if i % 4: k.e(f"v_subrev_u32 v{d+i}, {1024*(i%4)}, v{d+i}")
def step_dma(d, lds_s, soff, lds_add=0):
    o = [[f"s_add_u32 m0, s{lds_s}, {lds_add}"]] + [[] for _ in range(4)]
    o[4].append(f"s_add_u32 m0, s{lds_s}, {lds_add+4096}")
    for i in range(5): o[i].append(f"buffer_load_dwordx4 v{d+i}, s[16:19], s{soff} offen offset:{1024*(i%4)} lds")
    return o

def phase_b(k):
    AK, AKE, AV = 16, 17, 18
    VV = 20
    QM, QE = 28, 32
    KB = 36
    VB = 60
    OA, MB = 72, 76
    MX, MC = 80, 81
    DUM = 84
    O = 96
    SB = 112
    k.e("s_and_b32 s52, s2, 7", "s_lshr_b32 s53, s2, 3", "s_lshr_b32 s54, s53, 3", "s_lshl_b32 s25, s52, 2", "s_add_u32 s25, s25, s54",
        "s_and_b32 s26, s53, 7")
    wv_offsets(k, WV, 4, 4)
    k.e("s_cmp_lt_u32 s24, 4", f"s_cbranch_scc1 {k.lab('b_init')}")
    k.e("s_sub_u32 s31, s24, 4")
    for i in range(5):
        k.e(f"v_add_u32 v{T0}, {64*i}, v{L}", f"v_mul_u32_u24 v{T1}, 3277, v{T0}", f"v_lshrrev_b32 v{T1}, 16, v{T1}",
            f"v_mul_u32_u24 v{T1}, {10240-320}, v{T1}", f"v_lshl_add_u32 v{VV+i}, v{T0}, 4, v{T1}")
        if i % 4: k.e(f"v_subrev_u32 v{VV+i}, {1024*(i%4)}, v{VV+i}")
    k.e("s_lshr_b32 s52, s25, 1", "s_mul_i32 s52, s52, 5", "s_and_b32 s53, s25, 1", "s_lshl_b32 s53, s53, 1", "s_add_u32 s53, s53, s52",
        "s_lshl_b32 s4, s53, 15", "s_add_u32 s5, s4, 32768", "s_add_u32 s52, s52, 4", "s_lshl_b32 s6, s52, 15",
        "s_lshl_b32 s54, s26, 1", "s_add_u32 s54, s54, s31",
        "s_cmp_lt_u32 s54, 2", "s_cselect_b32 s55, 0, 2", "s_sub_u32 s54, s54, s55",
        "s_lshl_b32 s7, s54, 11", f"s_add_u32 s7, s7, {80*32768}",
        "s_lshl_b32 s8, s26, 12", "s_lshl_b32 s55, s31, 10", "s_add_u32 s8, s8, s55",
        "s_mul_i32 s9, s54, 163840", "s_mul_i32 s55, s25, 320", "s_add_u32 s9, s9, s55", f"s_add_u32 s9, s9, {WS_V}",
        "s_lshl_b32 s10, s26, 13", "s_lshl_b32 s55, s25, 8", "s_add_u32 s10, s10, s55", f"s_add_u32 s10, s10, {WS_FB}",
        "s_cmp_eq_u32 s26, 0", "s_cselect_b32 s11, 0, 0x7fe07fe0", f"v_lshlrev_b32 v{T2}, 2, v{L}")
    k.e("s_cmp_lg_u32 s24, 4", f"s_cbranch_scc1 {k.lab('b_np')}")
    poll(k, T2, "s10", T0, "s11", "0x7fff7fff")
    k.label("b_np")
    k.e("s_barrier")
    stamp(k, 7)
    k.e("s_lshl_b32 s52, s31, 11", "s_lshl_b32 s53, s31, 10")
    for p in range(3):
        k.e(f"s_add_u32 m0, s53, {LQ+4096*p}", f"s_add_u32 s54, s{4+p}, s8", f"buffer_load_dwordx4 v{L16}, s[20:23], s54 offen sc1 lds",
            f"s_add_u32 m0, s52, {LK+8192*p}", f"s_add_u32 s54, s{4+p}, s7", f"buffer_load_dwordx4 v{L16}, s[20:23], s54 offen sc1 lds",
            f"buffer_load_dwordx4 v{L16}, s[20:23], s54 offen offset:1024 sc1 lds")
    k.e("s_mul_i32 s52, s31, 5120", f"s_add_u32 m0, s52, {LV}")
    for i in range(5):
        if i == 4: k.e(f"s_add_u32 m0, s52, {LV+4096}")
        k.e(f"buffer_load_dwordx4 v{VV+i}, s[20:23], s9 offen offset:{1024*(i%4)} sc1 lds")
    k.e("s_lshl_b32 s54, s2, 2", "s_add_u32 s54, s54, s31", "s_lshl_b32 s54, s54, 11")
    for m in (KW1, KW3):
        srd(k, 16, m, 640 * 3072)
        for i in range(2): k.e(f"buffer_load_dwordx4 v[{DUM}:{DUM+3}], v{L16}, s[16:19], s54 offen offset:{1024*i} ; dummy")
    k.label("b_init")
    k.e("s_lshl_b32 s52, s24, 9", f"s_add_u32 s53, s52, {LK}", f"v_lshl_add_u32 v{AKE}, v{TK}, 4, s53", f"v_lshl_add_u32 v{AK}, v{H}, 13, v{AKE}",
        "s_mul_i32 s53, s24, 1280", f"s_add_u32 s53, s53, {LV}", f"v_mul_u32_u24 v{T1}, 320, v{H}", f"v_lshl_add_u32 v{T1}, v{TK}, 4, v{T1}", f"v_add_u32 v{AV}, s53, v{T1}",
        f"s_add_u32 s53, s52, {LQ}", f"v_lshl_add_u32 v{MX}, v{TK}, 4, s53", f"v_lshl_add_u32 v{MC}, v{H}, 12, v{MX}")
    k.e("s_lshl_b32 s27, s26, 3", "s_add_u32 s27, s27, s24", f"s_mov_b32 s54, {NEGBIG}")
    k.e(f"v_lshlrev_b32 v{T1}, 2, v{H}", f"v_sub_u32 v{T1}, v{TK}, v{T1}", f"v_mov_b32 v{T2}, s54",
        "s_cmp_ge_u32 s27, 8", "s_cselect_b32 s55, 0, s54", f"v_mov_b32 v{T3}, s55")
    for r in range(16):
        kk = (r & 3) + 8 * (r >> 2)
        k.e(f"v_cmp_le_i32 vcc, {kk}, v{T1}", f"v_cndmask_b32_e64 v{SB+128+r}, v{T2}, 0, vcc", f"v_cndmask_b32 v{SB+r}, v{T3}, v{T2}, vcc")
    for i in range(1, 8):
        k.e(f"s_cmp_ge_u32 s27, {8-i}", "s_cselect_b32 s55, 0, s54", f"v_mov_b32 v{T3}, s55")
        for r in range(16): k.e(f"v_mov_b32 v{SB+16*i+r}, v{T3}")
    for r in range(12): k.e(f"v_mov_b32 v{VB+r}, {ONES}")
    k.e(f"v_mov_b32 v{OA}, {ONES}", f"v_mov_b32 v{OA+1}, 0x3f80", f"v_mov_b32 v{OA+2}, 0", f"v_mov_b32 v{OA+3}, 0",
        f"v_mov_b32 v{MB+2}, 0", f"v_mov_b32 v{MB+3}, 0")
    k.e("s_bitcmp1_b32 s25, 0", "s_cselect_b32 s28, 0, -1", "s_cselect_b32 s56, -1, 0", "s_mov_b32 s29, 0", "s_mov_b32 s57, 0",
        "s_mov_b32 s58, 0x000fffff", "s_mov_b32 s59, 0x000fffff")
    k.e("s_cmp_ge_u32 s24, 4", f"s_cbranch_scc1 {k.lab('b_nb')}", "s_barrier")
    k.label("b_nb")
    stamp(k, 8)
    k.e("s_waitcnt vmcnt(9)", "s_barrier")
    stamp(k, 9)
    def kread(i):
        b = KB + 8 * (i % 3)
        return [f"ds_read_b128 v[{b}:{b+3}], v{AK} offset:{512*i}", f"ds_read_b128 v[{b+4}:{b+7}], v{AKE} offset:{512*i+16384}"]
    def vread(n):
        b = VB + 4 * (n % 3)
        return ["s_mov_b64 exec, s[58:59]", f"ds_read_b128 v[{b}:{b+3}], v{AV} offset:{640*n}", "s_mov_b64 exec, -1"]
    def maxops(i):
        sb = SB + 16 * i
        o = []
        if i == 0:
            o.append(f"v_max_f32 v{MX}, v{sb}, v{sb+1}"); o.append(f"v_max_f32 v{MC}, v{sb+2}, v{sb+3}")
            rs = list(range(4, 16))
        else: rs = list(range(16))
        for j in range(0, len(rs), 2):
            d = MX if (j // 2) % 2 == 0 else MC
            o.append(f"v_max3_f32 v{d}, v{sb+rs[j]}, v{sb+rs[j+1]}, v{d}")
        return o
    k.e(f"ds_read_b128 v[{QM}:{QM+3}], v{MC}", f"ds_read_b128 v[{QE}:{QE+3}], v{MX} offset:8192")
    k.e(*kread(0)); k.e(*kread(1))
    k.e("s_waitcnt lgkmcnt(4)")
    k.e(f"v_cndmask_b32_e64 v{QE}, 0, v{QE}, s[28:29]", f"v_cndmask_b32_e64 v{QE+1}, 0, v{QE+1}, s[28:29]",
        f"v_cndmask_b32_e64 v{QE+2}, 0, v{QE+2}, s[56:57]", f"v_cndmask_b32_e64 v{QE+3}, 0, v{QE+3}, s[56:57]")
    for i in range(9):
        b = KB + 8 * (i % 3); sb = SB + 16 * i
        k.e(f"s_waitcnt lgkmcnt({2 if i < 8 else 0})")
        mf = [f"v_mfma_f32_32x32x16_bf16 {v(sb,16)}, {v(b,4)}, {v(QM,4)}, {v(sb,16)}",
              f"v_mfma_f32_32x32x16_bf16 {v(sb,16)}, {v(b+4,4)}, {v(QE,4)}, {v(sb,16)}"]
        fill = []
        if i + 2 < 9: fill += kread(i + 2)
        if i >= 2: fill += maxops(i - 2)
        k.e(*interleave(mf, fill))
    k.e(*maxops(7)); k.e(*maxops(8))
    k.e("s_waitcnt vmcnt(4)", "s_barrier")
    stamp(k, 10)
    k.e(*vread(0)); k.e(*vread(1))
    k.e(f"v_max_f32 v{MX}, v{MX}, v{MC}", f"v_mov_b32 v{MC}, v{MX}", f"v_permlane32_swap_b32 v{MC}, v{MX}", f"v_max_f32 v{MX}, v{MX}, v{MC}")
    split3(k, MX, MB, MB + 1, T0, T1, neg=True)
    k.e(f"v_cmp_gt_u32 vcc, 32, v{L}", f"v_cndmask_b32 v{MB}, 0, v{MB}, vcc", f"v_cndmask_b32 v{MB+1}, 0, v{MB+1}, vcc")
    def sub(i): return f"v_mfma_f32_32x32x16_bf16 {v(SB+16*i,16)}, {v(OA,4)}, {v(MB,4)}, {v(SB+16*i,16)}"
    def soft(i, u):
        sb = SB + 16 * i + 8 * u
        o = [f"v_exp_f32 v{sb+r}, v{sb+r}" for r in range(8)]
        o += [f"v_cvt_pk_bf16_f32 v{sb+j}, v{sb+2*j}, v{sb+2*j+1}" for j in range(4)]
        return o
    k.e(sub(0), sub(1))
    srd(k, 16, KWO, 640 * 1280)
    k.e("s_mul_i32 s6, s26, 160", "s_add_u32 s4, s24, s26", "s_and_b32 s4, s4, 7", "s_mul_i32 s4, s4, 51200", "s_add_u32 s4, s4, s6", f"s_add_u32 s7, s4, {8*51200}",
        "s_cmp_ge_u32 s24, 3", "s_cselect_b32 s5, 2, 0", "s_add_u32 s5, s5, s24", "s_mul_i32 s5, s5, 10240")
    wo = step_dma(WV, 5, 4) + step_dma(WV, 5, 7, 5120)
    k.e(*soft(0, 0))
    for n in range(18):
        i, u = divmod(n, 2)
        sb = SB + 16 * i + 8 * u
        b = VB + 4 * (n % 3)
        nxt = soft(*divmod(n + 1, 2)) if n + 1 < 18 else []
        k.e(*nxt[:3])
        k.e(f"s_waitcnt lgkmcnt({1 if n < 17 else 0})")
        k.e(f"v_mfma_f32_32x32x16_bf16 {v(O,16)}, {v(b,4)}, {v(sb,4)}, {'0' if n == 0 else v(O,16)}")
        if n + 2 < 18: k.e(*vread(n + 2))
        k.e(*nxt[3:7])
        if u == 0 and i + 2 < 9: k.e(sub(i + 2))
        if n < 10: k.e(*wo[n])
        k.e(*nxt[7:])
    k.e("s_cmp_ge_u32 s24, 4", f"s_cbranch_scc1 {k.lab('b_w')}")
    wv_offsets(k, WV, 2, 16)
    k.e("s_mul_i32 s4, s24, 204800", "s_add_u32 s4, s4, s6", "s_add_u32 s4, s4, 20480", "s_and_b32 s5, s24, 1", "s_lshl_b32 s5, s5, 1", "s_lshr_b32 s7, s24, 1",
        "s_add_u32 s5, s5, s7", "s_mul_i32 s5, s5, 5120")
    for x in step_dma(WV, 5, 4, 6 * 5120): k.e(*x)
    k.label("b_w")
    k.e(f"v_lshrrev_b32 v{T0}, 4, v{TK}", f"v_mul_u32_u24 v{T0}, 20480, v{T0}", f"v_and_b32 v{T1}, 15, v{L}",
        f"v_lshl_add_u32 v{T3}, v{T1}, 3, v{T0}", f"v_lshl_add_u32 v{T0}, v{T1}, 4, v{T0}", f"v_lshl_add_u32 v{T1}, v{H}, 8, v{T0}")
    k.e("s_mul_i32 s52, s27, 40960", f"s_add_u32 s52, s52, {WS_O}", "s_lshl_b32 s53, s25, 9", "s_add_u32 s53, s53, s52",
        "s_lshl_b32 s54, s25, 7", "s_add_u32 s54, s54, s52", "s_add_u32 s54, s54, 16384")
    k.e(f"v_rcp_f32 v{T2}, v{O+12}")
    for r in range(12): k.e(f"v_mul_f32 v{O+r}, v{O+r}, v{T2}")
    for j in range(6): k.e(f"v_cvt_pk_bf16_f32 v{O+j}, v{O+2*j}, v{O+2*j+1}")
    k.e(f"buffer_store_dwordx4 v[{O}:{O+3}], v{T1}, s[20:23], s53 offen sc1")
    k.e("s_mov_b32 exec_hi, 0", f"buffer_store_dwordx2 v[{O+4}:{O+5}], v{T3}, s[20:23], s54 offen sc1", "s_mov_b64 exec, -1")
    k.e("s_lshl_b32 s52, s26, 12", "s_lshl_b32 s53, s25, 2", "s_add_u32 s52, s52, s53", f"s_add_u32 s52, s52, {WS_FC}", f"v_lshlrev_b32 v{T0}, 7, v{L}")
    stamp(k, 11)
    k.e("s_waitcnt vmcnt(0)", "s_barrier")
    stamp(k, 12)
    push_flags(k, 52, T0, -1)

WR, ACT, ACC = 96, 56, 36
LA, NAT, XR = 16, 22, 24
G_, TOK = 30, 31
DW = 32
def ce_setup(k, khs, set2):
    k.e("s_and_b32 s52, s2, 7", "s_lshr_b32 s53, s2, 3", "s_lshr_b32 s54, s53, 3", "s_lshl_b32 s25, s52, 2", "s_add_u32 s25, s25, s54",
        "s_and_b32 s26, s53, 7", "s_and_b32 s28, s24, 3", "s_lshr_b32 s29, s24, 2")
    k.e(f"v_lshrrev_b32 v{G_}, 4, v{L}", f"v_and_b32 v{TOK}, 15, v{L}")
    k.e(f"v_bfe_u32 v{T0}, v{L}, 2, 3", f"v_lshl_add_u32 v{T0}, v{H}, 4, v{T0}", f"v_mul_u32_u24 v{T0}, 160, v{T0}",
        f"v_and_b32 v{T1}, 3, v{L}", f"v_lshl_add_u32 v{T0}, v{T1}, 3, v{T0}", f"s_mul_i32 s53, s29, {khs}", f"v_add_u32 v{LA+2}, s53, v{T0}",
        "s_lshl_b32 s52, s29, 6", f"v_add_u32 v{LA}, s52, v{LA+2}", "s_xor_b32 s52, s52, 64", f"v_add_u32 v{LA+1}, s52, v{LA+2}")
    for j in range(3): k.e(f"v_add_u32 v{LA+3+j}, {set2}, v{LA+j}")
    k.e("s_lshl_b32 s52, s25, 2", "s_add_u32 s27, s52, s28", "s_mul_i32 s52, s27, 20480", "s_mul_i32 s53, s26, 160", "s_add_u32 s30, s52, s53",
        f"v_mul_u32_u24 v{NAT}, 1280, v{TOK}", f"v_lshl_add_u32 v{NAT+1}, v{G_}, 3, v{NAT}",
        f"v_lshl_add_u32 v{NAT}, v{H}, 4, v{NAT}", f"v_bfe_u32 v{T0}, v{L}, 4, 1", f"v_lshl_add_u32 v{NAT}, v{T0}, 5, v{NAT}",
        "s_lshl_b32 s52, s29, 6", "s_add_u32 s31, s30, s52")
def w_reads(st, off, dst):
    o = []
    for f in range(5):
        for u in range(2):
            o.append(f"ds_read_b64_tr_b16 v[{dst+4*f+2*u}:{dst+4*f+2*u+1}], v{LA+3*st+(f>>1)} offset:{off+1280*u+(32*(f&1) if f < 4 else 128)}")
    return o
def ce_mfma(wb, ab, first):
    return [f"v_mfma_f32_16x16x32_bf16 {v(ACC+4*f,4)}, {v(wb+4*f,4)}, {v(ab,4)}, {'0' if first else v(ACC+4*f,4)}" for f in range(5)]
def ce_epilogue(k, xb, res, out):
    X = ACT
    k.e("s_mul_i32 s52, s24, 3072", f"s_add_u32 s52, s52, {xb}", f"v_add_u32 v{T0}, s52, v{L16}",
        "s_xor_b32 s53, s24, 4", "s_mul_i32 s53, s53, 3072", f"s_add_u32 s53, s53, {xb}", f"v_add_u32 v{T1}, s53, v{L16}")
    k.e(f"ds_write_b128 v{T0}, {v(ACC+8,4)}", f"ds_write_b128 v{T0}, {v(ACC+12,4)} offset:1024", f"ds_write_b128 v{T0}, {v(ACC+16,4)} offset:2048")
    k.e("s_waitcnt lgkmcnt(0)", "s_barrier")
    for j in range(3): k.e(f"ds_read_b128 {v(X+4*j,4)}, v{T1} offset:{1024*j}")
    k.e("s_waitcnt lgkmcnt(0)")
    for r in range(0, 8, 2): k.e(f"v_pk_add_f32 {v(ACC+r,2)}, {v(ACC+r,2)}, {v(X+r,2)}")
    for r in range(0, 4, 2): k.e(f"v_pk_add_f32 {v(ACC+16+r,2)}, {v(ACC+16+r,2)}, {v(X+8+r,2)}")
    Y = X
    for j in range(4): k.e(f"v_cvt_pk_bf16_f32 v{Y+j}, v{ACC+2*j}, v{ACC+2*j+1}")
    for j in range(2): k.e(f"v_cvt_pk_bf16_f32 v{Y+4+j}, v{ACC+16+2*j}, v{ACC+17+2*j}")
    k.e(f"v_permlane16_swap_b32 v{Y}, v{Y+2}", f"v_permlane16_swap_b32 v{Y+1}, v{Y+3}")
    for j in (4, 5, 0, 1, 2, 3):
        a = ACC + 2 * j
        k.e(f"v_lshlrev_b32 v{a}, 16, v{Y+j}", f"v_and_b32 v{a+1}, 0xffff0000, v{Y+j}",
            f"v_lshlrev_b32 v{X+8}, 16, v{res+j}", f"v_and_b32 v{X+9}, 0xffff0000, v{res+j}",
            f"v_pk_add_f32 {v(a,2)}, {v(a,2)}, {v(X+8,2)}", f"v_cvt_pk_bf16_f32 v{out+j}, v{a}, v{a+1}")

def d_w(st): p = (st + 3) % 4; return 40960 * p + (16384 if p & 1 else 0)
def d_h(st): p = (st + 3) % 4; return 40960 * p + (0 if p & 1 else 24576)
DRB, DNB, DROT, DSW = 96, 97, 98, 99
def d_map(k):
    k.e("s_and_b32 s52, s2, 7", "s_lshr_b32 s53, s2, 3", "s_lshr_b32 s54, s53, 3", "s_lshr_b32 s55, s52, 1", f"s_lshl_b32 s{DRB}, s55, 2", f"s_add_u32 s{DRB}, s{DRB}, s54",
        "s_and_b32 s52, s52, 1", "s_lshl_b32 s52, s52, 3", "s_and_b32 s53, s53, 7", f"s_add_u32 s{DNB}, s52, s53",
        "s_mul_i32 s54, s54, 5", "s_add_u32 s54, s54, 1", "s_lshr_b32 s54, s54, 1", "s_add_u32 s54, s54, s55", f"s_add_u32 s54, s54, s{DNB}",
        "s_cmp_ge_u32 s54, 20", "s_cselect_b32 s55, 20, 0", "s_sub_u32 s54, s54, s55",
        "s_cmp_ge_u32 s54, 10", "s_cselect_b32 s55, 10, 0", f"s_sub_u32 s{DROT}, s54, s55")
def d_wsetup(k):
    k.e("s_bitcmp1_b32 s24, 1", f"s_cselect_b32 s16, s{KW3}, s{KW1}", f"s_cselect_b32 s17, s{KW3+1}, s{KW1+1}", f"s_mov_b32 s18, {640*3072}", "s_mov_b32 s19, 0x20000",
        "s_cselect_b32 s52, 2, 0")
    for i in range(3):
        k.e(f"v_add_u32 v{T0}, {64*i}, v{L}", f"v_mul_u32_u24 v{T1}, 5462, v{T0}", f"v_lshrrev_b32 v{T1}, 16, v{T1}",
            f"v_xor_b32 v{T0}, s52, v{T0}", f"v_mul_u32_u24 v{T1}, {3072-192}, v{T1}", f"v_lshl_add_u32 v{DW+i}, v{T0}, 4, v{T1}")
        if i: k.e(f"v_subrev_u32 v{DW+i}, {1024*i}, v{DW+i}")
def d_wtriple(lds_s, lds_add, soff):
    return [f"s_add_u32 m0, s{lds_s}, {lds_add}"] + [f"buffer_load_dwordx4 v{DW+i}, s[16:19], s{soff} offen offset:{1024*i} lds" for i in range(3)]
def d_wadv(lim):
    return [f"s_add_u32 s{DSW}, s{DSW}, {64*3072}", f"s_cmp_ge_u32 s{DSW}, s{lim}", f"s_cselect_b32 s52, {640*3072}, 0", f"s_sub_u32 s{DSW}, s{DSW}, s52"]

def phase_c(k):
    LE = 35
    d_map(k); d_wsetup(k)
    k.e("s_and_b32 s52, s24, 1", "s_lshl_b32 s52, s52, 1", "s_lshr_b32 s53, s24, 2", "s_add_u32 s52, s52, s53",
        "s_mul_i32 s59, s52, 3072", "s_bitcmp1_b32 s24, 1", "s_cselect_b32 s53, 12288, 0", "s_add_u32 s59, s59, s53",
        "s_mul_i32 s52, s52, 49152", f"s_mul_i32 s53, s{DNB}, 192", "s_add_u32 s52, s52, s53", f"s_add_u32 s60, s52, {640*3072}",
        f"s_mul_i32 s53, s{DROT}, {64*3072}", f"s_add_u32 s{DSW}, s52, s53")
    k.e(*d_wtriple(59, d_w(0), DSW)); k.e(*d_wadv(60))
    ce_setup(k, 5120, 51200)
    k.e(f"buffer_load_dwordx4 {v(XR,4)}, v{NAT}, s[12:15], s31 offen", f"buffer_load_dwordx2 {v(XR+4,2)}, v{NAT+1}, s[12:15], s30 offen offset:128")
    def cpos(i):
        o = 10240 * (i + 2 * (i >= 3)) if i < 8 else 10240 * (i - 5)
        return (1, o - 51200) if o >= 51200 else (0, o)
    for i in range(8): k.e(*w_reads(*cpos(i), WR + 20 * i))
    k.e("s_mul_i32 s52, s27, 20480", f"s_add_u32 s52, s52, {WS_O}", "s_lshl_b32 s54, s29, 13", "s_add_u32 s54, s54, s52")
    for i in range(8): k.e(f"s_add_u32 s53, s26, {i}", "s_and_b32 s53, s53, 7", "s_lshl_b32 s53, s53, 10", f"s_add_u32 s{4+i}, s53, s54")
    k.e("s_lshl_b32 s53, s29, 11", "s_add_u32 s56, s52, s53", "s_add_u32 s56, s56, 16384",
        f"v_lshlrev_b32 v{LE}, 9, v{H}", f"v_bfe_u32 v{T0}, v{L}, 4, 1", f"v_lshl_add_u32 v{LE}, v{T0}, 7, v{LE}", f"v_lshl_add_u32 v{LE}, v{TOK}, 3, v{LE}")
    k.e("s_cmp_lg_u32 s24, 1", f"s_cbranch_scc1 {k.lab('c_np')}")
    k.e("s_lshl_b32 s52, s25, 3", "s_add_u32 s52, s52, s26", "s_lshl_b32 s52, s52, 7", f"s_add_u32 s52, s52, {WS_FC}", f"v_lshlrev_b32 v{T2}, 2, v{L}")
    poll(k, T2, "s52", T0, -1, 0)
    k.label("c_np")
    k.e("s_waitcnt lgkmcnt(0)", "s_barrier")
    stamp(k, 13)
    for i in range(8): k.e(f"buffer_load_dwordx4 {v(ACT+4*i,4)}, v{L16}, s[20:23], s{4+i} offen sc1")
    for e in range(2):
        for u in range(2): k.e(f"buffer_load_dwordx2 {v(ACT+32+4*e+2*u,2)}, v{LE}, s[20:23], s56 offen offset:{1024*e+256*u} sc1")
    PF = int(([a[4:] for a in sys.argv if a.startswith("-pf=")] + ["3"])[0])
    npf = 0
    for i in range(10):
        k.e(f"s_waitcnt vmcnt({(11-i if i < 8 else 2*(9-i)) + npf})" + (f" lgkmcnt({10*(9-i)})" if i >= 8 else ""))
        if i == 0: stamp(k, 14)
        k.e(*ce_mfma(WR + 20 * (i % 8), ACT + 4 * i, i == 0))
        if i in (1, 2): k.e(*w_reads(*cpos(i + 7), WR + 20 * (i - 1)))
        if PF <= i < PF + 3:
            k.e(*d_wtriple(59, d_w(i - PF + 1), DSW)); k.e(*d_wadv(60)); npf += 3
    stamp(k, 15)
    ce_epilogue(k, LK, XR, HRES)
    k.e("s_lshr_b32 s52, s27, 1", "s_mul_i32 s52, s52, 40960", "s_mul_i32 s53, s26, 5120", "s_add_u32 s52, s52, s53", "s_and_b32 s53, s28, 1", "s_lshl_b32 s53, s53, 8",
        "s_add_u32 s52, s52, s53", f"s_add_u32 s52, s52, {WS_H}", "s_lshl_b32 s53, s29, 11", "s_add_u32 s53, s53, s52", "s_add_u32 s52, s52, 4096",
        f"v_lshlrev_b32 v{T0}, 9, v{H}", f"v_lshl_add_u32 v{T0}, v{TOK}, 4, v{T0}", f"v_bfe_u32 v{T1}, v{L}, 4, 1", f"v_lshl_add_u32 v{T1}, v{T1}, 10, v{T0}")
    k.e(f"buffer_store_dwordx4 {v(HRES,4)}, v{T1}, s[20:23], s53 offen sc1")
    S1 = ACC
    k.e(f"v_mov_b32 v{S1}, 0", f"v_mov_b32 v{S1+1}, 0", f"s_mov_b32 s54, {ONES}")
    k.e("s_cmp_lg_u32 s29, 0", f"s_cbranch_scc1 {k.lab('c_n4')}")
    Z = ACC + 4
    k.e(f"v_mov_b32 v{Z}, v{HRES+4}", f"v_mov_b32 v{Z+1}, v{HRES+5}", f"v_mov_b32 v{Z+2}, v{HRES+4}", f"v_mov_b32 v{Z+3}, v{HRES+5}",
        f"v_permlane16_swap_b32 v{Z}, v{Z+2}", f"v_permlane16_swap_b32 v{Z+1}, v{Z+3}",
        "s_mov_b32 exec_lo, 0xffff", "s_mov_b32 exec_hi, 0xffff", f"buffer_store_dwordx4 {v(Z,4)}, v{T0}, s[20:23], s52 offen sc1", "s_mov_b64 exec, -1")
    for j in (4, 5): k.e(f"v_dot2c_f32_bf16 v{S1}, s54, v{HRES+j}", f"v_dot2c_f32_bf16 v{S1+1}, v{HRES+j}, v{HRES+j}")
    k.label("c_n4")
    for j in range(4): k.e(f"v_dot2c_f32_bf16 v{S1}, s54, v{HRES+j}", f"v_dot2c_f32_bf16 v{S1+1}, v{HRES+j}, v{HRES+j}")
    for x, t in ((S1, T2), (S1 + 1, T3)):
        k.e(f"v_mov_b32 v{t}, v{x}", f"v_permlane16_swap_b32 v{t}, v{x}", f"v_add_f32 v{x}, v{t}, v{x}")
    for x, t in ((S1, T2), (S1 + 1, T3)): half_sum(k, x, t)
    k.e("s_lshl_b32 s52, s27, 4", "s_lshl_b32 s53, s26, 1", "s_add_u32 s52, s52, s53", "s_add_u32 s52, s52, s29", "s_lshl_b32 s52, s52, 7", f"s_add_u32 s52, s52, {WS_HST}",
        f"v_lshlrev_b32 v{T0}, 3, v{TOK}", "s_mov_b64 exec, 0xffff", f"buffer_store_dwordx2 {v(S1,2)}, v{T0}, s[20:23], s52 offen sc1", "s_mov_b64 exec, -1")
    k.e("s_lshr_b32 s52, s25, 1", "s_lshl_b32 s52, s52, 11", "s_and_b32 s53, s25, 1", "s_lshl_b32 s53, s53, 3", "s_add_u32 s53, s53, s26", "s_lshl_b32 s53, s53, 2",
        "s_add_u32 s52, s52, s53", f"s_add_u32 s52, s52, {WS_FD}", f"v_lshlrev_b32 v{T0}, 7, v{L}")
    stamp(k, 16)
    k.e("s_waitcnt vmcnt(0)", "s_barrier")
    stamp(k, 17)
    push_flags(k, 52, T0, "0xffff")

X6, X7, X8, X9 = 40960, 81920, 122880, 0
DMI = X6 + 5120
PK = 60
def e_soff(k, d, G, kh, isg):
    k.e(f"s_add_u32 s{d}, s{isg}, s26", f"s_and_b32 s{d}, s{d}, 7", f"s_mul_i32 s{d}, s{d}, 40960", f"s_add_u32 s{d}, s{d}, s58")
    if 24 * kh + 8 * G: k.e(f"s_add_u32 s{d}, s{d}, {(24*kh+8*G)*40960}")

def d_compute(k):
    AH, AW, AST, RI, AM = 16, 18, 27, 28, 32
    DA, FR = 160, 40
    ONE = 36
    k.e("s_lshr_b32 s28, s24, 1", "s_and_b32 s29, s24, 1", "s_lshl_b32 s52, s28, 13", f"v_add_u32 v{AH}, s52, v{L16}", f"v_add_u32 v{AH+1}, 81920, v{AH}")
    k.e(f"v_bfe_u32 v{T0}, v{L}, 2, 2", f"v_lshl_add_u32 v{T0}, v{H}, 3, v{T0}", f"v_mul_u32_u24 v{T0}, 192, v{T0}", f"v_and_b32 v{T1}, 3, v{L}", f"v_lshl_add_u32 v{T0}, v{T1}, 3, v{T0}",
        f"v_bfe_u32 v{T1}, v{L}, 4, 1", f"v_mul_u32_u24 v{T2}, 12288, v{T1}", f"v_add_u32 v{T0}, v{T0}, v{T2}", "s_mul_i32 s52, s29, 3")
    for f in range(3):
        k.e(f"v_xor_b32 v{T2}, s52, v{T1}", f"v_lshl_add_u32 v{AW+f}, v{T2}, 5, v{T0}", f"v_add_u32 v{AW+3+f}, 57344, v{AW+f}", f"v_add_u32 v{AW+6+f}, 139264, v{AW+f}", "s_add_u32 s52, s52, 1")
    def buf(g): return FR + 20 * (g % 4 if g < 38 else g - 34)
    def hreads(g):
        st, ks = divmod(g, 4); o = d_h(st); S = o >= 81920
        return [f"ds_read_b128 {v(buf(g)+4*t,4)}, v{AH+S} offset:{o-81920*S+4096*t+1024*ks}" for t in range(2)]
    def wreads(g):
        st, ks = divmod(g, 4); o = d_w(st); S, b = {0: (0, 0), 57344: (1, 0), 81920: (1, 24576), 139264: (2, 0)}[o]
        return [f"ds_read_b64_tr_b16 {v(buf(g)+8+4*f+2*u,2)}, v{AW+3*S+f} offset:{b+3072*ks+768*u}" for f in range(3) for u in range(2)]
    for g in range(4): k.e(*wreads(g))
    XO, CS = FR + 80, FR + 88
    k.e(f"v_lshrrev_b32 v{T0}, 4, v{TK}", f"v_mul_u32_u24 v{T0}, 49152, v{T0}", f"v_and_b32 v{T1}, 15, v{L}", f"v_lshl_add_u32 v{T0}, v{T1}, 4, v{T0}", f"v_lshl_add_u32 v{AST}, v{H}, 8, v{T0}",
        f"s_lshl_b32 s52, s{DRB}, 1", "s_add_u32 s52, s52, s28", f"s_mul_i32 s52, s52, {4*49152}", f"s_lshl_b32 s53, s{DNB}, 1", "s_add_u32 s53, s53, s29", "s_mul_i32 s54, s53, 1536",
        "s_add_u32 s52, s52, s54", f"s_add_u32 s4, s52, {WS_A}", f"s_add_u32 s5, s4, {2*49152}",
        "s_lshl_b32 s52, s28, 9", f"s_add_u32 s52, s52, {DMI}", f"v_lshl_add_u32 v{AM}, v{TK}, 3, s52",
        "s_mul_i32 s52, s29, 768", f"s_add_u32 s52, s52, {DMI+2048}", f"v_lshl_add_u32 v{AM+1}, v{TK}, 3, s52")
    for r in range(20): k.e(f"v_mov_b32 v{XO+r}, 0")
    k.e("s_cmp_lt_u32 s24, 2", f"s_cbranch_scc1 {k.lab('d_ncs')}")
    for r in range(4): k.e(f"v_mov_b32 v{ONE+r}, {ONES}")
    k.e(f"s_mul_i32 s52, s{DNB}, 15360", f"s_mul_i32 s53, s{DROT}, 1536", "s_add_u32 s52, s52, s53", "s_mul_i32 s53, s29, 768", "s_add_u32 s52, s52, s53", f"s_add_u32 s52, s52, {WS_CS}",
        f"v_lshlrev_b32 v{T0}, 3, v{TK}", "s_waitcnt lgkmcnt(0)")
    for g in range(4):
        for f in range(3): k.e(f"v_mfma_f32_32x32x16_bf16 {v(DA+16*f,16)}, {v(ONE,4)}, {v(buf(g)+8+4*f,4)}, {'0' if g == 0 else v(DA+16*f,16)}")
    k.e("s_mov_b32 exec_hi, 0")
    for f in range(3):
        k.e(f"v_mov_b32 v{DA+16*f+1}, s{TAG}", f"buffer_store_dwordx2 {v(DA+16*f,2)}, v{T0}, s[20:23], s52 offen offset:{256*f} sc1")
    k.e("s_mov_b64 exec, -1")
    k.label("d_ncs")
    k.e("s_barrier")
    stamp(k, 18)
    k.e("s_barrier")
    stamp(k, 19)
    lg = VM()
    def rd(ops, tag):
        lg.add(tag, len(ops)); return ops
    def lw(tag):
        if tag not in lg.q: return []
        w = lg.wait(tag); n = int(w[w.index("(") + 1:-1])
        return [f"s_waitcnt lgkmcnt({min(n, 15)})"]
    def mf(g, t, f):
        d = DA + 48 * t + 16 * f
        return f"v_mfma_f32_32x32x16_bf16 {v(d,16)}, {v(buf(g)+8+4*f,4)}, {v(buf(g)+4*t,4)}, {'0' if g == 0 else v(d,16)}"
    k.e(*rd(hreads(0), 0)); k.e(*rd(hreads(1), 1))
    for g in range(36):
        if g % 4 == 2:
            k.e("s_waitcnt lgkmcnt(0)", "s_barrier"); lg.q = []
        else: k.e(*lw(g))
        fill = []
        for n in ([g + 2] if g < 34 else [36, 39] if g == 34 else [37, 38]):
            fill += rd(hreads(n) + (wreads(n) if n >= 4 else []), n)
        if g == 30:
            fill.append(["s_mov_b32 exec_hi, 0"] + rd([f"ds_read_b64 {v(XO+4*t,2)}, v{AM} offset:{256*t}" for t in range(2)], 32) + ["s_mov_b64 exec, -1"])
            fill += rd([f"ds_read_b64 {v(CS+4*f,2)}, v{AM+1} offset:{256*f}" for f in range(3)] + [f"ds_read_b64 {v(RI+2*t,2)}, v{AM} offset:{1024+256*t}" for t in range(2)], 32)
        m = [mf(g, t, f) for t in range(2) for f in range(3)]
        if g in (32, 33):
            t = g - 32
            m = [f"v_mfma_f32_32x32x16_bf16 {v(DA+48*t+16*f,16)}, {v(CS+4*f,4)}, {v(XO+4*t,4)}, {v(DA+48*t+16*f,16)}" for f in range(3)] + m
        k.e(*interleave(m, fill))
    k.e("s_waitcnt lgkmcnt(0)")
    TM = FR + 40
    def epi(t, f, packed):
        d = DA + 48 * t + 16 * f; e = TM + 8 * ((3 * t + f) & 1)
        rn, ir = RI + 2 * t, RI + 2 * t + 1
        s1, s2 = [], []
        if packed:
            s1 += [f"v_pk_mul_f32 {v(e+r,2)}, {v(d+r,2)}, {v(rn,2)} op_sel:[0,0] op_sel_hi:[1,0]" for r in range(0, 8, 2)]
            s1 += [f"v_exp_f32 v{e+r}, v{e+r}" for r in range(8)]
            s1 += [f"v_pk_fma_f32 {v(e+r,2)}, {v(e+r,2)}, {v(rn,2)}, {v(rn,2)} op_sel:[0,1,1] op_sel_hi:[1,1,1]" for r in range(0, 8, 2)]
            s1 += [f"v_rcp_f32 v{e+r}, v{e+r}" for r in range(8)]
            s2 += [f"v_pk_mul_f32 {v(d+r,2)}, {v(d+r,2)}, {v(d+8+r,2)}" for r in range(0, 8, 2)]
            s2 += [f"v_pk_mul_f32 {v(d+r,2)}, {v(d+r,2)}, {v(e+r,2)}" for r in range(0, 8, 2)]
        else:
            s1 += [f"v_mul_f32 v{e+r}, v{d+r}, v{rn}" for r in range(8)]
            s1 += [f"v_exp_f32 v{e+r}, v{e+r}" for r in range(8)]
            s1 += [f"v_fma_f32 v{e+r}, v{e+r}, v{ir}, v{ir}" for r in range(8)]
            s1 += [f"v_rcp_f32 v{e+r}, v{e+r}" for r in range(8)]
            s2 += [f"v_mul_f32 v{d+r}, v{d+r}, v{d+8+r}" for r in range(8)]
            s2 += [f"v_mul_f32 v{d+r}, v{d+r}, v{e+r}" for r in range(8)]
        s2 += [f"v_cvt_pk_bf16_f32 v{d+j}, v{d+2*j}, v{d+2*j+1}" for j in range(4)]
        s2.append(f"buffer_store_dwordx4 {v(d,4)}, v{AST}, s[20:23], s{4+t} offen offset:{512*f} sc1")
        return s1 + s2
    tiles = [(t, f) for t in range(2) for f in range(3)]
    for t, f in tiles: k.e(*[mf(g, t, f) for g in range(36, 40)])
    stamp(k, 20)
    for n, (t, f) in enumerate(tiles):
        k.e(*epi(t, f, True))
        if n == 2: k.e("s_barrier")
    stamp(k, 21)

def d_loader(k):
    D = 40
    vm = VM()
    k.e("s_sub_u32 s31, s24, 4")
    k.e(f"s_sub_u32 s{DSW}, s{DSW}, 49152", "s_sub_u32 s60, s60, 49152", "s_sub_u32 s59, s59, 3072",
        f"s_lshl_b32 s52, s{DRB}, 2", "s_add_u32 s52, s52, s31", "s_mul_i32 s52, s52, 40960", f"s_add_u32 s52, s52, {WS_H}", "s_add_u32 s57, s52, 40960",
        f"s_lshl_b32 s53, s{DROT}, 12", "s_add_u32 s56, s52, s53", "s_lshl_b32 s55, s31, 12")
    wv_offsets(k)
    PH, PC = 36, 37
    k.e(f"v_lshrrev_b32 v{T0}, 4, v{L}", f"v_and_b32 v{T1}, 15, v{L}", f"v_lshlrev_b32 v{T1}, 3, v{T1}", f"v_lshl_add_u32 v{PH}, v{T0}, 10, v{T1}", f"v_lshlrev_b32 v{PC}, 3, v{L}",
        f"s_lshl_b32 s52, s{DRB}, 2", "s_add_u32 s52, s52, s31", "s_lshl_b32 s52, s52, 12", f"s_add_u32 s4, s52, {WS_HST}",
        "s_min_u32 s9, s31, 2", "s_lshl_b32 s9, s9, 9", f"s_mul_i32 s52, s{DNB}, 15360", "s_add_u32 s52, s52, s9", f"s_add_u32 s5, s52, {WS_CS}",
        "s_add_u32 s6, s5, 4608", "s_add_u32 s7, s5, 9216", "s_add_u32 s8, s5, 13824", "s_mul_i32 s58, s26, 160")
    k.e("s_cmp_lg_u32 s24, 4", f"s_cbranch_scc1 {k.lab('d_np')}")
    k.e(f"s_lshl_b32 s52, s{DRB}, 4", f"s_add_u32 s52, s52, s{DNB}", "s_lshl_b32 s52, s52, 7", f"s_add_u32 s52, s52, {WS_FD}", f"v_lshlrev_b32 v{T2}, 2, v{L}")
    poll(k, T2, "s52", T0, 0xffff, 0)
    k.label("d_np")
    k.e("s_barrier")
    stamp(k, 18)
    def hst(st):
        k.e(f"s_add_u32 m0, s55, {d_h(st)}")
        for i in range(4): k.e(f"buffer_load_dwordx4 v{L16}, s[20:23], s56 offen offset:{1024*i} sc1 lds")
        k.e("s_add_u32 s56, s56, 4096", "s_cmp_ge_u32 s56, s57", "s_cselect_b32 s52, 40960, 0", "s_sub_u32 s56, s56, s52")
        vm.add(st, 4)
    def wst(st):
        k.e(*d_wtriple(59, d_w(st), DSW)); k.e(f"s_add_u32 s53, s{DSW}, 49152"); k.e(*d_wtriple(59, d_w(st) + 3072, 53)); k.e(*d_wadv(60))
        vm.add(st, 6)
    def cs_loads():
        for j in range(10): k.e(f"buffer_load_dwordx2 {v(D+16+2*j,2)}, v{PC}, s[20:23], s{5+j//3} offen offset:{1536*(j%3)} sc1")
    def w2(G, kh, b, base, tag):
        k.e("s_lshl_b32 s53, s31, 1", f"s_add_u32 s53, s53, {b}") ; e_soff(k, 54, G, kh, 53)
        k.e("s_mul_i32 s53, s53, 5120")
        for x in step_dma(WV, 53, 54, base): k.e(*x)
        vm.add(tag, 5)
    for st in range(4): hst(st)
    k.e(vm.wait(0), "s_barrier")
    stamp(k, 19)
    for j in range(1, 10):
        k.e(vm.wait(j), "s_barrier")
        if j <= 6: wst(j + 3); hst(j + 3)
        if j == 5:
            for i in range(8): k.e(f"buffer_load_dwordx2 {v(D+2*i,2)}, v{PH}, s[20:23], s4 offen offset:{128*i} sc1")
            cs_loads(); vm.add("pt", 18)
        if j == 6: srd(k, 16, KW2, 1536 * 1280)
        if j == 7:
            w2(1, 1, 0, X6, "x6")
            k.e(vm.wait("pt"), "s_mov_b32 s61, 0")
            k.label("d_chk")
            k.e(f"v_xor_b32 v{T0}, s{TAG}, v{D+17}", f"v_xor_b32 v{T1}, s{TAG}, v{D+19}", f"v_or_b32 v{T0}, v{T0}, v{T1}")
            for i in range(2, 10, 2):
                k.e(f"v_xor_b32 v{T1}, s{TAG}, v{D+17+2*i}", f"v_xor_b32 v{T2}, s{TAG}, v{D+19+2*i}", f"v_or3_b32 v{T0}, v{T0}, v{T1}, v{T2}")
            k.e(f"v_cmp_ne_u32 vcc, 0, v{T0}", "s_add_u32 s61, s61, 1", f"s_cbranch_vccz {k.lab('d_ok')}", f"s_cmp_gt_u32 s61, {SPIN_MAX}", f"s_cbranch_scc1 {k.lab('d_ok')}")
            cs_loads()
            k.e("s_waitcnt vmcnt(0)", f"s_branch {k.lab('d_chk')}")
            k.label("d_ok")
            for i in range(1, 8): k.e(f"v_add_f32 v{D}, v{D}, v{D+2*i}", f"v_add_f32 v{D+1}, v{D+1}, v{D+2*i+1}")
            for i in range(1, 10): k.e(f"v_add_f32 v{D+16}, v{D+16}, v{D+16+2*i}")
            for x, t in ((D, T2), (D + 1, T3)):
                k.e(f"v_mov_b32 v{t}, v{x}", f"v_permlane16_swap_b32 v{t}, v{x}", f"v_add_f32 v{x}, v{t}, v{x}")
            ln_stats(k, D, D + 1, T0, T1, D + 4, D + 6, SD=D + 7)
            split3(k, D + 16, D + 8, D + 9, T0, T1)
            k.e(f"v_cvt_pk_bf16_f32 v{D+4}, -v{D+4}, -v{D+4}", f"v_and_b32 v{D+5}, 0xffff, v{D+4}",
                f"v_mul_f32 v{D+6}, {f32(-1.4426950408889634)}, v{D+6}", f"v_mul_f32 v{D+7}, v{D+7}, v{D+7}",
                f"v_and_b32 v{T0}, 15, v{L}", f"v_lshl_add_u32 v{T0}, v{H}, 4, v{T0}", "s_lshl_b32 s52, s31, 8", f"s_add_u32 s52, s52, {DMI}", f"v_lshl_add_u32 v{T0}, v{T0}, 3, s52",
                f"s_add_u32 s52, s9, {DMI+2048}", f"v_add_u32 v{T1}, s52, v{PC}",
                f"ds_write_b64 v{T0}, {v(D+4,2)}", f"ds_write_b64 v{T0}, {v(D+6,2)} offset:1024", f"ds_write_b64 v{T1}, {v(D+8,2)}", "s_waitcnt lgkmcnt(0)")
            vm.q = vm.q + [8]; vm.q = [8] + vm.q[:-1]
        if j == 8:
            w2(0, 0, 0, X7, "x7"); w2(0, 0, 1, X7, "x7")
        if j == 9:
            w2(0, 1, 0, X8, "x8"); w2(0, 1, 1, X8, "x8"); w2(1, 1, 1, X6, "x6b")
    stamp(k, 20)
    k.e(vm.wait("x8"), "s_barrier")
    w2(1, 0, 0, X9, "x9"); w2(1, 0, 1, X9, "x9")
    stamp(k, 21)

def phase_d(k):
    k.e("s_cmp_lt_u32 s24, 4", f"s_cbranch_scc1 {k.lab('d_cmp')}")
    d_loader(k)
    k.e(f"s_branch {k.lab('d_done')}")
    k.label("d_cmp")
    d_compute(k)
    srd(k, 16, KW2, 1536 * 1280)
    wv_offsets(k)
    k.label("d_done")
    ce_setup(k, 40960, 81920)
    for i in range(8): k.e(*w_reads(1, 5120 * i, WR + 20 * i))
    k.e(f"s_lshl_b32 s52, s{DRB}, 11", f"s_lshl_b32 s53, s{DNB}, 2", "s_add_u32 s52, s52, s53", f"s_add_u32 s52, s52, {WS_FE}", f"v_lshlrev_b32 v{T0}, 7, v{L}", "s_mul_i32 s58, s26, 160")
    e_soff(k, 54, 2, 0, 24); k.e(f"s_add_u32 s55, s54, {24*40960}", "s_mul_i32 s53, s24, 5120")
    k.e("s_waitcnt vmcnt(0) lgkmcnt(0)", "s_barrier")
    stamp(k, 22)
    push_flags(k, 52, T0, "0xffff")

def phase_e(k):
    for x in step_dma(WV, 53, 54, X7) + step_dma(WV, 53, 55, X8): k.e(*x)
    AV = 32
    k.e(f"v_add_u32 v{AV}, 8192, v{L16}", f"v_add_u32 v{AV+1}, 16384, v{L16}")
    k.e("s_mul_i32 s52, s27, 49152", f"s_add_u32 s52, s52, {WS_A}", "s_mul_i32 s54, s29, 24576", "s_add_u32 s54, s54, s52")
    for i in range(8): k.e(f"s_add_u32 s53, s26, {i}", "s_and_b32 s53, s53, 7", "s_lshl_b32 s53, s53, 10", f"s_add_u32 s{4+i}, s53, s54")
    srd(k, 12, KOUT, X_BYTES)
    k.e("s_cmp_lg_u32 s24, 1", f"s_cbranch_scc1 {k.lab('e_np')}")
    k.e("s_lshl_b32 s52, s25, 3", "s_add_u32 s52, s52, s26", "s_lshl_b32 s52, s52, 7", f"s_add_u32 s52, s52, {WS_FE}", f"v_lshlrev_b32 v{T2}, 2, v{L}")
    poll(k, T2, "s52", T0, 0xffff, 0)
    k.label("e_np")
    k.e("s_xor_b32 s52, s24, 2", "s_or_b32 s52, s52, s2", "s_cmp_lg_u32 s52, 0", f"s_cbranch_scc1 {k.lab('e_ne')}")
    k.e(f"v_lshrrev_b32 v{T0}, 3, v{L}", f"v_and_b32 v{T1}, 7, v{L}", f"v_lshlrev_b32 v{T1}, 4, v{T1}", f"v_lshl_add_u32 v{T2}, v{T0}, 12, v{T1}", f"s_mov_b32 s52, {WS_FC}")
    poll(k, T2, "s52", ACC, -1, -1, x4=True)
    k.e(f"v_mov_b32 v{T0}, 0", f"v_mov_b32 v{T1}, s{TAG}", f"s_mov_b32 s52, {WS_EP}", "s_mov_b64 exec, 1", f"buffer_store_dword v{T1}, v{T0}, s[20:23], s52 offen sc1", "s_mov_b64 exec, -1")
    k.label("e_ne")
    k.e("s_waitcnt vmcnt(0)", "s_barrier")
    stamp(k, 23)
    def ald(n): return f"buffer_load_dwordx4 {v(ACT+4*(n%10),4)}, v{(L16, AV, AV+1)[n//8]}, s[20:23], s{4+n%8} offen sc1"
    for n in range(10): k.e(ald(n))
    for n in range(24):
        issued = 10 if n < 2 else min(24, n + 9)
        w = f"s_waitcnt vmcnt({issued-1-n})"
        if 8 <= n: w += f" lgkmcnt({10 if n <= 17 else 0})"
        k.e(w)
        if n == 0: stamp(k, 24)
        fill = []
        if 1 <= n <= 14: fill.append(ald(n + 9))
        if 1 <= n <= 16: fill += w_reads(0 if n <= 8 else 1, 5120 * ((n - 1) % 8), WR + 20 * ((n - 1) % 8))
        k.e(*interleave(ce_mfma(WR + 20 * (n % 8), ACT + 4 * (n % 10), n == 0), fill))
        if n == 15: k.e("s_barrier")
    stamp(k, 25)
    ce_epilogue(k, 0, HRES, XR)
    k.e(f"buffer_store_dwordx4 {v(XR,4)}, v{NAT}, s[12:15], s31 offen")
    k.e("s_cmp_lg_u32 s29, 0", f"s_cbranch_scc1 {k.lab('fin')}")
    k.e(f"buffer_store_dwordx2 {v(XR+4,2)}, v{NAT+1}, s[12:15], s30 offen offset:128")

def rest(k):
    phase_b(k)
    if G.UPTO == "B": return
    phase_c(k)
    if G.UPTO == "C": return
    phase_d(k)
    if G.UPTO == "D": return
    phase_e(k)
```

```python
import itertools
EXT = {h: 4 for h in range(32)}; EXT[19] = 0; EXT[25] = 2
def records():
    out = []
    for h in range(32):
        m = [j for j in range(5) if j != EXT[h]]
        for hh in range(2):
            out.append((5 * (h >> 1) + 2 * (h & 1) + hh, 5 * h + m[2 * hh], 5 * h + m[2 * hh + 1]))
    for p in range(16):
        out.append((5 * p + 4, 5 * (2 * p) + EXT[2 * p], 5 * (2 * p + 1) + EXT[2 * p + 1]))
    return out
def solve(p):
    recs = [r for r in records() if r[1] // 32 == p]
    assert len(recs) == 16 and all(r[2] // 32 == p for r in recs)
    best = None
    def rec(rem, tiles):
        if not rem: return tiles
        first = rem[0]
        for comb in itertools.combinations(rem[1:], 3):
            t = (first,) + comb
            res = [c % 8 for r in t for c in r[1:]]
            if len(set(res)) == 8:
                x = rec([r for r in rem[1:] if r not in comb], tiles + [t])
                if x: return x
        return None
    return rec(recs, [])
def tables():
    T = []
    for p in range(5):
        s = solve(p)
        assert s, p
        tp = []
        for t in s:
            ch = [0] * 8; R = [0] * 4
            for n, r in enumerate(t):
                u, h = n >> 1, n & 1
                R[n] = r[0]
                for b in range(2): ch[4 * u + 2 * b + h] = r[1 + b] - 32 * p
            tp.append((ch, R))
        T.append(tp)
    T.append([([8 * ft + m for m in range(8)], [0] * 4) for ft in range(4)])
    return T
if __name__ == "__main__":
    for p, tp in enumerate(tables()): print(p, tp)
```

```python
import sys, struct
from asmlib import *
from qktab import tables

NAME = "sequential_preLN__sliding_block__glu_gated_swiglu__prompt"
WS_QK = 0
WS_V = 5242880
WS_O = 7864320
WS_H = 10485760
WS_A = 13107200
WS_HST = 19398656
WS_CS = WS_HST + 262144
WS_XST = WS_CS + 245760
WS_WST = WS_XST + 327680
WS_FB = WS_WST + 153600
WS_FC = WS_FB + 65536
WS_FD = WS_FC + 32768
WS_FE = WS_FD + 32768
WS_EP = WS_FE + 32768
WS_END = WS_EP + 128
X_BYTES = 2048 * 1280
SPIN_MAX = 40000

def f32(x): return "0x%08x" % struct.unpack("<I", struct.pack("<f", x))[0]
ONES = "0x3f803f80"
NEGBIG = f32(-1e30)
CSC = (20 ** -0.5) * 1.4426950408889634

STAMP = "-stamp" in sys.argv
UPTO = ([a[6:] for a in sys.argv if a.startswith("-upto=")] + ["E"])[0]
WS_STAMP = 64 << 20
WS_SRD = (1 << 28) if STAMP else WS_END
def opt(name): return ("-" + name) in sys.argv

L, L16, H, TK, T0, T1, T2, T3 = 1, 2, 3, 4, 5, 6, 7, 8
HRES = 10
KX, KWQKV, KWO, KW1, KW3, KW2, KOUT, KWS = 32, 34, 36, 40, 42, 44, 46, 50
TAG = 3

class VM:
    def __init__(s): s.q = []
    def add(s, tag, n=1): s.q += [tag] * n
    def wait(s, tag):
        idx = max(i for i, t in enumerate(s.q) if t == tag)
        n = len(s.q) - 1 - idx
        s.q = s.q[idx + 1:]
        assert n <= 63
        return f"s_waitcnt vmcnt({n})"

NST = [0]
def stamp(k, i):
    if STAMP:
        k.e("s_memrealtime s[62:63]", "s_waitcnt lgkmcnt(0)", f"s_mov_b32 s{64+i}, s62")
def stamp_out(k):
    if not STAMP: return
    k.e("s_waitcnt vmcnt(0)")
    stamp(k, 29)
    k.e("s_memtime s[62:63]", "s_waitcnt lgkmcnt(0)", "s_mov_b32 s95, s62")
    k.e("s_mov_b64 exec, 1", "s_lshl_b32 s62, s2, 3", "s_add_u32 s62, s62, s24", "s_lshl_b32 s62, s62, 7", f"s_add_u32 s62, s62, {WS_STAMP}")
    k.e("v_mov_b32 v0, 0")
    for i in range(32):
        k.e(f"v_mov_b32 v1, s{64+i}", f"buffer_store_dword v1, v0, s[20:23], s62 offen offset:{4*i}")

def srd(k, d, base, size):
    k.e(f"s_mov_b32 s{d}, s{base}", f"s_mov_b32 s{d+1}, s{base+1}", f"s_mov_b32 s{d+2}, {size}", f"s_mov_b32 s{d+3}, 0x20000")

def ln_stats(k, sx, sxx, t0, t1, Mout, Rout, SD=None):
    k.e(f"v_mul_f32 v{sx}, {f32(1/640)}, v{sx}")
    k.e(f"v_mul_f32 v{sxx}, {f32(1/640)}, v{sxx}")
    k.e(f"v_fma_f32 v{t0}, -v{sx}, v{sx}, v{sxx}")
    k.e(f"v_max_f32 v{t0}, 0, v{t0}")
    k.e(f"v_cvt_pk_bf16_f32 v{t1}, v{sx}, v{t0}")
    k.e(f"v_lshlrev_b32 v{Mout}, 16, v{t1}")
    k.e(f"v_and_b32 v{t0}, 0xffff0000, v{t1}")
    k.e(f"v_add_f32 v{t0}, {f32(1e-5)}, v{t0}")
    k.e(f"v_cvt_pk_bf16_f32 v{t0}, v{t0}, v{t0}")
    k.e(f"v_lshlrev_b32 v{t0}, 16, v{t0}")
    k.e(f"v_sqrt_f32 v{t0}, v{t0}")
    k.e(f"v_cvt_pk_bf16_f32 v{t0}, v{t0}, v{t0}")
    k.e(f"v_lshlrev_b32 v{t0}, 16, v{t0}")
    if SD is not None: k.e(f"v_mov_b32 v{SD}, v{t0}")
    k.e(f"v_rcp_f32 v{Rout}, v{t0}")

def half_sum(k, x, t):
    k.e(f"v_mov_b32 v{t}, v{x}", f"v_permlane32_swap_b32 v{t}, v{x}", f"v_add_f32 v{x}, v{t}, v{x}")

def split3(k, cs, d0, d1, t0, t1, neg=False):
    n = "-" if neg else ""
    k.e(f"v_cvt_pk_bf16_f32 v{t0}, v{cs}, v{cs}")
    k.e(f"v_lshlrev_b32 v{t0}, 16, v{t0}")
    k.e(f"v_sub_f32 v{t0}, v{cs}, v{t0}")
    k.e(f"v_cvt_pk_bf16_f32 v{t1}, v{t0}, v{t0}")
    k.e(f"v_cvt_pk_bf16_f32 v{d0}, {n}v{cs}, {n}v{t0}")
    k.e(f"v_lshlrev_b32 v{t1}, 16, v{t1}")
    k.e(f"v_sub_f32 v{t0}, v{t0}, v{t1}")
    k.e(f"v_cvt_pk_bf16_f32 v{d1}, {n}v{t0}, 0")

uid = [0]
def poll(k, vaddr, soff, vd, mask_lo, mask_hi, x4=False, preloaded=False):
    uid[0] += 1
    lp, dn = f"pl{uid[0]}", f"pd{uid[0]}"
    k.e(f"s_mov_b32 exec_lo, {mask_lo}", f"s_mov_b32 exec_hi, {mask_hi}", "s_mov_b32 s61, 0")
    ld = f"buffer_load_dwordx4 v[{vd}:{vd+3}], v{vaddr}, s[20:23], {soff} offen sc1" if x4 else f"buffer_load_dword v{vd}, v{vaddr}, s[20:23], {soff} offen sc1"
    def chk():
        if x4:
            k.e(f"v_xor_b32 v{vd}, s{TAG}, v{vd}", f"v_xor_b32 v{vd+1}, s{TAG}, v{vd+1}", f"v_xor_b32 v{vd+2}, s{TAG}, v{vd+2}", f"v_xor_b32 v{vd+3}, s{TAG}, v{vd+3}",
                f"v_or3_b32 v{vd}, v{vd}, v{vd+1}, v{vd+2}", f"v_or_b32 v{vd}, v{vd}, v{vd+3}", f"v_cmp_ne_u32 vcc, 0, v{vd}")
        else:
            k.e(f"v_cmp_ne_u32 vcc, s{TAG}, v{vd}")
    if preloaded:
        chk()
        k.e("s_nop 1", f"s_cbranch_vccz {k.lab(dn)}")
    k.label(lp)
    k.e(ld, "s_waitcnt vmcnt(0)")
    chk()
    k.e("s_add_u32 s61, s61, 1", f"s_cbranch_vccz {k.lab(dn)}", f"s_cmp_lt_u32 s61, {SPIN_MAX}", f"s_cbranch_scc1 {k.lab(lp)}")
    k.label(dn)
    k.e("s_mov_b64 exec, -1")

MISC = 65536

def a_map(k):
    k.e("s_and_b32 s52, s2, 7", "s_lshr_b32 s53, s2, 3",
        "s_and_b32 s54, s52, 1", "s_mul_i32 s54, s54, 30", "s_add_u32 s54, s54, s53",
        "s_lshr_b32 s25, s54, 2",
        "s_and_b32 s54, s54, 3", "s_lshr_b32 s52, s52, 1", "s_lshl_b32 s55, s52, 2", "s_add_u32 s26, s55, s54",
        "s_mul_i32 s54, s54, 5", "s_add_u32 s54, s54, 1", "s_lshr_b32 s54, s54, 1", "s_add_u32 s54, s54, s52",
        "s_add_u32 s27, s54, s25",
        "s_cmp_ge_u32 s27, 20", "s_cselect_b32 s54, 20, 0", "s_sub_u32 s27, s27, s54",
        "s_cmp_ge_u32 s27, 10", "s_cselect_b32 s54, 10, 0", "s_sub_u32 s27, s27, s54")
    if opt("norot_a"): k.e("s_mov_b32 s27, 0")

def a_table(k, wj_sgpr, pref):
    T = tables()
    k.e("s_cmp_ge_u32 s25, 5", "s_cselect_b32 s52, 5, 0", "s_sub_u32 s52, s25, s52", "s_min_u32 s52, s52, 5",
        "s_lshl_b32 s52, s52, 1", f"s_add_u32 s52, s52, s{wj_sgpr}")
    for i in range(12):
        p, wj = divmod(i, 2)
        if i < 11: k.e(f"s_cmp_lg_u32 s52, {i}", f"s_cbranch_scc1 {k.lab(f'{pref}{i+1}')}")
        for f in range(2):
            ch, R = T[p][2 * wj + f]
            b = [8 * c for c in ch]
            lo = b[0] | b[1] << 8 | b[2] << 16 | b[3] << 24
            hi = b[4] | b[5] << 8 | b[6] << 16 | b[7] << 24
            rr = R[0] | R[1] << 8 | R[2] << 16 | R[3] << 24
            k.e(f"s_mov_b32 s{54+3*f}, {lo:#x}", f"s_mov_b32 s{55+3*f}, {hi:#x}", f"s_mov_b32 s{56+3*f}, {rr:#x}")
        if i < 11:
            k.e(f"s_branch {k.lab(pref + 'd')}")
            k.label(f"{pref}{i+1}")
    k.label(pref + "d")

def a_waddr(k, d, lo, hi):
    k.e(f"v_bfe_u32 v{T0}, v{L}, 2, 2",
        f"v_bfe_u32 v{T1}, v{L}, 4, 1", f"v_cmp_eq_u32 vcc, 1, v{T1}",
        f"v_mov_b32 v{T1}, s{lo}", f"v_mov_b32 v{T2}, s{hi}", f"v_cndmask_b32 v{T1}, v{T1}, v{T2}, vcc",
        f"v_and_b32 v{T2}, 3, v{L}", f"v_lshlrev_b32 v{T2}, 3, v{T2}", f"v_bfe_u32 v{T1}, v{T1}, v{T2}, 8",
        f"v_lshlrev_b32 v{T2}, 6, v{T0}", f"v_xor_b32 v{T1}, v{T1}, v{T2}",
        f"v_lshl_add_u32 v{T0}, v{H}, 3, v{T0}", f"v_lshl_add_u32 v{d}, v{T0}, 8, v{T1}")

def a_xaddr(k, d, rowbase_sgpr):
    k.e(f"v_lshlrev_b32 v{T0}, 7, v{TK}", f"v_add_u32 v{T0}, s{rowbase_sgpr}, v{T0}",
        f"v_bfe_u32 v{T1}, v{TK}, 1, 3", f"v_xor_b32 v{T1}, v{T1}, v{H}")
    for ks in range(4):
        k.e(f"v_xor_b32 v{T2}, {2*ks}, v{T1}", f"v_lshl_add_u32 v{d+ks}, v{T2}, 4, v{T0}")

def a_compute(k):
    AX, AW = 16, 24
    AST = 28
    ACC = 64; FR = 128; EX = 176
    k.e("s_lshr_b32 s28, s24, 1", "s_and_b32 s29, s24, 1")
    a_table(k, 29, "ct")
    k.e("s_lshl_b32 s52, s28, 13")
    a_xaddr(k, AX, 52)
    for i in range(4): k.e(f"v_add_u32 v{AX+4+i}, 65536, v{AX+i}")
    a_waddr(k, AW, 54, 55); a_waddr(k, AW + 1, 57, 58)
    for i in range(2): k.e(f"v_add_u32 v{AW+2+i}, 65536, v{AW+i}")
    k.e("s_lshl_b32 s52, s26, 2", "s_lshl_b32 s53, s28, 1", "s_add_u32 s52, s52, s53")

    def reads(g):
        st, ks = divmod(g, 4)
        sl = st % 4; S = sl // 2; ob = (sl % 2) * 32768
        b = FR + 16 * (g % 3)
        o = []
        for t in range(2):
            o.append(f"ds_read_b128 v[{b+4*t}:{b+4*t+3}], v{AX+4*S+ks} offset:{ob+4096*t}")
        for f in range(2):
            for u in range(2):
                o.append(f"ds_read_b64_tr_b16 v[{b+8+4*f+2*u}:{b+8+4*f+2*u+1}], v{AW+2*S+f} offset:{ob+16384+ks*4096+u*1024}")
        return o

    def mainloop(vmode):
        stamp(k, 1)
        k.e("s_barrier")
        stamp(k, 2)
        k.e(*reads(0)); k.e(*reads(1))
        for g in range(40):
            b = FR + 16 * (g % 3)
            fill = []
            if g % 4 == 2 and g // 4 + 1 <= 9:
                k.e("s_waitcnt lgkmcnt(0)", "s_barrier")
            else:
                k.e(f"s_waitcnt lgkmcnt({6 if g + 1 < 40 else 0})")
            if g + 2 < 40: fill += reads(g + 2)
            mf = []
            for t in range(2):
                for f in range(2):
                    d = ACC + 32 * t + 16 * f
                    xa, wa = v(b + 4 * t, 4), v(b + 8 + 4 * f, 4)
                    A, B = (xa, wa) if vmode else (wa, xa)
                    c = "0" if g == 0 else v(d, 16)
                    mf.append(f"v_mfma_f32_32x32x16_bf16 {v(d,16)}, {A}, {B}, {c}")
            k.e(*interleave(mf, fill))
        stamp(k, 3)
        XO, WO, R = EX, EX + 8, EX + 16
        RD = FR
        k.e("s_lshl_b32 s53, s28, 8", f"s_add_u32 s53, s53, {MISC}", f"v_lshl_add_u32 v{T0}, v{TK}, 2, s53",
            "s_lshl_b32 s54, s29, 9", f"s_add_u32 s54, s54, {MISC+1024}", f"v_lshl_add_u32 v{T1}, v{TK}, 3, s54",
            f"v_lshl_add_u32 v{T2}, v{H}, 4, s53", f"v_mov_b32 v{T3}, {MISC}")
        for r in (XO+2, XO+3, XO+6, XO+7, WO+2, WO+3, WO+6, WO+7): k.e(f"v_mov_b32 v{r}, 0")
        k.e(f"v_cmp_gt_u32 vcc, 32, v{L}")
        k.e("s_barrier")
        stamp(k, 4)
        for t in range(2): k.e(f"ds_read_b32 v{XO+4*t}, v{T0} offset:{128*t}")
        for f in range(2): k.e(f"ds_read_b64 v[{WO+4*f}:{WO+4*f+1}], v{T1} offset:{256*f}")
        k.e(f"ds_read_b32 v{R+2}, v{T3} offset:2048")
        if vmode:
            for t in range(2):
                for q in range(4):
                    k.e(f"ds_read_b128 v[{RD+16*t+4*q}:{RD+16*t+4*q+3}], v{T2} offset:{512+128*t+32*q}")
        else:
            for t in range(2): k.e(f"ds_read_b32 v{R+t}, v{T0} offset:{512+128*t}")
        k.e(f"s_waitcnt lgkmcnt({8 if vmode else 2})")
        for t in range(2):
            k.e(f"v_cndmask_b32 v{XO+4*t}, 0, v{XO+4*t}, vcc", f"v_and_b32 v{XO+4*t+1}, 0xffff, v{XO+4*t}")
        k.e(f"v_readfirstlane_b32 s{TAG}, v{R+2}")
        for t in range(2):
            for f in range(2):
                d = ACC + 32 * t + 16 * f
                xa, wa = v(XO + 4 * t, 4), v(WO + 4 * f, 4)
                A, B = (xa, wa) if vmode else (wa, xa)
                k.e(f"v_mfma_f32_32x32x16_bf16 {v(d,16)}, {A}, {B}, {v(d,16)}")
        k.e("s_waitcnt lgkmcnt(0)")
        for t in range(2):
            for f in range(2):
                d = ACC + 32 * t + 16 * f
                for r in range(0, 16, 2):
                    if vmode: k.e(f"v_pk_mul_f32 v[{d+r}:{d+r+1}], v[{d+r}:{d+r+1}], v[{RD+16*t+r}:{RD+16*t+r+1}]")
                    else: k.e(f"v_pk_mul_f32 v[{d+r}:{d+r+1}], v[{d+r}:{d+r+1}], v[{R}:{R+1}] op_sel:[0,{t}] op_sel_hi:[1,{t}]")
                for j in range(8):
                    k.e(f"v_cvt_pk_bf16_f32 v{d+j}, v{d+2*j}, v{d+2*j+1}")
                for u in range(2):
                    k.e(f"buffer_store_dwordx4 v[{d+4*u}:{d+4*u+3}], v{AST+2*f+u}, s[20:23], s{30+t} offen sc1")
        k.e(f"s_branch {k.lab('a_pub')}")

    k.e("s_cmp_ge_u32 s25, 10", f"s_cbranch_scc1 {k.lab('vpath')}")
    k.e("s_cmp_ge_u32 s25, 5", f"s_cselect_b32 s53, {80*32768}, 0", "s_lshl_b32 s30, s52, 9", "s_add_u32 s30, s30, s53", "s_add_u32 s31, s30, 512")
    k.e(f"v_lshlrev_b32 v{T0}, 3, v{H}", f"v_lshlrev_b32 v{T1}, 4, v{TK}")
    for f in range(2):
        for u in range(2):
            k.e(f"v_add_u32 v{T2}, {16*u}, v{T0}", f"v_bfe_u32 v{T2}, s{56+3*f}, v{T2}, 8", f"v_lshl_add_u32 v{AST+2*f+u}, v{T2}, 15, v{T1}")
    mainloop(False)
    k.label("vpath")
    k.e("s_mul_i32 s30, s52, 40960", f"s_add_u32 s30, s30, {WS_V}", "s_add_u32 s31, s30, 40960",
        "s_sub_u32 s53, s25, 10", "s_lshl_b32 s53, s53, 11", "s_lshl_b32 s54, s29, 10", "s_add_u32 s53, s53, s54",
        f"v_mul_u32_u24 v{T0}, 10240, v{H}", f"v_lshl_add_u32 v{T0}, v{TK}, 4, v{T0}", f"v_add_u32 v{AST}, s53, v{T0}",
        f"v_add_u32 v{AST+1}, 20480, v{AST}", f"v_add_u32 v{AST+2}, 512, v{AST}", f"v_add_u32 v{AST+3}, {20480+512}, v{AST}")
    mainloop(True)
    k.label("a_pub")
    stamp(k, 5)
    k.e("s_lshr_b32 s52, s26, 1", "s_lshl_b32 s53, s52, 13", "s_and_b32 s54, s26, 1", "s_add_u32 s54, s54, 2", "s_lshl_b32 s54, s54, 4",
        "s_add_u32 s54, s54, s25", "s_lshl_b32 s54, s54, 2", "s_add_u32 s53, s53, s54", f"s_add_u32 s53, s53, {WS_FB}",
        f"v_mul_u32_u24 v{T0}, {8192-128}, v{H}", f"v_lshl_add_u32 v{T0}, v{TK}, 8, v{T0}",
        f"v_mov_b32 v{T1}, 1", f"v_mov_b32 v{T2}, s{TAG}",
        "s_cmp_eq_u32 s52, 7", "s_cselect_b32 s55, 0, -1")
    k.e("s_waitcnt vmcnt(0)")
    stamp(k, 6)
    k.e("s_barrier", "s_cmp_lg_u32 s24, 0", f"s_cbranch_scc1 {k.lab('a_done')}",
        "s_mov_b32 exec_hi, s55", f"buffer_store_dword v{T2}, v{T0}, s[20:23], s53 offen sc1", "s_mov_b64 exec, -1")

def spare(k):
    TG = 30
    tag_load(k, TG)
    k.e("s_sub_u32 s52, s2, 240", "s_lshl_b32 s52, s52, 3", "s_add_u32 s52, s52, s24", "s_lshl_b32 s52, s52, 10", "s_mov_b32 s53, s52")
    srd(k, 16, KWO, 640 * 1280)
    for i in range(7):
        k.e(f"buffer_load_dwordx4 v[32:35], v{L16}, s[16:19], s52 offen ; dummy", "s_add_u32 s52, s52, 131072")
    srd(k, 16, KW2, 1536 * 1280)
    for i in range(15):
        k.e(f"buffer_load_dwordx4 v[32:35], v{L16}, s[16:19], s53 offen ; dummy", "s_add_u32 s53, s53, 131072")
    k.e("s_waitcnt vmcnt(0)")
    tag_make(k, TG)
    stamp(k, 6)

def tag_load(k, d):
    k.e(f"v_mov_b32 v{T0}, 0", f"s_mov_b32 s52, {WS_EP}", f"buffer_load_dword v{d}, v{T0}, s[20:23], s52 offen sc1")
def tag_make(k, d):
    k.e(f"v_readfirstlane_b32 s{TAG}, v{d}", f"s_add_u32 s{TAG}, s{TAG}, 0x9e3779b9")
def misc_init(k):
    k.e(f"v_mov_b32 v20, s{TAG}", f"v_mov_b32 v{T3}, {MISC}", f"ds_write_b32 v{T3}, v20 offset:2048")

def a_loader(k):
    VXO, VWO = 16, 20
    AX, AW = 24, 28
    TG, PL = 30, 31
    D = 32
    vm = VM()
    k.e("s_sub_u32 s31, s24, 4")
    tag_load(k, TG); vm.add("tag")
    srd(k, 16, KWQKV, 640 * 3840)
    k.e("s_lshl_b32 s29, s31, 12",
        "s_mul_i32 s28, s26, 163840", "s_lshl_b32 s52, s27, 7", "s_add_u32 s58, s28, s52", "s_add_u32 s28, s28, 1280",
        "s_lshl_b32 s59, s25, 8", "s_mul_i32 s52, s27, 245760", "s_add_u32 s59, s59, s52")
    k.e(f"v_lshrrev_b32 v{T0}, 3, v{L}", "s_lshl_b32 s52, s31, 5", f"v_add_u32 v{T0}, s52, v{T0}", f"v_mul_u32_u24 v{T0}, 1280, v{T0}",
        f"v_and_b32 v{T1}, 7, v{L}", f"v_lshrrev_b32 v{T2}, 4, v{L}", f"v_xor_b32 v{T1}, v{T1}, v{T2}", f"v_lshl_add_u32 v{VXO}, v{T1}, 4, v{T0}",
        f"v_xor_b32 v{T0}, 64, v{VXO}", f"v_add_u32 v{VXO+1}, {10240-1024}, v{T0}", f"v_add_u32 v{VXO+2}, {2*(10240-1024)}, v{VXO}",
        f"v_add_u32 v{VXO+3}, {3*(10240-1024)}, v{T0}")
    k.e("s_lshl_b32 s52, s31, 4", f"v_add_u32 v{T0}, s52, v{T2}", f"v_mul_u32_u24 v{T0}, 3840, v{T0}",
        f"v_and_b32 v{T1}, 15, v{L}", f"v_lshlrev_b32 v{T3}, 2, v{T2}", f"v_xor_b32 v{T1}, v{T1}, v{T3}", f"v_lshl_add_u32 v{VWO}, v{T1}, 4, v{T0}")
    for j in range(1, 4): k.e(f"v_add_u32 v{VWO+j}, {j*(15360-1024)}, v{VWO}")
    CP = int(([a[4:] for a in sys.argv if a.startswith("-cp=")] + ["12"])[0])
    nxt = [0]
    def issue_to(q):
        while nxt[0] < min(q, 80):
            st, i = divmod(nxt[0], 8)
            sl = st % 4
            if i == 0: k.e(f"s_add_u32 m0, s29, {sl*32768}")
            if i == 4: k.e(f"s_add_u32 m0, s29, {sl*32768+16384}")
            if opt("nodma") and st >= 4:
                if i == 0: k.e(f"buffer_load_dwordx4 v{VXO+i}, s[12:15], s58 offen offset:{1024*i} lds"); vm.add(st)
                nxt[0] += 1; continue
            if i < 4: k.e(f"buffer_load_dwordx4 v{VXO+i}, s[12:15], s58 offen offset:{1024*i} lds")
            else: k.e(f"buffer_load_dwordx4 v{VWO+i-4}, s[16:19], s59 offen offset:{1024*(i-4)} lds")
            vm.add(st)
            if i == 7 and st < 9:
                k.e("s_add_u32 s58, s58, 128", "s_add_u32 s59, s59, 245760", "s_cmp_ge_u32 s58, s28",
                    "s_cselect_b32 s52, 1280, 0", "s_cselect_b32 s53, 2457600, 0", "s_sub_u32 s58, s58, s52", "s_sub_u32 s59, s59, s53")
            nxt[0] += 1
    issue_to(8)
    k.e("s_mov_b32 s60, s58", "s_mov_b32 s30, s59", "s_lshr_b32 s61, s31, 1")
    a_table(k, 61, "lt")
    k.e("s_bitcmp1_b32 s31, 0", "s_cselect_b32 s54, s57, s54", "s_cselect_b32 s55, s58, s55")
    a_waddr(k, AW, 54, 55)
    a_xaddr(k, AX, 29)
    k.e("s_mov_b32 s58, s60", "s_mov_b32 s59, s30")
    k.e("s_mul_i32 s4, s26, 20480", "s_lshl_b32 s56, s31, 9", "s_add_u32 s4, s4, s56", f"s_add_u32 s4, s4, {WS_XST}",
        "s_mul_i32 s5, s25, 10240", "s_lshl_b32 s57, s31, 8", "s_add_u32 s5, s5, s57", f"s_add_u32 s5, s5, {WS_WST}",
        "s_lshl_b32 s55, s27, 11", "s_add_u32 s55, s55, s4", "s_lshl_b32 s56, s27, 10", "s_add_u32 s56, s56, s5", f"s_mov_b32 s54, {ONES}")
    issue_to(8 + CP)
    stamp(k, 1)
    k.e(vm.wait(0), "s_barrier")
    stamp(k, 2)
    tag_make(k, TG)
    for ks in range(4): k.e(f"ds_read_b128 v[{D+4*ks}:{D+4*ks+3}], v{AX+ks}")
    for ks in range(4):
        for u in range(2): k.e(f"ds_read_b64_tr_b16 v[{D+16+4*ks+2*u}:{D+16+4*ks+2*u+1}], v{AW} offset:{16384+ks*4096+u*1024}")
    SX, SXX, CS = 64, 66, 68
    k.e(f"v_mov_b32 v{SX}, 0", f"v_mov_b32 v{SXX}, 0", f"v_mov_b32 v{CS}, 0",
        f"v_mov_b32 v{SX+1}, s{TAG}", f"v_mov_b32 v{SXX+1}, s{TAG}", f"v_mov_b32 v{CS+1}, s{TAG}",
        f"v_lshlrev_b32 v{T2}, 4, v{TK}", f"v_lshlrev_b32 v{T3}, 3, v{TK}")
    issue_to(16 + CP)
    k.e("s_waitcnt lgkmcnt(0)", vm.wait(1), "s_barrier")
    PX, PW = 70, 71
    def partials():
        for i in range(5):
            k.e(f"buffer_load_dwordx4 v[{D+4*i}:{D+4*i+3}], v{PX}, s[20:23], s{(4,6,7)[i//2]} offen offset:{2048*(i%2)} sc1")
            k.e(f"buffer_load_dwordx2 v[{D+20+2*i}:{D+21+2*i}], v{PW}, s[20:23], s{(5,8)[i//4]} offen offset:{1024*(i%4)} sc1")
    for j in range(2, 10):
        if j < 6:
            for i in range(4 * (j - 2), 4 * (j - 1)):
                issue_to(8 * j + CP + 2 * (i % 4 + 1))
                k.e(f"v_lshlrev_b32 v{T0}, 16, v{D+i}", f"v_and_b32 v{D+i}, 0xffff0000, v{D+i}", f"v_lshlrev_b32 v{T1}, 16, v{D+16+i}", f"v_and_b32 v{D+16+i}, 0xffff0000, v{D+16+i}",
                    f"v_add_f32 v{SX}, v{SX}, v{T0}", f"v_fmac_f32 v{SXX}, v{T0}, v{T0}", f"v_add_f32 v{CS}, v{CS}, v{T1}",
                    f"v_add_f32 v{SX}, v{SX}, v{D+i}", f"v_fmac_f32 v{SXX}, v{D+i}, v{D+i}", f"v_add_f32 v{CS}, v{CS}, v{D+16+i}")
        if j == 5:
            half_sum(k, SX, T0); half_sum(k, SXX, T1); half_sum(k, CS, T0)
            k.e("s_mov_b32 exec_hi, 0", f"buffer_store_dwordx4 v[{SX}:{SX+3}], v{T2}, s[20:23], s55 offen sc1",
                f"buffer_store_dwordx2 v[{CS}:{CS+1}], v{T3}, s[20:23], s56 offen sc1", "s_mov_b64 exec, -1")
            vm.add("st", 2)
        if j == 6:
            k.e(f"v_mul_u32_u24 v{PX}, 10240, v{H}", f"v_lshl_add_u32 v{PX}, v{TK}, 4, v{PX}", f"v_lshrrev_b32 v{PW}, 1, v{PX}",
                "s_add_u32 s6, s4, 4096", "s_add_u32 s7, s4, 8192", "s_add_u32 s8, s5, 4096")
        issue_to(8 * (j + 1) + CP)
        if j == 9:
            partials(); vm.add("pt", 10)
        k.e(vm.wait(j), "s_barrier")
    misc_init(k)
    k.e("s_mov_b32 s61, 0")
    k.label("pt_chk")
    k.e("s_waitcnt vmcnt(0)")
    k.e(f"v_xor_b32 v{T0}, s{TAG}, v{D+1}")
    for i in range(1, 15, 2):
        k.e(f"v_xor_b32 v{T1}, s{TAG}, v{D+1+2*i}", f"v_xor_b32 v9, s{TAG}, v{D+3+2*i}", f"v_or3_b32 v{T0}, v{T0}, v{T1}, v9")
    k.e(f"v_cmp_ne_u32 vcc, 0, v{T0}", "s_add_u32 s61, s61, 1", f"s_cbranch_vccz {k.lab('pt_ok')}", f"s_cmp_gt_u32 s61, {SPIN_MAX}", f"s_cbranch_scc1 {k.lab('pt_ok')}")
    partials()
    k.e(f"s_branch {k.lab('pt_chk')}")
    k.label("pt_ok")
    stamp(k, 3)
    for i in range(1, 5):
        k.e(f"v_add_f32 v{D}, v{D}, v{D+4*i}", f"v_add_f32 v{D+2}, v{D+2}, v{D+4*i+2}", f"v_add_f32 v{D+20}, v{D+20}, v{D+20+2*i}")
    half_sum(k, D, T0); half_sum(k, D + 2, T1); half_sum(k, D + 20, T2)
    ln_stats(k, D, D + 2, T0, T1, D + 4, D + 5)
    split3(k, D + 20, D + 12, D + 13, T0, T1)
    k.e("s_cmp_lt_u32 s25, 5", f"s_cselect_b32 s52, {f32(CSC)}, {f32(1.0)}", f"v_mul_f32 v{D+5}, s52, v{D+5}",
        f"v_cvt_pk_bf16_f32 v{D+4}, -v{D+4}, -v{D+4}",
        "s_lshl_b32 s52, s31, 7", f"s_add_u32 s52, s52, {MISC}", f"v_lshl_add_u32 v{T0}, v{TK}, 2, s52",
        "s_lshl_b32 s52, s31, 8", f"s_add_u32 s52, s52, {MISC+1024}", f"v_lshl_add_u32 v{T1}, v{TK}, 3, s52",
        f"ds_write_b32 v{T0}, v{D+4}", f"ds_write_b32 v{T0}, v{D+5} offset:512", f"ds_write_b64 v{T1}, v[{D+12}:{D+13}]",
        "s_waitcnt lgkmcnt(0)", "s_barrier")
    stamp(k, 4)
    k.e("s_barrier")

def build():
    k = Kern("mega_kernel", 256, 512, 163840, nvgpr=256, nsgpr=100)
    k.e("s_cmp_ge_u32 s2, 256", f"s_cbranch_scc1 {k.lab('end')}")
    if STAMP:
        k.e("s_memtime s[62:63]", "s_waitcnt lgkmcnt(0)", "s_mov_b32 s94, s62")
        for i in range(1, 30): k.e(f"s_mov_b32 s{64+i}, 0")
    stamp(k, 0)
    k.e("s_load_dwordx16 s[32:47], s[0:1], 0", "s_load_dwordx4 s[48:51], s[0:1], 64")
    k.e(f"v_lshrrev_b32 v{T0}, 6, v0", f"v_and_b32 v{L}, 63, v0", f"v_readfirstlane_b32 s24, v{T0}",
        f"v_lshlrev_b32 v{L16}, 4, v{L}", f"v_lshrrev_b32 v{H}, 5, v{L}", f"v_and_b32 v{TK}, 31, v{L}")
    a_map(k)
    k.e("s_waitcnt lgkmcnt(0)")
    srd(k, 20, KWS, WS_SRD); srd(k, 12, KX, X_BYTES)
    k.e("s_cmp_ge_u32 s2, 240", f"s_cbranch_scc1 {k.lab('spare')}")
    k.e("s_cmp_lt_u32 s24, 4", f"s_cbranch_scc1 {k.lab('compute')}")
    a_loader(k)
    k.e(f"s_branch {k.lab('a_done')}")
    k.label("spare")
    spare(k)
    k.e(f"s_branch {k.lab('a_done')}")
    k.label("compute")
    k.e("s_getpc_b64 s[52:53]")
    k.label("pc")
    k.e(f"s_sub_u32 s52, s52, {k.lab('pc')}-{k.name}", "s_subb_u32 s53, s53, 0", f"v_lshlrev_b32 v{T0}, 6, v0")
    for i in range(3):
        k.e(f"v_min_u32 v{T1}, {k.lab('end')}-{k.name}, v{T0}", f"global_load_dword v9, v{T1}, s[52:53] ; dummy")
        if i < 2: k.e(f"v_add_u32 v{T0}, 16384, v{T0}")
    k.e(f"v_lshlrev_b32 v{T0}, 6, v{L}", "s_mul_i32 s54, s2, 704", f"s_min_u32 s54, s54, {163840-704}", f"s_add_u32 s54, s54, {WS_FB}", "s_mov_b64 exec, 0x7ff",
        f"buffer_load_dword v9, v{T0}, s[20:23], s54 offen sc1 ; dummy", "s_mov_b64 exec, -1")
    a_compute(k)
    k.label("a_done")
    if UPTO != "A":
        import phases
        phases.rest(k)
    k.label("fin")
    stamp_out(k)
    k.label("end")
    k.e("s_endpgm")
    return k

HEADER = open("cdna_kernels/" + NAME + ".s.ref").read().split("; Override launch geometry")[0].rstrip()

if __name__ == "__main__":
    sys.modules["gen2"] = sys.modules["__main__"]
    out = sys.argv[1] if len(sys.argv) > 1 and not sys.argv[1].startswith("-") else "cdna_kernels/" + NAME + ".s"
    n = write_file(out, [build()], HEADER, verbose="-v" in sys.argv)
    print("errors:", n)
```

```python
import sys
from asmlib import *
from gen2 import *
import gen2 as G

LK, LV, LQ = 106496, 131072, 151552

def push_flags(k, base_sgpr, vaddr, mask_lo, wave=0):
    k.e(f"v_mov_b32 v{T3}, s{TAG}", f"s_cmp_eq_u32 s24, {wave}", f"s_cselect_b32 exec_lo, {mask_lo}, 0", "s_mov_b32 exec_hi, 0",
        f"buffer_store_dword v{T3}, v{vaddr}, s[20:23], s{base_sgpr} offen sc1", "s_mov_b64 exec, -1")

WV = 88
def wv_offsets(k, d=WV, sh=0, mul=0):
    for i in range(5):
        k.e(f"v_add_u32 v{T0}, {64*i}, v{L}", f"v_mul_u32_u24 v{T1}, 6554, v{T0}", f"v_lshrrev_b32 v{T1}, 16, v{T1}")
        if mul: k.e(f"v_lshrrev_b32 v{T2}, {sh}, v{T1}", f"v_mul_u32_u24 v{T2}, {1280*mul}, v{T2}")
        k.e(f"v_mul_u32_u24 v{T1}, {1280-160}, v{T1}", f"v_lshl_add_u32 v{d+i}, v{T0}, 4, v{T1}")
        if mul: k.e(f"v_add_u32 v{d+i}, v{d+i}, v{T2}")
        if i % 4: k.e(f"v_subrev_u32 v{d+i}, {1024*(i%4)}, v{d+i}")
def step_dma(d, lds_s, soff, lds_add=0):
    o = [[f"s_add_u32 m0, s{lds_s}, {lds_add}"]] + [[] for _ in range(4)]
    o[4].append(f"s_add_u32 m0, s{lds_s}, {lds_add+4096}")
    for i in range(5): o[i].append(f"buffer_load_dwordx4 v{d+i}, s[16:19], s{soff} offen offset:{1024*(i%4)} lds")
    return o

def phase_b(k):
    AK, AKE, AV = 16, 17, 18
    VV = 20
    QM, QE = 28, 32
    KB = 36
    VB = 60
    OA, MB = 72, 76
    MX, MC = 80, 81
    DUM = 84
    O = 96
    SB = 112
    k.e("s_and_b32 s52, s2, 7", "s_lshr_b32 s53, s2, 3", "s_lshr_b32 s54, s53, 3", "s_lshl_b32 s25, s52, 2", "s_add_u32 s25, s25, s54",
        "s_and_b32 s26, s53, 7")
    wv_offsets(k, WV, 4, 4)
    k.e("s_cmp_lt_u32 s24, 4", f"s_cbranch_scc1 {k.lab('b_init')}")
    k.e("s_sub_u32 s31, s24, 4")
    for i in range(5):
        k.e(f"v_add_u32 v{T0}, {64*i}, v{L}", f"v_mul_u32_u24 v{T1}, 3277, v{T0}", f"v_lshrrev_b32 v{T1}, 16, v{T1}",
            f"v_mul_u32_u24 v{T1}, {10240-320}, v{T1}", f"v_lshl_add_u32 v{VV+i}, v{T0}, 4, v{T1}")
        if i % 4: k.e(f"v_subrev_u32 v{VV+i}, {1024*(i%4)}, v{VV+i}")
    k.e("s_lshr_b32 s52, s25, 1", "s_mul_i32 s52, s52, 5", "s_and_b32 s53, s25, 1", "s_lshl_b32 s53, s53, 1", "s_add_u32 s53, s53, s52",
        "s_lshl_b32 s4, s53, 15", "s_add_u32 s5, s4, 32768", "s_add_u32 s52, s52, 4", "s_lshl_b32 s6, s52, 15",
        "s_lshl_b32 s54, s26, 1", "s_add_u32 s54, s54, s31",
        "s_cmp_lt_u32 s54, 2", "s_cselect_b32 s55, 0, 2", "s_sub_u32 s54, s54, s55",
        "s_lshl_b32 s7, s54, 11", f"s_add_u32 s7, s7, {80*32768}",
        "s_lshl_b32 s8, s26, 12", "s_lshl_b32 s55, s31, 10", "s_add_u32 s8, s8, s55",
        "s_mul_i32 s9, s54, 163840", "s_mul_i32 s55, s25, 320", "s_add_u32 s9, s9, s55", f"s_add_u32 s9, s9, {WS_V}",
        "s_lshl_b32 s10, s26, 13", "s_lshl_b32 s55, s25, 8", "s_add_u32 s10, s10, s55", f"s_add_u32 s10, s10, {WS_FB}",
        "s_cmp_eq_u32 s26, 0", "s_cselect_b32 s11, 0, 0x7fe07fe0", f"v_lshlrev_b32 v{T2}, 2, v{L}")
    k.e("s_cmp_lg_u32 s24, 4", f"s_cbranch_scc1 {k.lab('b_np')}")
    poll(k, T2, "s10", T0, "s11", "0x7fff7fff")
    k.label("b_np")
    k.e("s_barrier")
    stamp(k, 7)
    k.e("s_lshl_b32 s52, s31, 11", "s_lshl_b32 s53, s31, 10")
    for p in range(3):
        k.e(f"s_add_u32 m0, s53, {LQ+4096*p}", f"s_add_u32 s54, s{4+p}, s8", f"buffer_load_dwordx4 v{L16}, s[20:23], s54 offen sc1 lds",
            f"s_add_u32 m0, s52, {LK+8192*p}", f"s_add_u32 s54, s{4+p}, s7", f"buffer_load_dwordx4 v{L16}, s[20:23], s54 offen sc1 lds",
            f"buffer_load_dwordx4 v{L16}, s[20:23], s54 offen offset:1024 sc1 lds")
    k.e("s_mul_i32 s52, s31, 5120", f"s_add_u32 m0, s52, {LV}")
    for i in range(5):
        if i == 4: k.e(f"s_add_u32 m0, s52, {LV+4096}")
        k.e(f"buffer_load_dwordx4 v{VV+i}, s[20:23], s9 offen offset:{1024*(i%4)} sc1 lds")
    k.e("s_lshl_b32 s54, s2, 2", "s_add_u32 s54, s54, s31", "s_lshl_b32 s54, s54, 11")
    for m in (KW1, KW3):
        srd(k, 16, m, 640 * 3072)
        for i in range(2): k.e(f"buffer_load_dwordx4 v[{DUM}:{DUM+3}], v{L16}, s[16:19], s54 offen offset:{1024*i} ; dummy")
    k.label("b_init")
    k.e("s_lshl_b32 s52, s24, 9", f"s_add_u32 s53, s52, {LK}", f"v_lshl_add_u32 v{AKE}, v{TK}, 4, s53", f"v_lshl_add_u32 v{AK}, v{H}, 13, v{AKE}",
        "s_mul_i32 s53, s24, 1280", f"s_add_u32 s53, s53, {LV}", f"v_mul_u32_u24 v{T1}, 320, v{H}", f"v_lshl_add_u32 v{T1}, v{TK}, 4, v{T1}", f"v_add_u32 v{AV}, s53, v{T1}",
        f"s_add_u32 s53, s52, {LQ}", f"v_lshl_add_u32 v{MX}, v{TK}, 4, s53", f"v_lshl_add_u32 v{MC}, v{H}, 12, v{MX}")
    k.e("s_lshl_b32 s27, s26, 3", "s_add_u32 s27, s27, s24", f"s_mov_b32 s54, {NEGBIG}")
    k.e(f"v_lshlrev_b32 v{T1}, 2, v{H}", f"v_sub_u32 v{T1}, v{TK}, v{T1}", f"v_mov_b32 v{T2}, s54",
        "s_cmp_ge_u32 s27, 8", "s_cselect_b32 s55, 0, s54", f"v_mov_b32 v{T3}, s55")
    for r in range(16):
        kk = (r & 3) + 8 * (r >> 2)
        k.e(f"v_cmp_le_i32 vcc, {kk}, v{T1}", f"v_cndmask_b32_e64 v{SB+128+r}, v{T2}, 0, vcc", f"v_cndmask_b32 v{SB+r}, v{T3}, v{T2}, vcc")
    for i in range(1, 8):
        k.e(f"s_cmp_ge_u32 s27, {8-i}", "s_cselect_b32 s55, 0, s54", f"v_mov_b32 v{T3}, s55")
        for r in range(16): k.e(f"v_mov_b32 v{SB+16*i+r}, v{T3}")
    for r in range(12): k.e(f"v_mov_b32 v{VB+r}, {ONES}")
    k.e(f"v_mov_b32 v{OA}, {ONES}", f"v_mov_b32 v{OA+1}, 0x3f80", f"v_mov_b32 v{OA+2}, 0", f"v_mov_b32 v{OA+3}, 0",
        f"v_mov_b32 v{MB+2}, 0", f"v_mov_b32 v{MB+3}, 0")
    k.e("s_bitcmp1_b32 s25, 0", "s_cselect_b32 s28, 0, -1", "s_cselect_b32 s56, -1, 0", "s_mov_b32 s29, 0", "s_mov_b32 s57, 0",
        "s_mov_b32 s58, 0x000fffff", "s_mov_b32 s59, 0x000fffff")
    k.e("s_cmp_ge_u32 s24, 4", f"s_cbranch_scc1 {k.lab('b_nb')}", "s_barrier")
    k.label("b_nb")
    stamp(k, 8)
    k.e("s_waitcnt vmcnt(9)", "s_barrier")
    stamp(k, 9)
    def kread(i):
        b = KB + 8 * (i % 3)
        return [f"ds_read_b128 v[{b}:{b+3}], v{AK} offset:{512*i}", f"ds_read_b128 v[{b+4}:{b+7}], v{AKE} offset:{512*i+16384}"]
    def vread(n):
        b = VB + 4 * (n % 3)
        return ["s_mov_b64 exec, s[58:59]", f"ds_read_b128 v[{b}:{b+3}], v{AV} offset:{640*n}", "s_mov_b64 exec, -1"]
    def maxops(i):
        sb = SB + 16 * i
        o = []
        if i == 0:
            o.append(f"v_max_f32 v{MX}, v{sb}, v{sb+1}"); o.append(f"v_max_f32 v{MC}, v{sb+2}, v{sb+3}")
            rs = list(range(4, 16))
        else: rs = list(range(16))
        for j in range(0, len(rs), 2):
            d = MX if (j // 2) % 2 == 0 else MC
            o.append(f"v_max3_f32 v{d}, v{sb+rs[j]}, v{sb+rs[j+1]}, v{d}")
        return o
    k.e(f"ds_read_b128 v[{QM}:{QM+3}], v{MC}", f"ds_read_b128 v[{QE}:{QE+3}], v{MX} offset:8192")
    k.e(*kread(0)); k.e(*kread(1))
    k.e("s_waitcnt lgkmcnt(4)")
    k.e(f"v_cndmask_b32_e64 v{QE}, 0, v{QE}, s[28:29]", f"v_cndmask_b32_e64 v{QE+1}, 0, v{QE+1}, s[28:29]",
        f"v_cndmask_b32_e64 v{QE+2}, 0, v{QE+2}, s[56:57]", f"v_cndmask_b32_e64 v{QE+3}, 0, v{QE+3}, s[56:57]")
    for i in range(9):
        b = KB + 8 * (i % 3); sb = SB + 16 * i
        k.e(f"s_waitcnt lgkmcnt({2 if i < 8 else 0})")
        mf = [f"v_mfma_f32_32x32x16_bf16 {v(sb,16)}, {v(b,4)}, {v(QM,4)}, {v(sb,16)}",
              f"v_mfma_f32_32x32x16_bf16 {v(sb,16)}, {v(b+4,4)}, {v(QE,4)}, {v(sb,16)}"]
        fill = []
        if i + 2 < 9: fill += kread(i + 2)
        if i >= 2: fill += maxops(i - 2)
        k.e(*interleave(mf, fill))
    k.e(*maxops(7)); k.e(*maxops(8))
    k.e("s_waitcnt vmcnt(4)", "s_barrier")
    stamp(k, 10)
    k.e(*vread(0)); k.e(*vread(1))
    k.e(f"v_max_f32 v{MX}, v{MX}, v{MC}", f"v_mov_b32 v{MC}, v{MX}", f"v_permlane32_swap_b32 v{MC}, v{MX}", f"v_max_f32 v{MX}, v{MX}, v{MC}")
    split3(k, MX, MB, MB + 1, T0, T1, neg=True)
    k.e(f"v_cmp_gt_u32 vcc, 32, v{L}", f"v_cndmask_b32 v{MB}, 0, v{MB}, vcc", f"v_cndmask_b32 v{MB+1}, 0, v{MB+1}, vcc")
    def sub(i): return f"v_mfma_f32_32x32x16_bf16 {v(SB+16*i,16)}, {v(OA,4)}, {v(MB,4)}, {v(SB+16*i,16)}"
    def soft(i, u):
        sb = SB + 16 * i + 8 * u
        o = [f"v_exp_f32 v{sb+r}, v{sb+r}" for r in range(8)]
        o += [f"v_cvt_pk_bf16_f32 v{sb+j}, v{sb+2*j}, v{sb+2*j+1}" for j in range(4)]
        return o
    k.e(sub(0), sub(1))
    srd(k, 16, KWO, 640 * 1280)
    k.e("s_mul_i32 s6, s26, 160", "s_add_u32 s4, s24, s26", "s_and_b32 s4, s4, 7", "s_mul_i32 s4, s4, 51200", "s_add_u32 s4, s4, s6", f"s_add_u32 s7, s4, {8*51200}",
        "s_cmp_ge_u32 s24, 3", "s_cselect_b32 s5, 2, 0", "s_add_u32 s5, s5, s24", "s_mul_i32 s5, s5, 10240")
    wo = step_dma(WV, 5, 4) + step_dma(WV, 5, 7, 5120)
    k.e(*soft(0, 0))
    for n in range(18):
        i, u = divmod(n, 2)
        sb = SB + 16 * i + 8 * u
        b = VB + 4 * (n % 3)
        nxt = soft(*divmod(n + 1, 2)) if n + 1 < 18 else []
        k.e(*nxt[:3])
        k.e(f"s_waitcnt lgkmcnt({1 if n < 17 else 0})")
        k.e(f"v_mfma_f32_32x32x16_bf16 {v(O,16)}, {v(b,4)}, {v(sb,4)}, {'0' if n == 0 else v(O,16)}")
        if n + 2 < 18: k.e(*vread(n + 2))
        k.e(*nxt[3:7])
        if u == 0 and i + 2 < 9: k.e(sub(i + 2))
        if n < 10: k.e(*wo[n])
        k.e(*nxt[7:])
    k.e("s_cmp_ge_u32 s24, 4", f"s_cbranch_scc1 {k.lab('b_w')}")
    wv_offsets(k, WV, 2, 16)
    k.e("s_mul_i32 s4, s24, 204800", "s_add_u32 s4, s4, s6", "s_add_u32 s4, s4, 20480", "s_and_b32 s5, s24, 1", "s_lshl_b32 s5, s5, 1", "s_lshr_b32 s7, s24, 1",
        "s_add_u32 s5, s5, s7", "s_mul_i32 s5, s5, 5120")
    for x in step_dma(WV, 5, 4, 6 * 5120): k.e(*x)
    k.label("b_w")
    k.e(f"v_lshrrev_b32 v{T0}, 4, v{TK}", f"v_mul_u32_u24 v{T0}, 20480, v{T0}", f"v_and_b32 v{T1}, 15, v{L}",
        f"v_lshl_add_u32 v{T3}, v{T1}, 3, v{T0}", f"v_lshl_add_u32 v{T0}, v{T1}, 4, v{T0}", f"v_lshl_add_u32 v{T1}, v{H}, 8, v{T0}")
    k.e("s_mul_i32 s52, s27, 40960", f"s_add_u32 s52, s52, {WS_O}", "s_lshl_b32 s53, s25, 9", "s_add_u32 s53, s53, s52",
        "s_lshl_b32 s54, s25, 7", "s_add_u32 s54, s54, s52", "s_add_u32 s54, s54, 16384")
    k.e(f"v_rcp_f32 v{T2}, v{O+12}")
    for r in range(12): k.e(f"v_mul_f32 v{O+r}, v{O+r}, v{T2}")
    for j in range(6): k.e(f"v_cvt_pk_bf16_f32 v{O+j}, v{O+2*j}, v{O+2*j+1}")
    k.e(f"buffer_store_dwordx4 v[{O}:{O+3}], v{T1}, s[20:23], s53 offen sc1")
    k.e("s_mov_b32 exec_hi, 0", f"buffer_store_dwordx2 v[{O+4}:{O+5}], v{T3}, s[20:23], s54 offen sc1", "s_mov_b64 exec, -1")
    k.e("s_lshl_b32 s52, s26, 12", "s_lshl_b32 s53, s25, 2", "s_add_u32 s52, s52, s53", f"s_add_u32 s52, s52, {WS_FC}", f"v_lshlrev_b32 v{T0}, 7, v{L}")
    stamp(k, 11)
    k.e("s_waitcnt vmcnt(0)", "s_barrier")
    stamp(k, 12)
    push_flags(k, 52, T0, -1)

WR, ACT, ACC = 96, 56, 36
LA, NAT, XR = 16, 22, 24
G_, TOK = 30, 31
DW = 32
def ce_setup(k, khs, set2):
    k.e("s_and_b32 s52, s2, 7", "s_lshr_b32 s53, s2, 3", "s_lshr_b32 s54, s53, 3", "s_lshl_b32 s25, s52, 2", "s_add_u32 s25, s25, s54",
        "s_and_b32 s26, s53, 7", "s_and_b32 s28, s24, 3", "s_lshr_b32 s29, s24, 2")
    k.e(f"v_lshrrev_b32 v{G_}, 4, v{L}", f"v_and_b32 v{TOK}, 15, v{L}")
    k.e(f"v_bfe_u32 v{T0}, v{L}, 2, 3", f"v_lshl_add_u32 v{T0}, v{H}, 4, v{T0}", f"v_mul_u32_u24 v{T0}, 160, v{T0}",
        f"v_and_b32 v{T1}, 3, v{L}", f"v_lshl_add_u32 v{T0}, v{T1}, 3, v{T0}", f"s_mul_i32 s53, s29, {khs}", f"v_add_u32 v{LA+2}, s53, v{T0}",
        "s_lshl_b32 s52, s29, 6", f"v_add_u32 v{LA}, s52, v{LA+2}", "s_xor_b32 s52, s52, 64", f"v_add_u32 v{LA+1}, s52, v{LA+2}")
    for j in range(3): k.e(f"v_add_u32 v{LA+3+j}, {set2}, v{LA+j}")
    k.e("s_lshl_b32 s52, s25, 2", "s_add_u32 s27, s52, s28", "s_mul_i32 s52, s27, 20480", "s_mul_i32 s53, s26, 160", "s_add_u32 s30, s52, s53",
        f"v_mul_u32_u24 v{NAT}, 1280, v{TOK}", f"v_lshl_add_u32 v{NAT+1}, v{G_}, 3, v{NAT}",
        f"v_lshl_add_u32 v{NAT}, v{H}, 4, v{NAT}", f"v_bfe_u32 v{T0}, v{L}, 4, 1", f"v_lshl_add_u32 v{NAT}, v{T0}, 5, v{NAT}",
        "s_lshl_b32 s52, s29, 6", "s_add_u32 s31, s30, s52")
def w_reads(st, off, dst):
    o = []
    for f in range(5):
        for u in range(2):
            o.append(f"ds_read_b64_tr_b16 v[{dst+4*f+2*u}:{dst+4*f+2*u+1}], v{LA+3*st+(f>>1)} offset:{off+1280*u+(32*(f&1) if f < 4 else 128)}")
    return o
def ce_mfma(wb, ab, first):
    return [f"v_mfma_f32_16x16x32_bf16 {v(ACC+4*f,4)}, {v(wb+4*f,4)}, {v(ab,4)}, {'0' if first else v(ACC+4*f,4)}" for f in range(5)]
def ce_epilogue(k, xb, res, out):
    X = ACT
    k.e("s_mul_i32 s52, s24, 3072", f"s_add_u32 s52, s52, {xb}", f"v_add_u32 v{T0}, s52, v{L16}",
        "s_xor_b32 s53, s24, 4", "s_mul_i32 s53, s53, 3072", f"s_add_u32 s53, s53, {xb}", f"v_add_u32 v{T1}, s53, v{L16}")
    k.e(f"ds_write_b128 v{T0}, {v(ACC+8,4)}", f"ds_write_b128 v{T0}, {v(ACC+12,4)} offset:1024", f"ds_write_b128 v{T0}, {v(ACC+16,4)} offset:2048")
    k.e("s_waitcnt lgkmcnt(0)", "s_barrier")
    for j in range(3): k.e(f"ds_read_b128 {v(X+4*j,4)}, v{T1} offset:{1024*j}")
    k.e("s_waitcnt lgkmcnt(0)")
    for r in range(0, 8, 2): k.e(f"v_pk_add_f32 {v(ACC+r,2)}, {v(ACC+r,2)}, {v(X+r,2)}")
    for r in range(0, 4, 2): k.e(f"v_pk_add_f32 {v(ACC+16+r,2)}, {v(ACC+16+r,2)}, {v(X+8+r,2)}")
    Y = X
    for j in range(4): k.e(f"v_cvt_pk_bf16_f32 v{Y+j}, v{ACC+2*j}, v{ACC+2*j+1}")
    for j in range(2): k.e(f"v_cvt_pk_bf16_f32 v{Y+4+j}, v{ACC+16+2*j}, v{ACC+17+2*j}")
    k.e(f"v_permlane16_swap_b32 v{Y}, v{Y+2}", f"v_permlane16_swap_b32 v{Y+1}, v{Y+3}")
    for j in (4, 5, 0, 1, 2, 3):
        a = ACC + 2 * j
        k.e(f"v_lshlrev_b32 v{a}, 16, v{Y+j}", f"v_and_b32 v{a+1}, 0xffff0000, v{Y+j}",
            f"v_lshlrev_b32 v{X+8}, 16, v{res+j}", f"v_and_b32 v{X+9}, 0xffff0000, v{res+j}",
            f"v_pk_add_f32 {v(a,2)}, {v(a,2)}, {v(X+8,2)}", f"v_cvt_pk_bf16_f32 v{out+j}, v{a}, v{a+1}")

def d_w(st): p = (st + 3) % 4; return 40960 * p + (16384 if p & 1 else 0)
def d_h(st): p = (st + 3) % 4; return 40960 * p + (0 if p & 1 else 24576)
DRB, DNB, DROT, DSW = 96, 97, 98, 99
def d_map(k):
    k.e("s_and_b32 s52, s2, 7", "s_lshr_b32 s53, s2, 3", "s_lshr_b32 s54, s53, 3", "s_lshr_b32 s55, s52, 1", f"s_lshl_b32 s{DRB}, s55, 2", f"s_add_u32 s{DRB}, s{DRB}, s54",
        "s_and_b32 s52, s52, 1", "s_lshl_b32 s52, s52, 3", "s_and_b32 s53, s53, 7", f"s_add_u32 s{DNB}, s52, s53",
        "s_mul_i32 s54, s54, 5", "s_add_u32 s54, s54, 1", "s_lshr_b32 s54, s54, 1", "s_add_u32 s54, s54, s55", f"s_add_u32 s54, s54, s{DNB}",
        "s_cmp_ge_u32 s54, 20", "s_cselect_b32 s55, 20, 0", "s_sub_u32 s54, s54, s55",
        "s_cmp_ge_u32 s54, 10", "s_cselect_b32 s55, 10, 0", f"s_sub_u32 s{DROT}, s54, s55")
def d_wsetup(k):
    k.e("s_bitcmp1_b32 s24, 1", f"s_cselect_b32 s16, s{KW3}, s{KW1}", f"s_cselect_b32 s17, s{KW3+1}, s{KW1+1}", f"s_mov_b32 s18, {640*3072}", "s_mov_b32 s19, 0x20000",
        "s_cselect_b32 s52, 2, 0")
    for i in range(3):
        k.e(f"v_add_u32 v{T0}, {64*i}, v{L}", f"v_mul_u32_u24 v{T1}, 5462, v{T0}", f"v_lshrrev_b32 v{T1}, 16, v{T1}",
            f"v_xor_b32 v{T0}, s52, v{T0}", f"v_mul_u32_u24 v{T1}, {3072-192}, v{T1}", f"v_lshl_add_u32 v{DW+i}, v{T0}, 4, v{T1}")
        if i: k.e(f"v_subrev_u32 v{DW+i}, {1024*i}, v{DW+i}")
def d_wtriple(lds_s, lds_add, soff):
    return [f"s_add_u32 m0, s{lds_s}, {lds_add}"] + [f"buffer_load_dwordx4 v{DW+i}, s[16:19], s{soff} offen offset:{1024*i} lds" for i in range(3)]
def d_wadv(lim):
    return [f"s_add_u32 s{DSW}, s{DSW}, {64*3072}", f"s_cmp_ge_u32 s{DSW}, s{lim}", f"s_cselect_b32 s52, {640*3072}, 0", f"s_sub_u32 s{DSW}, s{DSW}, s52"]

def phase_c(k):
    LE = 35
    d_map(k); d_wsetup(k)
    k.e("s_and_b32 s52, s24, 1", "s_lshl_b32 s52, s52, 1", "s_lshr_b32 s53, s24, 2", "s_add_u32 s52, s52, s53",
        "s_mul_i32 s59, s52, 3072", "s_bitcmp1_b32 s24, 1", "s_cselect_b32 s53, 12288, 0", "s_add_u32 s59, s59, s53",
        "s_mul_i32 s52, s52, 49152", f"s_mul_i32 s53, s{DNB}, 192", "s_add_u32 s52, s52, s53", f"s_add_u32 s60, s52, {640*3072}",
        f"s_mul_i32 s53, s{DROT}, {64*3072}", f"s_add_u32 s{DSW}, s52, s53")
    k.e(*d_wtriple(59, d_w(0), DSW)); k.e(*d_wadv(60))
    ce_setup(k, 5120, 51200)
    k.e(f"buffer_load_dwordx4 {v(XR,4)}, v{NAT}, s[12:15], s31 offen", f"buffer_load_dwordx2 {v(XR+4,2)}, v{NAT+1}, s[12:15], s30 offen offset:128")
    def cpos(i):
        o = 10240 * (i + 2 * (i >= 3)) if i < 8 else 10240 * (i - 5)
        return (1, o - 51200) if o >= 51200 else (0, o)
    for i in range(8): k.e(*w_reads(*cpos(i), WR + 20 * i))
    k.e("s_mul_i32 s52, s27, 20480", f"s_add_u32 s52, s52, {WS_O}", "s_lshl_b32 s54, s29, 13", "s_add_u32 s54, s54, s52")
    for i in range(8): k.e(f"s_add_u32 s53, s26, {i}", "s_and_b32 s53, s53, 7", "s_lshl_b32 s53, s53, 10", f"s_add_u32 s{4+i}, s53, s54")
    k.e("s_lshl_b32 s53, s29, 11", "s_add_u32 s56, s52, s53", "s_add_u32 s56, s56, 16384",
        f"v_lshlrev_b32 v{LE}, 9, v{H}", f"v_bfe_u32 v{T0}, v{L}, 4, 1", f"v_lshl_add_u32 v{LE}, v{T0}, 7, v{LE}", f"v_lshl_add_u32 v{LE}, v{TOK}, 3, v{LE}")
    k.e("s_cmp_lg_u32 s24, 1", f"s_cbranch_scc1 {k.lab('c_np')}")
    k.e("s_lshl_b32 s52, s25, 3", "s_add_u32 s52, s52, s26", "s_lshl_b32 s52, s52, 7", f"s_add_u32 s52, s52, {WS_FC}", f"v_lshlrev_b32 v{T2}, 2, v{L}")
    poll(k, T2, "s52", T0, -1, 0)
    k.label("c_np")
    k.e("s_waitcnt lgkmcnt(0)", "s_barrier")
    stamp(k, 13)
    for i in range(8): k.e(f"buffer_load_dwordx4 {v(ACT+4*i,4)}, v{L16}, s[20:23], s{4+i} offen sc1")
    for e in range(2):
        for u in range(2): k.e(f"buffer_load_dwordx2 {v(ACT+32+4*e+2*u,2)}, v{LE}, s[20:23], s56 offen offset:{1024*e+256*u} sc1")
    PF = int(([a[4:] for a in sys.argv if a.startswith("-pf=")] + ["3"])[0])
    npf = 0
    for i in range(10):
        k.e(f"s_waitcnt vmcnt({(11-i if i < 8 else 2*(9-i)) + npf})" + (f" lgkmcnt({10*(9-i)})" if i >= 8 else ""))
        if i == 0: stamp(k, 14)
        k.e(*ce_mfma(WR + 20 * (i % 8), ACT + 4 * i, i == 0))
        if i in (1, 2): k.e(*w_reads(*cpos(i + 7), WR + 20 * (i - 1)))
        if PF <= i < PF + 3:
            k.e(*d_wtriple(59, d_w(i - PF + 1), DSW)); k.e(*d_wadv(60)); npf += 3
    stamp(k, 15)
    ce_epilogue(k, LK, XR, HRES)
    k.e("s_lshr_b32 s52, s27, 1", "s_mul_i32 s52, s52, 40960", "s_mul_i32 s53, s26, 5120", "s_add_u32 s52, s52, s53", "s_and_b32 s53, s28, 1", "s_lshl_b32 s53, s53, 8",
        "s_add_u32 s52, s52, s53", f"s_add_u32 s52, s52, {WS_H}", "s_lshl_b32 s53, s29, 11", "s_add_u32 s53, s53, s52", "s_add_u32 s52, s52, 4096",
        f"v_lshlrev_b32 v{T0}, 9, v{H}", f"v_lshl_add_u32 v{T0}, v{TOK}, 4, v{T0}", f"v_bfe_u32 v{T1}, v{L}, 4, 1", f"v_lshl_add_u32 v{T1}, v{T1}, 10, v{T0}")
    k.e(f"buffer_store_dwordx4 {v(HRES,4)}, v{T1}, s[20:23], s53 offen sc1")
    S1 = ACC
    k.e(f"v_mov_b32 v{S1}, 0", f"v_mov_b32 v{S1+1}, 0", f"s_mov_b32 s54, {ONES}")
    k.e("s_cmp_lg_u32 s29, 0", f"s_cbranch_scc1 {k.lab('c_n4')}")
    Z = ACC + 4
    k.e(f"v_mov_b32 v{Z}, v{HRES+4}", f"v_mov_b32 v{Z+1}, v{HRES+5}", f"v_mov_b32 v{Z+2}, v{HRES+4}", f"v_mov_b32 v{Z+3}, v{HRES+5}",
        f"v_permlane16_swap_b32 v{Z}, v{Z+2}", f"v_permlane16_swap_b32 v{Z+1}, v{Z+3}",
        "s_mov_b32 exec_lo, 0xffff", "s_mov_b32 exec_hi, 0xffff", f"buffer_store_dwordx4 {v(Z,4)}, v{T0}, s[20:23], s52 offen sc1", "s_mov_b64 exec, -1")
    for j in (4, 5): k.e(f"v_dot2c_f32_bf16 v{S1}, s54, v{HRES+j}", f"v_dot2c_f32_bf16 v{S1+1}, v{HRES+j}, v{HRES+j}")
    k.label("c_n4")
    for j in range(4): k.e(f"v_dot2c_f32_bf16 v{S1}, s54, v{HRES+j}", f"v_dot2c_f32_bf16 v{S1+1}, v{HRES+j}, v{HRES+j}")
    for x, t in ((S1, T2), (S1 + 1, T3)):
        k.e(f"v_mov_b32 v{t}, v{x}", f"v_permlane16_swap_b32 v{t}, v{x}", f"v_add_f32 v{x}, v{t}, v{x}")
    for x, t in ((S1, T2), (S1 + 1, T3)): half_sum(k, x, t)
    k.e("s_lshl_b32 s52, s27, 4", "s_lshl_b32 s53, s26, 1", "s_add_u32 s52, s52, s53", "s_add_u32 s52, s52, s29", "s_lshl_b32 s52, s52, 7", f"s_add_u32 s52, s52, {WS_HST}",
        f"v_lshlrev_b32 v{T0}, 3, v{TOK}", "s_mov_b64 exec, 0xffff", f"buffer_store_dwordx2 {v(S1,2)}, v{T0}, s[20:23], s52 offen sc1", "s_mov_b64 exec, -1")
    k.e("s_lshr_b32 s52, s25, 1", "s_lshl_b32 s52, s52, 11", "s_and_b32 s53, s25, 1", "s_lshl_b32 s53, s53, 3", "s_add_u32 s53, s53, s26", "s_lshl_b32 s53, s53, 2",
        "s_add_u32 s52, s52, s53", f"s_add_u32 s52, s52, {WS_FD}", f"v_lshlrev_b32 v{T0}, 7, v{L}")
    stamp(k, 16)
    k.e("s_waitcnt vmcnt(0)", "s_barrier")
    stamp(k, 17)
    push_flags(k, 52, T0, "0xffff")

X6, X7, X8, X9 = 40960, 81920, 122880, 0
DMI = X6 + 5120
PK = 60
def e_soff(k, d, G, kh, isg):
    k.e(f"s_add_u32 s{d}, s{isg}, s26", f"s_and_b32 s{d}, s{d}, 7", f"s_mul_i32 s{d}, s{d}, 40960", f"s_add_u32 s{d}, s{d}, s58")
    if 24 * kh + 8 * G: k.e(f"s_add_u32 s{d}, s{d}, {(24*kh+8*G)*40960}")

def d_compute(k):
    AH, AW, AST, RI, AM = 16, 18, 27, 28, 32
    DA, FR = 160, 40
    ONE = 36
    k.e("s_lshr_b32 s28, s24, 1", "s_and_b32 s29, s24, 1", "s_lshl_b32 s52, s28, 13", f"v_add_u32 v{AH}, s52, v{L16}", f"v_add_u32 v{AH+1}, 81920, v{AH}")
    k.e(f"v_bfe_u32 v{T0}, v{L}, 2, 2", f"v_lshl_add_u32 v{T0}, v{H}, 3, v{T0}", f"v_mul_u32_u24 v{T0}, 192, v{T0}", f"v_and_b32 v{T1}, 3, v{L}", f"v_lshl_add_u32 v{T0}, v{T1}, 3, v{T0}",
        f"v_bfe_u32 v{T1}, v{L}, 4, 1", f"v_mul_u32_u24 v{T2}, 12288, v{T1}", f"v_add_u32 v{T0}, v{T0}, v{T2}", "s_mul_i32 s52, s29, 3")
    for f in range(3):
        k.e(f"v_xor_b32 v{T2}, s52, v{T1}", f"v_lshl_add_u32 v{AW+f}, v{T2}, 5, v{T0}", f"v_add_u32 v{AW+3+f}, 57344, v{AW+f}", f"v_add_u32 v{AW+6+f}, 139264, v{AW+f}", "s_add_u32 s52, s52, 1")
    def buf(g): return FR + 20 * (g % 4 if g < 38 else g - 34)
    def hreads(g):
        st, ks = divmod(g, 4); o = d_h(st); S = o >= 81920
        return [f"ds_read_b128 {v(buf(g)+4*t,4)}, v{AH+S} offset:{o-81920*S+4096*t+1024*ks}" for t in range(2)]
    def wreads(g):
        st, ks = divmod(g, 4); o = d_w(st); S, b = {0: (0, 0), 57344: (1, 0), 81920: (1, 24576), 139264: (2, 0)}[o]
        return [f"ds_read_b64_tr_b16 {v(buf(g)+8+4*f+2*u,2)}, v{AW+3*S+f} offset:{b+3072*ks+768*u}" for f in range(3) for u in range(2)]
    for g in range(4): k.e(*wreads(g))
    XO, CS = FR + 80, FR + 88
    k.e(f"v_lshrrev_b32 v{T0}, 4, v{TK}", f"v_mul_u32_u24 v{T0}, 49152, v{T0}", f"v_and_b32 v{T1}, 15, v{L}", f"v_lshl_add_u32 v{T0}, v{T1}, 4, v{T0}", f"v_lshl_add_u32 v{AST}, v{H}, 8, v{T0}",
        f"s_lshl_b32 s52, s{DRB}, 1", "s_add_u32 s52, s52, s28", f"s_mul_i32 s52, s52, {4*49152}", f"s_lshl_b32 s53, s{DNB}, 1", "s_add_u32 s53, s53, s29", "s_mul_i32 s54, s53, 1536",
        "s_add_u32 s52, s52, s54", f"s_add_u32 s4, s52, {WS_A}", f"s_add_u32 s5, s4, {2*49152}",
        "s_lshl_b32 s52, s28, 9", f"s_add_u32 s52, s52, {DMI}", f"v_lshl_add_u32 v{AM}, v{TK}, 3, s52",
        "s_mul_i32 s52, s29, 768", f"s_add_u32 s52, s52, {DMI+2048}", f"v_lshl_add_u32 v{AM+1}, v{TK}, 3, s52")
    for r in range(20): k.e(f"v_mov_b32 v{XO+r}, 0")
    k.e("s_cmp_lt_u32 s24, 2", f"s_cbranch_scc1 {k.lab('d_ncs')}")
    for r in range(4): k.e(f"v_mov_b32 v{ONE+r}, {ONES}")
    k.e(f"s_mul_i32 s52, s{DNB}, 15360", f"s_mul_i32 s53, s{DROT}, 1536", "s_add_u32 s52, s52, s53", "s_mul_i32 s53, s29, 768", "s_add_u32 s52, s52, s53", f"s_add_u32 s52, s52, {WS_CS}",
        f"v_lshlrev_b32 v{T0}, 3, v{TK}", "s_waitcnt lgkmcnt(0)")
    for g in range(4):
        for f in range(3): k.e(f"v_mfma_f32_32x32x16_bf16 {v(DA+16*f,16)}, {v(ONE,4)}, {v(buf(g)+8+4*f,4)}, {'0' if g == 0 else v(DA+16*f,16)}")
    k.e("s_mov_b32 exec_hi, 0")
    for f in range(3):
        k.e(f"v_mov_b32 v{DA+16*f+1}, s{TAG}", f"buffer_store_dwordx2 {v(DA+16*f,2)}, v{T0}, s[20:23], s52 offen offset:{256*f} sc1")
    k.e("s_mov_b64 exec, -1")
    k.label("d_ncs")
    k.e("s_barrier")
    stamp(k, 18)
    k.e("s_barrier")
    stamp(k, 19)
    lg = VM()
    def rd(ops, tag):
        lg.add(tag, len(ops)); return ops
    def lw(tag):
        if tag not in lg.q: return []
        w = lg.wait(tag); n = int(w[w.index("(") + 1:-1])
        return [f"s_waitcnt lgkmcnt({min(n, 15)})"]
    def mf(g, t, f):
        d = DA + 48 * t + 16 * f
        return f"v_mfma_f32_32x32x16_bf16 {v(d,16)}, {v(buf(g)+8+4*f,4)}, {v(buf(g)+4*t,4)}, {'0' if g == 0 else v(d,16)}"
    k.e(*rd(hreads(0), 0)); k.e(*rd(hreads(1), 1))
    for g in range(36):
        if g % 4 == 2:
            k.e("s_waitcnt lgkmcnt(0)")
            if g // 4 < 8: dstamp(k, "D", 10 + g // 4)
            k.e("s_barrier"); lg.q = []
            dstamp(k, "D", 1 + g // 4)
        else: k.e(*lw(g))
        fill = []
        for n in ([g + 2] if g < 34 else [36, 39] if g == 34 else [37, 38]):
            fill += rd(hreads(n) + (wreads(n) if n >= 4 else []), n)
        if g == 30:
            fill.append(["s_mov_b32 exec_hi, 0"] + rd([f"ds_read_b64 {v(XO+4*t,2)}, v{AM} offset:{256*t}" for t in range(2)], 32) + ["s_mov_b64 exec, -1"])
            fill += rd([f"ds_read_b64 {v(CS+4*f,2)}, v{AM+1} offset:{256*f}" for f in range(3)] + [f"ds_read_b64 {v(RI+2*t,2)}, v{AM} offset:{1024+256*t}" for t in range(2)], 32)
        m = [mf(g, t, f) for t in range(2) for f in range(3)]
        if g in (32, 33):
            t = g - 32
            m = [f"v_mfma_f32_32x32x16_bf16 {v(DA+48*t+16*f,16)}, {v(CS+4*f,4)}, {v(XO+4*t,4)}, {v(DA+48*t+16*f,16)}" for f in range(3)] + m
        k.e(*interleave(m, fill))
    k.e("s_waitcnt lgkmcnt(0)")
    TM = FR + 40
    def epi(t, f, packed):
        d = DA + 48 * t + 16 * f; e = TM + 8 * ((3 * t + f) & 1)
        rn, ir = RI + 2 * t, RI + 2 * t + 1
        s1, s2 = [], []
        if packed:
            s1 += [f"v_pk_mul_f32 {v(e+r,2)}, {v(d+r,2)}, {v(rn,2)} op_sel:[0,0] op_sel_hi:[1,0]" for r in range(0, 8, 2)]
            s1 += [f"v_exp_f32 v{e+r}, v{e+r}" for r in range(8)]
            s1 += [f"v_pk_fma_f32 {v(e+r,2)}, {v(e+r,2)}, {v(rn,2)}, {v(rn,2)} op_sel:[0,1,1] op_sel_hi:[1,1,1]" for r in range(0, 8, 2)]
            s1 += [f"v_rcp_f32 v{e+r}, v{e+r}" for r in range(8)]
            s2 += [f"v_pk_mul_f32 {v(d+r,2)}, {v(d+r,2)}, {v(d+8+r,2)}" for r in range(0, 8, 2)]
            s2 += [f"v_pk_mul_f32 {v(d+r,2)}, {v(d+r,2)}, {v(e+r,2)}" for r in range(0, 8, 2)]
        else:
            s1 += [f"v_mul_f32 v{e+r}, v{d+r}, v{rn}" for r in range(8)]
            s1 += [f"v_exp_f32 v{e+r}, v{e+r}" for r in range(8)]
            s1 += [f"v_fma_f32 v{e+r}, v{e+r}, v{ir}, v{ir}" for r in range(8)]
            s1 += [f"v_rcp_f32 v{e+r}, v{e+r}" for r in range(8)]
            s2 += [f"v_mul_f32 v{d+r}, v{d+r}, v{d+8+r}" for r in range(8)]
            s2 += [f"v_mul_f32 v{d+r}, v{d+r}, v{e+r}" for r in range(8)]
        s2 += [f"v_cvt_pk_bf16_f32 v{d+j}, v{d+2*j}, v{d+2*j+1}" for j in range(4)]
        s2.append(f"buffer_store_dwordx4 {v(d,4)}, v{AST}, s[20:23], s{4+t} offen offset:{512*f} sc1")
        return s1 + s2
    tiles = [(t, f) for t in range(2) for f in range(3)]
    for t, f in tiles: k.e(*[mf(g, t, f) for g in range(36, 40)])
    stamp(k, 20)
    for n, (t, f) in enumerate(tiles):
        k.e(*epi(t, f, True))
        if n == 2: k.e("s_barrier")
    stamp(k, 21)

def d_loader(k):
    D = 40
    vm = VM()
    k.e("s_sub_u32 s31, s24, 4")
    k.e(f"s_sub_u32 s{DSW}, s{DSW}, 49152", "s_sub_u32 s60, s60, 49152", "s_sub_u32 s59, s59, 3072",
        f"s_lshl_b32 s52, s{DRB}, 2", "s_add_u32 s52, s52, s31", "s_mul_i32 s52, s52, 40960", f"s_add_u32 s52, s52, {WS_H}", "s_add_u32 s57, s52, 40960",
        f"s_lshl_b32 s53, s{DROT}, 12", "s_add_u32 s56, s52, s53", "s_lshl_b32 s55, s31, 12")
    wv_offsets(k)
    PH, PC = 36, 37
    k.e(f"v_lshrrev_b32 v{T0}, 4, v{L}", f"v_and_b32 v{T1}, 15, v{L}", f"v_lshlrev_b32 v{T1}, 3, v{T1}", f"v_lshl_add_u32 v{PH}, v{T0}, 10, v{T1}", f"v_lshlrev_b32 v{PC}, 3, v{L}",
        f"s_lshl_b32 s52, s{DRB}, 2", "s_add_u32 s52, s52, s31", "s_lshl_b32 s52, s52, 12", f"s_add_u32 s4, s52, {WS_HST}",
        "s_min_u32 s9, s31, 2", "s_lshl_b32 s9, s9, 9", f"s_mul_i32 s52, s{DNB}, 15360", "s_add_u32 s52, s52, s9", f"s_add_u32 s5, s52, {WS_CS}",
        "s_add_u32 s6, s5, 4608", "s_add_u32 s7, s5, 9216", "s_add_u32 s8, s5, 13824", "s_mul_i32 s58, s26, 160")
    k.e("s_cmp_lg_u32 s24, 4", f"s_cbranch_scc1 {k.lab('d_np')}")
    k.e(f"s_lshl_b32 s52, s{DRB}, 4", f"s_add_u32 s52, s52, s{DNB}", "s_lshl_b32 s52, s52, 7", f"s_add_u32 s52, s52, {WS_FD}", f"v_lshlrev_b32 v{T2}, 2, v{L}")
    poll(k, T2, "s52", T0, 0xffff, 0)
    k.label("d_np")
    k.e("s_barrier")
    stamp(k, 18)
    def hst(st):
        k.e(f"s_add_u32 m0, s55, {d_h(st)}")
        for i in range(4): k.e(f"buffer_load_dwordx4 v{L16}, s[20:23], s56 offen offset:{1024*i} sc1 lds")
        k.e("s_add_u32 s56, s56, 4096", "s_cmp_ge_u32 s56, s57", "s_cselect_b32 s52, 40960, 0", "s_sub_u32 s56, s56, s52")
        vm.add(st, 4)
    def wst(st):
        k.e(*d_wtriple(59, d_w(st), DSW)); k.e(f"s_add_u32 s53, s{DSW}, 49152"); k.e(*d_wtriple(59, d_w(st) + 3072, 53)); k.e(*d_wadv(60))
        vm.add(st, 6)
    def cs_loads():
        for j in range(10): k.e(f"buffer_load_dwordx2 {v(D+16+2*j,2)}, v{PC}, s[20:23], s{5+j//3} offen offset:{1536*(j%3)} sc1")
    def w2(G, kh, b, base, tag):
        k.e("s_lshl_b32 s53, s31, 1", f"s_add_u32 s53, s53, {b}") ; e_soff(k, 54, G, kh, 53)
        k.e("s_mul_i32 s53, s53, 5120")
        for x in step_dma(WV, 53, 54, base): k.e(*x)
        vm.add(tag, 5)
    for st in range(4): hst(st)
    k.e(vm.wait(0), "s_barrier")
    stamp(k, 19)
    for j in range(1, 10):
        if j < 9: dstamp(k, "D", 9 + j)
        k.e(vm.wait(j))
        dstamp(k, "D", j)
        k.e("s_barrier")
        if j <= 6: wst(j + 3); hst(j + 3)
        if j == 5:
            for i in range(8): k.e(f"buffer_load_dwordx2 {v(D+2*i,2)}, v{PH}, s[20:23], s4 offen offset:{128*i} sc1")
            cs_loads(); vm.add("pt", 18)
        if j == 6: srd(k, 16, KW2, 1536 * 1280)
        if j == 7:
            w2(1, 1, 0, X6, "x6")
            k.e(vm.wait("pt"), "s_mov_b32 s61, 0")
            k.label("d_chk")
            k.e(f"v_xor_b32 v{T0}, s{TAG}, v{D+17}", f"v_xor_b32 v{T1}, s{TAG}, v{D+19}", f"v_or_b32 v{T0}, v{T0}, v{T1}")
            for i in range(2, 10, 2):
                k.e(f"v_xor_b32 v{T1}, s{TAG}, v{D+17+2*i}", f"v_xor_b32 v{T2}, s{TAG}, v{D+19+2*i}", f"v_or3_b32 v{T0}, v{T0}, v{T1}, v{T2}")
            k.e(f"v_cmp_ne_u32 vcc, 0, v{T0}", "s_add_u32 s61, s61, 1", f"s_cbranch_vccz {k.lab('d_ok')}", f"s_cmp_gt_u32 s61, {SPIN_MAX}", f"s_cbranch_scc1 {k.lab('d_ok')}")
            cs_loads()
            k.e("s_waitcnt vmcnt(0)", f"s_branch {k.lab('d_chk')}")
            k.label("d_ok")
            for i in range(1, 8): k.e(f"v_add_f32 v{D}, v{D}, v{D+2*i}", f"v_add_f32 v{D+1}, v{D+1}, v{D+2*i+1}")
            for i in range(1, 10): k.e(f"v_add_f32 v{D+16}, v{D+16}, v{D+16+2*i}")
            for x, t in ((D, T2), (D + 1, T3)):
                k.e(f"v_mov_b32 v{t}, v{x}", f"v_permlane16_swap_b32 v{t}, v{x}", f"v_add_f32 v{x}, v{t}, v{x}")
            ln_stats(k, D, D + 1, T0, T1, D + 4, D + 6, SD=D + 7)
            split3(k, D + 16, D + 8, D + 9, T0, T1)
            k.e(f"v_cvt_pk_bf16_f32 v{D+4}, -v{D+4}, -v{D+4}", f"v_and_b32 v{D+5}, 0xffff, v{D+4}",
                f"v_mul_f32 v{D+6}, {f32(-1.4426950408889634)}, v{D+6}", f"v_mul_f32 v{D+7}, v{D+7}, v{D+7}",
                f"v_and_b32 v{T0}, 15, v{L}", f"v_lshl_add_u32 v{T0}, v{H}, 4, v{T0}", "s_lshl_b32 s52, s31, 8", f"s_add_u32 s52, s52, {DMI}", f"v_lshl_add_u32 v{T0}, v{T0}, 3, s52",
                f"s_add_u32 s52, s9, {DMI+2048}", f"v_add_u32 v{T1}, s52, v{PC}",
                f"ds_write_b64 v{T0}, {v(D+4,2)}", f"ds_write_b64 v{T0}, {v(D+6,2)} offset:1024", f"ds_write_b64 v{T1}, {v(D+8,2)}", "s_waitcnt lgkmcnt(0)")
            vm.q = vm.q + [8]; vm.q = [8] + vm.q[:-1]
        if j == 8:
            w2(0, 0, 0, X7, "x7"); w2(0, 0, 1, X7, "x7")
        if j == 9:
            w2(0, 1, 0, X8, "x8"); w2(0, 1, 1, X8, "x8"); w2(1, 1, 1, X6, "x6b")
    stamp(k, 20)
    k.e(vm.wait("x8"), "s_barrier")
    w2(1, 0, 0, X9, "x9"); w2(1, 0, 1, X9, "x9")
    stamp(k, 21)

def phase_d(k):
    k.e("s_cmp_lt_u32 s24, 4", f"s_cbranch_scc1 {k.lab('d_cmp')}")
    d_loader(k)
    k.e(f"s_branch {k.lab('d_done')}")
    k.label("d_cmp")
    d_compute(k)
    srd(k, 16, KW2, 1536 * 1280)
    wv_offsets(k)
    k.label("d_done")
    ce_setup(k, 40960, 81920)
    for i in range(8): k.e(*w_reads(1, 5120 * i, WR + 20 * i))
    k.e(f"s_lshl_b32 s52, s{DRB}, 11", f"s_lshl_b32 s53, s{DNB}, 2", "s_add_u32 s52, s52, s53", f"s_add_u32 s52, s52, {WS_FE}", f"v_lshlrev_b32 v{T0}, 7, v{L}", "s_mul_i32 s58, s26, 160")
    e_soff(k, 54, 2, 0, 24); k.e(f"s_add_u32 s55, s54, {24*40960}", "s_mul_i32 s53, s24, 5120")
    k.e("s_waitcnt vmcnt(0) lgkmcnt(0)", "s_barrier")
    stamp(k, 22)
    push_flags(k, 52, T0, "0xffff")

def phase_e(k):
    for x in step_dma(WV, 53, 54, X7) + step_dma(WV, 53, 55, X8): k.e(*x)
    AV = 32
    k.e(f"v_add_u32 v{AV}, 8192, v{L16}", f"v_add_u32 v{AV+1}, 16384, v{L16}")
    k.e("s_mul_i32 s52, s27, 49152", f"s_add_u32 s52, s52, {WS_A}", "s_mul_i32 s54, s29, 24576", "s_add_u32 s54, s54, s52")
    for i in range(8): k.e(f"s_add_u32 s53, s26, {i}", "s_and_b32 s53, s53, 7", "s_lshl_b32 s53, s53, 10", f"s_add_u32 s{4+i}, s53, s54")
    srd(k, 12, KOUT, X_BYTES)
    k.e("s_cmp_lg_u32 s24, 1", f"s_cbranch_scc1 {k.lab('e_np')}")
    k.e("s_lshl_b32 s52, s25, 3", "s_add_u32 s52, s52, s26", "s_lshl_b32 s52, s52, 7", f"s_add_u32 s52, s52, {WS_FE}", f"v_lshlrev_b32 v{T2}, 2, v{L}")
    poll(k, T2, "s52", T0, 0xffff, 0)
    k.label("e_np")
    k.e("s_xor_b32 s52, s24, 2", "s_or_b32 s52, s52, s2", "s_cmp_lg_u32 s52, 0", f"s_cbranch_scc1 {k.lab('e_ne')}")
    k.e(f"v_lshrrev_b32 v{T0}, 3, v{L}", f"v_and_b32 v{T1}, 7, v{L}", f"v_lshlrev_b32 v{T1}, 4, v{T1}", f"v_lshl_add_u32 v{T2}, v{T0}, 12, v{T1}", f"s_mov_b32 s52, {WS_FC}")
    poll(k, T2, "s52", ACC, -1, -1, x4=True)
    k.e(f"v_mov_b32 v{T0}, 0", f"v_mov_b32 v{T1}, s{TAG}", f"s_mov_b32 s52, {WS_EP}", "s_mov_b64 exec, 1", f"buffer_store_dword v{T1}, v{T0}, s[20:23], s52 offen sc1", "s_mov_b64 exec, -1")
    k.label("e_ne")
    k.e("s_waitcnt vmcnt(0)", "s_barrier")
    stamp(k, 23)
    def ald(n): return f"buffer_load_dwordx4 {v(ACT+4*(n%10),4)}, v{(L16, AV, AV+1)[n//8]}, s[20:23], s{4+n%8} offen sc1"
    for n in range(10): k.e(ald(n))
    for n in range(24):
        issued = 10 if n < 2 else min(24, n + 9)
        w = f"s_waitcnt vmcnt({issued-1-n})"
        if 8 <= n: w += f" lgkmcnt({10 if n <= 17 else 0})"
        k.e(w)
        if n == 0: stamp(k, 24)
        fill = []
        if 1 <= n <= 14: fill.append(ald(n + 9))
        if 1 <= n <= 16: fill += w_reads(0 if n <= 8 else 1, 5120 * ((n - 1) % 8), WR + 20 * ((n - 1) % 8))
        k.e(*interleave(ce_mfma(WR + 20 * (n % 8), ACT + 4 * (n % 10), n == 0), fill))
        if n == 15: k.e("s_barrier")
    stamp(k, 25)
    ce_epilogue(k, 0, HRES, XR)
    k.e(f"buffer_store_dwordx4 {v(XR,4)}, v{NAT}, s[12:15], s31 offen")
    k.e("s_cmp_lg_u32 s29, 0", f"s_cbranch_scc1 {k.lab('fin')}")
    k.e(f"buffer_store_dwordx2 {v(XR+4,2)}, v{NAT+1}, s[12:15], s30 offen offset:128")

def rest(k):
    phase_b(k)
    if G.UPTO == "B": return
    phase_c(k)
    if G.UPTO == "C": return
    phase_d(k)
    if G.UPTO == "D": return
    phase_e(k)
```

```python
import sys, struct
from asmlib import *
from qktab import tables

NAME = "sequential_preLN__sliding_block__glu_gated_swiglu__prompt"
WS_QK = 0
WS_V = 5242880
WS_O = 7864320
WS_H = 10485760
WS_A = 13107200
WS_HST = 19398656
WS_CS = WS_HST + 262144
WS_XST = WS_CS + 245760
WS_WST = WS_XST + 327680
WS_FB = WS_WST + 153600
WS_FC = WS_FB + 65536
WS_FD = WS_FC + 32768
WS_FE = WS_FD + 32768
WS_EP = WS_FE + 32768
WS_END = WS_EP + 128
X_BYTES = 2048 * 1280
SPIN_MAX = 40000 if not any(a in sys.argv for a in ('-xrot', '-norot_a')) else 20

def f32(x): return "0x%08x" % struct.unpack("<I", struct.pack("<f", x))[0]
ONES = "0x3f803f80"
NEGBIG = f32(-1e30)
CSC = (20 ** -0.5) * 1.4426950408889634

STAMP = "-stamp" in sys.argv
UPTO = ([a[6:] for a in sys.argv if a.startswith("-upto=")] + ["E"])[0]
WS_STAMP = 64 << 20
WS_SRD = (1 << 28) if STAMP else WS_END
def opt(name): return ("-" + name) in sys.argv

L, L16, H, TK, T0, T1, T2, T3 = 1, 2, 3, 4, 5, 6, 7, 8
HRES = 10
KX, KWQKV, KWO, KW1, KW3, KW2, KOUT, KWS = 32, 34, 36, 40, 42, 44, 46, 50
TAG = 3

class VM:
    def __init__(s): s.q = []
    def add(s, tag, n=1): s.q += [tag] * n
    def wait(s, tag):
        idx = max(i for i, t in enumerate(s.q) if t == tag)
        n = len(s.q) - 1 - idx
        s.q = s.q[idx + 1:]
        assert n <= 63
        return f"s_waitcnt vmcnt({n})"

NST = [0]
DST = ([a[5:] for a in sys.argv if a.startswith("-dst=")] + [""])[0]
def dstamp(k, ph, i):
    if DST == ph: stamp(k, i, True)
def stamp(k, i, force=False):
    if DST and 1 <= i <= 17 and not force: return
    if STAMP:
        k.e("s_memrealtime s[62:63]", "s_waitcnt lgkmcnt(0)", f"s_mov_b32 s{64+i}, s62")
def stamp_out(k):
    if not STAMP: return
    k.e("s_waitcnt vmcnt(0)")
    stamp(k, 29)
    k.e("s_memtime s[62:63]", "s_waitcnt lgkmcnt(0)", "s_mov_b32 s95, s62")
    k.e("s_mov_b64 exec, 1", "s_lshl_b32 s62, s2, 3", "s_add_u32 s62, s62, s24", "s_lshl_b32 s62, s62, 7", f"s_add_u32 s62, s62, {WS_STAMP}")
    k.e("v_mov_b32 v0, 0")
    for i in range(32):
        k.e(f"v_mov_b32 v1, s{64+i}", f"buffer_store_dword v1, v0, s[20:23], s62 offen offset:{4*i}")
    if opt("dbg"):
        k.e("s_lshl_b32 s62, s2, 3", "s_add_u32 s62, s62, s24", "s_cmp_lg_u32 s62, 800", f"s_cbranch_scc1 {k.lab('end')}")
        srd(k, 16, 48, 256)
        for n, i in enumerate((1, 2, 3, 6, 8, 9, 12, 13, 17, 18, 19, 20, 22, 23, 25, 29)):
            k.e(f"s_sub_u32 s62, s{64+i}, s64", "v_mov_b32 v1, s62", f"buffer_store_dword v1, v0, s[16:19], 0 offen offset:{4*n}")

def srd(k, d, base, size):
    k.e(f"s_mov_b32 s{d}, s{base}", f"s_mov_b32 s{d+1}, s{base+1}", f"s_mov_b32 s{d+2}, {size}", f"s_mov_b32 s{d+3}, 0x20000")

def ln_stats(k, sx, sxx, t0, t1, Mout, Rout, SD=None):
    k.e(f"v_mul_f32 v{sx}, {f32(1/640)}, v{sx}")
    k.e(f"v_mul_f32 v{sxx}, {f32(1/640)}, v{sxx}")
    k.e(f"v_fma_f32 v{t0}, -v{sx}, v{sx}, v{sxx}")
    k.e(f"v_max_f32 v{t0}, 0, v{t0}")
    k.e(f"v_cvt_pk_bf16_f32 v{t1}, v{sx}, v{t0}")
    k.e(f"v_lshlrev_b32 v{Mout}, 16, v{t1}")
    k.e(f"v_and_b32 v{t0}, 0xffff0000, v{t1}")
    k.e(f"v_add_f32 v{t0}, {f32(1e-5)}, v{t0}")
    k.e(f"v_cvt_pk_bf16_f32 v{t0}, v{t0}, v{t0}")
    k.e(f"v_lshlrev_b32 v{t0}, 16, v{t0}")
    k.e(f"v_sqrt_f32 v{t0}, v{t0}")
    k.e(f"v_cvt_pk_bf16_f32 v{t0}, v{t0}, v{t0}")
    k.e(f"v_lshlrev_b32 v{t0}, 16, v{t0}")
    if SD is not None: k.e(f"v_mov_b32 v{SD}, v{t0}")
    k.e(f"v_rcp_f32 v{Rout}, v{t0}")

def half_sum(k, x, t):
    k.e(f"v_mov_b32 v{t}, v{x}", f"v_permlane32_swap_b32 v{t}, v{x}", f"v_add_f32 v{x}, v{t}, v{x}")

def split3(k, cs, d0, d1, t0, t1, neg=False):
    n = "-" if neg else ""
    k.e(f"v_cvt_pk_bf16_f32 v{t0}, v{cs}, v{cs}")
    k.e(f"v_lshlrev_b32 v{t0}, 16, v{t0}")
    k.e(f"v_sub_f32 v{t0}, v{cs}, v{t0}")
    k.e(f"v_cvt_pk_bf16_f32 v{t1}, v{t0}, v{t0}")
    k.e(f"v_cvt_pk_bf16_f32 v{d0}, {n}v{cs}, {n}v{t0}")
    k.e(f"v_lshlrev_b32 v{t1}, 16, v{t1}")
    k.e(f"v_sub_f32 v{t0}, v{t0}, v{t1}")
    k.e(f"v_cvt_pk_bf16_f32 v{d1}, {n}v{t0}, 0")

uid = [0]
def poll(k, vaddr, soff, vd, mask_lo, mask_hi, x4=False, preloaded=False):
    uid[0] += 1
    lp, dn = f"pl{uid[0]}", f"pd{uid[0]}"
    k.e(f"s_mov_b32 exec_lo, {mask_lo}", f"s_mov_b32 exec_hi, {mask_hi}", "s_mov_b32 s61, 0")
    ld = f"buffer_load_dwordx4 v[{vd}:{vd+3}], v{vaddr}, s[20:23], {soff} offen sc1" if x4 else f"buffer_load_dword v{vd}, v{vaddr}, s[20:23], {soff} offen sc1"
    def chk():
        if x4:
            k.e(f"v_xor_b32 v{vd}, s{TAG}, v{vd}", f"v_xor_b32 v{vd+1}, s{TAG}, v{vd+1}", f"v_xor_b32 v{vd+2}, s{TAG}, v{vd+2}", f"v_xor_b32 v{vd+3}, s{TAG}, v{vd+3}",
                f"v_or3_b32 v{vd}, v{vd}, v{vd+1}, v{vd+2}", f"v_or_b32 v{vd}, v{vd}, v{vd+3}", f"v_cmp_ne_u32 vcc, 0, v{vd}")
        else:
            k.e(f"v_cmp_ne_u32 vcc, s{TAG}, v{vd}")
    if preloaded:
        chk()
        k.e("s_nop 1", f"s_cbranch_vccz {k.lab(dn)}")
    k.label(lp)
    k.e(ld, "s_waitcnt vmcnt(0)")
    chk()
    k.e("s_add_u32 s61, s61, 1", f"s_cbranch_vccz {k.lab(dn)}", f"s_cmp_lt_u32 s61, {SPIN_MAX}", f"s_cbranch_scc1 {k.lab(lp)}")
    k.label(dn)
    k.e("s_mov_b64 exec, -1")

MISC = 65536

def a_map(k):
    k.e("s_and_b32 s52, s2, 7", "s_lshr_b32 s53, s2, 3",
        "s_and_b32 s54, s52, 1", "s_mul_i32 s54, s54, 30", "s_add_u32 s54, s54, s53",
        "s_lshr_b32 s25, s54, 2",
        "s_and_b32 s54, s54, 3", "s_lshr_b32 s52, s52, 1", "s_lshl_b32 s55, s52, 2", "s_add_u32 s26, s55, s54",
        "s_mul_i32 s54, s54, 5", "s_add_u32 s54, s54, 1", "s_lshr_b32 s54, s54, 1", "s_add_u32 s54, s54, s52",
        "s_add_u32 s27, s54, s25",
        "s_cmp_ge_u32 s27, 20", "s_cselect_b32 s54, 20, 0", "s_sub_u32 s27, s27, s54",
        "s_cmp_ge_u32 s27, 10", "s_cselect_b32 s54, 10, 0", "s_sub_u32 s27, s27, s54")
    if opt("norot_a"): k.e("s_mov_b32 s27, 0")
    if opt("xrot"):
        k.e("s_mul_i32 s54, s52, 5", "s_add_u32 s54, s54, 1", "s_lshr_b32 s54, s54, 1", "s_and_b32 s27, s2, 1", "s_mul_i32 s27, s27, 5", "s_add_u32 s27, s27, s54",
            "s_cmp_ge_u32 s27, 10", "s_cselect_b32 s54, 10, 0", "s_sub_u32 s27, s27, s54")

def a_table(k, wj_sgpr, pref):
    T = tables()
    k.e("s_cmp_ge_u32 s25, 5", "s_cselect_b32 s52, 5, 0", "s_sub_u32 s52, s25, s52", "s_min_u32 s52, s52, 5",
        "s_lshl_b32 s52, s52, 1", f"s_add_u32 s52, s52, s{wj_sgpr}")
    for i in range(12):
        p, wj = divmod(i, 2)
        if i < 11: k.e(f"s_cmp_lg_u32 s52, {i}", f"s_cbranch_scc1 {k.lab(f'{pref}{i+1}')}")
        for f in range(2):
            ch, R = T[p][2 * wj + f]
            b = [8 * c for c in ch]
            lo = b[0] | b[1] << 8 | b[2] << 16 | b[3] << 24
            hi = b[4] | b[5] << 8 | b[6] << 16 | b[7] << 24
            rr = R[0] | R[1] << 8 | R[2] << 16 | R[3] << 24
            k.e(f"s_mov_b32 s{54+3*f}, {lo:#x}", f"s_mov_b32 s{55+3*f}, {hi:#x}", f"s_mov_b32 s{56+3*f}, {rr:#x}")
        if i < 11:
            k.e(f"s_branch {k.lab(pref + 'd')}")
            k.label(f"{pref}{i+1}")
    k.label(pref + "d")

def a_waddr(k, d, lo, hi):
    k.e(f"v_bfe_u32 v{T0}, v{L}, 2, 2",
        f"v_bfe_u32 v{T1}, v{L}, 4, 1", f"v_cmp_eq_u32 vcc, 1, v{T1}",
        f"v_mov_b32 v{T1}, s{lo}", f"v_mov_b32 v{T2}, s{hi}", f"v_cndmask_b32 v{T1}, v{T1}, v{T2}, vcc",
        f"v_and_b32 v{T2}, 3, v{L}", f"v_lshlrev_b32 v{T2}, 3, v{T2}", f"v_bfe_u32 v{T1}, v{T1}, v{T2}, 8",
        f"v_lshlrev_b32 v{T2}, 6, v{T0}", f"v_xor_b32 v{T1}, v{T1}, v{T2}",
        f"v_lshl_add_u32 v{T0}, v{H}, 3, v{T0}", f"v_lshl_add_u32 v{d}, v{T0}, 8, v{T1}")

def a_xaddr(k, d, rowbase_sgpr):
    k.e(f"v_lshlrev_b32 v{T0}, 7, v{TK}", f"v_add_u32 v{T0}, s{rowbase_sgpr}, v{T0}",
        f"v_bfe_u32 v{T1}, v{TK}, 1, 3", f"v_xor_b32 v{T1}, v{T1}, v{H}")
    for ks in range(4):
        k.e(f"v_xor_b32 v{T2}, {2*ks}, v{T1}", f"v_lshl_add_u32 v{d+ks}, v{T2}, 4, v{T0}")

def a_compute(k):
    AX, AW = 16, 24
    AST = 28
    ACC = 64; FR = 128; EX = 176
    k.e("s_lshr_b32 s28, s24, 1", "s_and_b32 s29, s24, 1")
    a_table(k, 29, "ct")
    k.e("s_lshl_b32 s52, s28, 13")
    a_xaddr(k, AX, 52)
    for i in range(4): k.e(f"v_add_u32 v{AX+4+i}, 65536, v{AX+i}")
    a_waddr(k, AW, 54, 55); a_waddr(k, AW + 1, 57, 58)
    for i in range(2): k.e(f"v_add_u32 v{AW+2+i}, 65536, v{AW+i}")
    k.e("s_lshl_b32 s52, s26, 2", "s_lshl_b32 s53, s28, 1", "s_add_u32 s52, s52, s53")

    def reads(g):
        st, ks = divmod(g, 4)
        sl = st % 4; S = sl // 2; ob = (sl % 2) * 32768
        b = FR + 16 * (g % 3)
        o = []
        for t in range(2):
            o.append(f"ds_read_b128 v[{b+4*t}:{b+4*t+3}], v{AX+4*S+ks} offset:{ob+4096*t}")
        for f in range(2):
            for u in range(2):
                o.append(f"ds_read_b64_tr_b16 v[{b+8+4*f+2*u}:{b+8+4*f+2*u+1}], v{AW+2*S+f} offset:{ob+16384+ks*4096+u*1024}")
        return o

    def mainloop(vmode):
        stamp(k, 1)
        k.e("s_barrier")
        stamp(k, 2)
        k.e(*reads(0)); k.e(*reads(1))
        for g in range(40):
            b = FR + 16 * (g % 3)
            fill = []
            if g % 4 == 2 and g // 4 + 1 <= 9:
                k.e("s_waitcnt lgkmcnt(0)", "s_barrier")
            else:
                k.e(f"s_waitcnt lgkmcnt({6 if g + 1 < 40 else 0})")
            if g + 2 < 40: fill += reads(g + 2)
            mf = []
            for t in range(2):
                for f in range(2):
                    d = ACC + 32 * t + 16 * f
                    xa, wa = v(b + 4 * t, 4), v(b + 8 + 4 * f, 4)
                    A, B = (xa, wa) if vmode else (wa, xa)
                    c = "0" if g == 0 else v(d, 16)
                    mf.append(f"v_mfma_f32_32x32x16_bf16 {v(d,16)}, {A}, {B}, {c}")
            k.e(*interleave(mf, fill))
        stamp(k, 3)
        XO, WO, R = EX, EX + 8, EX + 16
        RD = FR
        k.e("s_lshl_b32 s53, s28, 8", f"s_add_u32 s53, s53, {MISC}", f"v_lshl_add_u32 v{T0}, v{TK}, 2, s53",
            "s_lshl_b32 s54, s29, 9", f"s_add_u32 s54, s54, {MISC+1024}", f"v_lshl_add_u32 v{T1}, v{TK}, 3, s54",
            f"v_lshl_add_u32 v{T2}, v{H}, 4, s53", f"v_mov_b32 v{T3}, {MISC}")
        for r in (XO+2, XO+3, XO+6, XO+7, WO+2, WO+3, WO+6, WO+7): k.e(f"v_mov_b32 v{r}, 0")
        k.e(f"v_cmp_gt_u32 vcc, 32, v{L}")
        k.e("s_barrier")
        stamp(k, 4)
        for t in range(2): k.e(f"ds_read_b32 v{XO+4*t}, v{T0} offset:{128*t}")
        for f in range(2): k.e(f"ds_read_b64 v[{WO+4*f}:{WO+4*f+1}], v{T1} offset:{256*f}")
        k.e(f"ds_read_b32 v{R+2}, v{T3} offset:2048")
        if vmode:
            for t in range(2):
                for q in range(4):
                    k.e(f"ds_read_b128 v[{RD+16*t+4*q}:{RD+16*t+4*q+3}], v{T2} offset:{512+128*t+32*q}")
        else:
            for t in range(2): k.e(f"ds_read_b32 v{R+t}, v{T0} offset:{512+128*t}")
        k.e(f"s_waitcnt lgkmcnt({8 if vmode else 2})")
        for t in range(2):
            k.e(f"v_cndmask_b32 v{XO+4*t}, 0, v{XO+4*t}, vcc", f"v_and_b32 v{XO+4*t+1}, 0xffff, v{XO+4*t}")
        k.e(f"v_readfirstlane_b32 s{TAG}, v{R+2}")
        for t in range(2):
            for f in range(2):
                d = ACC + 32 * t + 16 * f
                xa, wa = v(XO + 4 * t, 4), v(WO + 4 * f, 4)
                A, B = (xa, wa) if vmode else (wa, xa)
                k.e(f"v_mfma_f32_32x32x16_bf16 {v(d,16)}, {A}, {B}, {v(d,16)}")
        k.e("s_waitcnt lgkmcnt(0)")
        for t in range(2):
            for f in range(2):
                d = ACC + 32 * t + 16 * f
                for r in range(0, 16, 2):
                    if vmode: k.e(f"v_pk_mul_f32 v[{d+r}:{d+r+1}], v[{d+r}:{d+r+1}], v[{RD+16*t+r}:{RD+16*t+r+1}]")
                    else: k.e(f"v_pk_mul_f32 v[{d+r}:{d+r+1}], v[{d+r}:{d+r+1}], v[{R}:{R+1}] op_sel:[0,{t}] op_sel_hi:[1,{t}]")
                for j in range(8):
                    k.e(f"v_cvt_pk_bf16_f32 v{d+j}, v{d+2*j}, v{d+2*j+1}")
                for u in range(2):
                    k.e(f"buffer_store_dwordx4 v[{d+4*u}:{d+4*u+3}], v{AST+2*f+u}, s[20:23], s{30+t} offen sc1")
        k.e(f"s_branch {k.lab('a_pub')}")

    k.e("s_cmp_ge_u32 s25, 10", f"s_cbranch_scc1 {k.lab('vpath')}")
    k.e("s_cmp_ge_u32 s25, 5", f"s_cselect_b32 s53, {80*32768}, 0", "s_lshl_b32 s30, s52, 9", "s_add_u32 s30, s30, s53", "s_add_u32 s31, s30, 512")
    k.e(f"v_lshlrev_b32 v{T0}, 3, v{H}", f"v_lshlrev_b32 v{T1}, 4, v{TK}")
    for f in range(2):
        for u in range(2):
            k.e(f"v_add_u32 v{T2}, {16*u}, v{T0}", f"v_bfe_u32 v{T2}, s{56+3*f}, v{T2}, 8", f"v_lshl_add_u32 v{AST+2*f+u}, v{T2}, 15, v{T1}")
    mainloop(False)
    k.label("vpath")
    k.e("s_mul_i32 s30, s52, 40960", f"s_add_u32 s30, s30, {WS_V}", "s_add_u32 s31, s30, 40960",
        "s_sub_u32 s53, s25, 10", "s_lshl_b32 s53, s53, 11", "s_lshl_b32 s54, s29, 10", "s_add_u32 s53, s53, s54",
        f"v_mul_u32_u24 v{T0}, 10240, v{H}", f"v_lshl_add_u32 v{T0}, v{TK}, 4, v{T0}", f"v_add_u32 v{AST}, s53, v{T0}",
        f"v_add_u32 v{AST+1}, 20480, v{AST}", f"v_add_u32 v{AST+2}, 512, v{AST}", f"v_add_u32 v{AST+3}, {20480+512}, v{AST}")
    mainloop(True)
    k.label("a_pub")
    stamp(k, 5)
    k.e("s_lshr_b32 s52, s26, 1", "s_lshl_b32 s53, s52, 13", "s_and_b32 s54, s26, 1", "s_add_u32 s54, s54, 2", "s_lshl_b32 s54, s54, 4",
        "s_add_u32 s54, s54, s25", "s_lshl_b32 s54, s54, 2", "s_add_u32 s53, s53, s54", f"s_add_u32 s53, s53, {WS_FB}",
        f"v_mul_u32_u24 v{T0}, {8192-128}, v{H}", f"v_lshl_add_u32 v{T0}, v{TK}, 8, v{T0}",
        f"v_mov_b32 v{T1}, 1", f"v_mov_b32 v{T2}, s{TAG}",
        "s_cmp_eq_u32 s52, 7", "s_cselect_b32 s55, 0, -1")
    k.e("s_waitcnt vmcnt(0)")
    stamp(k, 6)
    k.e("s_barrier", "s_cmp_lg_u32 s24, 0", f"s_cbranch_scc1 {k.lab('a_done')}",
        "s_mov_b32 exec_hi, s55", f"buffer_store_dword v{T2}, v{T0}, s[20:23], s53 offen sc1", "s_mov_b64 exec, -1")

def code_touch(k, n, nthr):
    uid[0] += 1
    k.e("s_getpc_b64 s[52:53]")
    k.label(f"pc{uid[0]}")
    k.e(f"s_sub_u32 s52, s52, {k.lab(f'pc{uid[0]}')}-{k.name}", "s_subb_u32 s53, s53, 0", f"v_lshlrev_b32 v{T0}, 6, v0")
    for i in range(n):
        k.e(f"v_min_u32 v{T1}, {k.lab('end')}-{k.name}, v{T0}", f"global_load_dword v9, v{T1}, s[52:53] ; dummy")
        if i < n - 1: k.e(f"v_add_u32 v{T0}, {64*nthr}, v{T0}")
def spare(k):
    TG = 30
    tag_load(k, TG)
    code_touch(k, 2, 512)
    mats = [(KWO, 640 * 1280), (KW2, 1536 * 1280)] if not opt("sp13") else [(KWO, 640 * 1280), (KW1, 640 * 3072), (KW3, 640 * 3072)]
    if opt("spall"): mats = [(KWO, 640 * 1280), (KW1, 640 * 3072), (KW3, 640 * 3072), (KW2, 1536 * 1280)]
    sh = 12 if opt("touch") else 10
    k.e("s_sub_u32 s52, s2, 240", "s_lshl_b32 s52, s52, 3", "s_add_u32 s52, s52, s24", f"s_lshl_b32 s52, s52, {sh}", f"v_lshlrev_b32 v{T0}, 6, v{L}")
    for m, sz in mats:
        srd(k, 16, m, sz)
        k.e("s_mov_b32 s53, s52")
        for i in range(-(-sz // (128 << sh))):
            if opt("touch"): k.e(f"buffer_load_dword v32, v{T0}, s[16:19], s53 offen ; dummy")
            else: k.e(f"buffer_load_dwordx4 v[32:35], v{L16}, s[16:19], s53 offen ; dummy")
            k.e(f"s_add_u32 s53, s53, {128 << sh}")
    k.e("s_waitcnt vmcnt(0)")
    tag_make(k, TG)
    stamp(k, 6)

def tag_load(k, d):
    k.e(f"v_mov_b32 v{T0}, 0", f"s_mov_b32 s52, {WS_EP}", f"buffer_load_dword v{d}, v{T0}, s[20:23], s52 offen sc1")
def tag_make(k, d):
    k.e(f"v_readfirstlane_b32 s{TAG}, v{d}", f"s_add_u32 s{TAG}, s{TAG}, 0x9e3779b9")
def misc_init(k):
    k.e(f"v_mov_b32 v20, s{TAG}", f"v_mov_b32 v{T3}, {MISC}", f"ds_write_b32 v{T3}, v20 offset:2048")

def a_loader(k):
    VXO, VWO = 16, 20
    AX, AW = 24, 28
    TG, PL = 30, 31
    D = 32
    vm = VM()
    k.e("s_sub_u32 s31, s24, 4")
    tag_load(k, TG); vm.add("tag")
    srd(k, 16, KWQKV, 640 * 3840)
    k.e("s_lshl_b32 s29, s31, 12",
        "s_mul_i32 s28, s26, 163840", "s_lshl_b32 s52, s27, 7", "s_add_u32 s58, s28, s52", "s_add_u32 s28, s28, 1280",
        "s_lshl_b32 s59, s25, 8", "s_mul_i32 s52, s27, 245760", "s_add_u32 s59, s59, s52")
    k.e(f"v_lshrrev_b32 v{T0}, 3, v{L}", "s_lshl_b32 s52, s31, 5", f"v_add_u32 v{T0}, s52, v{T0}", f"v_mul_u32_u24 v{T0}, 1280, v{T0}",
        f"v_and_b32 v{T1}, 7, v{L}", f"v_lshrrev_b32 v{T2}, 4, v{L}", f"v_xor_b32 v{T1}, v{T1}, v{T2}", f"v_lshl_add_u32 v{VXO}, v{T1}, 4, v{T0}",
        f"v_xor_b32 v{T0}, 64, v{VXO}", f"v_add_u32 v{VXO+1}, {10240-1024}, v{T0}", f"v_add_u32 v{VXO+2}, {2*(10240-1024)}, v{VXO}",
        f"v_add_u32 v{VXO+3}, {3*(10240-1024)}, v{T0}")
    k.e("s_lshl_b32 s52, s31, 4", f"v_add_u32 v{T0}, s52, v{T2}", f"v_mul_u32_u24 v{T0}, 3840, v{T0}",
        f"v_and_b32 v{T1}, 15, v{L}", f"v_lshlrev_b32 v{T3}, 2, v{T2}", f"v_xor_b32 v{T1}, v{T1}, v{T3}", f"v_lshl_add_u32 v{VWO}, v{T1}, 4, v{T0}")
    for j in range(1, 4): k.e(f"v_add_u32 v{VWO+j}, {j*(15360-1024)}, v{VWO}")
    CP = int(([a[4:] for a in sys.argv if a.startswith("-cp=")] + ["12"])[0])
    nxt = [0]
    def issue_to(q):
        while nxt[0] < min(q, 80):
            st, i = divmod(nxt[0], 8)
            sl = st % 4
            if i == 0: k.e(f"s_add_u32 m0, s29, {sl*32768}")
            if i == 4: k.e(f"s_add_u32 m0, s29, {sl*32768+16384}")
            if opt("nodma") and st >= 4:
                if i == 0: k.e(f"buffer_load_dwordx4 v{VXO+i}, s[12:15], s58 offen offset:{1024*i} lds"); vm.add(st)
                nxt[0] += 1; continue
            if i < 4: k.e(f"buffer_load_dwordx4 v{VXO+i}, s[12:15], s58 offen offset:{1024*i} lds")
            else: k.e(f"buffer_load_dwordx4 v{VWO+i-4}, s[16:19], s59 offen offset:{1024*(i-4)} lds")
            vm.add(st)
            if i == 7 and st < 9:
                k.e("s_add_u32 s58, s58, 128", "s_add_u32 s59, s59, 245760", "s_cmp_ge_u32 s58, s28",
                    "s_cselect_b32 s52, 1280, 0", "s_cselect_b32 s53, 2457600, 0", "s_sub_u32 s58, s58, s52", "s_sub_u32 s59, s59, s53")
            nxt[0] += 1
    issue_to(8)
    k.e("s_mov_b32 s60, s58", "s_mov_b32 s30, s59", "s_lshr_b32 s61, s31, 1")
    a_table(k, 61, "lt")
    k.e("s_bitcmp1_b32 s31, 0", "s_cselect_b32 s54, s57, s54", "s_cselect_b32 s55, s58, s55")
    a_waddr(k, AW, 54, 55)
    a_xaddr(k, AX, 29)
    k.e("s_mov_b32 s58, s60", "s_mov_b32 s59, s30")
    k.e("s_mul_i32 s4, s26, 20480", "s_lshl_b32 s56, s31, 9", "s_add_u32 s4, s4, s56", f"s_add_u32 s4, s4, {WS_XST}",
        "s_mul_i32 s5, s25, 10240", "s_lshl_b32 s57, s31, 8", "s_add_u32 s5, s5, s57", f"s_add_u32 s5, s5, {WS_WST}",
        "s_lshl_b32 s55, s27, 11", "s_add_u32 s55, s55, s4", "s_lshl_b32 s56, s27, 10", "s_add_u32 s56, s56, s5", f"s_mov_b32 s54, {ONES}")
    issue_to(8 + CP)
    stamp(k, 1)
    k.e(vm.wait(0), "s_barrier")
    stamp(k, 2)
    tag_make(k, TG)
    for ks in range(4): k.e(f"ds_read_b128 v[{D+4*ks}:{D+4*ks+3}], v{AX+ks}")
    for ks in range(4):
        for u in range(2): k.e(f"ds_read_b64_tr_b16 v[{D+16+4*ks+2*u}:{D+16+4*ks+2*u+1}], v{AW} offset:{16384+ks*4096+u*1024}")
    SX, SXX, CS = 64, 66, 68
    k.e(f"v_mov_b32 v{SX}, 0", f"v_mov_b32 v{SXX}, 0", f"v_mov_b32 v{CS}, 0",
        f"v_mov_b32 v{SX+1}, s{TAG}", f"v_mov_b32 v{SXX+1}, s{TAG}", f"v_mov_b32 v{CS+1}, s{TAG}",
        f"v_lshlrev_b32 v{T2}, 4, v{TK}", f"v_lshlrev_b32 v{T3}, 3, v{TK}")
    issue_to(16 + CP)
    k.e("s_waitcnt lgkmcnt(0)", vm.wait(1), "s_barrier")
    PX, PW = 70, 71
    def partials():
        for i in range(5):
            k.e(f"buffer_load_dwordx4 v[{D+4*i}:{D+4*i+3}], v{PX}, s[20:23], s{(4,6,7)[i//2]} offen offset:{2048*(i%2)} sc1")
            k.e(f"buffer_load_dwordx2 v[{D+20+2*i}:{D+21+2*i}], v{PW}, s[20:23], s{(5,8)[i//4]} offen offset:{1024*(i%4)} sc1")
    for j in range(2, 10):
        if j < 6:
            for i in range(4 * (j - 2), 4 * (j - 1)):
                issue_to(8 * j + CP + 2 * (i % 4 + 1))
                k.e(f"v_lshlrev_b32 v{T0}, 16, v{D+i}", f"v_and_b32 v{D+i}, 0xffff0000, v{D+i}", f"v_lshlrev_b32 v{T1}, 16, v{D+16+i}", f"v_and_b32 v{D+16+i}, 0xffff0000, v{D+16+i}",
                    f"v_add_f32 v{SX}, v{SX}, v{T0}", f"v_fmac_f32 v{SXX}, v{T0}, v{T0}", f"v_add_f32 v{CS}, v{CS}, v{T1}",
                    f"v_add_f32 v{SX}, v{SX}, v{D+i}", f"v_fmac_f32 v{SXX}, v{D+i}, v{D+i}", f"v_add_f32 v{CS}, v{CS}, v{D+16+i}")
        if j == 5:
            half_sum(k, SX, T0); half_sum(k, SXX, T1); half_sum(k, CS, T0)
            k.e("s_mov_b32 exec_hi, 0", f"buffer_store_dwordx4 v[{SX}:{SX+3}], v{T2}, s[20:23], s55 offen sc1",
                f"buffer_store_dwordx2 v[{CS}:{CS+1}], v{T3}, s[20:23], s56 offen sc1", "s_mov_b64 exec, -1")
            vm.add("st", 2)
        if j == 6:
            k.e(f"v_mul_u32_u24 v{PX}, 10240, v{H}", f"v_lshl_add_u32 v{PX}, v{TK}, 4, v{PX}", f"v_lshrrev_b32 v{PW}, 1, v{PX}",
                "s_add_u32 s6, s4, 4096", "s_add_u32 s7, s4, 8192", "s_add_u32 s8, s5, 4096")
        issue_to(8 * (j + 1) + CP)
        if j == 9:
            partials(); vm.add("pt", 10)
        k.e(vm.wait(j), "s_barrier")
    misc_init(k)
    k.e("s_mov_b32 s61, 0")
    k.label("pt_chk")
    k.e("s_waitcnt vmcnt(0)")
    k.e(f"v_xor_b32 v{T0}, s{TAG}, v{D+1}")
    for i in range(1, 15, 2):
        k.e(f"v_xor_b32 v{T1}, s{TAG}, v{D+1+2*i}", f"v_xor_b32 v9, s{TAG}, v{D+3+2*i}", f"v_or3_b32 v{T0}, v{T0}, v{T1}, v9")
    k.e(f"v_cmp_ne_u32 vcc, 0, v{T0}", "s_add_u32 s61, s61, 1", f"s_cbranch_vccz {k.lab('pt_ok')}", f"s_cmp_gt_u32 s61, {SPIN_MAX}", f"s_cbranch_scc1 {k.lab('pt_ok')}")
    partials()
    k.e(f"s_branch {k.lab('pt_chk')}")
    k.label("pt_ok")
    stamp(k, 3)
    for i in range(1, 5):
        k.e(f"v_add_f32 v{D}, v{D}, v{D+4*i}", f"v_add_f32 v{D+2}, v{D+2}, v{D+4*i+2}", f"v_add_f32 v{D+20}, v{D+20}, v{D+20+2*i}")
    half_sum(k, D, T0); half_sum(k, D + 2, T1); half_sum(k, D + 20, T2)
    ln_stats(k, D, D + 2, T0, T1, D + 4, D + 5)
    split3(k, D + 20, D + 12, D + 13, T0, T1)
    k.e("s_cmp_lt_u32 s25, 5", f"s_cselect_b32 s52, {f32(CSC)}, {f32(1.0)}", f"v_mul_f32 v{D+5}, s52, v{D+5}",
        f"v_cvt_pk_bf16_f32 v{D+4}, -v{D+4}, -v{D+4}",
        "s_lshl_b32 s52, s31, 7", f"s_add_u32 s52, s52, {MISC}", f"v_lshl_add_u32 v{T0}, v{TK}, 2, s52",
        "s_lshl_b32 s52, s31, 8", f"s_add_u32 s52, s52, {MISC+1024}", f"v_lshl_add_u32 v{T1}, v{TK}, 3, s52",
        f"ds_write_b32 v{T0}, v{D+4}", f"ds_write_b32 v{T0}, v{D+5} offset:512", f"ds_write_b64 v{T1}, v[{D+12}:{D+13}]",
        "s_waitcnt lgkmcnt(0)", "s_barrier")
    stamp(k, 4)
    k.e("s_barrier")

def build():
    k = Kern("mega_kernel", 256, 512, 163840, nvgpr=256, nsgpr=100)
    k.e("s_cmp_ge_u32 s2, 256", f"s_cbranch_scc1 {k.lab('end')}")
    if STAMP:
        k.e("s_memtime s[62:63]", "s_waitcnt lgkmcnt(0)", "s_mov_b32 s94, s62")
        for i in range(1, 30): k.e(f"s_mov_b32 s{64+i}, 0")
    stamp(k, 0)
    k.e("s_load_dwordx16 s[32:47], s[0:1], 0", "s_load_dwordx4 s[48:51], s[0:1], 64")
    k.e(f"v_lshrrev_b32 v{T0}, 6, v0", f"v_and_b32 v{L}, 63, v0", f"v_readfirstlane_b32 s24, v{T0}",
        f"v_lshlrev_b32 v{L16}, 4, v{L}", f"v_lshrrev_b32 v{H}, 5, v{L}", f"v_and_b32 v{TK}, 31, v{L}")
    a_map(k)
    k.e("s_waitcnt lgkmcnt(0)")
    WOFF = int(([a[6:] for a in sys.argv if a.startswith("-woff=")] + ["0"])[0]) << 20
    if WOFF: k.e(f"s_add_u32 s{KWS}, s{KWS}, {WOFF}", f"s_addc_u32 s{KWS+1}, s{KWS+1}, 0")
    srd(k, 20, KWS, WS_SRD); srd(k, 12, KX, X_BYTES)
    k.e("s_cmp_ge_u32 s2, 240", f"s_cbranch_scc1 {k.lab('spare')}")
    k.e("s_cmp_lt_u32 s24, 4", f"s_cbranch_scc1 {k.lab('compute')}")
    a_loader(k)
    k.e(f"s_branch {k.lab('a_done')}")
    k.label("spare")
    spare(k)
    k.e(f"s_branch {k.lab('a_done')}")
    k.label("compute")
    if not opt("nocf"): code_touch(k, 1, 256)
    k.e(f"v_lshlrev_b32 v{T0}, 6, v{L}", "s_mul_i32 s54, s2, 704", f"s_min_u32 s54, s54, {163840-704}", f"s_add_u32 s54, s54, {WS_FB}", "s_mov_b64 exec, 0x7ff",
        f"buffer_load_dword v9, v{T0}, s[20:23], s54 offen sc1 ; dummy", "s_mov_b64 exec, -1")
    a_compute(k)
    k.label("a_done")
    if UPTO != "A":
        import phases
        phases.rest(k)
    k.label("fin")
    stamp_out(k)
    k.label("end")
    k.e("s_endpgm")
    return k

HEADER = open("cdna_kernels/" + NAME + ".s.ref").read().split("; Override launch geometry")[0].rstrip()

if __name__ == "__main__":
    sys.modules["gen2"] = sys.modules["__main__"]
    out = sys.argv[1] if len(sys.argv) > 1 and not sys.argv[1].startswith("-") else "cdna_kernels/" + NAME + ".s"
    n = write_file(out, [build()], HEADER, verbose="-v" in sys.argv)
    print("errors:", n)
```

```python
import sys, struct
from asmlib import *
from qktab import tables

NAME = "sequential_preLN__sliding_block__glu_gated_swiglu__prompt"
WS_QK = 0
WS_V = 5242880
WS_O = 7864320
WS_H = 10485760
WS_A = 13107200
WS_HST = 19398656
WS_CS = WS_HST + 262144
WS_XST = WS_CS + 245760
WS_WST = WS_XST + 327680
WS_FB = WS_WST + 153600
WS_FC = WS_FB + 65536
WS_FD = WS_FC + 32768
WS_FE = WS_FD + 32768
WS_EP = WS_FE + 32768
WS_END = WS_EP + 128
X_BYTES = 2048 * 1280
SPIN_MAX = 40000 if not any(a in sys.argv for a in ('-xrot', '-norot_a')) else 20

def f32(x): return "0x%08x" % struct.unpack("<I", struct.pack("<f", x))[0]
ONES = "0x3f803f80"
NEGBIG = f32(-1e30)
CSC = (20 ** -0.5) * 1.4426950408889634

STAMP = "-stamp" in sys.argv
UPTO = ([a[6:] for a in sys.argv if a.startswith("-upto=")] + ["E"])[0]
WS_STAMP = 64 << 20
WS_SRD = (1 << 28) if STAMP else WS_END
def opt(name): return ("-" + name) in sys.argv

L, L16, H, TK, T0, T1, T2, T3 = 1, 2, 3, 4, 5, 6, 7, 8
HRES = 10
KX, KWQKV, KWO, KW1, KW3, KW2, KOUT, KWS = 32, 34, 36, 40, 42, 44, 46, 50
TAG = 3

class VM:
    def __init__(s): s.q = []
    def add(s, tag, n=1): s.q += [tag] * n
    def wait(s, tag):
        idx = max(i for i, t in enumerate(s.q) if t == tag)
        n = len(s.q) - 1 - idx
        s.q = s.q[idx + 1:]
        assert n <= 63
        return f"s_waitcnt vmcnt({n})"

NST = [0]
DST = ([a[5:] for a in sys.argv if a.startswith("-dst=")] + [""])[0]
def dstamp(k, ph, i):
    if DST == ph: stamp(k, i, True)
def stamp(k, i, force=False):
    if DST and 1 <= i <= 17 and not force: return
    if STAMP:
        k.e("s_memrealtime s[62:63]", "s_waitcnt lgkmcnt(0)", f"s_mov_b32 s{64+i}, s62")
def stamp_out(k):
    if not STAMP: return
    k.e("s_waitcnt vmcnt(0)")
    stamp(k, 29)
    k.e("s_memtime s[62:63]", "s_waitcnt lgkmcnt(0)", "s_mov_b32 s95, s62")
    k.e("s_mov_b64 exec, 1", "s_lshl_b32 s62, s2, 3", "s_add_u32 s62, s62, s24", "s_lshl_b32 s62, s62, 7", f"s_add_u32 s62, s62, {WS_STAMP}")
    k.e("v_mov_b32 v0, 0")
    for i in range(32):
        k.e(f"v_mov_b32 v1, s{64+i}", f"buffer_store_dword v1, v0, s[20:23], s62 offen offset:{4*i}")
    EC = int(([a[6:] for a in sys.argv if a.startswith("-echo=")] + ["0"])[0])
    if EC:
        k.e(f"s_sub_u32 s60, s{64+EC}, s64", "s_min_u32 s60, s60, 10000", f"s_cmp_eq_u32 s{64+EC}, 0", "s_cselect_b32 s60, 0, s60")
        k.label("echo")
        k.e("s_memrealtime s[62:63]", "s_waitcnt lgkmcnt(0)", "s_sub_u32 s62, s62, s93", "s_cmp_lt_u32 s62, s60", f"s_cbranch_scc1 {k.lab('echo')}")
    if opt("dbg"):
        k.e("s_lshl_b32 s62, s2, 3", "s_add_u32 s62, s62, s24", "s_cmp_lg_u32 s62, 800", f"s_cbranch_scc1 {k.lab('end')}")
        srd(k, 16, 48, 256)
        for n, i in enumerate((1, 2, 3, 6, 8, 9, 12, 13, 17, 18, 19, 20, 22, 23, 25, 29)):
            k.e(f"s_sub_u32 s62, s{64+i}, s64", "v_mov_b32 v1, s62", f"buffer_store_dword v1, v0, s[16:19], 0 offen offset:{4*n}")

def srd(k, d, base, size):
    k.e(f"s_mov_b32 s{d}, s{base}", f"s_mov_b32 s{d+1}, s{base+1}", f"s_mov_b32 s{d+2}, {size}", f"s_mov_b32 s{d+3}, 0x20000")

def ln_stats(k, sx, sxx, t0, t1, Mout, Rout, SD=None):
    k.e(f"v_mul_f32 v{sx}, {f32(1/640)}, v{sx}")
    k.e(f"v_mul_f32 v{sxx}, {f32(1/640)}, v{sxx}")
    k.e(f"v_fma_f32 v{t0}, -v{sx}, v{sx}, v{sxx}")
    k.e(f"v_max_f32 v{t0}, 0, v{t0}")
    k.e(f"v_cvt_pk_bf16_f32 v{t1}, v{sx}, v{t0}")
    k.e(f"v_lshlrev_b32 v{Mout}, 16, v{t1}")
    k.e(f"v_and_b32 v{t0}, 0xffff0000, v{t1}")
    k.e(f"v_add_f32 v{t0}, {f32(1e-5)}, v{t0}")
    k.e(f"v_cvt_pk_bf16_f32 v{t0}, v{t0}, v{t0}")
    k.e(f"v_lshlrev_b32 v{t0}, 16, v{t0}")
    k.e(f"v_sqrt_f32 v{t0}, v{t0}")
    k.e(f"v_cvt_pk_bf16_f32 v{t0}, v{t0}, v{t0}")
    k.e(f"v_lshlrev_b32 v{t0}, 16, v{t0}")
    if SD is not None: k.e(f"v_mov_b32 v{SD}, v{t0}")
    k.e(f"v_rcp_f32 v{Rout}, v{t0}")

def half_sum(k, x, t):
    k.e(f"v_mov_b32 v{t}, v{x}", f"v_permlane32_swap_b32 v{t}, v{x}", f"v_add_f32 v{x}, v{t}, v{x}")

def split3(k, cs, d0, d1, t0, t1, neg=False):
    n = "-" if neg else ""
    k.e(f"v_cvt_pk_bf16_f32 v{t0}, v{cs}, v{cs}")
    k.e(f"v_lshlrev_b32 v{t0}, 16, v{t0}")
    k.e(f"v_sub_f32 v{t0}, v{cs}, v{t0}")
    k.e(f"v_cvt_pk_bf16_f32 v{t1}, v{t0}, v{t0}")
    k.e(f"v_cvt_pk_bf16_f32 v{d0}, {n}v{cs}, {n}v{t0}")
    k.e(f"v_lshlrev_b32 v{t1}, 16, v{t1}")
    k.e(f"v_sub_f32 v{t0}, v{t0}, v{t1}")
    k.e(f"v_cvt_pk_bf16_f32 v{d1}, {n}v{t0}, 0")

uid = [0]
def poll(k, vaddr, soff, vd, mask_lo, mask_hi, x4=False, preloaded=False):
    uid[0] += 1
    lp, dn = f"pl{uid[0]}", f"pd{uid[0]}"
    k.e(f"s_mov_b32 exec_lo, {mask_lo}", f"s_mov_b32 exec_hi, {mask_hi}", "s_mov_b32 s61, 0")
    ld = f"buffer_load_dwordx4 v[{vd}:{vd+3}], v{vaddr}, s[20:23], {soff} offen sc1" if x4 else f"buffer_load_dword v{vd}, v{vaddr}, s[20:23], {soff} offen sc1"
    def chk():
        if x4:
            k.e(f"v_xor_b32 v{vd}, s{TAG}, v{vd}", f"v_xor_b32 v{vd+1}, s{TAG}, v{vd+1}", f"v_xor_b32 v{vd+2}, s{TAG}, v{vd+2}", f"v_xor_b32 v{vd+3}, s{TAG}, v{vd+3}",
                f"v_or3_b32 v{vd}, v{vd}, v{vd+1}, v{vd+2}", f"v_or_b32 v{vd}, v{vd}, v{vd+3}", f"v_cmp_ne_u32 vcc, 0, v{vd}")
        else:
            k.e(f"v_cmp_ne_u32 vcc, s{TAG}, v{vd}")
    if preloaded:
        chk()
        k.e("s_nop 1", f"s_cbranch_vccz {k.lab(dn)}")
    k.label(lp)
    k.e(ld, "s_waitcnt vmcnt(0)")
    chk()
    k.e("s_add_u32 s61, s61, 1", f"s_cbranch_vccz {k.lab(dn)}", f"s_cmp_lt_u32 s61, {SPIN_MAX}", f"s_cbranch_scc1 {k.lab(lp)}")
    k.label(dn)
    k.e("s_mov_b64 exec, -1")

MISC = 65536

def a_map(k):
    k.e("s_and_b32 s52, s2, 7", "s_lshr_b32 s53, s2, 3",
        "s_and_b32 s54, s52, 1", "s_mul_i32 s54, s54, 30", "s_add_u32 s54, s54, s53",
        "s_lshr_b32 s25, s54, 2",
        "s_and_b32 s54, s54, 3", "s_lshr_b32 s52, s52, 1", "s_lshl_b32 s55, s52, 2", "s_add_u32 s26, s55, s54",
        "s_mul_i32 s54, s54, 5", "s_add_u32 s54, s54, 1", "s_lshr_b32 s54, s54, 1", "s_add_u32 s54, s54, s52",
        "s_add_u32 s27, s54, s25",
        "s_cmp_ge_u32 s27, 20", "s_cselect_b32 s54, 20, 0", "s_sub_u32 s27, s27, s54",
        "s_cmp_ge_u32 s27, 10", "s_cselect_b32 s54, 10, 0", "s_sub_u32 s27, s27, s54")
    if opt("norot_a"): k.e("s_mov_b32 s27, 0")
    if opt("xrot"):
        k.e("s_mul_i32 s54, s52, 5", "s_add_u32 s54, s54, 1", "s_lshr_b32 s54, s54, 1", "s_and_b32 s27, s2, 1", "s_mul_i32 s27, s27, 5", "s_add_u32 s27, s27, s54",
            "s_cmp_ge_u32 s27, 10", "s_cselect_b32 s54, 10, 0", "s_sub_u32 s27, s27, s54")

def a_table(k, wj_sgpr, pref):
    T = tables()
    k.e("s_cmp_ge_u32 s25, 5", "s_cselect_b32 s52, 5, 0", "s_sub_u32 s52, s25, s52", "s_min_u32 s52, s52, 5",
        "s_lshl_b32 s52, s52, 1", f"s_add_u32 s52, s52, s{wj_sgpr}")
    for i in range(12):
        p, wj = divmod(i, 2)
        if i < 11: k.e(f"s_cmp_lg_u32 s52, {i}", f"s_cbranch_scc1 {k.lab(f'{pref}{i+1}')}")
        for f in range(2):
            ch, R = T[p][2 * wj + f]
            b = [8 * c for c in ch]
            lo = b[0] | b[1] << 8 | b[2] << 16 | b[3] << 24
            hi = b[4] | b[5] << 8 | b[6] << 16 | b[7] << 24
            rr = R[0] | R[1] << 8 | R[2] << 16 | R[3] << 24
            k.e(f"s_mov_b32 s{54+3*f}, {lo:#x}", f"s_mov_b32 s{55+3*f}, {hi:#x}", f"s_mov_b32 s{56+3*f}, {rr:#x}")
        if i < 11:
            k.e(f"s_branch {k.lab(pref + 'd')}")
            k.label(f"{pref}{i+1}")
    k.label(pref + "d")

def a_waddr(k, d, lo, hi):
    k.e(f"v_bfe_u32 v{T0}, v{L}, 2, 2",
        f"v_bfe_u32 v{T1}, v{L}, 4, 1", f"v_cmp_eq_u32 vcc, 1, v{T1}",
        f"v_mov_b32 v{T1}, s{lo}", f"v_mov_b32 v{T2}, s{hi}", f"v_cndmask_b32 v{T1}, v{T1}, v{T2}, vcc",
        f"v_and_b32 v{T2}, 3, v{L}", f"v_lshlrev_b32 v{T2}, 3, v{T2}", f"v_bfe_u32 v{T1}, v{T1}, v{T2}, 8",
        f"v_lshlrev_b32 v{T2}, 6, v{T0}", f"v_xor_b32 v{T1}, v{T1}, v{T2}",
        f"v_lshl_add_u32 v{T0}, v{H}, 3, v{T0}", f"v_lshl_add_u32 v{d}, v{T0}, 8, v{T1}")

def a_xaddr(k, d, rowbase_sgpr):
    k.e(f"v_lshlrev_b32 v{T0}, 7, v{TK}", f"v_add_u32 v{T0}, s{rowbase_sgpr}, v{T0}",
        f"v_bfe_u32 v{T1}, v{TK}, 1, 3", f"v_xor_b32 v{T1}, v{T1}, v{H}")
    for ks in range(4):
        k.e(f"v_xor_b32 v{T2}, {2*ks}, v{T1}", f"v_lshl_add_u32 v{d+ks}, v{T2}, 4, v{T0}")

def a_compute(k):
    AX, AW = 16, 24
    AST = 28
    ACC = 64; FR = 128; EX = 176
    k.e("s_lshr_b32 s28, s24, 1", "s_and_b32 s29, s24, 1")
    a_table(k, 29, "ct")
    k.e("s_lshl_b32 s52, s28, 13")
    a_xaddr(k, AX, 52)
    for i in range(4): k.e(f"v_add_u32 v{AX+4+i}, 65536, v{AX+i}")
    a_waddr(k, AW, 54, 55); a_waddr(k, AW + 1, 57, 58)
    for i in range(2): k.e(f"v_add_u32 v{AW+2+i}, 65536, v{AW+i}")
    k.e("s_lshl_b32 s52, s26, 2", "s_lshl_b32 s53, s28, 1", "s_add_u32 s52, s52, s53")

    def reads(g):
        st, ks = divmod(g, 4)
        sl = st % 4; S = sl // 2; ob = (sl % 2) * 32768
        b = FR + 16 * (g % 3)
        o = []
        for t in range(2):
            o.append(f"ds_read_b128 v[{b+4*t}:{b+4*t+3}], v{AX+4*S+ks} offset:{ob+4096*t}")
        for f in range(2):
            for u in range(2):
                o.append(f"ds_read_b64_tr_b16 v[{b+8+4*f+2*u}:{b+8+4*f+2*u+1}], v{AW+2*S+f} offset:{ob+16384+ks*4096+u*1024}")
        return o

    def mainloop(vmode):
        stamp(k, 1)
        k.e("s_barrier")
        stamp(k, 2)
        k.e(*reads(0)); k.e(*reads(1))
        for g in range(40):
            b = FR + 16 * (g % 3)
            fill = []
            if g % 4 == 2 and g // 4 + 1 <= 9:
                k.e("s_waitcnt lgkmcnt(0)", "s_barrier")
            else:
                k.e(f"s_waitcnt lgkmcnt({6 if g + 1 < 40 else 0})")
            if g + 2 < 40: fill += reads(g + 2)
            mf = []
            for t in range(2):
                for f in range(2):
                    d = ACC + 32 * t + 16 * f
                    xa, wa = v(b + 4 * t, 4), v(b + 8 + 4 * f, 4)
                    A, B = (xa, wa) if vmode else (wa, xa)
                    c = "0" if g == 0 else v(d, 16)
                    mf.append(f"v_mfma_f32_32x32x16_bf16 {v(d,16)}, {A}, {B}, {c}")
            k.e(*interleave(mf, fill))
        stamp(k, 3)
        XO, WO, R = EX, EX + 8, EX + 16
        RD = FR
        k.e("s_lshl_b32 s53, s28, 8", f"s_add_u32 s53, s53, {MISC}", f"v_lshl_add_u32 v{T0}, v{TK}, 2, s53",
            "s_lshl_b32 s54, s29, 9", f"s_add_u32 s54, s54, {MISC+1024}", f"v_lshl_add_u32 v{T1}, v{TK}, 3, s54",
            f"v_lshl_add_u32 v{T2}, v{H}, 4, s53", f"v_mov_b32 v{T3}, {MISC}")
        for r in (XO+2, XO+3, XO+6, XO+7, WO+2, WO+3, WO+6, WO+7): k.e(f"v_mov_b32 v{r}, 0")
        k.e(f"v_cmp_gt_u32 vcc, 32, v{L}")
        k.e("s_barrier")
        stamp(k, 4)
        for t in range(2): k.e(f"ds_read_b32 v{XO+4*t}, v{T0} offset:{128*t}")
        for f in range(2): k.e(f"ds_read_b64 v[{WO+4*f}:{WO+4*f+1}], v{T1} offset:{256*f}")
        k.e(f"ds_read_b32 v{R+2}, v{T3} offset:2048")
        if vmode:
            for t in range(2):
                for q in range(4):
                    k.e(f"ds_read_b128 v[{RD+16*t+4*q}:{RD+16*t+4*q+3}], v{T2} offset:{512+128*t+32*q}")
        else:
            for t in range(2): k.e(f"ds_read_b32 v{R+t}, v{T0} offset:{512+128*t}")
        k.e(f"s_waitcnt lgkmcnt({8 if vmode else 2})")
        for t in range(2):
            k.e(f"v_cndmask_b32 v{XO+4*t}, 0, v{XO+4*t}, vcc", f"v_and_b32 v{XO+4*t+1}, 0xffff, v{XO+4*t}")
        k.e(f"v_readfirstlane_b32 s{TAG}, v{R+2}")
        for t in range(2):
            for f in range(2):
                d = ACC + 32 * t + 16 * f
                xa, wa = v(XO + 4 * t, 4), v(WO + 4 * f, 4)
                A, B = (xa, wa) if vmode else (wa, xa)
                k.e(f"v_mfma_f32_32x32x16_bf16 {v(d,16)}, {A}, {B}, {v(d,16)}")
        k.e("s_waitcnt lgkmcnt(0)")
        for t in range(2):
            for f in range(2):
                d = ACC + 32 * t + 16 * f
                for r in range(0, 16, 2):
                    if vmode: k.e(f"v_pk_mul_f32 v[{d+r}:{d+r+1}], v[{d+r}:{d+r+1}], v[{RD+16*t+r}:{RD+16*t+r+1}]")
                    else: k.e(f"v_pk_mul_f32 v[{d+r}:{d+r+1}], v[{d+r}:{d+r+1}], v[{R}:{R+1}] op_sel:[0,{t}] op_sel_hi:[1,{t}]")
                for j in range(8):
                    k.e(f"v_cvt_pk_bf16_f32 v{d+j}, v{d+2*j}, v{d+2*j+1}")
                for u in range(2):
                    k.e(f"buffer_store_dwordx4 v[{d+4*u}:{d+4*u+3}], v{AST+2*f+u}, s[20:23], s{30+t} offen sc1")
        k.e(f"s_branch {k.lab('a_pub')}")

    k.e("s_cmp_ge_u32 s25, 10", f"s_cbranch_scc1 {k.lab('vpath')}")
    k.e("s_cmp_ge_u32 s25, 5", f"s_cselect_b32 s53, {80*32768}, 0", "s_lshl_b32 s30, s52, 9", "s_add_u32 s30, s30, s53", "s_add_u32 s31, s30, 512")
    k.e(f"v_lshlrev_b32 v{T0}, 3, v{H}", f"v_lshlrev_b32 v{T1}, 4, v{TK}")
    for f in range(2):
        for u in range(2):
            k.e(f"v_add_u32 v{T2}, {16*u}, v{T0}", f"v_bfe_u32 v{T2}, s{56+3*f}, v{T2}, 8", f"v_lshl_add_u32 v{AST+2*f+u}, v{T2}, 15, v{T1}")
    mainloop(False)
    k.label("vpath")
    k.e("s_mul_i32 s30, s52, 40960", f"s_add_u32 s30, s30, {WS_V}", "s_add_u32 s31, s30, 40960",
        "s_sub_u32 s53, s25, 10", "s_lshl_b32 s53, s53, 11", "s_lshl_b32 s54, s29, 10", "s_add_u32 s53, s53, s54",
        f"v_mul_u32_u24 v{T0}, 10240, v{H}", f"v_lshl_add_u32 v{T0}, v{TK}, 4, v{T0}", f"v_add_u32 v{AST}, s53, v{T0}",
        f"v_add_u32 v{AST+1}, 20480, v{AST}", f"v_add_u32 v{AST+2}, 512, v{AST}", f"v_add_u32 v{AST+3}, {20480+512}, v{AST}")
    mainloop(True)
    k.label("a_pub")
    stamp(k, 5)
    k.e("s_lshr_b32 s52, s26, 1", "s_lshl_b32 s53, s52, 13", "s_and_b32 s54, s26, 1", "s_add_u32 s54, s54, 2", "s_lshl_b32 s54, s54, 4",
        "s_add_u32 s54, s54, s25", "s_lshl_b32 s54, s54, 2", "s_add_u32 s53, s53, s54", f"s_add_u32 s53, s53, {WS_FB}",
        f"v_mul_u32_u24 v{T0}, {8192-128}, v{H}", f"v_lshl_add_u32 v{T0}, v{TK}, 8, v{T0}",
        f"v_mov_b32 v{T1}, 1", f"v_mov_b32 v{T2}, s{TAG}",
        "s_cmp_eq_u32 s52, 7", "s_cselect_b32 s55, 0, -1")
    k.e("s_waitcnt vmcnt(0)")
    stamp(k, 6)
    k.e("s_barrier", "s_cmp_lg_u32 s24, 0", f"s_cbranch_scc1 {k.lab('a_done')}",
        "s_mov_b32 exec_hi, s55", f"buffer_store_dword v{T2}, v{T0}, s[20:23], s53 offen sc1", "s_mov_b64 exec, -1")

def code_touch(k, n, nthr):
    uid[0] += 1
    k.e("s_getpc_b64 s[52:53]")
    k.label(f"pc{uid[0]}")
    k.e(f"s_sub_u32 s52, s52, {k.lab(f'pc{uid[0]}')}-{k.name}", "s_subb_u32 s53, s53, 0", f"v_lshlrev_b32 v{T0}, 6, v0")
    for i in range(n):
        k.e(f"v_min_u32 v{T1}, {k.lab('end')}-{k.name}, v{T0}", f"global_load_dword v9, v{T1}, s[52:53] ; dummy")
        if i < n - 1: k.e(f"v_add_u32 v{T0}, {64*nthr}, v{T0}")
def spare(k):
    TG = 30
    tag_load(k, TG)
    code_touch(k, 2, 512)
    mats = [(KWO, 640 * 1280), (KW2, 1536 * 1280)] if not opt("sp13") else [(KWO, 640 * 1280), (KW1, 640 * 3072), (KW3, 640 * 3072)]
    if opt("spall"): mats = [(KWO, 640 * 1280), (KW1, 640 * 3072), (KW3, 640 * 3072), (KW2, 1536 * 1280)]
    sh = 12 if opt("touch") else 10
    k.e("s_sub_u32 s52, s2, 240", "s_lshl_b32 s52, s52, 3", "s_add_u32 s52, s52, s24", f"s_lshl_b32 s52, s52, {sh}", f"v_lshlrev_b32 v{T0}, 6, v{L}")
    for m, sz in mats:
        srd(k, 16, m, sz)
        k.e("s_mov_b32 s53, s52")
        for i in range(-(-sz // (128 << sh))):
            if opt("touch"): k.e(f"buffer_load_dword v32, v{T0}, s[16:19], s53 offen ; dummy")
            else: k.e(f"buffer_load_dwordx4 v[32:35], v{L16}, s[16:19], s53 offen ; dummy")
            k.e(f"s_add_u32 s53, s53, {128 << sh}")
    k.e("s_waitcnt vmcnt(0)")
    tag_make(k, TG)
    stamp(k, 6)

def tag_load(k, d):
    k.e(f"v_mov_b32 v{T0}, 0", f"s_mov_b32 s52, {WS_EP}", f"buffer_load_dword v{d}, v{T0}, s[20:23], s52 offen sc1")
def tag_make(k, d):
    k.e(f"v_readfirstlane_b32 s{TAG}, v{d}", f"s_add_u32 s{TAG}, s{TAG}, 0x9e3779b9")
def misc_init(k):
    k.e(f"v_mov_b32 v20, s{TAG}", f"v_mov_b32 v{T3}, {MISC}", f"ds_write_b32 v{T3}, v20 offset:2048")

def a_loader(k):
    VXO, VWO = 16, 20
    AX, AW = 24, 28
    TG, PL = 30, 31
    D = 32
    vm = VM()
    k.e("s_sub_u32 s31, s24, 4")
    tag_load(k, TG); vm.add("tag")
    srd(k, 16, KWQKV, 640 * 3840)
    k.e("s_lshl_b32 s29, s31, 12",
        "s_mul_i32 s28, s26, 163840", "s_lshl_b32 s52, s27, 7", "s_add_u32 s58, s28, s52", "s_add_u32 s28, s28, 1280",
        "s_lshl_b32 s59, s25, 8", "s_mul_i32 s52, s27, 245760", "s_add_u32 s59, s59, s52")
    k.e(f"v_lshrrev_b32 v{T0}, 3, v{L}", "s_lshl_b32 s52, s31, 5", f"v_add_u32 v{T0}, s52, v{T0}", f"v_mul_u32_u24 v{T0}, 1280, v{T0}",
        f"v_and_b32 v{T1}, 7, v{L}", f"v_lshrrev_b32 v{T2}, 4, v{L}", f"v_xor_b32 v{T1}, v{T1}, v{T2}", f"v_lshl_add_u32 v{VXO}, v{T1}, 4, v{T0}",
        f"v_xor_b32 v{T0}, 64, v{VXO}", f"v_add_u32 v{VXO+1}, {10240-1024}, v{T0}", f"v_add_u32 v{VXO+2}, {2*(10240-1024)}, v{VXO}",
        f"v_add_u32 v{VXO+3}, {3*(10240-1024)}, v{T0}")
    k.e("s_lshl_b32 s52, s31, 4", f"v_add_u32 v{T0}, s52, v{T2}", f"v_mul_u32_u24 v{T0}, 3840, v{T0}",
        f"v_and_b32 v{T1}, 15, v{L}", f"v_lshlrev_b32 v{T3}, 2, v{T2}", f"v_xor_b32 v{T1}, v{T1}, v{T3}", f"v_lshl_add_u32 v{VWO}, v{T1}, 4, v{T0}")
    for j in range(1, 4): k.e(f"v_add_u32 v{VWO+j}, {j*(15360-1024)}, v{VWO}")
    CP = int(([a[4:] for a in sys.argv if a.startswith("-cp=")] + ["12"])[0])
    nxt = [0]
    def issue_to(q):
        while nxt[0] < min(q, 80):
            st, i = divmod(nxt[0], 8)
            sl = st % 4
            if i == 0: k.e(f"s_add_u32 m0, s29, {sl*32768}")
            if i == 4: k.e(f"s_add_u32 m0, s29, {sl*32768+16384}")
            if opt("nodma") and st >= 4:
                if i == 0: k.e(f"buffer_load_dwordx4 v{VXO+i}, s[12:15], s58 offen offset:{1024*i} lds"); vm.add(st)
                nxt[0] += 1; continue
            if i < 4: k.e(f"buffer_load_dwordx4 v{VXO+i}, s[12:15], s58 offen offset:{1024*i} lds")
            else: k.e(f"buffer_load_dwordx4 v{VWO+i-4}, s[16:19], s59 offen offset:{1024*(i-4)} lds")
            vm.add(st)
            if i == 7 and st < 9:
                k.e("s_add_u32 s58, s58, 128", "s_add_u32 s59, s59, 245760", "s_cmp_ge_u32 s58, s28",
                    "s_cselect_b32 s52, 1280, 0", "s_cselect_b32 s53, 2457600, 0", "s_sub_u32 s58, s58, s52", "s_sub_u32 s59, s59, s53")
            nxt[0] += 1
    issue_to(8)
    k.e("s_mov_b32 s60, s58", "s_mov_b32 s30, s59", "s_lshr_b32 s61, s31, 1")
    a_table(k, 61, "lt")
    k.e("s_bitcmp1_b32 s31, 0", "s_cselect_b32 s54, s57, s54", "s_cselect_b32 s55, s58, s55")
    a_waddr(k, AW, 54, 55)
    a_xaddr(k, AX, 29)
    k.e("s_mov_b32 s58, s60", "s_mov_b32 s59, s30")
    k.e("s_mul_i32 s4, s26, 20480", "s_lshl_b32 s56, s31, 9", "s_add_u32 s4, s4, s56", f"s_add_u32 s4, s4, {WS_XST}",
        "s_mul_i32 s5, s25, 10240", "s_lshl_b32 s57, s31, 8", "s_add_u32 s5, s5, s57", f"s_add_u32 s5, s5, {WS_WST}",
        "s_lshl_b32 s55, s27, 11", "s_add_u32 s55, s55, s4", "s_lshl_b32 s56, s27, 10", "s_add_u32 s56, s56, s5", f"s_mov_b32 s54, {ONES}")
    issue_to(8 + CP)
    stamp(k, 1)
    k.e(vm.wait(0), "s_barrier")
    stamp(k, 2)
    tag_make(k, TG)
    for ks in range(4): k.e(f"ds_read_b128 v[{D+4*ks}:{D+4*ks+3}], v{AX+ks}")
    for ks in range(4):
        for u in range(2): k.e(f"ds_read_b64_tr_b16 v[{D+16+4*ks+2*u}:{D+16+4*ks+2*u+1}], v{AW} offset:{16384+ks*4096+u*1024}")
    SX, SXX, CS = 64, 66, 68
    k.e(f"v_mov_b32 v{SX}, 0", f"v_mov_b32 v{SXX}, 0", f"v_mov_b32 v{CS}, 0",
        f"v_mov_b32 v{SX+1}, s{TAG}", f"v_mov_b32 v{SXX+1}, s{TAG}", f"v_mov_b32 v{CS+1}, s{TAG}",
        f"v_lshlrev_b32 v{T2}, 4, v{TK}", f"v_lshlrev_b32 v{T3}, 3, v{TK}")
    issue_to(16 + CP)
    k.e("s_waitcnt lgkmcnt(0)", vm.wait(1), "s_barrier")
    PX, PW = 70, 71
    def partials():
        for i in range(5):
            k.e(f"buffer_load_dwordx4 v[{D+4*i}:{D+4*i+3}], v{PX}, s[20:23], s{(4,6,7)[i//2]} offen offset:{2048*(i%2)} sc1")
            k.e(f"buffer_load_dwordx2 v[{D+20+2*i}:{D+21+2*i}], v{PW}, s[20:23], s{(5,8)[i//4]} offen offset:{1024*(i%4)} sc1")
    for j in range(2, 10):
        if j < 6:
            for i in range(4 * (j - 2), 4 * (j - 1)):
                issue_to(8 * j + CP + 2 * (i % 4 + 1))
                k.e(f"v_lshlrev_b32 v{T0}, 16, v{D+i}", f"v_and_b32 v{D+i}, 0xffff0000, v{D+i}", f"v_lshlrev_b32 v{T1}, 16, v{D+16+i}", f"v_and_b32 v{D+16+i}, 0xffff0000, v{D+16+i}",
                    f"v_add_f32 v{SX}, v{SX}, v{T0}", f"v_fmac_f32 v{SXX}, v{T0}, v{T0}", f"v_add_f32 v{CS}, v{CS}, v{T1}",
                    f"v_add_f32 v{SX}, v{SX}, v{D+i}", f"v_fmac_f32 v{SXX}, v{D+i}, v{D+i}", f"v_add_f32 v{CS}, v{CS}, v{D+16+i}")
        if j == 5:
            half_sum(k, SX, T0); half_sum(k, SXX, T1); half_sum(k, CS, T0)
            k.e("s_mov_b32 exec_hi, 0", f"buffer_store_dwordx4 v[{SX}:{SX+3}], v{T2}, s[20:23], s55 offen sc1",
                f"buffer_store_dwordx2 v[{CS}:{CS+1}], v{T3}, s[20:23], s56 offen sc1", "s_mov_b64 exec, -1")
            vm.add("st", 2)
        if j == 6:
            k.e(f"v_mul_u32_u24 v{PX}, 10240, v{H}", f"v_lshl_add_u32 v{PX}, v{TK}, 4, v{PX}", f"v_lshrrev_b32 v{PW}, 1, v{PX}",
                "s_add_u32 s6, s4, 4096", "s_add_u32 s7, s4, 8192", "s_add_u32 s8, s5, 4096")
        issue_to(8 * (j + 1) + CP)
        if j == 9:
            partials(); vm.add("pt", 10)
        k.e(vm.wait(j), "s_barrier")
    misc_init(k)
    k.e("s_mov_b32 s61, 0")
    k.label("pt_chk")
    k.e("s_waitcnt vmcnt(0)")
    k.e(f"v_xor_b32 v{T0}, s{TAG}, v{D+1}")
    for i in range(1, 15, 2):
        k.e(f"v_xor_b32 v{T1}, s{TAG}, v{D+1+2*i}", f"v_xor_b32 v9, s{TAG}, v{D+3+2*i}", f"v_or3_b32 v{T0}, v{T0}, v{T1}, v9")
    k.e(f"v_cmp_ne_u32 vcc, 0, v{T0}", "s_add_u32 s61, s61, 1", f"s_cbranch_vccz {k.lab('pt_ok')}", f"s_cmp_gt_u32 s61, {SPIN_MAX}", f"s_cbranch_scc1 {k.lab('pt_ok')}")
    partials()
    k.e(f"s_branch {k.lab('pt_chk')}")
    k.label("pt_ok")
    stamp(k, 3)
    for i in range(1, 5):
        k.e(f"v_add_f32 v{D}, v{D}, v{D+4*i}", f"v_add_f32 v{D+2}, v{D+2}, v{D+4*i+2}", f"v_add_f32 v{D+20}, v{D+20}, v{D+20+2*i}")
    half_sum(k, D, T0); half_sum(k, D + 2, T1); half_sum(k, D + 20, T2)
    ln_stats(k, D, D + 2, T0, T1, D + 4, D + 5)
    split3(k, D + 20, D + 12, D + 13, T0, T1)
    k.e("s_cmp_lt_u32 s25, 5", f"s_cselect_b32 s52, {f32(CSC)}, {f32(1.0)}", f"v_mul_f32 v{D+5}, s52, v{D+5}",
        f"v_cvt_pk_bf16_f32 v{D+4}, -v{D+4}, -v{D+4}",
        "s_lshl_b32 s52, s31, 7", f"s_add_u32 s52, s52, {MISC}", f"v_lshl_add_u32 v{T0}, v{TK}, 2, s52",
        "s_lshl_b32 s52, s31, 8", f"s_add_u32 s52, s52, {MISC+1024}", f"v_lshl_add_u32 v{T1}, v{TK}, 3, s52",
        f"ds_write_b32 v{T0}, v{D+4}", f"ds_write_b32 v{T0}, v{D+5} offset:512", f"ds_write_b64 v{T1}, v[{D+12}:{D+13}]",
        "s_waitcnt lgkmcnt(0)", "s_barrier")
    stamp(k, 4)
    k.e("s_barrier")

def build():
    k = Kern("mega_kernel", 256, 512, 163840, nvgpr=256, nsgpr=100)
    k.e("s_cmp_ge_u32 s2, 256", f"s_cbranch_scc1 {k.lab('end')}")
    if STAMP:
        k.e("s_memtime s[62:63]", "s_waitcnt lgkmcnt(0)", "s_mov_b32 s94, s62")
        for i in range(1, 30): k.e(f"s_mov_b32 s{64+i}, 0")
    stamp(k, 0)
    k.e("s_load_dwordx16 s[32:47], s[0:1], 0", "s_load_dwordx4 s[48:51], s[0:1], 64")
    k.e(f"v_lshrrev_b32 v{T0}, 6, v0", f"v_and_b32 v{L}, 63, v0", f"v_readfirstlane_b32 s24, v{T0}",
        f"v_lshlrev_b32 v{L16}, 4, v{L}", f"v_lshrrev_b32 v{H}, 5, v{L}", f"v_and_b32 v{TK}, 31, v{L}")
    a_map(k)
    k.e("s_waitcnt lgkmcnt(0)")
    WOFF = int(([a[6:] for a in sys.argv if a.startswith("-woff=")] + ["0"])[0]) << 20
    if WOFF: k.e(f"s_add_u32 s{KWS}, s{KWS}, {WOFF}", f"s_addc_u32 s{KWS+1}, s{KWS+1}, 0")
    srd(k, 20, KWS, WS_SRD); srd(k, 12, KX, X_BYTES)
    k.e("s_cmp_ge_u32 s2, 240", f"s_cbranch_scc1 {k.lab('spare')}")
    k.e("s_cmp_lt_u32 s24, 4", f"s_cbranch_scc1 {k.lab('compute')}")
    a_loader(k)
    k.e(f"s_branch {k.lab('a_done')}")
    k.label("spare")
    spare(k)
    k.e(f"s_branch {k.lab('a_done')}")
    k.label("compute")
    if not opt("nocf"): code_touch(k, 1, 256)
    k.e(f"v_lshlrev_b32 v{T0}, 6, v{L}", "s_mul_i32 s54, s2, 704", f"s_min_u32 s54, s54, {163840-704}", f"s_add_u32 s54, s54, {WS_FB}", "s_mov_b64 exec, 0x7ff",
        f"buffer_load_dword v9, v{T0}, s[20:23], s54 offen sc1 ; dummy", "s_mov_b64 exec, -1")
    a_compute(k)
    k.label("a_done")
    if UPTO != "A":
        import phases
        phases.rest(k)
    k.label("fin")
    stamp_out(k)
    k.label("end")
    k.e("s_endpgm")
    return k

HEADER = open("cdna_kernels/" + NAME + ".s.ref").read().split("; Override launch geometry")[0].rstrip()

if __name__ == "__main__":
    sys.modules["gen2"] = sys.modules["__main__"]
    out = sys.argv[1] if len(sys.argv) > 1 and not sys.argv[1].startswith("-") else "cdna_kernels/" + NAME + ".s"
    n = write_file(out, [build()], HEADER, verbose="-v" in sys.argv)
    print("errors:", n)
```

```python
import sys, struct
from asmlib import *
from qktab import tables

NAME = "sequential_preLN__sliding_block__glu_gated_swiglu__prompt"
WS_QK = 0
WS_V = 5242880
WS_O = 7864320
WS_H = 10485760
WS_A = 13107200
WS_HST = 19398656
WS_CS = WS_HST + 262144
WS_XST = WS_CS + 245760
WS_WST = WS_XST + 327680
WS_FB = WS_WST + 153600
WS_FC = WS_FB + 65536
WS_FD = WS_FC + 32768
WS_FE = WS_FD + 32768
WS_EP = WS_FE + 32768
WS_END = WS_EP + 128
X_BYTES = 2048 * 1280
SPIN_MAX = 40000 if not any(a in sys.argv for a in ('-xrot', '-norot_a')) else 20

def f32(x): return "0x%08x" % struct.unpack("<I", struct.pack("<f", x))[0]
ONES = "0x3f803f80"
NEGBIG = f32(-1e30)
CSC = (20 ** -0.5) * 1.4426950408889634

STAMP = "-stamp" in sys.argv
UPTO = ([a[6:] for a in sys.argv if a.startswith("-upto=")] + ["E"])[0]
WS_STAMP = 64 << 20
WS_SRD = (1 << 28) if STAMP else WS_END
def opt(name): return ("-" + name) in sys.argv

L, L16, H, TK, T0, T1, T2, T3 = 1, 2, 3, 4, 5, 6, 7, 8
HRES = 10
KX, KWQKV, KWO, KW1, KW3, KW2, KOUT, KWS = 32, 34, 36, 40, 42, 44, 46, 50
TAG = 3

class VM:
    def __init__(s): s.q = []
    def add(s, tag, n=1): s.q += [tag] * n
    def wait(s, tag):
        idx = max(i for i, t in enumerate(s.q) if t == tag)
        n = len(s.q) - 1 - idx
        s.q = s.q[idx + 1:]
        assert n <= 63
        return f"s_waitcnt vmcnt({n})"

NST = [0]
DST = ([a[5:] for a in sys.argv if a.startswith("-dst=")] + [""])[0]
def dstamp(k, ph, i):
    if DST == ph: stamp(k, i, True)
def stamp(k, i, force=False):
    if DST and 1 <= i <= 17 and not force: return
    if STAMP:
        k.e("s_memrealtime s[62:63]", "s_waitcnt lgkmcnt(0)", f"s_mov_b32 s{64+i}, s62")
def stamp_out(k):
    if not STAMP: return
    k.e("s_waitcnt vmcnt(0)")
    stamp(k, 29)
    k.e("s_memtime s[62:63]", "s_waitcnt lgkmcnt(0)", "s_mov_b32 s95, s62")
    k.e("s_mov_b64 exec, 1", "s_lshl_b32 s62, s2, 3", "s_add_u32 s62, s62, s24", "s_lshl_b32 s62, s62, 7", f"s_add_u32 s62, s62, {WS_STAMP}")
    k.e("v_mov_b32 v0, 0")
    for i in range(32):
        k.e(f"v_mov_b32 v1, s{64+i}", f"buffer_store_dword v1, v0, s[20:23], s62 offen offset:{4*i}")
    EC = int(([a[6:] for a in sys.argv if a.startswith("-echo=")] + ["0"])[0])
    if EC:
        k.e(f"s_sub_u32 s60, s{64+EC}, s64", "s_min_u32 s60, s60, 10000", f"s_cmp_eq_u32 s{64+EC}, 0", "s_cselect_b32 s60, 0, s60")
        k.label("echo")
        k.e("s_memrealtime s[62:63]", "s_waitcnt lgkmcnt(0)", "s_sub_u32 s62, s62, s93", "s_cmp_lt_u32 s62, s60", f"s_cbranch_scc1 {k.lab('echo')}")
    if opt("dbg"):
        k.e("s_lshl_b32 s62, s2, 3", "s_add_u32 s62, s62, s24", "s_cmp_lg_u32 s62, 800", f"s_cbranch_scc1 {k.lab('end')}")
        srd(k, 16, 48, 256)
        for n, i in enumerate((1, 2, 3, 6, 8, 9, 12, 13, 17, 18, 19, 20, 22, 23, 25, 29)):
            k.e(f"s_sub_u32 s62, s{64+i}, s64", "v_mov_b32 v1, s62", f"buffer_store_dword v1, v0, s[16:19], 0 offen offset:{4*n}")

def srd(k, d, base, size):
    k.e(f"s_mov_b32 s{d}, s{base}", f"s_mov_b32 s{d+1}, s{base+1}", f"s_mov_b32 s{d+2}, {size}", f"s_mov_b32 s{d+3}, 0x20000")

def ln_stats(k, sx, sxx, t0, t1, Mout, Rout, SD=None):
    k.e(f"v_mul_f32 v{sx}, {f32(1/640)}, v{sx}")
    k.e(f"v_mul_f32 v{sxx}, {f32(1/640)}, v{sxx}")
    k.e(f"v_fma_f32 v{t0}, -v{sx}, v{sx}, v{sxx}")
    k.e(f"v_max_f32 v{t0}, 0, v{t0}")
    k.e(f"v_cvt_pk_bf16_f32 v{t1}, v{sx}, v{t0}")
    k.e(f"v_lshlrev_b32 v{Mout}, 16, v{t1}")
    k.e(f"v_and_b32 v{t0}, 0xffff0000, v{t1}")
    k.e(f"v_add_f32 v{t0}, {f32(1e-5)}, v{t0}")
    k.e(f"v_cvt_pk_bf16_f32 v{t0}, v{t0}, v{t0}")
    k.e(f"v_lshlrev_b32 v{t0}, 16, v{t0}")
    k.e(f"v_sqrt_f32 v{t0}, v{t0}")
    k.e(f"v_cvt_pk_bf16_f32 v{t0}, v{t0}, v{t0}")
    k.e(f"v_lshlrev_b32 v{t0}, 16, v{t0}")
    if SD is not None: k.e(f"v_mov_b32 v{SD}, v{t0}")
    k.e(f"v_rcp_f32 v{Rout}, v{t0}")

def half_sum(k, x, t):
    k.e(f"v_mov_b32 v{t}, v{x}", f"v_permlane32_swap_b32 v{t}, v{x}", f"v_add_f32 v{x}, v{t}, v{x}")

def split3(k, cs, d0, d1, t0, t1, neg=False):
    n = "-" if neg else ""
    k.e(f"v_cvt_pk_bf16_f32 v{t0}, v{cs}, v{cs}")
    k.e(f"v_lshlrev_b32 v{t0}, 16, v{t0}")
    k.e(f"v_sub_f32 v{t0}, v{cs}, v{t0}")
    k.e(f"v_cvt_pk_bf16_f32 v{t1}, v{t0}, v{t0}")
    k.e(f"v_cvt_pk_bf16_f32 v{d0}, {n}v{cs}, {n}v{t0}")
    k.e(f"v_lshlrev_b32 v{t1}, 16, v{t1}")
    k.e(f"v_sub_f32 v{t0}, v{t0}, v{t1}")
    k.e(f"v_cvt_pk_bf16_f32 v{d1}, {n}v{t0}, 0")

uid = [0]
def poll(k, vaddr, soff, vd, mask_lo, mask_hi, x4=False, preloaded=False):
    uid[0] += 1
    lp, dn = f"pl{uid[0]}", f"pd{uid[0]}"
    k.e(f"s_mov_b32 exec_lo, {mask_lo}", f"s_mov_b32 exec_hi, {mask_hi}", "s_mov_b32 s61, 0")
    ld = f"buffer_load_dwordx4 v[{vd}:{vd+3}], v{vaddr}, s[20:23], {soff} offen sc1" if x4 else f"buffer_load_dword v{vd}, v{vaddr}, s[20:23], {soff} offen sc1"
    def chk():
        if x4:
            k.e(f"v_xor_b32 v{vd}, s{TAG}, v{vd}", f"v_xor_b32 v{vd+1}, s{TAG}, v{vd+1}", f"v_xor_b32 v{vd+2}, s{TAG}, v{vd+2}", f"v_xor_b32 v{vd+3}, s{TAG}, v{vd+3}",
                f"v_or3_b32 v{vd}, v{vd}, v{vd+1}, v{vd+2}", f"v_or_b32 v{vd}, v{vd}, v{vd+3}", f"v_cmp_ne_u32 vcc, 0, v{vd}")
        else:
            k.e(f"v_cmp_ne_u32 vcc, s{TAG}, v{vd}")
    if preloaded:
        chk()
        k.e("s_nop 1", f"s_cbranch_vccz {k.lab(dn)}")
    k.label(lp)
    k.e(ld, "s_waitcnt vmcnt(0)")
    chk()
    k.e("s_add_u32 s61, s61, 1", f"s_cbranch_vccz {k.lab(dn)}", f"s_cmp_lt_u32 s61, {SPIN_MAX}", f"s_cbranch_scc1 {k.lab(lp)}")
    k.label(dn)
    k.e("s_mov_b64 exec, -1")

MISC = 65536

def a_map(k):
    k.e("s_and_b32 s52, s2, 7", "s_lshr_b32 s53, s2, 3",
        "s_and_b32 s54, s52, 1", "s_mul_i32 s54, s54, 30", "s_add_u32 s54, s54, s53",
        "s_lshr_b32 s25, s54, 2",
        "s_and_b32 s54, s54, 3", "s_lshr_b32 s52, s52, 1", "s_lshl_b32 s55, s52, 2", "s_add_u32 s26, s55, s54",
        "s_mul_i32 s54, s54, 5", "s_add_u32 s54, s54, 1", "s_lshr_b32 s54, s54, 1", "s_add_u32 s54, s54, s52",
        "s_add_u32 s27, s54, s25",
        "s_cmp_ge_u32 s27, 20", "s_cselect_b32 s54, 20, 0", "s_sub_u32 s27, s27, s54",
        "s_cmp_ge_u32 s27, 10", "s_cselect_b32 s54, 10, 0", "s_sub_u32 s27, s27, s54")
    if opt("norot_a"): k.e("s_mov_b32 s27, 0")
    if opt("xrot"):
        k.e("s_mul_i32 s54, s52, 5", "s_add_u32 s54, s54, 1", "s_lshr_b32 s54, s54, 1", "s_and_b32 s27, s2, 1", "s_mul_i32 s27, s27, 5", "s_add_u32 s27, s27, s54",
            "s_cmp_ge_u32 s27, 10", "s_cselect_b32 s54, 10, 0", "s_sub_u32 s27, s27, s54")

def a_table(k, wj_sgpr, pref):
    T = tables()
    k.e("s_cmp_ge_u32 s25, 5", "s_cselect_b32 s52, 5, 0", "s_sub_u32 s52, s25, s52", "s_min_u32 s52, s52, 5",
        "s_lshl_b32 s52, s52, 1", f"s_add_u32 s52, s52, s{wj_sgpr}")
    for i in range(12):
        p, wj = divmod(i, 2)
        if i < 11: k.e(f"s_cmp_lg_u32 s52, {i}", f"s_cbranch_scc1 {k.lab(f'{pref}{i+1}')}")
        for f in range(2):
            ch, R = T[p][2 * wj + f]
            b = [8 * c for c in ch]
            lo = b[0] | b[1] << 8 | b[2] << 16 | b[3] << 24
            hi = b[4] | b[5] << 8 | b[6] << 16 | b[7] << 24
            rr = R[0] | R[1] << 8 | R[2] << 16 | R[3] << 24
            k.e(f"s_mov_b32 s{54+3*f}, {lo:#x}", f"s_mov_b32 s{55+3*f}, {hi:#x}", f"s_mov_b32 s{56+3*f}, {rr:#x}")
        if i < 11:
            k.e(f"s_branch {k.lab(pref + 'd')}")
            k.label(f"{pref}{i+1}")
    k.label(pref + "d")

def a_waddr(k, d, lo, hi):
    k.e(f"v_bfe_u32 v{T0}, v{L}, 2, 2",
        f"v_bfe_u32 v{T1}, v{L}, 4, 1", f"v_cmp_eq_u32 vcc, 1, v{T1}",
        f"v_mov_b32 v{T1}, s{lo}", f"v_mov_b32 v{T2}, s{hi}", f"v_cndmask_b32 v{T1}, v{T1}, v{T2}, vcc",
        f"v_and_b32 v{T2}, 3, v{L}", f"v_lshlrev_b32 v{T2}, 3, v{T2}", f"v_bfe_u32 v{T1}, v{T1}, v{T2}, 8",
        f"v_lshlrev_b32 v{T2}, 6, v{T0}", f"v_xor_b32 v{T1}, v{T1}, v{T2}",
        f"v_lshl_add_u32 v{T0}, v{H}, 3, v{T0}", f"v_lshl_add_u32 v{d}, v{T0}, 8, v{T1}")

def a_xaddr(k, d, rowbase_sgpr):
    k.e(f"v_lshlrev_b32 v{T0}, 7, v{TK}", f"v_add_u32 v{T0}, s{rowbase_sgpr}, v{T0}",
        f"v_bfe_u32 v{T1}, v{TK}, 1, 3", f"v_xor_b32 v{T1}, v{T1}, v{H}")
    for ks in range(4):
        k.e(f"v_xor_b32 v{T2}, {2*ks}, v{T1}", f"v_lshl_add_u32 v{d+ks}, v{T2}, 4, v{T0}")

def a_compute(k):
    AX, AW = 16, 24
    AST = 28
    ACC = 64; FR = 128; EX = 176
    k.e("s_lshr_b32 s28, s24, 1", "s_and_b32 s29, s24, 1")
    a_table(k, 29, "ct")
    k.e("s_lshl_b32 s52, s28, 13")
    a_xaddr(k, AX, 52)
    for i in range(4): k.e(f"v_add_u32 v{AX+4+i}, 65536, v{AX+i}")
    a_waddr(k, AW, 54, 55); a_waddr(k, AW + 1, 57, 58)
    for i in range(2): k.e(f"v_add_u32 v{AW+2+i}, 65536, v{AW+i}")
    k.e("s_lshl_b32 s52, s26, 2", "s_lshl_b32 s53, s28, 1", "s_add_u32 s52, s52, s53")

    def reads(g):
        st, ks = divmod(g, 4)
        sl = st % 4; S = sl // 2; ob = (sl % 2) * 32768
        b = FR + 16 * (g % 3)
        o = []
        for t in range(2):
            o.append(f"ds_read_b128 v[{b+4*t}:{b+4*t+3}], v{AX+4*S+ks} offset:{ob+4096*t}")
        for f in range(2):
            for u in range(2):
                o.append(f"ds_read_b64_tr_b16 v[{b+8+4*f+2*u}:{b+8+4*f+2*u+1}], v{AW+2*S+f} offset:{ob+16384+ks*4096+u*1024}")
        return o

    def mainloop(vmode):
        stamp(k, 1)
        k.e("s_barrier")
        stamp(k, 2)
        k.e(*reads(0)); k.e(*reads(1))
        for g in range(40):
            b = FR + 16 * (g % 3)
            fill = []
            if g % 4 == 2 and g // 4 + 1 <= 9:
                k.e("s_waitcnt lgkmcnt(0)", "s_barrier")
            else:
                k.e(f"s_waitcnt lgkmcnt({6 if g + 1 < 40 else 0})")
            if g + 2 < 40: fill += reads(g + 2)
            mf = []
            for t in range(2):
                for f in range(2):
                    d = ACC + 32 * t + 16 * f
                    xa, wa = v(b + 4 * t, 4), v(b + 8 + 4 * f, 4)
                    A, B = (xa, wa) if vmode else (wa, xa)
                    c = "0" if g == 0 else v(d, 16)
                    mf.append(f"v_mfma_f32_32x32x16_bf16 {v(d,16)}, {A}, {B}, {c}")
            k.e(*interleave(mf, fill))
        stamp(k, 3)
        XO, WO, R = EX, EX + 8, EX + 16
        RD = FR
        k.e("s_lshl_b32 s53, s28, 8", f"s_add_u32 s53, s53, {MISC}", f"v_lshl_add_u32 v{T0}, v{TK}, 2, s53",
            "s_lshl_b32 s54, s29, 9", f"s_add_u32 s54, s54, {MISC+1024}", f"v_lshl_add_u32 v{T1}, v{TK}, 3, s54",
            f"v_lshl_add_u32 v{T2}, v{H}, 4, s53", f"v_mov_b32 v{T3}, {MISC}")
        for r in (XO+2, XO+3, XO+6, XO+7, WO+2, WO+3, WO+6, WO+7): k.e(f"v_mov_b32 v{r}, 0")
        k.e(f"v_cmp_gt_u32 vcc, 32, v{L}")
        k.e("s_barrier")
        stamp(k, 4)
        for t in range(2): k.e(f"ds_read_b32 v{XO+4*t}, v{T0} offset:{128*t}")
        for f in range(2): k.e(f"ds_read_b64 v[{WO+4*f}:{WO+4*f+1}], v{T1} offset:{256*f}")
        k.e(f"ds_read_b32 v{R+2}, v{T3} offset:2048")
        if vmode:
            for t in range(2):
                for q in range(4):
                    k.e(f"ds_read_b128 v[{RD+16*t+4*q}:{RD+16*t+4*q+3}], v{T2} offset:{512+128*t+32*q}")
        else:
            for t in range(2): k.e(f"ds_read_b32 v{R+t}, v{T0} offset:{512+128*t}")
        k.e(f"s_waitcnt lgkmcnt({8 if vmode else 2})")
        for t in range(2):
            k.e(f"v_cndmask_b32 v{XO+4*t}, 0, v{XO+4*t}, vcc", f"v_and_b32 v{XO+4*t+1}, 0xffff, v{XO+4*t}")
        k.e(f"v_readfirstlane_b32 s{TAG}, v{R+2}")
        for t in range(2):
            for f in range(2):
                d = ACC + 32 * t + 16 * f
                xa, wa = v(XO + 4 * t, 4), v(WO + 4 * f, 4)
                A, B = (xa, wa) if vmode else (wa, xa)
                k.e(f"v_mfma_f32_32x32x16_bf16 {v(d,16)}, {A}, {B}, {v(d,16)}")
        k.e("s_waitcnt lgkmcnt(0)")
        for t in range(2):
            for f in range(2):
                d = ACC + 32 * t + 16 * f
                for r in range(0, 16, 2):
                    if vmode: k.e(f"v_pk_mul_f32 v[{d+r}:{d+r+1}], v[{d+r}:{d+r+1}], v[{RD+16*t+r}:{RD+16*t+r+1}]")
                    else: k.e(f"v_pk_mul_f32 v[{d+r}:{d+r+1}], v[{d+r}:{d+r+1}], v[{R}:{R+1}] op_sel:[0,{t}] op_sel_hi:[1,{t}]")
                for j in range(8):
                    k.e(f"v_cvt_pk_bf16_f32 v{d+j}, v{d+2*j}, v{d+2*j+1}")
                for u in range(2):
                    k.e(f"buffer_store_dwordx4 v[{d+4*u}:{d+4*u+3}], v{AST+2*f+u}, s[20:23], s{30+t} offen sc1")
        k.e(f"s_branch {k.lab('a_pub')}")

    k.e("s_cmp_ge_u32 s25, 10", f"s_cbranch_scc1 {k.lab('vpath')}")
    k.e("s_cmp_ge_u32 s25, 5", f"s_cselect_b32 s53, {80*32768}, 0", "s_lshl_b32 s30, s52, 9", "s_add_u32 s30, s30, s53", "s_add_u32 s31, s30, 512")
    k.e(f"v_lshlrev_b32 v{T0}, 3, v{H}", f"v_lshlrev_b32 v{T1}, 4, v{TK}")
    for f in range(2):
        for u in range(2):
            k.e(f"v_add_u32 v{T2}, {16*u}, v{T0}", f"v_bfe_u32 v{T2}, s{56+3*f}, v{T2}, 8", f"v_lshl_add_u32 v{AST+2*f+u}, v{T2}, 15, v{T1}")
    mainloop(False)
    k.label("vpath")
    k.e("s_mul_i32 s30, s52, 40960", f"s_add_u32 s30, s30, {WS_V}", "s_add_u32 s31, s30, 40960",
        "s_sub_u32 s53, s25, 10", "s_lshl_b32 s53, s53, 11", "s_lshl_b32 s54, s29, 10", "s_add_u32 s53, s53, s54",
        f"v_mul_u32_u24 v{T0}, 10240, v{H}", f"v_lshl_add_u32 v{T0}, v{TK}, 4, v{T0}", f"v_add_u32 v{AST}, s53, v{T0}",
        f"v_add_u32 v{AST+1}, 20480, v{AST}", f"v_add_u32 v{AST+2}, 512, v{AST}", f"v_add_u32 v{AST+3}, {20480+512}, v{AST}")
    mainloop(True)
    k.label("a_pub")
    stamp(k, 5)
    k.e("s_lshr_b32 s52, s26, 1", "s_lshl_b32 s53, s52, 13", "s_and_b32 s54, s26, 1", "s_add_u32 s54, s54, 2", "s_lshl_b32 s54, s54, 4",
        "s_add_u32 s54, s54, s25", "s_lshl_b32 s54, s54, 2", "s_add_u32 s53, s53, s54", f"s_add_u32 s53, s53, {WS_FB}",
        f"v_mul_u32_u24 v{T0}, {8192-128}, v{H}", f"v_lshl_add_u32 v{T0}, v{TK}, 8, v{T0}",
        f"v_mov_b32 v{T1}, 1", f"v_mov_b32 v{T2}, s{TAG}",
        "s_cmp_eq_u32 s52, 7", "s_cselect_b32 s55, 0, -1")
    k.e("s_waitcnt vmcnt(0)")
    stamp(k, 6)
    k.e("s_barrier", "s_cmp_lg_u32 s24, 0", f"s_cbranch_scc1 {k.lab('a_done')}",
        "s_mov_b32 exec_hi, s55", f"buffer_store_dword v{T2}, v{T0}, s[20:23], s53 offen sc1", "s_mov_b64 exec, -1")

def code_touch(k, n, nthr):
    uid[0] += 1
    k.e("s_getpc_b64 s[52:53]")
    k.label(f"pc{uid[0]}")
    k.e(f"s_sub_u32 s52, s52, {k.lab(f'pc{uid[0]}')}-{k.name}", "s_subb_u32 s53, s53, 0", f"v_lshlrev_b32 v{T0}, 6, v0")
    for i in range(n):
        k.e(f"v_min_u32 v{T1}, {k.lab('end')}-{k.name}, v{T0}", f"global_load_dword v9, v{T1}, s[52:53] ; dummy")
        if i < n - 1: k.e(f"v_add_u32 v{T0}, {64*nthr}, v{T0}")
def spare(k):
    TG = 30
    tag_load(k, TG)
    TL = int(([a[5:] for a in sys.argv if a.startswith("-tlb=")] + ["0"])[0])
    if TL:
        k.e("s_bfe_u32 s54, s2, 0x10003", f"v_lshl_add_u32 v{T1}, v0, 1, s54", f"v_lshlrev_b32 v{T1}, {TL}, v{T1}")
        assert WS_END <= 1024 << TL and TL <= 21
        for m, sz in ((KWS, WS_END), (KW1, 640 * 3072), (KW3, 640 * 3072), (KOUT, X_BYTES), (KW2, 1536 * 1280)):
            srd(k, 16, m, sz)
            k.e(f"buffer_load_dword v32, v{T1}, s[16:19], 0 offen ; dummy")
    code_touch(k, 2, 512)
    mats = [(KWO, 640 * 1280), (KW2, 1536 * 1280)] if not opt("sp13") else [(KWO, 640 * 1280), (KW1, 640 * 3072), (KW3, 640 * 3072)]
    if opt("spall"): mats = [(KWO, 640 * 1280), (KW1, 640 * 3072), (KW3, 640 * 3072), (KW2, 1536 * 1280)]
    sh = 12 if opt("touch") else 10
    k.e("s_sub_u32 s52, s2, 240", "s_lshl_b32 s52, s52, 3", "s_add_u32 s52, s52, s24", f"s_lshl_b32 s52, s52, {sh}", f"v_lshlrev_b32 v{T0}, 6, v{L}")
    for m, sz in mats:
        srd(k, 16, m, sz)
        k.e("s_mov_b32 s53, s52")
        for i in range(-(-sz // (128 << sh))):
            if opt("touch"): k.e(f"buffer_load_dword v32, v{T0}, s[16:19], s53 offen ; dummy")
            else: k.e(f"buffer_load_dwordx4 v[32:35], v{L16}, s[16:19], s53 offen ; dummy")
            k.e(f"s_add_u32 s53, s53, {128 << sh}")
    k.e("s_waitcnt vmcnt(0)")
    tag_make(k, TG)
    stamp(k, 6)

def tag_load(k, d):
    k.e(f"v_mov_b32 v{T0}, 0", f"s_mov_b32 s52, {WS_EP}", f"buffer_load_dword v{d}, v{T0}, s[20:23], s52 offen sc1")
def tag_make(k, d):
    k.e(f"v_readfirstlane_b32 s{TAG}, v{d}", f"s_add_u32 s{TAG}, s{TAG}, 0x9e3779b9")
def misc_init(k):
    k.e(f"v_mov_b32 v20, s{TAG}", f"v_mov_b32 v{T3}, {MISC}", f"ds_write_b32 v{T3}, v20 offset:2048")

def a_loader(k):
    VXO, VWO = 16, 20
    AX, AW = 24, 28
    TG, PL = 30, 31
    D = 32
    vm = VM()
    k.e("s_sub_u32 s31, s24, 4")
    tag_load(k, TG); vm.add("tag")
    srd(k, 16, KWQKV, 640 * 3840)
    k.e("s_lshl_b32 s29, s31, 12",
        "s_mul_i32 s28, s26, 163840", "s_lshl_b32 s52, s27, 7", "s_add_u32 s58, s28, s52", "s_add_u32 s28, s28, 1280",
        "s_lshl_b32 s59, s25, 8", "s_mul_i32 s52, s27, 245760", "s_add_u32 s59, s59, s52")
    k.e(f"v_lshrrev_b32 v{T0}, 3, v{L}", "s_lshl_b32 s52, s31, 5", f"v_add_u32 v{T0}, s52, v{T0}", f"v_mul_u32_u24 v{T0}, 1280, v{T0}",
        f"v_and_b32 v{T1}, 7, v{L}", f"v_lshrrev_b32 v{T2}, 4, v{L}", f"v_xor_b32 v{T1}, v{T1}, v{T2}", f"v_lshl_add_u32 v{VXO}, v{T1}, 4, v{T0}",
        f"v_xor_b32 v{T0}, 64, v{VXO}", f"v_add_u32 v{VXO+1}, {10240-1024}, v{T0}", f"v_add_u32 v{VXO+2}, {2*(10240-1024)}, v{VXO}",
        f"v_add_u32 v{VXO+3}, {3*(10240-1024)}, v{T0}")
    k.e("s_lshl_b32 s52, s31, 4", f"v_add_u32 v{T0}, s52, v{T2}", f"v_mul_u32_u24 v{T0}, 3840, v{T0}",
        f"v_and_b32 v{T1}, 15, v{L}", f"v_lshlrev_b32 v{T3}, 2, v{T2}", f"v_xor_b32 v{T1}, v{T1}, v{T3}", f"v_lshl_add_u32 v{VWO}, v{T1}, 4, v{T0}")
    for j in range(1, 4): k.e(f"v_add_u32 v{VWO+j}, {j*(15360-1024)}, v{VWO}")
    CP = int(([a[4:] for a in sys.argv if a.startswith("-cp=")] + ["12"])[0])
    nxt = [0]
    def issue_to(q):
        while nxt[0] < min(q, 80):
            st, i = divmod(nxt[0], 8)
            sl = st % 4
            if i == 0: k.e(f"s_add_u32 m0, s29, {sl*32768}")
            if i == 4: k.e(f"s_add_u32 m0, s29, {sl*32768+16384}")
            if opt("nodma") and st >= 4:
                if i == 0: k.e(f"buffer_load_dwordx4 v{VXO+i}, s[12:15], s58 offen offset:{1024*i} lds"); vm.add(st)
                nxt[0] += 1; continue
            if i < 4: k.e(f"buffer_load_dwordx4 v{VXO+i}, s[12:15], s58 offen offset:{1024*i} lds")
            else: k.e(f"buffer_load_dwordx4 v{VWO+i-4}, s[16:19], s59 offen offset:{1024*(i-4)} lds")
            vm.add(st)
            if i == 7 and st < 9:
                k.e("s_add_u32 s58, s58, 128", "s_add_u32 s59, s59, 245760", "s_cmp_ge_u32 s58, s28",
                    "s_cselect_b32 s52, 1280, 0", "s_cselect_b32 s53, 2457600, 0", "s_sub_u32 s58, s58, s52", "s_sub_u32 s59, s59, s53")
            nxt[0] += 1
    issue_to(8)
    k.e("s_mov_b32 s60, s58", "s_mov_b32 s30, s59", "s_lshr_b32 s61, s31, 1")
    a_table(k, 61, "lt")
    k.e("s_bitcmp1_b32 s31, 0", "s_cselect_b32 s54, s57, s54", "s_cselect_b32 s55, s58, s55")
    a_waddr(k, AW, 54, 55)
    a_xaddr(k, AX, 29)
    k.e("s_mov_b32 s58, s60", "s_mov_b32 s59, s30")
    k.e("s_mul_i32 s4, s26, 20480", "s_lshl_b32 s56, s31, 9", "s_add_u32 s4, s4, s56", f"s_add_u32 s4, s4, {WS_XST}",
        "s_mul_i32 s5, s25, 10240", "s_lshl_b32 s57, s31, 8", "s_add_u32 s5, s5, s57", f"s_add_u32 s5, s5, {WS_WST}",
        "s_lshl_b32 s55, s27, 11", "s_add_u32 s55, s55, s4", "s_lshl_b32 s56, s27, 10", "s_add_u32 s56, s56, s5", f"s_mov_b32 s54, {ONES}")
    issue_to(8 + CP)
    stamp(k, 1)
    k.e(vm.wait(0), "s_barrier")
    stamp(k, 2)
    tag_make(k, TG)
    for ks in range(4): k.e(f"ds_read_b128 v[{D+4*ks}:{D+4*ks+3}], v{AX+ks}")
    for ks in range(4):
        for u in range(2): k.e(f"ds_read_b64_tr_b16 v[{D+16+4*ks+2*u}:{D+16+4*ks+2*u+1}], v{AW} offset:{16384+ks*4096+u*1024}")
    SX, SXX, CS = 64, 66, 68
    k.e(f"v_mov_b32 v{SX}, 0", f"v_mov_b32 v{SXX}, 0", f"v_mov_b32 v{CS}, 0",
        f"v_mov_b32 v{SX+1}, s{TAG}", f"v_mov_b32 v{SXX+1}, s{TAG}", f"v_mov_b32 v{CS+1}, s{TAG}",
        f"v_lshlrev_b32 v{T2}, 4, v{TK}", f"v_lshlrev_b32 v{T3}, 3, v{TK}")
    issue_to(16 + CP)
    k.e("s_waitcnt lgkmcnt(0)", vm.wait(1), "s_barrier")
    PX, PW = 70, 71
    def partials():
        for i in range(5):
            k.e(f"buffer_load_dwordx4 v[{D+4*i}:{D+4*i+3}], v{PX}, s[20:23], s{(4,6,7)[i//2]} offen offset:{2048*(i%2)} sc1")
            k.e(f"buffer_load_dwordx2 v[{D+20+2*i}:{D+21+2*i}], v{PW}, s[20:23], s{(5,8)[i//4]} offen offset:{1024*(i%4)} sc1")
    for j in range(2, 10):
        if j < 6:
            for i in range(4 * (j - 2), 4 * (j - 1)):
                issue_to(8 * j + CP + 2 * (i % 4 + 1))
                k.e(f"v_lshlrev_b32 v{T0}, 16, v{D+i}", f"v_and_b32 v{D+i}, 0xffff0000, v{D+i}", f"v_lshlrev_b32 v{T1}, 16, v{D+16+i}", f"v_and_b32 v{D+16+i}, 0xffff0000, v{D+16+i}",
                    f"v_add_f32 v{SX}, v{SX}, v{T0}", f"v_fmac_f32 v{SXX}, v{T0}, v{T0}", f"v_add_f32 v{CS}, v{CS}, v{T1}",
                    f"v_add_f32 v{SX}, v{SX}, v{D+i}", f"v_fmac_f32 v{SXX}, v{D+i}, v{D+i}", f"v_add_f32 v{CS}, v{CS}, v{D+16+i}")
        if j == 5:
            half_sum(k, SX, T0); half_sum(k, SXX, T1); half_sum(k, CS, T0)
            k.e("s_mov_b32 exec_hi, 0", f"buffer_store_dwordx4 v[{SX}:{SX+3}], v{T2}, s[20:23], s55 offen sc1",
                f"buffer_store_dwordx2 v[{CS}:{CS+1}], v{T3}, s[20:23], s56 offen sc1", "s_mov_b64 exec, -1")
            vm.add("st", 2)
        if j == 6:
            k.e(f"v_mul_u32_u24 v{PX}, 10240, v{H}", f"v_lshl_add_u32 v{PX}, v{TK}, 4, v{PX}", f"v_lshrrev_b32 v{PW}, 1, v{PX}",
                "s_add_u32 s6, s4, 4096", "s_add_u32 s7, s4, 8192", "s_add_u32 s8, s5, 4096")
        issue_to(8 * (j + 1) + CP)
        if j == 9:
            partials(); vm.add("pt", 10)
        k.e(vm.wait(j), "s_barrier")
    misc_init(k)
    k.e("s_mov_b32 s61, 0")
    k.label("pt_chk")
    k.e("s_waitcnt vmcnt(0)")
    k.e(f"v_xor_b32 v{T0}, s{TAG}, v{D+1}")
    for i in range(1, 15, 2):
        k.e(f"v_xor_b32 v{T1}, s{TAG}, v{D+1+2*i}", f"v_xor_b32 v9, s{TAG}, v{D+3+2*i}", f"v_or3_b32 v{T0}, v{T0}, v{T1}, v9")
    k.e(f"v_cmp_ne_u32 vcc, 0, v{T0}", "s_add_u32 s61, s61, 1", f"s_cbranch_vccz {k.lab('pt_ok')}", f"s_cmp_gt_u32 s61, {SPIN_MAX}", f"s_cbranch_scc1 {k.lab('pt_ok')}")
    partials()
    k.e(f"s_branch {k.lab('pt_chk')}")
    k.label("pt_ok")
    stamp(k, 3)
    for i in range(1, 5):
        k.e(f"v_add_f32 v{D}, v{D}, v{D+4*i}", f"v_add_f32 v{D+2}, v{D+2}, v{D+4*i+2}", f"v_add_f32 v{D+20}, v{D+20}, v{D+20+2*i}")
    half_sum(k, D, T0); half_sum(k, D + 2, T1); half_sum(k, D + 20, T2)
    ln_stats(k, D, D + 2, T0, T1, D + 4, D + 5)
    split3(k, D + 20, D + 12, D + 13, T0, T1)
    k.e("s_cmp_lt_u32 s25, 5", f"s_cselect_b32 s52, {f32(CSC)}, {f32(1.0)}", f"v_mul_f32 v{D+5}, s52, v{D+5}",
        f"v_cvt_pk_bf16_f32 v{D+4}, -v{D+4}, -v{D+4}",
        "s_lshl_b32 s52, s31, 7", f"s_add_u32 s52, s52, {MISC}", f"v_lshl_add_u32 v{T0}, v{TK}, 2, s52",
        "s_lshl_b32 s52, s31, 8", f"s_add_u32 s52, s52, {MISC+1024}", f"v_lshl_add_u32 v{T1}, v{TK}, 3, s52",
        f"ds_write_b32 v{T0}, v{D+4}", f"ds_write_b32 v{T0}, v{D+5} offset:512", f"ds_write_b64 v{T1}, v[{D+12}:{D+13}]",
        "s_waitcnt lgkmcnt(0)", "s_barrier")
    stamp(k, 4)
    k.e("s_barrier")

def build():
    k = Kern("mega_kernel", 256, 512, 163840, nvgpr=256, nsgpr=100)
    k.e("s_cmp_ge_u32 s2, 256", f"s_cbranch_scc1 {k.lab('end')}")
    if STAMP:
        k.e("s_memtime s[62:63]", "s_waitcnt lgkmcnt(0)", "s_mov_b32 s94, s62")
        for i in range(1, 30): k.e(f"s_mov_b32 s{64+i}, 0")
    stamp(k, 0)
    k.e("s_load_dwordx16 s[32:47], s[0:1], 0", "s_load_dwordx4 s[48:51], s[0:1], 64")
    k.e(f"v_lshrrev_b32 v{T0}, 6, v0", f"v_and_b32 v{L}, 63, v0", f"v_readfirstlane_b32 s24, v{T0}",
        f"v_lshlrev_b32 v{L16}, 4, v{L}", f"v_lshrrev_b32 v{H}, 5, v{L}", f"v_and_b32 v{TK}, 31, v{L}")
    a_map(k)
    k.e("s_waitcnt lgkmcnt(0)")
    WOFF = int(([a[6:] for a in sys.argv if a.startswith("-woff=")] + ["0"])[0]) << 20
    if WOFF: k.e(f"s_add_u32 s{KWS}, s{KWS}, {WOFF}", f"s_addc_u32 s{KWS+1}, s{KWS+1}, 0")
    srd(k, 20, KWS, WS_SRD); srd(k, 12, KX, X_BYTES)
    k.e("s_cmp_ge_u32 s2, 240", f"s_cbranch_scc1 {k.lab('spare')}")
    k.e("s_cmp_lt_u32 s24, 4", f"s_cbranch_scc1 {k.lab('compute')}")
    a_loader(k)
    k.e(f"s_branch {k.lab('a_done')}")
    k.label("spare")
    spare(k)
    k.e(f"s_branch {k.lab('a_done')}")
    k.label("compute")
    if not opt("nocf"): code_touch(k, 1, 256)
    k.e(f"v_lshlrev_b32 v{T0}, 6, v{L}", "s_mul_i32 s54, s2, 704", f"s_min_u32 s54, s54, {163840-704}", f"s_add_u32 s54, s54, {WS_FB}", "s_mov_b64 exec, 0x7ff",
        f"buffer_load_dword v9, v{T0}, s[20:23], s54 offen sc1 ; dummy", "s_mov_b64 exec, -1")
    a_compute(k)
    k.label("a_done")
    if UPTO != "A":
        import phases
        phases.rest(k)
    k.label("fin")
    stamp_out(k)
    k.label("end")
    k.e("s_endpgm")
    return k

HEADER = open("cdna_kernels/" + NAME + ".s.ref").read().split("; Override launch geometry")[0].rstrip()

if __name__ == "__main__":
    sys.modules["gen2"] = sys.modules["__main__"]
    out = sys.argv[1] if len(sys.argv) > 1 and not sys.argv[1].startswith("-") else "cdna_kernels/" + NAME + ".s"
    n = write_file(out, [build()], HEADER, verbose="-v" in sys.argv)
    print("errors:", n)
```

```python
import sys
from asmlib import *
from gen2 import *
import gen2 as G

LK, LV, LQ = 106496, 131072, 151552
SC = '' if opt('plain') else ' sc1'
ER = int(([a[4:] for a in sys.argv if a.startswith('-er=')] + ['3'])[0])

def push_flags(k, base_sgpr, vaddr, mask_lo, wave=0):
    k.e(f"v_mov_b32 v{T3}, s{TAG}", f"s_cmp_eq_u32 s24, {wave}", f"s_cselect_b32 exec_lo, {mask_lo}, 0", "s_mov_b32 exec_hi, 0",
        f"buffer_store_dword v{T3}, v{vaddr}, s[20:23], s{base_sgpr} offen sc1", "s_mov_b64 exec, -1")

WV = 88
def wv_offsets(k, d=WV, sh=0, mul=0):
    for i in range(5):
        k.e(f"v_add_u32 v{T0}, {64*i}, v{L}", f"v_mul_u32_u24 v{T1}, 6554, v{T0}", f"v_lshrrev_b32 v{T1}, 16, v{T1}")
        if mul: k.e(f"v_lshrrev_b32 v{T2}, {sh}, v{T1}", f"v_mul_u32_u24 v{T2}, {1280*mul}, v{T2}")
        k.e(f"v_mul_u32_u24 v{T1}, {1280-160}, v{T1}", f"v_lshl_add_u32 v{d+i}, v{T0}, 4, v{T1}")
        if mul: k.e(f"v_add_u32 v{d+i}, v{d+i}, v{T2}")
        if i % 4: k.e(f"v_subrev_u32 v{d+i}, {1024*(i%4)}, v{d+i}")
def step_dma(d, lds_s, soff, lds_add=0):
    o = [[f"s_add_u32 m0, s{lds_s}, {lds_add}"]] + [[] for _ in range(4)]
    o[4].append(f"s_add_u32 m0, s{lds_s}, {lds_add+4096}")
    for i in range(5): o[i].append(f"buffer_load_dwordx4 v{d+i}, s[16:19], s{soff} offen offset:{1024*(i%4)} lds")
    return o

def phase_b(k):
    AK, AKE, AV = 16, 17, 18
    VV = 20
    QM, QE = 28, 32
    KB = 36
    VB = 60
    OA, MB = 72, 76
    MX, MC = 80, 81
    DUM = 84
    O = 96
    SB = 112
    k.e("s_and_b32 s52, s2, 7", "s_lshr_b32 s53, s2, 3", "s_lshr_b32 s54, s53, 3", "s_lshl_b32 s25, s52, 2", "s_add_u32 s25, s25, s54",
        "s_and_b32 s26, s53, 7")
    k.e("s_and_b32 s31, s24, 3")
    wv_offsets(k, WV, 4, 4)
    srd(k, 16, KWO, 640 * 1280)
    k.e("s_mul_i32 s60, s26, 160", "s_add_u32 s96, s24, s26", "s_and_b32 s96, s96, 7", "s_mul_i32 s96, s96, 51200", "s_add_u32 s96, s96, s60", f"s_add_u32 s97, s96, {8*51200}",
        "s_cmp_ge_u32 s24, 3", "s_cselect_b32 s98, 2, 0", "s_add_u32 s98, s98, s24", "s_mul_i32 s98, s98, 10240")
    wo = step_dma(WV, 98, 96) + step_dma(WV, 98, 97, 5120)
    k.e("s_lshr_b32 s52, s25, 1", "s_mul_i32 s52, s52, 5", "s_and_b32 s53, s25, 1", "s_lshl_b32 s53, s53, 1", "s_add_u32 s53, s53, s52",
        "s_lshl_b32 s4, s53, 15", "s_add_u32 s5, s4, 32768", "s_add_u32 s53, s52, 4", "s_lshl_b32 s6, s53, 15",
        "s_lshr_b32 s52, s52, 4", "s_lshr_b32 s53, s53, 4", "s_lshl_b32 s52, 0x04210421, s52", "s_lshl_b32 s53, 0x04210421, s53", "s_or_b32 s30, s52, s53",
        "s_lshl_b32 s54, s26, 1", "s_add_u32 s54, s54, s31",
        "s_cmp_lt_u32 s54, 2", "s_cselect_b32 s55, 0, 2", "s_sub_u32 s54, s54, s55",
        "s_lshl_b32 s7, s54, 11", f"s_add_u32 s7, s7, {80*32768}",
        "s_lshl_b32 s8, s26, 12", "s_lshl_b32 s55, s31, 10", "s_add_u32 s8, s8, s55",
        "s_mul_i32 s9, s54, 163840", "s_mul_i32 s55, s25, 320", "s_add_u32 s9, s9, s55", f"s_add_u32 s9, s9, {WS_V}",
        "s_lshl_b32 s10, s26, 13", "s_lshl_b32 s55, s25, 8", "s_add_u32 s10, s10, s55", f"s_add_u32 s10, s10, {WS_FB}",
        "s_cmp_eq_u32 s26, 0", "s_cselect_b32 s11, 0, 0x7fe07fe0", "s_and_b32 s11, s11, s30")
    k.e("s_lshl_b32 s52, s24, 9", f"s_add_u32 s53, s52, {LK}", f"v_lshl_add_u32 v{AKE}, v{TK}, 4, s53", f"v_lshl_add_u32 v{AK}, v{H}, 13, v{AKE}",
        "s_mul_i32 s53, s24, 1280", f"s_add_u32 s53, s53, {LV}", f"v_mul_u32_u24 v{T1}, 320, v{H}", f"v_lshl_add_u32 v{T1}, v{TK}, 4, v{T1}", f"v_add_u32 v{AV}, s53, v{T1}",
        f"s_add_u32 s53, s52, {LQ}", f"v_lshl_add_u32 v{MX}, v{TK}, 4, s53", f"v_lshl_add_u32 v{MC}, v{H}, 12, v{MX}")
    k.e("s_lshl_b32 s27, s26, 3", "s_add_u32 s27, s27, s24", f"s_mov_b32 s54, {NEGBIG}")
    k.e(f"v_lshlrev_b32 v{T1}, 2, v{H}", f"v_sub_u32 v{T1}, v{TK}, v{T1}", f"v_mov_b32 v{T2}, s54",
        "s_cmp_ge_u32 s27, 8", "s_cselect_b32 s55, 0, s54", f"v_mov_b32 v{T3}, s55")
    for r in range(16):
        kk = (r & 3) + 8 * (r >> 2)
        k.e(f"v_cmp_le_i32 vcc, {kk}, v{T1}", f"v_cndmask_b32_e64 v{SB+128+r}, v{T2}, 0, vcc", f"v_cndmask_b32 v{SB+r}, v{T3}, v{T2}, vcc")
    for i in range(1, 8):
        k.e(f"s_cmp_ge_u32 s27, {8-i}", "s_cselect_b32 s55, 0, s54", f"v_mov_b32 v{T3}, s55")
        for r in range(16): k.e(f"v_mov_b32 v{SB+16*i+r}, v{T3}")
    for r in range(12): k.e(f"v_mov_b32 v{VB+r}, {ONES}")
    k.e(f"v_mov_b32 v{OA}, {ONES}", f"v_mov_b32 v{OA+1}, 0x3f80", f"v_mov_b32 v{OA+2}, 0", f"v_mov_b32 v{OA+3}, 0",
        f"v_mov_b32 v{MB+2}, 0", f"v_mov_b32 v{MB+3}, 0")
    k.e("s_bitcmp1_b32 s25, 0", "s_cselect_b32 s28, 0, -1", "s_cselect_b32 s56, -1, 0", "s_mov_b32 s29, 0", "s_mov_b32 s57, 0",
        "s_mov_b32 s58, 0x000fffff", "s_mov_b32 s59, 0x000fffff")
    k.e("s_lshl_b32 s52, s31, 11", "s_lshl_b32 s53, s31, 10")
    k.e("s_cmp_lt_u32 s24, 4", f"s_cbranch_scc1 {k.lab('b_k')}")
    for i in range(5):
        k.e(f"v_add_u32 v{T0}, {64*i}, v{L}", f"v_mul_u32_u24 v{T1}, 3277, v{T0}", f"v_lshrrev_b32 v{T1}, 16, v{T1}",
            f"v_mul_u32_u24 v{T1}, {10240-320}, v{T1}", f"v_lshl_add_u32 v{VV+i}, v{T0}, 4, v{T1}")
        if i % 4: k.e(f"v_subrev_u32 v{VV+i}, {1024*(i%4)}, v{VV+i}")
    k.e("s_cmp_ge_u32 s2, 240", f"s_cbranch_scc1 {k.lab('b_sp')}", "s_barrier")
    k.label("b_sp")
    stamp(k, 8)
    k.e("s_cmp_lg_u32 s24, 4", f"s_cbranch_scc1 {k.lab('b_np')}", f"v_lshlrev_b32 v{T2}, 2, v{L}")
    poll(k, T2, "s10", T0, "s11", "s30")
    k.label("b_np")
    k.e("s_barrier")
    stamp(k, 7)
    for p_ in range(3):
        k.e(f"s_add_u32 m0, s53, {LQ+4096*p_}", f"s_add_u32 s54, s{4+p_}, s8", f"buffer_load_dwordx4 v{L16}, s[20:23], s54 offen{SC} lds")
    k.e("s_mul_i32 s52, s31, 5120", f"s_add_u32 m0, s52, {LV}")
    for i in range(5):
        if i == 4: k.e(f"s_add_u32 m0, s52, {LV+4096}")
        k.e(f"buffer_load_dwordx4 v{VV+i}, s[20:23], s9 offen offset:{1024*(i%4)}{SC} lds")
    k.e("s_waitcnt vmcnt(5)", f"s_branch {k.lab('b_go')}")
    k.label("b_k")
    wv_offsets(k, VV, 2, 16)
    k.e("s_mul_i32 s9, s31, 204800", "s_add_u32 s9, s9, s60", "s_add_u32 s9, s9, 20480", "s_and_b32 s8, s31, 1", "s_lshl_b32 s8, s8, 1", "s_lshr_b32 s10, s31, 1",
        "s_add_u32 s8, s8, s10", "s_mul_i32 s8, s8, 5120")
    stamp(k, 8)
    k.e("s_barrier")
    stamp(k, 7)
    for p_ in range(3):
        k.e(f"s_add_u32 m0, s52, {LK+8192*p_}", f"s_add_u32 s54, s{4+p_}, s7", f"buffer_load_dwordx4 v{L16}, s[20:23], s54 offen{SC} lds",
            f"buffer_load_dwordx4 v{L16}, s[20:23], s54 offen offset:1024{SC} lds")
    for x in step_dma(VV, 8, 9, 6 * 5120): k.e(*x)
    k.e("s_waitcnt vmcnt(5)")
    k.label("b_go")
    k.e("s_barrier")
    stamp(k, 9)
    def kread(i):
        b = KB + 8 * (i % 3)
        return [f"ds_read_b128 v[{b}:{b+3}], v{AK} offset:{512*i}", f"ds_read_b128 v[{b+4}:{b+7}], v{AKE} offset:{512*i+16384}"]
    def vread(n):
        b = VB + 4 * (n % 3)
        return ["s_mov_b64 exec, s[58:59]", f"ds_read_b128 v[{b}:{b+3}], v{AV} offset:{640*n}", "s_mov_b64 exec, -1"]
    def maxops(i):
        sb = SB + 16 * i
        o = []
        if i == 0:
            o.append(f"v_max_f32 v{MX}, v{sb}, v{sb+1}"); o.append(f"v_max_f32 v{MC}, v{sb+2}, v{sb+3}")
            rs = list(range(4, 16))
        else: rs = list(range(16))
        for j in range(0, len(rs), 2):
            d = MX if (j // 2) % 2 == 0 else MC
            o.append(f"v_max3_f32 v{d}, v{sb+rs[j]}, v{sb+rs[j+1]}, v{d}")
        return o
    k.e(f"ds_read_b128 v[{QM}:{QM+3}], v{MC}", f"ds_read_b128 v[{QE}:{QE+3}], v{MX} offset:8192")
    k.e(*kread(0)); k.e(*kread(1))
    k.e("s_waitcnt lgkmcnt(4)")
    k.e(f"v_cndmask_b32_e64 v{QE}, 0, v{QE}, s[28:29]", f"v_cndmask_b32_e64 v{QE+1}, 0, v{QE+1}, s[28:29]",
        f"v_cndmask_b32_e64 v{QE+2}, 0, v{QE+2}, s[56:57]", f"v_cndmask_b32_e64 v{QE+3}, 0, v{QE+3}, s[56:57]")
    WQ = [2, 5, 8]; WS_ = [0, 2, 4, 6, 8, 10, 12]
    if opt("wo2"): WQ = []; WS_ = [0, 1, 3, 4, 6, 7, 9, 10, 12, 13]
    for i in range(9):
        b = KB + 8 * (i % 3); sb = SB + 16 * i
        k.e(f"s_waitcnt lgkmcnt({2 if i < 8 else 0})")
        mf = [f"v_mfma_f32_32x32x16_bf16 {v(sb,16)}, {v(b,4)}, {v(QM,4)}, {v(sb,16)}",
              f"v_mfma_f32_32x32x16_bf16 {v(sb,16)}, {v(b+4,4)}, {v(QE,4)}, {v(sb,16)}"]
        fill = []
        if i + 2 < 9: fill += kread(i + 2)
        if i >= 2: fill += maxops(i - 2)
        if i in WQ: fill.append(wo[WQ.index(i)])
        k.e(*interleave(mf, fill))
    k.e(*maxops(7)); k.e(*maxops(8))
    k.e(f"s_waitcnt vmcnt({len(WQ)})", "s_barrier")
    stamp(k, 10)
    if not opt("now13"):
        k.e("s_lshl_b32 s54, s2, 3", "s_add_u32 s54, s54, s24", "s_lshl_b32 s54, s54, 10")
        for m in (KW1, KW3):
            srd(k, 4, m, 640 * 3072)
            k.e(f"buffer_load_dwordx4 v[84:87], v{L16}, s[4:7], s54 offen ; dummy")
    k.e(*vread(0)); k.e(*vread(1))
    k.e(f"v_max_f32 v{MX}, v{MX}, v{MC}", f"v_mov_b32 v{MC}, v{MX}", f"v_permlane32_swap_b32 v{MC}, v{MX}", f"v_max_f32 v{MX}, v{MX}, v{MC}")
    split3(k, MX, MB, MB + 1, T0, T1, neg=True)
    k.e(f"v_cmp_gt_u32 vcc, 32, v{L}", f"v_cndmask_b32 v{MB}, 0, v{MB}, vcc", f"v_cndmask_b32 v{MB+1}, 0, v{MB+1}, vcc")
    def sub(i): return f"v_mfma_f32_32x32x16_bf16 {v(SB+16*i,16)}, {v(OA,4)}, {v(MB,4)}, {v(SB+16*i,16)}"
    def soft(i, u):
        sb = SB + 16 * i + 8 * u
        o = [f"v_exp_f32 v{sb+r}, v{sb+r}" for r in range(8)]
        o += [f"v_cvt_pk_bf16_f32 v{sb+j}, v{sb+2*j}, v{sb+2*j+1}" for j in range(4)]
        return o
    k.e(sub(0), sub(1))
    k.e(*soft(0, 0))
    for n in range(18):
        i, u = divmod(n, 2)
        sb = SB + 16 * i + 8 * u
        b = VB + 4 * (n % 3)
        nxt = soft(*divmod(n + 1, 2)) if n + 1 < 18 else []
        k.e(*nxt[:3])
        k.e(f"s_waitcnt lgkmcnt({1 if n < 17 else 0})")
        k.e(f"v_mfma_f32_32x32x16_bf16 {v(O,16)}, {v(b,4)}, {v(sb,4)}, {'0' if n == 0 else v(O,16)}")
        if n + 2 < 18: k.e(*vread(n + 2))
        k.e(*nxt[3:7])
        if u == 0 and i + 2 < 9: k.e(sub(i + 2))
        if n in WS_: k.e(*wo[len(WQ) + WS_.index(n)])
        k.e(*nxt[7:])
    k.e(f"v_lshrrev_b32 v{T0}, 4, v{TK}", f"v_mul_u32_u24 v{T0}, 20480, v{T0}", f"v_and_b32 v{T1}, 15, v{L}",
        f"v_lshl_add_u32 v{T3}, v{T1}, 3, v{T0}", f"v_lshl_add_u32 v{T0}, v{T1}, 4, v{T0}", f"v_lshl_add_u32 v{T1}, v{H}, 8, v{T0}")
    k.e("s_mul_i32 s52, s27, 40960", f"s_add_u32 s52, s52, {WS_O}", "s_lshl_b32 s53, s25, 9", "s_add_u32 s53, s53, s52",
        "s_lshl_b32 s54, s25, 7", "s_add_u32 s54, s54, s52", "s_add_u32 s54, s54, 16384")
    k.e(f"v_rcp_f32 v{T2}, v{O+12}")
    for r in range(12): k.e(f"v_mul_f32 v{O+r}, v{O+r}, v{T2}")
    for j in range(6): k.e(f"v_cvt_pk_bf16_f32 v{O+j}, v{O+2*j}, v{O+2*j+1}")
    k.e(f"buffer_store_dwordx4 v[{O}:{O+3}], v{T1}, s[20:23], s53 offen sc1")
    k.e("s_mov_b32 exec_hi, 0", f"buffer_store_dwordx2 v[{O+4}:{O+5}], v{T3}, s[20:23], s54 offen sc1", "s_mov_b64 exec, -1")
    k.e("s_lshl_b32 s52, s26, 12", "s_lshl_b32 s53, s25, 2", "s_add_u32 s52, s52, s53", f"s_add_u32 s52, s52, {WS_FC}", f"v_lshlrev_b32 v{T0}, 7, v{L}")
    stamp(k, 11)
    k.e("s_waitcnt vmcnt(0)", "s_barrier")
    stamp(k, 12)
    push_flags(k, 52, T0, -1)

WR, ACT, ACC = 96, 56, 36
LA, NAT, XR = 16, 22, 24
G_, TOK = 30, 31
DW = 32
def ce_setup(k, khs, set2):
    k.e("s_and_b32 s52, s2, 7", "s_lshr_b32 s53, s2, 3", "s_lshr_b32 s54, s53, 3", "s_lshl_b32 s25, s52, 2", "s_add_u32 s25, s25, s54",
        "s_and_b32 s26, s53, 7", "s_and_b32 s28, s24, 3", "s_lshr_b32 s29, s24, 2")
    k.e(f"v_lshrrev_b32 v{G_}, 4, v{L}", f"v_and_b32 v{TOK}, 15, v{L}")
    k.e(f"v_bfe_u32 v{T0}, v{L}, 2, 3", f"v_lshl_add_u32 v{T0}, v{H}, 4, v{T0}", f"v_mul_u32_u24 v{T0}, 160, v{T0}",
        f"v_and_b32 v{T1}, 3, v{L}", f"v_lshl_add_u32 v{T0}, v{T1}, 3, v{T0}", f"s_mul_i32 s53, s29, {khs}", f"v_add_u32 v{LA+2}, s53, v{T0}",
        "s_lshl_b32 s52, s29, 6", f"v_add_u32 v{LA}, s52, v{LA+2}", "s_xor_b32 s52, s52, 64", f"v_add_u32 v{LA+1}, s52, v{LA+2}")
    for j in range(3): k.e(f"v_add_u32 v{LA+3+j}, {set2}, v{LA+j}")
    k.e("s_lshl_b32 s52, s25, 2", "s_add_u32 s27, s52, s28", "s_mul_i32 s52, s27, 20480", "s_mul_i32 s53, s26, 160", "s_add_u32 s30, s52, s53",
        f"v_mul_u32_u24 v{NAT}, 1280, v{TOK}", f"v_lshl_add_u32 v{NAT+1}, v{G_}, 3, v{NAT}",
        f"v_lshl_add_u32 v{NAT}, v{H}, 4, v{NAT}", f"v_bfe_u32 v{T0}, v{L}, 4, 1", f"v_lshl_add_u32 v{NAT}, v{T0}, 5, v{NAT}",
        "s_lshl_b32 s52, s29, 6", "s_add_u32 s31, s30, s52")
def w_reads(st, off, dst):
    o = []
    for f in range(5):
        for u in range(2):
            o.append(f"ds_read_b64_tr_b16 v[{dst+4*f+2*u}:{dst+4*f+2*u+1}], v{LA+3*st+(f>>1)} offset:{off+1280*u+(32*(f&1) if f < 4 else 128)}")
    return o
def ce_mfma(wb, ab, first):
    return [f"v_mfma_f32_16x16x32_bf16 {v(ACC+4*f,4)}, {v(wb+4*f,4)}, {v(ab,4)}, {'0' if first else v(ACC+4*f,4)}" for f in range(5)]
def ce_epilogue(k, xb, res, out):
    X = ACT
    k.e("s_mul_i32 s52, s24, 3072", f"s_add_u32 s52, s52, {xb}", f"v_add_u32 v{T0}, s52, v{L16}",
        "s_xor_b32 s53, s24, 4", "s_mul_i32 s53, s53, 3072", f"s_add_u32 s53, s53, {xb}", f"v_add_u32 v{T1}, s53, v{L16}")
    k.e(f"ds_write_b128 v{T0}, {v(ACC+8,4)}", f"ds_write_b128 v{T0}, {v(ACC+12,4)} offset:1024", f"ds_write_b128 v{T0}, {v(ACC+16,4)} offset:2048")
    k.e("s_waitcnt lgkmcnt(0)", "s_barrier")
    for j in range(3): k.e(f"ds_read_b128 {v(X+4*j,4)}, v{T1} offset:{1024*j}")
    k.e("s_waitcnt lgkmcnt(0)")
    for r in range(0, 8, 2): k.e(f"v_pk_add_f32 {v(ACC+r,2)}, {v(ACC+r,2)}, {v(X+r,2)}")
    for r in range(0, 4, 2): k.e(f"v_pk_add_f32 {v(ACC+16+r,2)}, {v(ACC+16+r,2)}, {v(X+8+r,2)}")
    Y = X
    for j in range(4): k.e(f"v_cvt_pk_bf16_f32 v{Y+j}, v{ACC+2*j}, v{ACC+2*j+1}")
    for j in range(2): k.e(f"v_cvt_pk_bf16_f32 v{Y+4+j}, v{ACC+16+2*j}, v{ACC+17+2*j}")
    k.e(f"v_permlane16_swap_b32 v{Y}, v{Y+2}", f"v_permlane16_swap_b32 v{Y+1}, v{Y+3}")
    for j in (4, 5, 0, 1, 2, 3):
        a = ACC + 2 * j
        k.e(f"v_lshlrev_b32 v{a}, 16, v{Y+j}", f"v_and_b32 v{a+1}, 0xffff0000, v{Y+j}",
            f"v_lshlrev_b32 v{X+8}, 16, v{res+j}", f"v_and_b32 v{X+9}, 0xffff0000, v{res+j}",
            f"v_pk_add_f32 {v(a,2)}, {v(a,2)}, {v(X+8,2)}", f"v_cvt_pk_bf16_f32 v{out+j}, v{a}, v{a+1}")

def d_w(st): p = (st + 3) % 4; return 40960 * p + (16384 if p & 1 else 0)
def d_h(st): p = (st + 3) % 4; return 40960 * p + (0 if p & 1 else 24576)
DRB, DNB, DROT, DSW = 96, 97, 98, 99
def d_map(k):
    k.e("s_and_b32 s52, s2, 7", "s_lshr_b32 s53, s2, 3", "s_lshr_b32 s54, s53, 3", "s_lshr_b32 s55, s52, 1", f"s_lshl_b32 s{DRB}, s55, 2", f"s_add_u32 s{DRB}, s{DRB}, s54",
        "s_and_b32 s52, s52, 1", "s_lshl_b32 s52, s52, 3", "s_and_b32 s53, s53, 7", f"s_add_u32 s{DNB}, s52, s53",
        "s_mul_i32 s54, s54, 5", "s_add_u32 s54, s54, 1", "s_lshr_b32 s54, s54, 1", "s_add_u32 s54, s54, s55", f"s_add_u32 s54, s54, s{DNB}",
        "s_cmp_ge_u32 s54, 20", "s_cselect_b32 s55, 20, 0", "s_sub_u32 s54, s54, s55",
        "s_cmp_ge_u32 s54, 10", "s_cselect_b32 s55, 10, 0", f"s_sub_u32 s{DROT}, s54, s55")
def d_wsetup(k):
    k.e("s_bitcmp1_b32 s24, 1", f"s_cselect_b32 s16, s{KW3}, s{KW1}", f"s_cselect_b32 s17, s{KW3+1}, s{KW1+1}", f"s_mov_b32 s18, {640*3072}", "s_mov_b32 s19, 0x20000",
        "s_cselect_b32 s52, 2, 0")
    for i in range(3):
        k.e(f"v_add_u32 v{T0}, {64*i}, v{L}", f"v_mul_u32_u24 v{T1}, 5462, v{T0}", f"v_lshrrev_b32 v{T1}, 16, v{T1}",
            f"v_xor_b32 v{T0}, s52, v{T0}", f"v_mul_u32_u24 v{T1}, {3072-192}, v{T1}", f"v_lshl_add_u32 v{DW+i}, v{T0}, 4, v{T1}")
        if i: k.e(f"v_subrev_u32 v{DW+i}, {1024*i}, v{DW+i}")
def d_wtriple(lds_s, lds_add, soff):
    return [f"s_add_u32 m0, s{lds_s}, {lds_add}"] + [f"buffer_load_dwordx4 v{DW+i}, s[16:19], s{soff} offen offset:{1024*i} lds" for i in range(3)]
def d_wadv(lim):
    return [f"s_add_u32 s{DSW}, s{DSW}, {64*3072}", f"s_cmp_ge_u32 s{DSW}, s{lim}", f"s_cselect_b32 s52, {640*3072}, 0", f"s_sub_u32 s{DSW}, s{DSW}, s52"]

def phase_c(k):
    LE = 35
    d_map(k); d_wsetup(k)
    k.e("s_and_b32 s52, s24, 1", "s_lshl_b32 s52, s52, 1", "s_lshr_b32 s53, s24, 2", "s_add_u32 s52, s52, s53",
        "s_mul_i32 s59, s52, 3072", "s_bitcmp1_b32 s24, 1", "s_cselect_b32 s53, 12288, 0", "s_add_u32 s59, s59, s53",
        "s_mul_i32 s52, s52, 49152", f"s_mul_i32 s53, s{DNB}, 192", "s_add_u32 s52, s52, s53", f"s_add_u32 s60, s52, {640*3072}",
        f"s_mul_i32 s53, s{DROT}, {64*3072}", f"s_add_u32 s{DSW}, s52, s53")
    k.e(*d_wtriple(59, d_w(0), DSW)); k.e(*d_wadv(60))
    ce_setup(k, 5120, 51200)
    k.e(f"buffer_load_dwordx4 {v(XR,4)}, v{NAT}, s[12:15], s31 offen", f"buffer_load_dwordx2 {v(XR+4,2)}, v{NAT+1}, s[12:15], s30 offen offset:128")
    def cpos(i):
        o = 10240 * (i + 2 * (i >= 3)) if i < 8 else 10240 * (i - 5)
        return (1, o - 51200) if o >= 51200 else (0, o)
    for i in range(8): k.e(*w_reads(*cpos(i), WR + 20 * i))
    k.e("s_mul_i32 s52, s27, 20480", f"s_add_u32 s52, s52, {WS_O}", "s_lshl_b32 s54, s29, 13", "s_add_u32 s54, s54, s52")
    for i in range(8): k.e(f"s_add_u32 s53, s26, {i}", "s_and_b32 s53, s53, 7", "s_lshl_b32 s53, s53, 10", f"s_add_u32 s{4+i}, s53, s54")
    k.e("s_lshl_b32 s53, s29, 11", "s_add_u32 s56, s52, s53", "s_add_u32 s56, s56, 16384",
        f"v_lshlrev_b32 v{LE}, 9, v{H}", f"v_bfe_u32 v{T0}, v{L}, 4, 1", f"v_lshl_add_u32 v{LE}, v{T0}, 7, v{LE}", f"v_lshl_add_u32 v{LE}, v{TOK}, 3, v{LE}")
    k.e("s_cmp_lg_u32 s24, 1", f"s_cbranch_scc1 {k.lab('c_np')}")
    k.e("s_lshl_b32 s52, s25, 3", "s_add_u32 s52, s52, s26", "s_lshl_b32 s52, s52, 7", f"s_add_u32 s52, s52, {WS_FC}", f"v_lshlrev_b32 v{T2}, 2, v{L}")
    poll(k, T2, "s52", T0, -1, 0)
    k.label("c_np")
    k.e("s_waitcnt lgkmcnt(0)", "s_barrier")
    stamp(k, 13)
    for i in range(8): k.e(f"buffer_load_dwordx4 {v(ACT+4*i,4)}, v{L16}, s[20:23], s{4+i} offen{SC}")
    for e in range(2):
        for u in range(2): k.e(f"buffer_load_dwordx2 {v(ACT+32+4*e+2*u,2)}, v{LE}, s[20:23], s56 offen offset:{1024*e+256*u}{SC}")
    PF = int(([a[4:] for a in sys.argv if a.startswith("-pf=")] + ["3"])[0])
    npf = 0
    for i in range(10):
        k.e(f"s_waitcnt vmcnt({(11-i if i < 8 else 2*(9-i)) + npf})" + (f" lgkmcnt({10*(9-i)})" if i >= 8 else ""))
        if i == 0: stamp(k, 14)
        k.e(*ce_mfma(WR + 20 * (i % 8), ACT + 4 * i, i == 0))
        if i in (1, 2): k.e(*w_reads(*cpos(i + 7), WR + 20 * (i - 1)))
        if PF <= i < PF + 3:
            k.e(*d_wtriple(59, d_w(i - PF + 1), DSW)); k.e(*d_wadv(60)); npf += 3
    stamp(k, 15)
    ce_epilogue(k, LK, XR, HRES)
    k.e("s_lshr_b32 s52, s27, 1", "s_mul_i32 s52, s52, 40960", "s_mul_i32 s53, s26, 5120", "s_add_u32 s52, s52, s53", "s_and_b32 s53, s28, 1", "s_lshl_b32 s53, s53, 8",
        "s_add_u32 s52, s52, s53", f"s_add_u32 s52, s52, {WS_H}", "s_lshl_b32 s53, s29, 11", "s_add_u32 s53, s53, s52", "s_add_u32 s52, s52, 4096",
        f"v_lshlrev_b32 v{T0}, 9, v{H}", f"v_lshl_add_u32 v{T0}, v{TOK}, 4, v{T0}", f"v_bfe_u32 v{T1}, v{L}, 4, 1", f"v_lshl_add_u32 v{T1}, v{T1}, 10, v{T0}")
    k.e(f"buffer_store_dwordx4 {v(HRES,4)}, v{T1}, s[20:23], s53 offen sc1")
    S1 = ACC
    k.e(f"v_mov_b32 v{S1}, 0", f"v_mov_b32 v{S1+1}, 0", f"s_mov_b32 s54, {ONES}")
    k.e("s_cmp_lg_u32 s29, 0", f"s_cbranch_scc1 {k.lab('c_n4')}")
    Z = ACC + 4
    k.e(f"v_mov_b32 v{Z}, v{HRES+4}", f"v_mov_b32 v{Z+1}, v{HRES+5}", f"v_mov_b32 v{Z+2}, v{HRES+4}", f"v_mov_b32 v{Z+3}, v{HRES+5}",
        f"v_permlane16_swap_b32 v{Z}, v{Z+2}", f"v_permlane16_swap_b32 v{Z+1}, v{Z+3}",
        "s_mov_b32 exec_lo, 0xffff", "s_mov_b32 exec_hi, 0xffff", f"buffer_store_dwordx4 {v(Z,4)}, v{T0}, s[20:23], s52 offen sc1", "s_mov_b64 exec, -1")
    for j in (4, 5): k.e(f"v_dot2c_f32_bf16 v{S1}, s54, v{HRES+j}", f"v_dot2c_f32_bf16 v{S1+1}, v{HRES+j}, v{HRES+j}")
    k.label("c_n4")
    for j in range(4): k.e(f"v_dot2c_f32_bf16 v{S1}, s54, v{HRES+j}", f"v_dot2c_f32_bf16 v{S1+1}, v{HRES+j}, v{HRES+j}")
    for x, t in ((S1, T2), (S1 + 1, T3)):
        k.e(f"v_mov_b32 v{t}, v{x}", f"v_permlane16_swap_b32 v{t}, v{x}", f"v_add_f32 v{x}, v{t}, v{x}")
    for x, t in ((S1, T2), (S1 + 1, T3)): half_sum(k, x, t)
    k.e("s_lshl_b32 s52, s27, 4", "s_lshl_b32 s53, s26, 1", "s_add_u32 s52, s52, s53", "s_add_u32 s52, s52, s29", "s_lshl_b32 s52, s52, 7", f"s_add_u32 s52, s52, {WS_HST}",
        f"v_lshlrev_b32 v{T0}, 3, v{TOK}", "s_mov_b64 exec, 0xffff", f"buffer_store_dwordx2 {v(S1,2)}, v{T0}, s[20:23], s52 offen sc1", "s_mov_b64 exec, -1")
    k.e("s_lshr_b32 s52, s25, 1", "s_lshl_b32 s52, s52, 11", "s_and_b32 s53, s25, 1", "s_lshl_b32 s53, s53, 3", "s_add_u32 s53, s53, s26", "s_lshl_b32 s53, s53, 2",
        "s_add_u32 s52, s52, s53", f"s_add_u32 s52, s52, {WS_FD}", f"v_lshlrev_b32 v{T0}, 7, v{L}")
    stamp(k, 16)
    k.e("s_waitcnt vmcnt(0)", "s_barrier")
    stamp(k, 17)
    push_flags(k, 52, T0, "0xffff")

X6, X7, X8, X9 = 40960, 81920, 122880, 0
DMI = X6 + 5120
PK = 60
def e_soff(k, d, G, kh, isg):
    k.e(f"s_mul_i32 s{d}, s26, {ER}", f"s_add_u32 s{d}, s{d}, s{isg}", f"s_add_u32 s{d}, s{d}, {8*G}", f"s_cmp_ge_u32 s{d}, 24", f"s_cselect_b32 s61, {24*kh-24}, {24*kh}",
        f"s_add_u32 s{d}, s{d}, s61", f"s_mul_i32 s{d}, s{d}, 40960", f"s_add_u32 s{d}, s{d}, s58")

def d_compute(k):
    AH, AW, AST, RI, AM = 16, 18, 27, 28, 32
    DA, FR = 160, 40
    ONE = 36
    k.e("s_lshr_b32 s28, s24, 1", "s_and_b32 s29, s24, 1", "s_lshl_b32 s52, s28, 13", f"v_add_u32 v{AH}, s52, v{L16}", f"v_add_u32 v{AH+1}, 81920, v{AH}")
    k.e(f"v_bfe_u32 v{T0}, v{L}, 2, 2", f"v_lshl_add_u32 v{T0}, v{H}, 3, v{T0}", f"v_mul_u32_u24 v{T0}, 192, v{T0}", f"v_and_b32 v{T1}, 3, v{L}", f"v_lshl_add_u32 v{T0}, v{T1}, 3, v{T0}",
        f"v_bfe_u32 v{T1}, v{L}, 4, 1", f"v_mul_u32_u24 v{T2}, 12288, v{T1}", f"v_add_u32 v{T0}, v{T0}, v{T2}", "s_mul_i32 s52, s29, 3")
    for f in range(3):
        k.e(f"v_xor_b32 v{T2}, s52, v{T1}", f"v_lshl_add_u32 v{AW+f}, v{T2}, 5, v{T0}", f"v_add_u32 v{AW+3+f}, 57344, v{AW+f}", f"v_add_u32 v{AW+6+f}, 139264, v{AW+f}", "s_add_u32 s52, s52, 1")
    def buf(g): return FR + 20 * (g % 4 if g < 38 else g - 34)
    def hreads(g):
        st, ks = divmod(g, 4); o = d_h(st); S = o >= 81920
        return [f"ds_read_b128 {v(buf(g)+4*t,4)}, v{AH+S} offset:{o-81920*S+4096*t+1024*ks}" for t in range(2)]
    def wreads(g):
        st, ks = divmod(g, 4); o = d_w(st); S, b = {0: (0, 0), 57344: (1, 0), 81920: (1, 24576), 139264: (2, 0)}[o]
        return [f"ds_read_b64_tr_b16 {v(buf(g)+8+4*f+2*u,2)}, v{AW+3*S+f} offset:{b+3072*ks+768*u}" for f in range(3) for u in range(2)]
    for g in range(4): k.e(*wreads(g))
    XO, CS = FR + 80, FR + 88
    k.e(f"v_lshrrev_b32 v{T0}, 4, v{TK}", f"v_mul_u32_u24 v{T0}, 49152, v{T0}", f"v_and_b32 v{T1}, 15, v{L}", f"v_lshl_add_u32 v{T0}, v{T1}, 4, v{T0}", f"v_lshl_add_u32 v{AST}, v{H}, 8, v{T0}",
        f"s_lshl_b32 s52, s{DRB}, 1", "s_add_u32 s52, s52, s28", f"s_mul_i32 s52, s52, {4*49152}", f"s_lshl_b32 s53, s{DNB}, 1", "s_add_u32 s53, s53, s29", "s_mul_i32 s54, s53, 1536",
        "s_add_u32 s52, s52, s54", f"s_add_u32 s4, s52, {WS_A}", f"s_add_u32 s5, s4, {2*49152}",
        "s_lshl_b32 s52, s28, 9", f"s_add_u32 s52, s52, {DMI}", f"v_lshl_add_u32 v{AM}, v{TK}, 3, s52",
        "s_mul_i32 s52, s29, 768", f"s_add_u32 s52, s52, {DMI+2048}", f"v_lshl_add_u32 v{AM+1}, v{TK}, 3, s52")
    for r in range(20): k.e(f"v_mov_b32 v{XO+r}, 0")
    k.e("s_cmp_lt_u32 s24, 2", f"s_cbranch_scc1 {k.lab('d_ncs')}")
    for r in range(4): k.e(f"v_mov_b32 v{ONE+r}, {ONES}")
    k.e(f"s_mul_i32 s52, s{DNB}, 15360", f"s_mul_i32 s53, s{DROT}, 1536", "s_add_u32 s52, s52, s53", "s_mul_i32 s53, s29, 768", "s_add_u32 s52, s52, s53", f"s_add_u32 s52, s52, {WS_CS}",
        f"v_lshlrev_b32 v{T0}, 3, v{TK}", "s_waitcnt lgkmcnt(0)")
    for g in range(4):
        for f in range(3): k.e(f"v_mfma_f32_32x32x16_bf16 {v(DA+16*f,16)}, {v(ONE,4)}, {v(buf(g)+8+4*f,4)}, {'0' if g == 0 else v(DA+16*f,16)}")
    k.e("s_mov_b32 exec_hi, 0")
    for f in range(3):
        k.e(f"v_mov_b32 v{DA+16*f+1}, s{TAG}", f"buffer_store_dwordx2 {v(DA+16*f,2)}, v{T0}, s[20:23], s52 offen offset:{256*f} sc1")
    k.e("s_mov_b64 exec, -1")
    k.label("d_ncs")
    k.e("s_barrier")
    stamp(k, 18)
    k.e("s_barrier")
    stamp(k, 19)
    lg = VM()
    def rd(ops, tag):
        lg.add(tag, len(ops)); return ops
    def lw(tag):
        if tag not in lg.q: return []
        w = lg.wait(tag); n = int(w[w.index("(") + 1:-1])
        return [f"s_waitcnt lgkmcnt({min(n, 15)})"]
    def mf(g, t, f):
        d = DA + 48 * t + 16 * f
        return f"v_mfma_f32_32x32x16_bf16 {v(d,16)}, {v(buf(g)+8+4*f,4)}, {v(buf(g)+4*t,4)}, {'0' if g == 0 else v(d,16)}"
    k.e(*rd(hreads(0), 0)); k.e(*rd(hreads(1), 1))
    for g in range(36):
        if g % 4 == 2:
            k.e("s_waitcnt lgkmcnt(0)")
            if g // 4 < 8: dstamp(k, "D", 10 + g // 4)
            k.e("s_barrier"); lg.q = []
            dstamp(k, "D", 1 + g // 4)
        else: k.e(*lw(g))
        fill = []
        for n in ([g + 2] if g < 34 else [36, 39] if g == 34 else [37, 38]):
            fill += rd(hreads(n) + (wreads(n) if n >= 4 else []), n)
        if g == 30:
            fill.append(["s_mov_b32 exec_hi, 0"] + rd([f"ds_read_b64 {v(XO+4*t,2)}, v{AM} offset:{256*t}" for t in range(2)], 32) + ["s_mov_b64 exec, -1"])
            fill += rd([f"ds_read_b64 {v(CS+4*f,2)}, v{AM+1} offset:{256*f}" for f in range(3)] + [f"ds_read_b64 {v(RI+2*t,2)}, v{AM} offset:{1024+256*t}" for t in range(2)], 32)
        m = [mf(g, t, f) for t in range(2) for f in range(3)]
        if g in (32, 33):
            t = g - 32
            m = [f"v_mfma_f32_32x32x16_bf16 {v(DA+48*t+16*f,16)}, {v(CS+4*f,4)}, {v(XO+4*t,4)}, {v(DA+48*t+16*f,16)}" for f in range(3)] + m
        k.e(*interleave(m, fill))
    k.e("s_waitcnt lgkmcnt(0)")
    TM = FR + 40
    def epi(t, f, packed):
        d = DA + 48 * t + 16 * f; e = TM + 8 * ((3 * t + f) & 1)
        rn, ir = RI + 2 * t, RI + 2 * t + 1
        s1, s2 = [], []
        if packed:
            s1 += [f"v_pk_mul_f32 {v(e+r,2)}, {v(d+r,2)}, {v(rn,2)} op_sel:[0,0] op_sel_hi:[1,0]" for r in range(0, 8, 2)]
            s1 += [f"v_exp_f32 v{e+r}, v{e+r}" for r in range(8)]
            s1 += [f"v_pk_fma_f32 {v(e+r,2)}, {v(e+r,2)}, {v(rn,2)}, {v(rn,2)} op_sel:[0,1,1] op_sel_hi:[1,1,1]" for r in range(0, 8, 2)]
            s1 += [f"v_rcp_f32 v{e+r}, v{e+r}" for r in range(8)]
            s2 += [f"v_pk_mul_f32 {v(d+r,2)}, {v(d+r,2)}, {v(d+8+r,2)}" for r in range(0, 8, 2)]
            s2 += [f"v_pk_mul_f32 {v(d+r,2)}, {v(d+r,2)}, {v(e+r,2)}" for r in range(0, 8, 2)]
        else:
            s1 += [f"v_mul_f32 v{e+r}, v{d+r}, v{rn}" for r in range(8)]
            s1 += [f"v_exp_f32 v{e+r}, v{e+r}" for r in range(8)]
            s1 += [f"v_fma_f32 v{e+r}, v{e+r}, v{ir}, v{ir}" for r in range(8)]
            s1 += [f"v_rcp_f32 v{e+r}, v{e+r}" for r in range(8)]
            s2 += [f"v_mul_f32 v{d+r}, v{d+r}, v{d+8+r}" for r in range(8)]
            s2 += [f"v_mul_f32 v{d+r}, v{d+r}, v{e+r}" for r in range(8)]
        s2 += [f"v_cvt_pk_bf16_f32 v{d+j}, v{d+2*j}, v{d+2*j+1}" for j in range(4)]
        s2.append(f"buffer_store_dwordx4 {v(d,4)}, v{AST}, s[20:23], s{4+t} offen offset:{512*f} sc1")
        return s1 + s2
    tiles = [(t, f) for t in range(2) for f in range(3)]
    for t, f in tiles: k.e(*[mf(g, t, f) for g in range(36, 40)])
    stamp(k, 20)
    for n, (t, f) in enumerate(tiles):
        k.e(*epi(t, f, True))
        if n == 2: k.e("s_barrier")
    stamp(k, 21)

def d_loader(k):
    D = 40
    vm = VM()
    k.e("s_sub_u32 s31, s24, 4")
    k.e(f"s_sub_u32 s{DSW}, s{DSW}, 49152", "s_sub_u32 s60, s60, 49152", "s_sub_u32 s59, s59, 3072",
        f"s_lshl_b32 s52, s{DRB}, 2", "s_add_u32 s52, s52, s31", "s_mul_i32 s52, s52, 40960", f"s_add_u32 s52, s52, {WS_H}", "s_add_u32 s57, s52, 40960",
        f"s_lshl_b32 s53, s{DROT}, 12", "s_add_u32 s56, s52, s53", "s_lshl_b32 s55, s31, 12")
    wv_offsets(k)
    PH, PC = 36, 37
    k.e(f"v_lshrrev_b32 v{T0}, 4, v{L}", f"v_and_b32 v{T1}, 15, v{L}", f"v_lshlrev_b32 v{T1}, 3, v{T1}", f"v_lshl_add_u32 v{PH}, v{T0}, 10, v{T1}", f"v_lshlrev_b32 v{PC}, 3, v{L}",
        f"s_lshl_b32 s52, s{DRB}, 2", "s_add_u32 s52, s52, s31", "s_lshl_b32 s52, s52, 12", f"s_add_u32 s4, s52, {WS_HST}",
        "s_min_u32 s9, s31, 2", "s_lshl_b32 s9, s9, 9", f"s_mul_i32 s52, s{DNB}, 15360", "s_add_u32 s52, s52, s9", f"s_add_u32 s5, s52, {WS_CS}",
        "s_add_u32 s6, s5, 4608", "s_add_u32 s7, s5, 9216", "s_add_u32 s8, s5, 13824", "s_mul_i32 s58, s26, 160")
    k.e("s_cmp_lg_u32 s24, 4", f"s_cbranch_scc1 {k.lab('d_np')}")
    k.e(f"s_lshl_b32 s52, s{DRB}, 4", f"s_add_u32 s52, s52, s{DNB}", "s_lshl_b32 s52, s52, 7", f"s_add_u32 s52, s52, {WS_FD}", f"v_lshlrev_b32 v{T2}, 2, v{L}")
    poll(k, T2, "s52", T0, 0xffff, 0)
    k.label("d_np")
    k.e("s_barrier")
    stamp(k, 18)
    def hst(st):
        k.e(f"s_add_u32 m0, s55, {d_h(st)}")
        for i in range(4): k.e(f"buffer_load_dwordx4 v{L16}, s[20:23], s56 offen offset:{1024*i}{SC} lds")
        k.e("s_add_u32 s56, s56, 4096", "s_cmp_ge_u32 s56, s57", "s_cselect_b32 s52, 40960, 0", "s_sub_u32 s56, s56, s52")
        vm.add(st, 4)
    def wst(st):
        k.e(*d_wtriple(59, d_w(st), DSW)); k.e(f"s_add_u32 s53, s{DSW}, 49152"); k.e(*d_wtriple(59, d_w(st) + 3072, 53)); k.e(*d_wadv(60))
        vm.add(st, 6)
    def cs_loads():
        for j in range(10): k.e(f"buffer_load_dwordx2 {v(D+16+2*j,2)}, v{PC}, s[20:23], s{5+j//3} offen offset:{1536*(j%3)} sc1")
    def w2(G, kh, b, base, tag):
        k.e("s_lshl_b32 s53, s31, 1", f"s_add_u32 s53, s53, {b}") ; e_soff(k, 54, G, kh, 53)
        k.e("s_mul_i32 s53, s53, 5120")
        for x in step_dma(WV, 53, 54, base): k.e(*x)
        vm.add(tag, 5)
    for st in range(4): hst(st)
    k.e(vm.wait(0), "s_barrier")
    stamp(k, 19)
    for j in range(1, 10):
        if j < 9: dstamp(k, "D", 9 + j)
        k.e(vm.wait(j))
        dstamp(k, "D", j)
        k.e("s_barrier")
        if j <= 6: wst(j + 3); hst(j + 3)
        if j == 5:
            for i in range(8): k.e(f"buffer_load_dwordx2 {v(D+2*i,2)}, v{PH}, s[20:23], s4 offen offset:{128*i}{SC}")
            cs_loads(); vm.add("pt", 18)
        if j == 6: srd(k, 16, KW2, 1536 * 1280)
        if j == 7:
            w2(1, 1, 0, X6, "x6")
            k.e(vm.wait("pt"), "s_mov_b32 s61, 0")
            k.label("d_chk")
            k.e(f"v_xor_b32 v{T0}, s{TAG}, v{D+17}", f"v_xor_b32 v{T1}, s{TAG}, v{D+19}", f"v_or_b32 v{T0}, v{T0}, v{T1}")
            for i in range(2, 10, 2):
                k.e(f"v_xor_b32 v{T1}, s{TAG}, v{D+17+2*i}", f"v_xor_b32 v{T2}, s{TAG}, v{D+19+2*i}", f"v_or3_b32 v{T0}, v{T0}, v{T1}, v{T2}")
            k.e(f"v_cmp_ne_u32 vcc, 0, v{T0}", "s_add_u32 s61, s61, 1", f"s_cbranch_vccz {k.lab('d_ok')}", f"s_cmp_gt_u32 s61, {SPIN_MAX}", f"s_cbranch_scc1 {k.lab('d_ok')}")
            cs_loads()
            k.e("s_waitcnt vmcnt(0)", f"s_branch {k.lab('d_chk')}")
            k.label("d_ok")
            for i in range(1, 8): k.e(f"v_add_f32 v{D}, v{D}, v{D+2*i}", f"v_add_f32 v{D+1}, v{D+1}, v{D+2*i+1}")
            for i in range(1, 10): k.e(f"v_add_f32 v{D+16}, v{D+16}, v{D+16+2*i}")
            for x, t in ((D, T2), (D + 1, T3)):
                k.e(f"v_mov_b32 v{t}, v{x}", f"v_permlane16_swap_b32 v{t}, v{x}", f"v_add_f32 v{x}, v{t}, v{x}")
            ln_stats(k, D, D + 1, T0, T1, D + 4, D + 6, SD=D + 7)
            split3(k, D + 16, D + 8, D + 9, T0, T1)
            k.e(f"v_cvt_pk_bf16_f32 v{D+4}, -v{D+4}, -v{D+4}", f"v_and_b32 v{D+5}, 0xffff, v{D+4}",
                f"v_mul_f32 v{D+6}, {f32(-1.4426950408889634)}, v{D+6}", f"v_mul_f32 v{D+7}, v{D+7}, v{D+7}",
                f"v_and_b32 v{T0}, 15, v{L}", f"v_lshl_add_u32 v{T0}, v{H}, 4, v{T0}", "s_lshl_b32 s52, s31, 8", f"s_add_u32 s52, s52, {DMI}", f"v_lshl_add_u32 v{T0}, v{T0}, 3, s52",
                f"s_add_u32 s52, s9, {DMI+2048}", f"v_add_u32 v{T1}, s52, v{PC}",
                f"ds_write_b64 v{T0}, {v(D+4,2)}", f"ds_write_b64 v{T0}, {v(D+6,2)} offset:1024", f"ds_write_b64 v{T1}, {v(D+8,2)}", "s_waitcnt lgkmcnt(0)")
            vm.q = vm.q + [8]; vm.q = [8] + vm.q[:-1]
        if j == 8:
            w2(0, 0, 0, X7, "x7"); w2(0, 0, 1, X7, "x7")
        if j == 9:
            w2(0, 1, 0, X8, "x8"); w2(0, 1, 1, X8, "x8"); w2(1, 1, 1, X6, "x6b")
    stamp(k, 20)
    k.e(vm.wait("x8"), "s_barrier")
    w2(1, 0, 0, X9, "x9"); w2(1, 0, 1, X9, "x9")
    stamp(k, 21)

def phase_d(k):
    k.e("s_cmp_lt_u32 s24, 4", f"s_cbranch_scc1 {k.lab('d_cmp')}")
    d_loader(k)
    k.e(f"s_branch {k.lab('d_done')}")
    k.label("d_cmp")
    d_compute(k)
    srd(k, 16, KW2, 1536 * 1280)
    wv_offsets(k)
    k.label("d_done")
    ce_setup(k, 40960, 81920)
    for i in range(8): k.e(*w_reads(1, 5120 * i, WR + 20 * i))
    k.e(f"s_lshl_b32 s52, s{DRB}, 11", f"s_lshl_b32 s53, s{DNB}, 2", "s_add_u32 s52, s52, s53", f"s_add_u32 s52, s52, {WS_FE}", f"v_lshlrev_b32 v{T0}, 7, v{L}", "s_mul_i32 s58, s26, 160")
    e_soff(k, 54, 2, 0, 24); k.e(f"s_add_u32 s55, s54, {24*40960}", "s_mul_i32 s53, s24, 5120")
    k.e("s_waitcnt vmcnt(0) lgkmcnt(0)", "s_barrier")
    stamp(k, 22)
    push_flags(k, 52, T0, "0xffff")

def phase_e(k):
    for x in step_dma(WV, 53, 54, X7) + step_dma(WV, 53, 55, X8): k.e(*x)
    k.e("s_mul_i32 s52, s27, 49152", f"s_add_u32 s52, s52, {WS_A}", "s_mul_i32 s54, s29, 24576", "s_add_u32 s54, s54, s52",
        "s_add_u32 s5, s54, 24576", f"s_mul_i32 s4, s26, {1024*ER}", "s_add_u32 s4, s4, s54", "s_mov_b32 s6, s54")
    srd(k, 12, KOUT, X_BYTES)
    k.e("s_cmp_lg_u32 s24, 1", f"s_cbranch_scc1 {k.lab('e_np')}")
    k.e("s_lshl_b32 s52, s25, 3", "s_add_u32 s52, s52, s26", "s_lshl_b32 s52, s52, 7", f"s_add_u32 s52, s52, {WS_FE}", f"v_lshlrev_b32 v{T2}, 2, v{L}")
    poll(k, T2, "s52", T0, 0xffff, 0)
    k.label("e_np")
    k.e("s_xor_b32 s52, s24, 2", "s_or_b32 s52, s52, s2", "s_cmp_lg_u32 s52, 0", f"s_cbranch_scc1 {k.lab('e_ne')}")
    k.e(f"v_lshrrev_b32 v{T0}, 3, v{L}", f"v_and_b32 v{T1}, 7, v{L}", f"v_lshlrev_b32 v{T1}, 4, v{T1}", f"v_lshl_add_u32 v{T2}, v{T0}, 12, v{T1}", f"s_mov_b32 s52, {WS_FC}")
    poll(k, T2, "s52", ACC, -1, -1, x4=True)
    k.e(f"v_mov_b32 v{T0}, 0", f"v_mov_b32 v{T1}, s{TAG}", f"s_mov_b32 s52, {WS_EP}", "s_mov_b64 exec, 1", f"buffer_store_dword v{T1}, v{T0}, s[20:23], s52 offen sc1", "s_mov_b64 exec, -1")
    k.label("e_ne")
    k.e("s_waitcnt vmcnt(0)", "s_barrier")
    stamp(k, 23)
    def ald(n): return [f"buffer_load_dwordx4 {v(ACT+4*(n%10),4)}, v{L16}, s[20:23], s4 offen{SC}", "s_add_u32 s4, s4, 1024", "s_cmp_ge_u32 s4, s5", "s_cselect_b32 s4, s6, s4"]
    ED = int(([a[4:] for a in sys.argv if a.startswith('-ed=')] + ['6'])[0])
    for n in range(ED): k.e(*ald(n))
    for n in range(24):
        issued = min(24, n + ED)
        w = f"s_waitcnt vmcnt({issued-1-n})"
        if 8 <= n: w += f" lgkmcnt({10 if n <= 17 else 0})"
        k.e(w)
        if n == 0: stamp(k, 24)
        fill = []
        if n + ED < 24: fill.append(ald(n + ED))
        if 1 <= n <= 16 and not opt('e_nolds'): fill += w_reads(0 if n <= 8 else 1, 5120 * ((n - 1) % 8), WR + 20 * ((n - 1) % 8))
        k.e(*interleave(ce_mfma(WR + 20 * (n % 8), ACT + 4 * (n % 10), n == 0)[:(1 if opt('e_nomf') else 5)], fill))
        if n == 24 - ED: k.e("s_barrier")
    stamp(k, 25)
    ce_epilogue(k, 0, HRES, XR)
    k.e(f"buffer_store_dwordx4 {v(XR,4)}, v{NAT}, s[12:15], s31 offen")
    k.e("s_cmp_lg_u32 s29, 0", f"s_cbranch_scc1 {k.lab('fin')}")
    k.e(f"buffer_store_dwordx2 {v(XR+4,2)}, v{NAT+1}, s[12:15], s30 offen offset:128")

def rest(k):
    phase_b(k)
    if G.UPTO == "B": return
    phase_c(k)
    if G.UPTO == "C": return
    phase_d(k)
    if G.UPTO == "D": return
    phase_e(k)
```

```python
import sys, struct
from asmlib import *
from qktab import tables

NAME = "sequential_preLN__sliding_block__glu_gated_swiglu__prompt"
WS_QK = 0
WS_V = 5242880
WS_O = 7864320
WS_H = 10485760
WS_A = 13107200
WS_HST = 19398656
WS_CS = WS_HST + 262144
WS_XST = WS_CS + 245760
WS_WST = WS_XST + 327680
WS_FB = WS_WST + 153600
WS_FC = WS_FB + 65536
WS_FD = WS_FC + 32768
WS_FE = WS_FD + 32768
WS_EP = WS_FE + 32768
WS_END = WS_EP + 128
X_BYTES = 2048 * 1280
SPIN_MAX = 40000 if not any(a in sys.argv for a in ('-xrot', '-norot_a')) else 20

def f32(x): return "0x%08x" % struct.unpack("<I", struct.pack("<f", x))[0]
ONES = "0x3f803f80"
NEGBIG = f32(-1e30)
CSC = (20 ** -0.5) * 1.4426950408889634

STAMP = "-stamp" in sys.argv
UPTO = ([a[6:] for a in sys.argv if a.startswith("-upto=")] + ["E"])[0]
WS_STAMP = 64 << 20
WS_SRD = (1 << 28) if STAMP else WS_END
def opt(name): return ("-" + name) in sys.argv

L, L16, H, TK, T0, T1, T2, T3 = 1, 2, 3, 4, 5, 6, 7, 8
HRES = 10
KX, KWQKV, KWO, KW1, KW3, KW2, KOUT, KWS = 32, 34, 36, 40, 42, 44, 46, 50
TAG = 3

class VM:
    def __init__(s): s.q = []
    def add(s, tag, n=1): s.q += [tag] * n
    def wait(s, tag):
        idx = max(i for i, t in enumerate(s.q) if t == tag)
        n = len(s.q) - 1 - idx
        s.q = s.q[idx + 1:]
        assert n <= 63
        return f"s_waitcnt vmcnt({n})"

NST = [0]
DST = ([a[5:] for a in sys.argv if a.startswith("-dst=")] + [""])[0]
def dstamp(k, ph, i):
    if DST == ph: stamp(k, i, True)
def stamp(k, i, force=False):
    if DST and 1 <= i <= 17 and not force: return
    if STAMP:
        k.e("s_memrealtime s[62:63]", "s_waitcnt lgkmcnt(0)", f"s_mov_b32 s{64+i}, s62")
def stamp_out(k):
    if not STAMP: return
    k.e("s_waitcnt vmcnt(0)")
    stamp(k, 29)
    k.e("s_memtime s[62:63]", "s_waitcnt lgkmcnt(0)", "s_mov_b32 s95, s62")
    k.e("s_mov_b64 exec, 1", "s_lshl_b32 s62, s2, 3", "s_add_u32 s62, s62, s24", "s_lshl_b32 s62, s62, 7", f"s_add_u32 s62, s62, {WS_STAMP}")
    k.e("v_mov_b32 v0, 0")
    for i in range(32):
        k.e(f"v_mov_b32 v1, s{64+i}", f"buffer_store_dword v1, v0, s[20:23], s62 offen offset:{4*i}")
    EC = int(([a[6:] for a in sys.argv if a.startswith("-echo=")] + ["0"])[0])
    if EC:
        k.e(f"s_sub_u32 s60, s{64+EC}, s64", "s_min_u32 s60, s60, 10000", f"s_cmp_eq_u32 s{64+EC}, 0", "s_cselect_b32 s60, 0, s60")
        k.label("echo")
        k.e("s_memrealtime s[62:63]", "s_waitcnt lgkmcnt(0)", "s_sub_u32 s62, s62, s93", "s_cmp_lt_u32 s62, s60", f"s_cbranch_scc1 {k.lab('echo')}")
    if opt("dbg"):
        k.e("s_lshl_b32 s62, s2, 3", "s_add_u32 s62, s62, s24", "s_cmp_lg_u32 s62, 800", f"s_cbranch_scc1 {k.lab('end')}")
        srd(k, 16, 48, 256)
        for n, i in enumerate((1, 2, 3, 6, 8, 9, 12, 13, 17, 18, 19, 20, 22, 23, 25, 29)):
            k.e(f"s_sub_u32 s62, s{64+i}, s64", "v_mov_b32 v1, s62", f"buffer_store_dword v1, v0, s[16:19], 0 offen offset:{4*n}")

def srd(k, d, base, size):
    k.e(f"s_mov_b32 s{d}, s{base}", f"s_mov_b32 s{d+1}, s{base+1}", f"s_mov_b32 s{d+2}, {size}", f"s_mov_b32 s{d+3}, 0x20000")

def ln_stats(k, sx, sxx, t0, t1, Mout, Rout, SD=None):
    k.e(f"v_mul_f32 v{sx}, {f32(1/640)}, v{sx}")
    k.e(f"v_mul_f32 v{sxx}, {f32(1/640)}, v{sxx}")
    k.e(f"v_fma_f32 v{t0}, -v{sx}, v{sx}, v{sxx}")
    k.e(f"v_max_f32 v{t0}, 0, v{t0}")
    k.e(f"v_cvt_pk_bf16_f32 v{t1}, v{sx}, v{t0}")
    k.e(f"v_lshlrev_b32 v{Mout}, 16, v{t1}")
    k.e(f"v_and_b32 v{t0}, 0xffff0000, v{t1}")
    k.e(f"v_add_f32 v{t0}, {f32(1e-5)}, v{t0}")
    k.e(f"v_cvt_pk_bf16_f32 v{t0}, v{t0}, v{t0}")
    k.e(f"v_lshlrev_b32 v{t0}, 16, v{t0}")
    k.e(f"v_sqrt_f32 v{t0}, v{t0}")
    k.e(f"v_cvt_pk_bf16_f32 v{t0}, v{t0}, v{t0}")
    k.e(f"v_lshlrev_b32 v{t0}, 16, v{t0}")
    if SD is not None: k.e(f"v_mov_b32 v{SD}, v{t0}")
    k.e(f"v_rcp_f32 v{Rout}, v{t0}")

def half_sum(k, x, t):
    k.e(f"v_mov_b32 v{t}, v{x}", f"v_permlane32_swap_b32 v{t}, v{x}", f"v_add_f32 v{x}, v{t}, v{x}")

def split3(k, cs, d0, d1, t0, t1, neg=False):
    n = "-" if neg else ""
    k.e(f"v_cvt_pk_bf16_f32 v{t0}, v{cs}, v{cs}")
    k.e(f"v_lshlrev_b32 v{t0}, 16, v{t0}")
    k.e(f"v_sub_f32 v{t0}, v{cs}, v{t0}")
    k.e(f"v_cvt_pk_bf16_f32 v{t1}, v{t0}, v{t0}")
    k.e(f"v_cvt_pk_bf16_f32 v{d0}, {n}v{cs}, {n}v{t0}")
    k.e(f"v_lshlrev_b32 v{t1}, 16, v{t1}")
    k.e(f"v_sub_f32 v{t0}, v{t0}, v{t1}")
    k.e(f"v_cvt_pk_bf16_f32 v{d1}, {n}v{t0}, 0")

uid = [0]
def poll(k, vaddr, soff, vd, mask_lo, mask_hi, x4=False, preloaded=False):
    uid[0] += 1
    lp, dn = f"pl{uid[0]}", f"pd{uid[0]}"
    k.e(f"s_mov_b32 exec_lo, {mask_lo}", f"s_mov_b32 exec_hi, {mask_hi}", "s_mov_b32 s61, 0")
    ld = f"buffer_load_dwordx4 v[{vd}:{vd+3}], v{vaddr}, s[20:23], {soff} offen sc1" if x4 else f"buffer_load_dword v{vd}, v{vaddr}, s[20:23], {soff} offen sc1"
    def chk():
        if x4:
            k.e(f"v_xor_b32 v{vd}, s{TAG}, v{vd}", f"v_xor_b32 v{vd+1}, s{TAG}, v{vd+1}", f"v_xor_b32 v{vd+2}, s{TAG}, v{vd+2}", f"v_xor_b32 v{vd+3}, s{TAG}, v{vd+3}",
                f"v_or3_b32 v{vd}, v{vd}, v{vd+1}, v{vd+2}", f"v_or_b32 v{vd}, v{vd}, v{vd+3}", f"v_cmp_ne_u32 vcc, 0, v{vd}")
        else:
            k.e(f"v_cmp_ne_u32 vcc, s{TAG}, v{vd}")
    if preloaded:
        chk()
        k.e("s_nop 1", f"s_cbranch_vccz {k.lab(dn)}")
    k.label(lp)
    k.e(ld, "s_waitcnt vmcnt(0)")
    chk()
    k.e("s_add_u32 s61, s61, 1", f"s_cbranch_vccz {k.lab(dn)}", f"s_cmp_lt_u32 s61, {SPIN_MAX}", f"s_cbranch_scc1 {k.lab(lp)}")
    k.label(dn)
    k.e("s_mov_b64 exec, -1")

MISC = 106496

def a_map(k):
    k.e("s_and_b32 s52, s2, 7", "s_lshr_b32 s53, s2, 3",
        "s_and_b32 s54, s52, 1", "s_mul_i32 s54, s54, 30", "s_add_u32 s54, s54, s53",
        "s_lshr_b32 s25, s54, 2",
        "s_and_b32 s54, s54, 3", "s_lshr_b32 s52, s52, 1", "s_lshl_b32 s55, s52, 2", "s_add_u32 s26, s55, s54",
        "s_mul_i32 s54, s54, 5", "s_add_u32 s54, s54, 1", "s_lshr_b32 s54, s54, 1", "s_add_u32 s54, s54, s52",
        "s_add_u32 s27, s54, s25",
        "s_cmp_ge_u32 s27, 20", "s_cselect_b32 s54, 20, 0", "s_sub_u32 s27, s27, s54",
        "s_cmp_ge_u32 s27, 10", "s_cselect_b32 s54, 10, 0", "s_sub_u32 s27, s27, s54")
    if opt("norot_a"): k.e("s_mov_b32 s27, 0")
    if opt("xrot"):
        k.e("s_mul_i32 s54, s52, 5", "s_add_u32 s54, s54, 1", "s_lshr_b32 s54, s54, 1", "s_and_b32 s27, s2, 1", "s_mul_i32 s27, s27, 5", "s_add_u32 s27, s27, s54",
            "s_cmp_ge_u32 s27, 10", "s_cselect_b32 s54, 10, 0", "s_sub_u32 s27, s27, s54")

def a_table(k, wj_sgpr, pref):
    T = tables()
    k.e("s_cmp_ge_u32 s25, 5", "s_cselect_b32 s52, 5, 0", "s_sub_u32 s52, s25, s52", "s_min_u32 s52, s52, 5",
        "s_lshl_b32 s52, s52, 1", f"s_add_u32 s52, s52, s{wj_sgpr}")
    for i in range(12):
        p, wj = divmod(i, 2)
        if i < 11: k.e(f"s_cmp_lg_u32 s52, {i}", f"s_cbranch_scc1 {k.lab(f'{pref}{i+1}')}")
        for f in range(2):
            ch, R = T[p][2 * wj + f]
            b = [8 * c for c in ch]
            lo = b[0] | b[1] << 8 | b[2] << 16 | b[3] << 24
            hi = b[4] | b[5] << 8 | b[6] << 16 | b[7] << 24
            rr = R[0] | R[1] << 8 | R[2] << 16 | R[3] << 24
            k.e(f"s_mov_b32 s{54+3*f}, {lo:#x}", f"s_mov_b32 s{55+3*f}, {hi:#x}", f"s_mov_b32 s{56+3*f}, {rr:#x}")
        if i < 11:
            k.e(f"s_branch {k.lab(pref + 'd')}")
            k.label(f"{pref}{i+1}")
    k.label(pref + "d")

def a_waddr(k, d, lo, hi):
    k.e(f"v_bfe_u32 v{T0}, v{L}, 2, 2",
        f"v_bfe_u32 v{T1}, v{L}, 4, 1", f"v_cmp_eq_u32 vcc, 1, v{T1}",
        f"v_mov_b32 v{T1}, s{lo}", f"v_mov_b32 v{T2}, s{hi}", f"v_cndmask_b32 v{T1}, v{T1}, v{T2}, vcc",
        f"v_and_b32 v{T2}, 3, v{L}", f"v_lshlrev_b32 v{T2}, 3, v{T2}", f"v_bfe_u32 v{T1}, v{T1}, v{T2}, 8",
        f"v_lshlrev_b32 v{T2}, 6, v{T0}", f"v_xor_b32 v{T1}, v{T1}, v{T2}",
        f"v_lshl_add_u32 v{T0}, v{H}, 3, v{T0}", f"v_lshl_add_u32 v{d}, v{T0}, 8, v{T1}")

def a_xaddr(k, d, rowbase_sgpr):
    k.e(f"v_lshlrev_b32 v{T0}, 7, v{TK}", f"v_add_u32 v{T0}, s{rowbase_sgpr}, v{T0}",
        f"v_bfe_u32 v{T1}, v{TK}, 1, 3", f"v_xor_b32 v{T1}, v{T1}, v{H}")
    for ks in range(4):
        k.e(f"v_xor_b32 v{T2}, {2*ks}, v{T1}", f"v_lshl_add_u32 v{d+ks}, v{T2}, 4, v{T0}")

def a_compute(k):
    AX, AW = 16, 24
    AST = 28
    ACC = 64; FR = 128; EX = 176
    k.e("s_lshr_b32 s28, s24, 1", "s_and_b32 s29, s24, 1")
    a_table(k, 29, "ct")
    k.e("s_lshl_b32 s52, s28, 13")
    a_xaddr(k, AX, 52)
    for i in range(4): k.e(f"v_add_u32 v{AX+4+i}, 65536, v{AX+i}")
    a_waddr(k, AW, 54, 55); a_waddr(k, AW + 1, 57, 58)
    for i in range(2): k.e(f"v_add_u32 v{AW+2+i}, 65536, v{AW+i}")
    k.e("s_lshl_b32 s52, s26, 2", "s_lshl_b32 s53, s28, 1", "s_add_u32 s52, s52, s53")

    PW = int(([a[4:] for a in sys.argv if a.startswith("-pw=")] + ["0"])[0])
    PWS = int(([a[5:] for a in sys.argv if a.startswith("-pws=")] + ["1"])[0])
    k.e("s_lshl_b32 s60, s25, 2", "s_add_u32 s60, s60, s24", "s_mul_i32 s60, s60, 3", "s_min_u32 s60, s60, 157", "s_lshl_b32 s60, s60, 10",
        "s_mul_i32 s53, s26, 163840", "s_add_u32 s60, s60, s53", f"s_add_u32 s60, s60, {WS_O}")
    def reads(g):
        st, ks = divmod(g, 4)
        sl = st % 4; S = sl // 2; ob = (sl % 2) * 32768
        b = FR + 16 * (g % 3)
        o = []
        for t in range(2):
            o.append(f"ds_read_b128 v[{b+4*t}:{b+4*t+3}], v{AX+4*S+ks} offset:{ob+4096*t}")
        for f in range(2):
            for u in range(2):
                o.append(f"ds_read_b64_tr_b16 v[{b+8+4*f+2*u}:{b+8+4*f+2*u+1}], v{AW+2*S+f} offset:{ob+16384+ks*4096+u*1024}")
        return o

    def mainloop(vmode):
        if PW >= 40:
            for n in range(8): k.e(f"buffer_store_dwordx4 v[16:19], v{AST+(n&3)}, s[20:23], s{30+(n>>2)} offen sc1")
        stamp(k, 1)
        k.e("s_barrier")
        stamp(k, 2)
        k.e(*reads(0)); k.e(*reads(1))
        for g in range(40):
            b = FR + 16 * (g % 3)
            fill = []
            if g % 4 == 2 and g // 4 + 1 <= 9:
                k.e("s_waitcnt lgkmcnt(0)", "s_barrier")
            else:
                k.e(f"s_waitcnt lgkmcnt({6 if g + 1 < 40 else 0})")
            if g + 2 < 40: fill += reads(g + 2)
            if PW and g >= PW and (g - PW) % PWS == 0 and (g - PW) // PWS < 8:
                n = (g - PW) // PWS
                if opt("pr"): fill.append(f"buffer_load_dwordx4 v[200:203], v{AST+(n&3)}, s[20:23], s{30+(n>>2)} offen sc1 ; dummy")
                else: fill.append(f"buffer_store_dwordx4 v[16:19], v{AST+(n&3)}, s[20:23], s{30+(n>>2)} offen sc1")
            if PW and opt("pwo") and g >= PW and (g - PW) % PWS == 0 and 8 <= (g - PW) // PWS < 11:
                fill.append(f"buffer_store_dwordx4 v[16:19], v{L16}, s[20:23], s60 offen offset:{1024*((g-PW)//PWS-8)} sc1")
            mf = []
            for t in range(2):
                for f in range(2):
                    d = ACC + 32 * t + 16 * f
                    xa, wa = v(b + 4 * t, 4), v(b + 8 + 4 * f, 4)
                    A, B = (xa, wa) if vmode else (wa, xa)
                    c = "0" if g == 0 else v(d, 16)
                    mf.append(f"v_mfma_f32_32x32x16_bf16 {v(d,16)}, {A}, {B}, {c}")
            k.e(*interleave(mf, fill))
        stamp(k, 3)
        XO, WO, R = EX, EX + 8, EX + 16
        RD = FR
        k.e("s_lshl_b32 s53, s28, 8", f"s_add_u32 s53, s53, {MISC}", f"v_lshl_add_u32 v{T0}, v{TK}, 2, s53",
            "s_lshl_b32 s54, s29, 9", f"s_add_u32 s54, s54, {MISC+1024}", f"v_lshl_add_u32 v{T1}, v{TK}, 3, s54",
            f"v_lshl_add_u32 v{T2}, v{H}, 4, s53", f"v_mov_b32 v{T3}, {MISC}")
        for r in (XO+2, XO+3, XO+6, XO+7, WO+2, WO+3, WO+6, WO+7): k.e(f"v_mov_b32 v{r}, 0")
        k.e(f"v_cmp_gt_u32 vcc, 32, v{L}")
        if PW: k.e("s_waitcnt vmcnt(0)")
        k.e("s_barrier")
        stamp(k, 4)
        for t in range(2): k.e(f"ds_read_b32 v{XO+4*t}, v{T0} offset:{128*t}")
        for f in range(2): k.e(f"ds_read_b64 v[{WO+4*f}:{WO+4*f+1}], v{T1} offset:{256*f}")
        k.e(f"ds_read_b32 v{R+2}, v{T3} offset:2048")
        if vmode:
            for t in range(2):
                for q in range(4):
                    k.e(f"ds_read_b128 v[{RD+16*t+4*q}:{RD+16*t+4*q+3}], v{T2} offset:{512+128*t+32*q}")
        else:
            for t in range(2): k.e(f"ds_read_b32 v{R+t}, v{T0} offset:{512+128*t}")
        k.e(f"s_waitcnt lgkmcnt({8 if vmode else 2})")
        for t in range(2):
            k.e(f"v_cndmask_b32 v{XO+4*t}, 0, v{XO+4*t}, vcc", f"v_and_b32 v{XO+4*t+1}, 0xffff, v{XO+4*t}")
        k.e(f"v_readfirstlane_b32 s{TAG}, v{R+2}")
        for t in range(2):
            for f in range(2):
                d = ACC + 32 * t + 16 * f
                xa, wa = v(XO + 4 * t, 4), v(WO + 4 * f, 4)
                A, B = (xa, wa) if vmode else (wa, xa)
                k.e(f"v_mfma_f32_32x32x16_bf16 {v(d,16)}, {A}, {B}, {v(d,16)}")
        k.e("s_waitcnt lgkmcnt(0)")
        for t in range(2):
            for f in range(2):
                d = ACC + 32 * t + 16 * f
                for r in range(0, 16, 2):
                    if vmode: k.e(f"v_pk_mul_f32 v[{d+r}:{d+r+1}], v[{d+r}:{d+r+1}], v[{RD+16*t+r}:{RD+16*t+r+1}]")
                    else: k.e(f"v_pk_mul_f32 v[{d+r}:{d+r+1}], v[{d+r}:{d+r+1}], v[{R}:{R+1}] op_sel:[0,{t}] op_sel_hi:[1,{t}]")
                for j in range(8):
                    k.e(f"v_cvt_pk_bf16_f32 v{d+j}, v{d+2*j}, v{d+2*j+1}")
                for u in range(2):
                    k.e(f"buffer_store_dwordx4 v[{d+4*u}:{d+4*u+3}], v{AST+2*f+u}, s[20:23], s{30+t} offen sc1")
        k.e(f"s_branch {k.lab('a_pub')}")

    k.e("s_cmp_ge_u32 s25, 10", f"s_cbranch_scc1 {k.lab('vpath')}")
    k.e("s_cmp_ge_u32 s25, 5", f"s_cselect_b32 s53, {80*32768}, 0", "s_lshl_b32 s30, s52, 9", "s_add_u32 s30, s30, s53", "s_add_u32 s31, s30, 512")
    k.e(f"v_lshlrev_b32 v{T0}, 3, v{H}", f"v_lshlrev_b32 v{T1}, 4, v{TK}")
    for f in range(2):
        for u in range(2):
            k.e(f"v_add_u32 v{T2}, {16*u}, v{T0}", f"v_bfe_u32 v{T2}, s{56+3*f}, v{T2}, 8", f"v_lshl_add_u32 v{AST+2*f+u}, v{T2}, 15, v{T1}")
    mainloop(False)
    k.label("vpath")
    k.e("s_mul_i32 s30, s52, 40960", f"s_add_u32 s30, s30, {WS_V}", "s_add_u32 s31, s30, 40960",
        "s_sub_u32 s53, s25, 10", "s_lshl_b32 s53, s53, 11", "s_lshl_b32 s54, s29, 10", "s_add_u32 s53, s53, s54",
        f"v_mul_u32_u24 v{T0}, 10240, v{H}", f"v_lshl_add_u32 v{T0}, v{TK}, 4, v{T0}", f"v_add_u32 v{AST}, s53, v{T0}",
        f"v_add_u32 v{AST+1}, 20480, v{AST}", f"v_add_u32 v{AST+2}, 512, v{AST}", f"v_add_u32 v{AST+3}, {20480+512}, v{AST}")
    mainloop(True)
    k.label("a_pub")
    stamp(k, 5)
    k.e("s_lshr_b32 s52, s26, 1", "s_lshl_b32 s53, s52, 13", "s_and_b32 s54, s26, 1", "s_add_u32 s54, s54, 2", "s_lshl_b32 s54, s54, 4",
        "s_add_u32 s54, s54, s25", "s_lshl_b32 s54, s54, 2", "s_add_u32 s53, s53, s54", f"s_add_u32 s53, s53, {WS_FB}",
        f"v_mul_u32_u24 v{T0}, {8192-128}, v{H}", f"v_lshl_add_u32 v{T0}, v{TK}, 8, v{T0}",
        f"v_mov_b32 v{T2}, s{TAG}", "s_cmp_eq_u32 s52, 7", "s_cselect_b32 s55, 0, -1", "s_cmp_lt_u32 s25, 5", "s_cselect_b32 s55, 0, s55",
        "s_cmp_ge_u32 s25, 5", "s_cselect_b32 s52, 5, 0", "s_sub_u32 s54, s25, s52", "s_cmp_ge_u32 s25, 10", "s_cselect_b32 s52, 5, 0", "s_sub_u32 s54, s54, s52",
        f"v_lshrrev_b32 v{T1}, 1, v{TK}", f"v_mul_u32_u24 v{T1}, 5, v{T1}", f"v_add_u32 v{T3}, 4, v{T1}", f"v_lshrrev_b32 v{T1}, 4, v{T1}", f"v_lshrrev_b32 v{T3}, 4, v{T3}",
        f"v_cmp_eq_u32 vcc, s54, v{T1}", f"v_cmp_eq_u32 s[56:57], s54, v{T3}", "s_or_b64 s[56:57], s[56:57], vcc", "s_and_b32 s57, s57, s55")
    k.e("s_waitcnt vmcnt(0)")
    stamp(k, 6)
    k.e("s_barrier", "s_cmp_lg_u32 s24, 0", f"s_cbranch_scc1 {k.lab('a_done')}",
        "s_mov_b64 exec, s[56:57]", f"buffer_store_dword v{T2}, v{T0}, s[20:23], s53 offen sc1", "s_mov_b64 exec, -1")

def code_touch(k, n, nthr):
    uid[0] += 1
    k.e("s_getpc_b64 s[52:53]")
    k.label(f"pc{uid[0]}")
    k.e(f"s_sub_u32 s52, s52, {k.lab(f'pc{uid[0]}')}-{k.name}", "s_subb_u32 s53, s53, 0", f"v_lshlrev_b32 v{T0}, 6, v0")
    for i in range(n):
        k.e(f"v_min_u32 v{T1}, {k.lab('end')}-{k.name}, v{T0}", f"global_load_dword v9, v{T1}, s[52:53] ; dummy")
        if i < n - 1: k.e(f"v_add_u32 v{T0}, {64*nthr}, v{T0}")
def spare(k):
    TG = 30
    tag_load(k, TG)
    TL = int(([a[5:] for a in sys.argv if a.startswith("-tlb=")] + ["0"])[0])
    if TL:
        k.e("s_bfe_u32 s54, s2, 0x10003", f"v_lshl_add_u32 v{T1}, v0, 1, s54", f"v_lshlrev_b32 v{T1}, {TL}, v{T1}")
        assert WS_END <= 1024 << TL and TL <= 21
        for m, sz in ((KWS, WS_END), (KW1, 640 * 3072), (KW3, 640 * 3072), (KOUT, X_BYTES), (KW2, 1536 * 1280)):
            srd(k, 16, m, sz)
            k.e(f"buffer_load_dword v32, v{T1}, s[16:19], 0 offen ; dummy")
    code_touch(k, 2, 512)
    mats = [(KWO, 640 * 1280), (KW2, 1536 * 1280)] if not opt("sp13") else [(KWO, 640 * 1280), (KW1, 640 * 3072), (KW3, 640 * 3072)]
    if opt("spall"): mats = [(KWO, 640 * 1280), (KW1, 640 * 3072), (KW3, 640 * 3072), (KW2, 1536 * 1280)]
    sh = 12 if opt("touch") else 10
    k.e("s_sub_u32 s52, s2, 240", "s_lshl_b32 s52, s52, 3", "s_add_u32 s52, s52, s24", f"s_lshl_b32 s52, s52, {sh}", f"v_lshlrev_b32 v{T0}, 6, v{L}")
    for m, sz in mats:
        srd(k, 16, m, sz)
        k.e("s_mov_b32 s53, s52")
        for i in range(-(-sz // (128 << sh))):
            if opt("touch"): k.e(f"buffer_load_dword v32, v{T0}, s[16:19], s53 offen ; dummy")
            else: k.e(f"buffer_load_dwordx4 v[32:35], v{L16}, s[16:19], s53 offen ; dummy")
            k.e(f"s_add_u32 s53, s53, {128 << sh}")
    k.e("s_waitcnt vmcnt(0)")
    tag_make(k, TG)
    stamp(k, 6)

def tag_load(k, d):
    k.e(f"v_mov_b32 v{T0}, 0", f"s_mov_b32 s52, {WS_EP}", f"buffer_load_dword v{d}, v{T0}, s[20:23], s52 offen sc1")
def tag_make(k, d):
    k.e(f"v_readfirstlane_b32 s{TAG}, v{d}", f"s_add_u32 s{TAG}, s{TAG}, 0x9e3779b9")
def misc_init(k):
    k.e(f"v_mov_b32 v20, s{TAG}", f"v_mov_b32 v{T3}, {MISC}", f"ds_write_b32 v{T3}, v20 offset:2048")

def a_loader(k):
    VXO, VWO = 16, 20
    AX, AW = 24, 28
    TG, PL = 30, 31
    D = 32
    vm = VM()
    k.e("s_sub_u32 s31, s24, 4")
    tag_load(k, TG); vm.add("tag")
    srd(k, 16, KWQKV, 640 * 3840)
    k.e("s_lshl_b32 s29, s31, 12",
        "s_mul_i32 s28, s26, 163840", "s_lshl_b32 s52, s27, 7", "s_add_u32 s58, s28, s52", "s_add_u32 s28, s28, 1280",
        "s_lshl_b32 s59, s25, 8", "s_mul_i32 s52, s27, 245760", "s_add_u32 s59, s59, s52")
    k.e(f"v_lshrrev_b32 v{T0}, 3, v{L}", "s_lshl_b32 s52, s31, 5", f"v_add_u32 v{T0}, s52, v{T0}", f"v_mul_u32_u24 v{T0}, 1280, v{T0}",
        f"v_and_b32 v{T1}, 7, v{L}", f"v_lshrrev_b32 v{T2}, 4, v{L}", f"v_xor_b32 v{T1}, v{T1}, v{T2}", f"v_lshl_add_u32 v{VXO}, v{T1}, 4, v{T0}",
        f"v_xor_b32 v{T0}, 64, v{VXO}", f"v_add_u32 v{VXO+1}, {10240-1024}, v{T0}", f"v_add_u32 v{VXO+2}, {2*(10240-1024)}, v{VXO}",
        f"v_add_u32 v{VXO+3}, {3*(10240-1024)}, v{T0}")
    k.e("s_lshl_b32 s52, s31, 4", f"v_add_u32 v{T0}, s52, v{T2}", f"v_mul_u32_u24 v{T0}, 3840, v{T0}",
        f"v_and_b32 v{T1}, 15, v{L}", f"v_lshlrev_b32 v{T3}, 2, v{T2}", f"v_xor_b32 v{T1}, v{T1}, v{T3}", f"v_lshl_add_u32 v{VWO}, v{T1}, 4, v{T0}")
    for j in range(1, 4): k.e(f"v_add_u32 v{VWO+j}, {j*(15360-1024)}, v{VWO}")
    CP = int(([a[4:] for a in sys.argv if a.startswith("-cp=")] + ["12"])[0])
    nxt = [0]
    def issue_to(q):
        while nxt[0] < min(q, 80):
            st, i = divmod(nxt[0], 8)
            sl = st % 4
            if i == 0: k.e(f"s_add_u32 m0, s29, {sl*32768}")
            if i == 4: k.e(f"s_add_u32 m0, s29, {sl*32768+16384}")
            if opt("nodma") and st >= 4:
                if i == 0: k.e(f"buffer_load_dwordx4 v{VXO+i}, s[12:15], s58 offen offset:{1024*i} lds"); vm.add(st)
                nxt[0] += 1; continue
            if i < 4: k.e(f"buffer_load_dwordx4 v{VXO+i}, s[12:15], s58 offen offset:{1024*i} lds")
            else: k.e(f"buffer_load_dwordx4 v{VWO+i-4}, s[16:19], s59 offen offset:{1024*(i-4)} lds")
            vm.add(st)
            if i == 7 and st < 9:
                k.e("s_add_u32 s58, s58, 128", "s_add_u32 s59, s59, 245760", "s_cmp_ge_u32 s58, s28",
                    "s_cselect_b32 s52, 1280, 0", "s_cselect_b32 s53, 2457600, 0", "s_sub_u32 s58, s58, s52", "s_sub_u32 s59, s59, s53")
            nxt[0] += 1
    issue_to(8)
    k.e("s_mov_b32 s60, s58", "s_mov_b32 s30, s59", "s_lshr_b32 s61, s31, 1")
    a_table(k, 61, "lt")
    k.e("s_bitcmp1_b32 s31, 0", "s_cselect_b32 s54, s57, s54", "s_cselect_b32 s55, s58, s55")
    a_waddr(k, AW, 54, 55)
    a_xaddr(k, AX, 29)
    k.e("s_mov_b32 s58, s60", "s_mov_b32 s59, s30")
    k.e("s_mul_i32 s4, s26, 20480", "s_lshl_b32 s56, s31, 9", "s_add_u32 s4, s4, s56", f"s_add_u32 s4, s4, {WS_XST}",
        "s_mul_i32 s5, s25, 10240", "s_lshl_b32 s57, s31, 8", "s_add_u32 s5, s5, s57", f"s_add_u32 s5, s5, {WS_WST}",
        "s_lshl_b32 s55, s27, 11", "s_add_u32 s55, s55, s4", "s_lshl_b32 s56, s27, 10", "s_add_u32 s56, s56, s5", f"s_mov_b32 s54, {ONES}")
    issue_to(8 + CP)
    stamp(k, 1)
    k.e(vm.wait(0), "s_barrier")
    stamp(k, 2)
    tag_make(k, TG)
    for ks in range(4): k.e(f"ds_read_b128 v[{D+4*ks}:{D+4*ks+3}], v{AX+ks}")
    for ks in range(4):
        for u in range(2): k.e(f"ds_read_b64_tr_b16 v[{D+16+4*ks+2*u}:{D+16+4*ks+2*u+1}], v{AW} offset:{16384+ks*4096+u*1024}")
    SX, SXX, CS = 64, 66, 68
    k.e(f"v_mov_b32 v{SX}, 0", f"v_mov_b32 v{SXX}, 0", f"v_mov_b32 v{CS}, 0",
        f"v_mov_b32 v{SX+1}, s{TAG}", f"v_mov_b32 v{SXX+1}, s{TAG}", f"v_mov_b32 v{CS+1}, s{TAG}",
        f"v_lshlrev_b32 v{T2}, 4, v{TK}", f"v_lshlrev_b32 v{T3}, 3, v{TK}")
    issue_to(16 + CP)
    k.e("s_waitcnt lgkmcnt(0)", vm.wait(1), "s_barrier")
    PX, PW = 70, 71
    def partials():
        for i in range(5):
            k.e(f"buffer_load_dwordx4 v[{D+4*i}:{D+4*i+3}], v{PX}, s[20:23], s{(4,6,7)[i//2]} offen offset:{2048*(i%2)} sc1")
            k.e(f"buffer_load_dwordx2 v[{D+20+2*i}:{D+21+2*i}], v{PW}, s[20:23], s{(5,8)[i//4]} offen offset:{1024*(i%4)} sc1")
    for j in range(2, 10):
        if j < 6:
            for i in range(4 * (j - 2), 4 * (j - 1)):
                issue_to(8 * j + CP + 2 * (i % 4 + 1))
                k.e(f"v_lshlrev_b32 v{T0}, 16, v{D+i}", f"v_and_b32 v{D+i}, 0xffff0000, v{D+i}", f"v_lshlrev_b32 v{T1}, 16, v{D+16+i}", f"v_and_b32 v{D+16+i}, 0xffff0000, v{D+16+i}",
                    f"v_add_f32 v{SX}, v{SX}, v{T0}", f"v_fmac_f32 v{SXX}, v{T0}, v{T0}", f"v_add_f32 v{CS}, v{CS}, v{T1}",
                    f"v_add_f32 v{SX}, v{SX}, v{D+i}", f"v_fmac_f32 v{SXX}, v{D+i}, v{D+i}", f"v_add_f32 v{CS}, v{CS}, v{D+16+i}")
        if j == 5:
            half_sum(k, SX, T0); half_sum(k, SXX, T1); half_sum(k, CS, T0)
            k.e("s_mov_b32 exec_hi, 0", f"buffer_store_dwordx4 v[{SX}:{SX+3}], v{T2}, s[20:23], s55 offen sc1",
                f"buffer_store_dwordx2 v[{CS}:{CS+1}], v{T3}, s[20:23], s56 offen sc1", "s_mov_b64 exec, -1")
            vm.add("st", 2)
        if j == 6:
            k.e(f"v_mul_u32_u24 v{PX}, 10240, v{H}", f"v_lshl_add_u32 v{PX}, v{TK}, 4, v{PX}", f"v_lshrrev_b32 v{PW}, 1, v{PX}",
                "s_add_u32 s6, s4, 4096", "s_add_u32 s7, s4, 8192", "s_add_u32 s8, s5, 4096")
        issue_to(8 * (j + 1) + CP)
        if j == 9:
            partials(); vm.add("pt", 10)
        k.e(vm.wait(j), "s_barrier")
    misc_init(k)
    k.e("s_mov_b32 s61, 0")
    k.label("pt_chk")
    k.e("s_waitcnt vmcnt(0)")
    k.e(f"v_xor_b32 v{T0}, s{TAG}, v{D+1}")
    for i in range(1, 15, 2):
        k.e(f"v_xor_b32 v{T1}, s{TAG}, v{D+1+2*i}", f"v_xor_b32 v9, s{TAG}, v{D+3+2*i}", f"v_or3_b32 v{T0}, v{T0}, v{T1}, v9")
    k.e(f"v_cmp_ne_u32 vcc, 0, v{T0}", "s_add_u32 s61, s61, 1", f"s_cbranch_vccz {k.lab('pt_ok')}", f"s_cmp_gt_u32 s61, {SPIN_MAX}", f"s_cbranch_scc1 {k.lab('pt_ok')}")
    partials()
    k.e(f"s_branch {k.lab('pt_chk')}")
    k.label("pt_ok")
    stamp(k, 3)
    if opt("w13a"):
        k.e("s_lshl_b32 s54, s2, 2", "s_add_u32 s54, s54, s31", "s_lshl_b32 s54, s54, 11")
        for m in (KW1, KW3):
            srd(k, 16, m, 640 * 3072)
            for i in range(2): k.e(f"buffer_load_dwordx4 v[84:87], v{L16}, s[16:19], s54 offen offset:{1024*i} ; dummy")
    for i in range(1, 5):
        k.e(f"v_add_f32 v{D}, v{D}, v{D+4*i}", f"v_add_f32 v{D+2}, v{D+2}, v{D+4*i+2}", f"v_add_f32 v{D+20}, v{D+20}, v{D+20+2*i}")
    half_sum(k, D, T0); half_sum(k, D + 2, T1); half_sum(k, D + 20, T2)
    ln_stats(k, D, D + 2, T0, T1, D + 4, D + 5)
    split3(k, D + 20, D + 12, D + 13, T0, T1)
    k.e("s_cmp_lt_u32 s25, 5", f"s_cselect_b32 s52, {f32(CSC)}, {f32(1.0)}", f"v_mul_f32 v{D+5}, s52, v{D+5}",
        f"v_cvt_pk_bf16_f32 v{D+4}, -v{D+4}, -v{D+4}",
        "s_lshl_b32 s52, s31, 7", f"s_add_u32 s52, s52, {MISC}", f"v_lshl_add_u32 v{T0}, v{TK}, 2, s52",
        "s_lshl_b32 s52, s31, 8", f"s_add_u32 s52, s52, {MISC+1024}", f"v_lshl_add_u32 v{T1}, v{TK}, 3, s52",
        f"ds_write_b32 v{T0}, v{D+4}", f"ds_write_b32 v{T0}, v{D+5} offset:512", f"ds_write_b64 v{T1}, v[{D+12}:{D+13}]",
        "s_waitcnt lgkmcnt(0)", "s_barrier")
    stamp(k, 4)
    if UPTO == "A": k.e("s_barrier")

def build():
    k = Kern("mega_kernel", 256, 512, 163840, nvgpr=256, nsgpr=100)
    k.e("s_cmp_ge_u32 s2, 256", f"s_cbranch_scc1 {k.lab('end')}")
    if STAMP:
        k.e("s_memtime s[62:63]", "s_waitcnt lgkmcnt(0)", "s_mov_b32 s94, s62")
        for i in range(1, 30): k.e(f"s_mov_b32 s{64+i}, 0")
    stamp(k, 0)
    k.e("s_load_dwordx16 s[32:47], s[0:1], 0", "s_load_dwordx4 s[48:51], s[0:1], 64")
    k.e(f"v_lshrrev_b32 v{T0}, 6, v0", f"v_and_b32 v{L}, 63, v0", f"v_readfirstlane_b32 s24, v{T0}",
        f"v_lshlrev_b32 v{L16}, 4, v{L}", f"v_lshrrev_b32 v{H}, 5, v{L}", f"v_and_b32 v{TK}, 31, v{L}")
    a_map(k)
    k.e("s_waitcnt lgkmcnt(0)")
    WOFF = int(([a[6:] for a in sys.argv if a.startswith("-woff=")] + ["0"])[0]) << 20
    if WOFF: k.e(f"s_add_u32 s{KWS}, s{KWS}, {WOFF}", f"s_addc_u32 s{KWS+1}, s{KWS+1}, 0")
    srd(k, 20, KWS, WS_SRD); srd(k, 12, KX, X_BYTES)
    k.e("s_cmp_ge_u32 s2, 240", f"s_cbranch_scc1 {k.lab('spare')}")
    k.e("s_cmp_lt_u32 s24, 4", f"s_cbranch_scc1 {k.lab('compute')}")
    a_loader(k)
    k.e(f"s_branch {k.lab('a_done')}")
    k.label("spare")
    spare(k)
    k.e(f"s_branch {k.lab('a_done')}")
    k.label("compute")
    if not opt("nocf"): code_touch(k, 1, 256)
    k.e(f"v_lshlrev_b32 v{T0}, 6, v{L}", "s_mul_i32 s54, s2, 704", f"s_min_u32 s54, s54, {163840-704}", f"s_add_u32 s54, s54, {WS_FB}", "s_mov_b64 exec, 0x7ff",
        f"buffer_load_dword v9, v{T0}, s[20:23], s54 offen sc1 ; dummy", "s_mov_b64 exec, -1")
    a_compute(k)
    k.label("a_done")
    if UPTO != "A":
        import phases
        phases.rest(k)
    k.label("fin")
    stamp_out(k)
    k.label("end")
    k.e("s_endpgm")
    return k

HEADER = open("cdna_kernels/" + NAME + ".s.ref").read().split("; Override launch geometry")[0].rstrip()

if __name__ == "__main__":
    sys.modules["gen2"] = sys.modules["__main__"]
    out = sys.argv[1] if len(sys.argv) > 1 and not sys.argv[1].startswith("-") else "cdna_kernels/" + NAME + ".s"
    n = write_file(out, [build()], HEADER, verbose="-v" in sys.argv)
    print("errors:", n)
```

```python
import sys, struct
from asmlib import *
from qktab import tables

NAME = "sequential_preLN__sliding_block__glu_gated_swiglu__prompt"
WS_QK = 0
WS_V = 5242880
WS_O = 7864320
WS_H = 10485760
WS_A = 13107200
WS_HST = 19398656
WS_CS = WS_HST + 262144
WS_XST = WS_CS + 245760
WS_WST = WS_XST + 327680
WS_FB = WS_WST + 153600
WS_FC = WS_FB + 65536
WS_FD = WS_FC + 32768
WS_FE = WS_FD + 32768
WS_EP = WS_FE + 32768
WS_END = WS_EP + 128
X_BYTES = 2048 * 1280
SPIN_MAX = 40000 if not any(a in sys.argv for a in ('-xrot', '-norot_a')) else 20

def f32(x): return "0x%08x" % struct.unpack("<I", struct.pack("<f", x))[0]
ONES = "0x3f803f80"
NEGBIG = f32(-1e30)
CSC = (20 ** -0.5) * 1.4426950408889634

STAMP = "-stamp" in sys.argv
UPTO = ([a[6:] for a in sys.argv if a.startswith("-upto=")] + ["E"])[0]
WS_STAMP = 64 << 20
WS_SRD = (1 << 28) if STAMP else WS_END
def opt(name): return ("-" + name) in sys.argv

L, L16, H, TK, T0, T1, T2, T3 = 1, 2, 3, 4, 5, 6, 7, 8
HRES = 10
KX, KWQKV, KWO, KW1, KW3, KW2, KOUT, KWS = 32, 34, 36, 40, 42, 44, 46, 50
TAG = 3

class VM:
    def __init__(s): s.q = []
    def add(s, tag, n=1): s.q += [tag] * n
    def wait(s, tag):
        if tag not in s.q: return "s_nop 0"
        idx = max(i for i, t in enumerate(s.q) if t == tag)
        n = len(s.q) - 1 - idx
        s.q = s.q[idx + 1:]
        assert n <= 63
        return f"s_waitcnt vmcnt({n})"

NST = [0]
DST = ([a[5:] for a in sys.argv if a.startswith("-dst=")] + [""])[0]
def dstamp(k, ph, i):
    if DST == ph: stamp(k, i, True)
ECHO = [tuple(map(int, a[6:].split(":"))) for a in sys.argv if a.startswith("-echo=")]
def stamp(k, i, force=False):
    if ECHO:
        if i in ECHO[0] or i == 29: k.e("s_memrealtime s[62:63]", "s_waitcnt lgkmcnt(0)", f"s_mov_b32 s{64+i}, s62")
        return
    if DST and 1 <= i <= 17 and not force: return
    if STAMP:
        k.e("s_memrealtime s[62:63]", "s_waitcnt lgkmcnt(0)", f"s_mov_b32 s{64+i}, s62")
def stamp_out(k):
    if ECHO:
        i, j = ECHO[0][:2]; wv = ECHO[0][2] if len(ECHO[0]) > 2 else 808
        k.e("s_lshl_b32 s62, s2, 3", "s_add_u32 s62, s62, s24", f"s_cmp_lg_u32 s62, {wv}", f"s_cbranch_scc1 {k.lab('end')}")
        k.e("s_waitcnt vmcnt(0)")
        stamp(k, 29)
        k.e(f"s_sub_u32 s60, s{64+j}, s{64+i}", "s_min_u32 s60, s60, 10000", "s_lshl_b32 s60, s60, 2")
        k.label("echo")
        k.e("s_memrealtime s[62:63]", "s_waitcnt lgkmcnt(0)", "s_sub_u32 s62, s62, s93", "s_cmp_lt_u32 s62, s60", f"s_cbranch_scc1 {k.lab('echo')}")
        return
    if not STAMP: return
    k.e("s_waitcnt vmcnt(0)")
    stamp(k, 29)
    k.e("s_memtime s[62:63]", "s_waitcnt lgkmcnt(0)", "s_mov_b32 s95, s62")
    k.e("s_mov_b64 exec, 1", "s_lshl_b32 s62, s2, 3", "s_add_u32 s62, s62, s24", "s_lshl_b32 s62, s62, 7", f"s_add_u32 s62, s62, {WS_STAMP}")
    k.e("v_mov_b32 v0, 0")
    for i in range(32):
        k.e(f"v_mov_b32 v1, s{64+i}", f"buffer_store_dword v1, v0, s[20:23], s62 offen offset:{4*i}")
    if opt("dbg"):
        k.e("s_lshl_b32 s62, s2, 3", "s_add_u32 s62, s62, s24", "s_cmp_lg_u32 s62, 800", f"s_cbranch_scc1 {k.lab('end')}")
        srd(k, 16, 48, 256)
        for n, i in enumerate((1, 2, 3, 6, 8, 9, 12, 13, 17, 18, 19, 20, 22, 23, 25, 29)):
            k.e(f"s_sub_u32 s62, s{64+i}, s64", "v_mov_b32 v1, s62", f"buffer_store_dword v1, v0, s[16:19], 0 offen offset:{4*n}")

def srd(k, d, base, size):
    k.e(f"s_mov_b32 s{d}, s{base}", f"s_mov_b32 s{d+1}, s{base+1}", f"s_mov_b32 s{d+2}, {size}", f"s_mov_b32 s{d+3}, 0x20000")

def ln_stats(k, sx, sxx, t0, t1, Mout, Rout, SD=None):
    k.e(f"v_mul_f32 v{sx}, {f32(1/640)}, v{sx}")
    k.e(f"v_mul_f32 v{sxx}, {f32(1/640)}, v{sxx}")
    k.e(f"v_fma_f32 v{t0}, -v{sx}, v{sx}, v{sxx}")
    k.e(f"v_max_f32 v{t0}, 0, v{t0}")
    k.e(f"v_cvt_pk_bf16_f32 v{t1}, v{sx}, v{t0}")
    k.e(f"v_lshlrev_b32 v{Mout}, 16, v{t1}")
    k.e(f"v_and_b32 v{t0}, 0xffff0000, v{t1}")
    k.e(f"v_add_f32 v{t0}, {f32(1e-5)}, v{t0}")
    k.e(f"v_cvt_pk_bf16_f32 v{t0}, v{t0}, v{t0}")
    k.e(f"v_lshlrev_b32 v{t0}, 16, v{t0}")
    k.e(f"v_sqrt_f32 v{t0}, v{t0}")
    k.e(f"v_cvt_pk_bf16_f32 v{t0}, v{t0}, v{t0}")
    k.e(f"v_lshlrev_b32 v{t0}, 16, v{t0}")
    if SD is not None: k.e(f"v_mov_b32 v{SD}, v{t0}")
    k.e(f"v_rcp_f32 v{Rout}, v{t0}")

def half_sum(k, x, t):
    k.e(f"v_mov_b32 v{t}, v{x}", f"v_permlane32_swap_b32 v{t}, v{x}", f"v_add_f32 v{x}, v{t}, v{x}")

def split3(k, cs, d0, d1, t0, t1, neg=False):
    n = "-" if neg else ""
    k.e(f"v_cvt_pk_bf16_f32 v{t0}, v{cs}, v{cs}")
    k.e(f"v_lshlrev_b32 v{t0}, 16, v{t0}")
    k.e(f"v_sub_f32 v{t0}, v{cs}, v{t0}")
    k.e(f"v_cvt_pk_bf16_f32 v{t1}, v{t0}, v{t0}")
    k.e(f"v_cvt_pk_bf16_f32 v{d0}, {n}v{cs}, {n}v{t0}")
    k.e(f"v_lshlrev_b32 v{t1}, 16, v{t1}")
    k.e(f"v_sub_f32 v{t0}, v{t0}, v{t1}")
    k.e(f"v_cvt_pk_bf16_f32 v{d1}, {n}v{t0}, 0")

uid = [0]
def poll(k, vaddr, soff, vd, mask_lo, mask_hi, x4=False, preloaded=False):
    uid[0] += 1
    lp, dn = f"pl{uid[0]}", f"pd{uid[0]}"
    k.e(f"s_mov_b32 exec_lo, {mask_lo}", f"s_mov_b32 exec_hi, {mask_hi}", "s_mov_b32 s61, 0")
    ld = f"buffer_load_dwordx4 v[{vd}:{vd+3}], v{vaddr}, s[20:23], {soff} offen sc1" if x4 else f"buffer_load_dword v{vd}, v{vaddr}, s[20:23], {soff} offen sc1"
    def chk():
        if x4:
            k.e(f"v_xor_b32 v{vd}, s{TAG}, v{vd}", f"v_xor_b32 v{vd+1}, s{TAG}, v{vd+1}", f"v_xor_b32 v{vd+2}, s{TAG}, v{vd+2}", f"v_xor_b32 v{vd+3}, s{TAG}, v{vd+3}",
                f"v_or3_b32 v{vd}, v{vd}, v{vd+1}, v{vd+2}", f"v_or_b32 v{vd}, v{vd}, v{vd+3}", f"v_cmp_ne_u32 vcc, 0, v{vd}")
        else:
            k.e(f"v_cmp_ne_u32 vcc, s{TAG}, v{vd}")
    if preloaded:
        chk()
        k.e("s_nop 1", f"s_cbranch_vccz {k.lab(dn)}")
    k.label(lp)
    k.e(ld, "s_waitcnt vmcnt(0)")
    chk()
    k.e("s_add_u32 s61, s61, 1", f"s_cbranch_vccz {k.lab(dn)}", f"s_cmp_lt_u32 s61, {SPIN_MAX}", f"s_cbranch_scc1 {k.lab(lp)}")
    k.label(dn)
    k.e("s_mov_b64 exec, -1")

MISC = 106496

def a_map(k):
    k.e("s_and_b32 s52, s2, 7", "s_lshr_b32 s53, s2, 3",
        "s_and_b32 s54, s52, 1", "s_mul_i32 s54, s54, 30", "s_add_u32 s54, s54, s53",
        "s_lshr_b32 s25, s54, 2",
        "s_and_b32 s54, s54, 3", "s_lshr_b32 s52, s52, 1", "s_lshl_b32 s55, s52, 2", "s_add_u32 s26, s55, s54",
        "s_mul_i32 s54, s54, 5", "s_add_u32 s54, s54, 1", "s_lshr_b32 s54, s54, 1", "s_add_u32 s54, s54, s52",
        "s_add_u32 s27, s54, s25",
        "s_cmp_ge_u32 s27, 20", "s_cselect_b32 s54, 20, 0", "s_sub_u32 s27, s27, s54",
        "s_cmp_ge_u32 s27, 10", "s_cselect_b32 s54, 10, 0", "s_sub_u32 s27, s27, s54")
    if opt("norot_a"): k.e("s_mov_b32 s27, 0")
    if opt("xrot"):
        k.e("s_mul_i32 s54, s52, 5", "s_add_u32 s54, s54, 1", "s_lshr_b32 s54, s54, 1", "s_and_b32 s27, s2, 1", "s_mul_i32 s27, s27, 5", "s_add_u32 s27, s27, s54",
            "s_cmp_ge_u32 s27, 10", "s_cselect_b32 s54, 10, 0", "s_sub_u32 s27, s27, s54")

def a_table(k, wj_sgpr, pref):
    T = tables()
    k.e("s_cmp_ge_u32 s25, 5", "s_cselect_b32 s52, 5, 0", "s_sub_u32 s52, s25, s52", "s_min_u32 s52, s52, 5",
        "s_lshl_b32 s52, s52, 1", f"s_add_u32 s52, s52, s{wj_sgpr}")
    for i in range(12):
        p, wj = divmod(i, 2)
        if i < 11: k.e(f"s_cmp_lg_u32 s52, {i}", f"s_cbranch_scc1 {k.lab(f'{pref}{i+1}')}")
        for f in range(2):
            ch, R = T[p][2 * wj + f]
            b = [8 * c for c in ch]
            lo = b[0] | b[1] << 8 | b[2] << 16 | b[3] << 24
            hi = b[4] | b[5] << 8 | b[6] << 16 | b[7] << 24
            rr = R[0] | R[1] << 8 | R[2] << 16 | R[3] << 24
            k.e(f"s_mov_b32 s{54+3*f}, {lo:#x}", f"s_mov_b32 s{55+3*f}, {hi:#x}", f"s_mov_b32 s{56+3*f}, {rr:#x}")
        if i < 11:
            k.e(f"s_branch {k.lab(pref + 'd')}")
            k.label(f"{pref}{i+1}")
    k.label(pref + "d")

def a_waddr(k, d, lo, hi):
    k.e(f"v_bfe_u32 v{T0}, v{L}, 2, 2",
        f"v_bfe_u32 v{T1}, v{L}, 4, 1", f"v_cmp_eq_u32 vcc, 1, v{T1}",
        f"v_mov_b32 v{T1}, s{lo}", f"v_mov_b32 v{T2}, s{hi}", f"v_cndmask_b32 v{T1}, v{T1}, v{T2}, vcc",
        f"v_and_b32 v{T2}, 3, v{L}", f"v_lshlrev_b32 v{T2}, 3, v{T2}", f"v_bfe_u32 v{T1}, v{T1}, v{T2}, 8",
        f"v_lshlrev_b32 v{T2}, 6, v{T0}", f"v_xor_b32 v{T1}, v{T1}, v{T2}",
        f"v_lshl_add_u32 v{T0}, v{H}, 3, v{T0}", f"v_lshl_add_u32 v{d}, v{T0}, 8, v{T1}")

def a_xaddr(k, d, rowbase_sgpr):
    k.e(f"v_lshlrev_b32 v{T0}, 7, v{TK}", f"v_add_u32 v{T0}, s{rowbase_sgpr}, v{T0}",
        f"v_bfe_u32 v{T1}, v{TK}, 1, 3", f"v_xor_b32 v{T1}, v{T1}, v{H}")
    for ks in range(4):
        k.e(f"v_xor_b32 v{T2}, {2*ks}, v{T1}", f"v_lshl_add_u32 v{d+ks}, v{T2}, 4, v{T0}")

def a_compute(k):
    AX, AW = 16, 24
    AST = 28
    ACC = 64; FR = 128; EX = 176
    k.e("s_lshr_b32 s28, s24, 1", "s_and_b32 s29, s24, 1")
    a_table(k, 29, "ct")
    k.e("s_lshl_b32 s52, s28, 13")
    a_xaddr(k, AX, 52)
    for i in range(4): k.e(f"v_add_u32 v{AX+4+i}, 65536, v{AX+i}")
    a_waddr(k, AW, 54, 55); a_waddr(k, AW + 1, 57, 58)
    for i in range(2): k.e(f"v_add_u32 v{AW+2+i}, 65536, v{AW+i}")
    k.e("s_lshl_b32 s52, s26, 2", "s_lshl_b32 s53, s28, 1", "s_add_u32 s52, s52, s53")

    PW = int(([a[4:] for a in sys.argv if a.startswith("-pw=")] + ["0"])[0])
    PWS = int(([a[5:] for a in sys.argv if a.startswith("-pws=")] + ["1"])[0])
    k.e("s_lshl_b32 s60, s25, 2", "s_add_u32 s60, s60, s24", "s_mul_i32 s60, s60, 3", "s_min_u32 s60, s60, 157", "s_lshl_b32 s60, s60, 10",
        "s_mul_i32 s53, s26, 163840", "s_add_u32 s60, s60, s53", f"s_add_u32 s60, s60, {WS_O}")
    def reads(g):
        st, ks = divmod(g, 4)
        sl = st % 4; S = sl // 2; ob = (sl % 2) * 32768
        b = FR + 16 * (g % 3)
        o = []
        for t in range(2):
            o.append(f"ds_read_b128 v[{b+4*t}:{b+4*t+3}], v{AX+4*S+ks} offset:{ob+4096*t}")
        for f in range(2):
            for u in range(2):
                o.append(f"ds_read_b64_tr_b16 v[{b+8+4*f+2*u}:{b+8+4*f+2*u+1}], v{AW+2*S+f} offset:{ob+16384+ks*4096+u*1024}")
        return o

    def mainloop(vmode):
        if PW >= 40:
            for n in range(8): k.e(f"buffer_store_dwordx4 v[16:19], v{AST+(n&3)}, s[20:23], s{30+(n>>2)} offen sc1")
        stamp(k, 1)
        k.e("s_barrier")
        stamp(k, 2)
        k.e(*reads(0)); k.e(*reads(1))
        for g in range(40):
            b = FR + 16 * (g % 3)
            fill = []
            if g % 4 == 2 and g // 4 + 1 <= 9:
                k.e("s_waitcnt lgkmcnt(0)", "s_barrier")
            else:
                k.e(f"s_waitcnt lgkmcnt({6 if g + 1 < 40 else 0})")
            if g + 2 < 40: fill += reads(g + 2)
            if PW and g >= PW and (g - PW) % PWS == 0 and (g - PW) // PWS < 8:
                n = (g - PW) // PWS
                if opt("pr"): fill.append(f"buffer_load_dwordx4 v[200:203], v{AST+(n&3)}, s[20:23], s{30+(n>>2)} offen sc1 ; dummy")
                else: fill.append(f"buffer_store_dwordx4 v[16:19], v{AST+(n&3)}, s[20:23], s{30+(n>>2)} offen sc1")
            if PW and opt("pwo") and g >= PW and (g - PW) % PWS == 0 and 8 <= (g - PW) // PWS < 11:
                fill.append(f"buffer_store_dwordx4 v[16:19], v{L16}, s[20:23], s60 offen offset:{1024*((g-PW)//PWS-8)} sc1")
            mf = []
            for t in range(2):
                for f in range(2):
                    d = ACC + 32 * t + 16 * f
                    xa, wa = v(b + 4 * t, 4), v(b + 8 + 4 * f, 4)
                    A, B = (xa, wa) if vmode else (wa, xa)
                    c = "0" if g == 0 else v(d, 16)
                    mf.append(f"v_mfma_f32_32x32x16_bf16 {v(d,16)}, {A}, {B}, {c}")
            k.e(*interleave(mf, fill))
        stamp(k, 3)
        XO, WO, R = EX, EX + 8, EX + 16
        RD = FR
        k.e("s_lshl_b32 s53, s28, 8", f"s_add_u32 s53, s53, {MISC}", f"v_lshl_add_u32 v{T0}, v{TK}, 2, s53",
            "s_lshl_b32 s54, s29, 9", f"s_add_u32 s54, s54, {MISC+1024}", f"v_lshl_add_u32 v{T1}, v{TK}, 3, s54",
            f"v_lshl_add_u32 v{T2}, v{H}, 4, s53", f"v_mov_b32 v{T3}, {MISC}")
        for r in (XO+2, XO+3, XO+6, XO+7, WO+2, WO+3, WO+6, WO+7): k.e(f"v_mov_b32 v{r}, 0")
        k.e(f"v_cmp_gt_u32 vcc, 32, v{L}")
        if PW: k.e("s_waitcnt vmcnt(0)")
        k.e("s_barrier")
        stamp(k, 4)
        for t in range(2): k.e(f"ds_read_b32 v{XO+4*t}, v{T0} offset:{128*t}")
        for f in range(2): k.e(f"ds_read_b64 v[{WO+4*f}:{WO+4*f+1}], v{T1} offset:{256*f}")
        k.e(f"ds_read_b32 v{R+2}, v{T3} offset:2048")
        if vmode:
            for t in range(2):
                for q in range(4):
                    k.e(f"ds_read_b128 v[{RD+16*t+4*q}:{RD+16*t+4*q+3}], v{T2} offset:{512+128*t+32*q}")
        else:
            for t in range(2): k.e(f"ds_read_b32 v{R+t}, v{T0} offset:{512+128*t}")
        k.e(f"s_waitcnt lgkmcnt({8 if vmode else 2})")
        for t in range(2):
            k.e(f"v_cndmask_b32 v{XO+4*t}, 0, v{XO+4*t}, vcc", f"v_and_b32 v{XO+4*t+1}, 0xffff, v{XO+4*t}")
        k.e(f"v_readfirstlane_b32 s{TAG}, v{R+2}")
        for t in range(2):
            for f in range(2):
                d = ACC + 32 * t + 16 * f
                xa, wa = v(XO + 4 * t, 4), v(WO + 4 * f, 4)
                A, B = (xa, wa) if vmode else (wa, xa)
                k.e(f"v_mfma_f32_32x32x16_bf16 {v(d,16)}, {A}, {B}, {v(d,16)}")
        k.e("s_waitcnt lgkmcnt(0)")
        for t in range(2):
            for f in range(2):
                d = ACC + 32 * t + 16 * f
                for r in range(0, 16, 2):
                    if vmode: k.e(f"v_pk_mul_f32 v[{d+r}:{d+r+1}], v[{d+r}:{d+r+1}], v[{RD+16*t+r}:{RD+16*t+r+1}]")
                    else: k.e(f"v_pk_mul_f32 v[{d+r}:{d+r+1}], v[{d+r}:{d+r+1}], v[{R}:{R+1}] op_sel:[0,{t}] op_sel_hi:[1,{t}]")
                for j in range(8):
                    k.e(f"v_cvt_pk_bf16_f32 v{d+j}, v{d+2*j}, v{d+2*j+1}")
                for u in range(2):
                    k.e(f"buffer_store_dwordx4 v[{d+4*u}:{d+4*u+3}], v{AST+2*f+u}, s[20:23], s{30+t} offen sc1")
        k.e(f"s_branch {k.lab('a_pub')}")

    k.e("s_cmp_ge_u32 s25, 10", f"s_cbranch_scc1 {k.lab('vpath')}")
    k.e("s_cmp_ge_u32 s25, 5", f"s_cselect_b32 s53, {80*32768}, 0", "s_lshl_b32 s30, s52, 9", "s_add_u32 s30, s30, s53", "s_add_u32 s31, s30, 512")
    k.e(f"v_lshlrev_b32 v{T0}, 3, v{H}", f"v_lshlrev_b32 v{T1}, 4, v{TK}")
    for f in range(2):
        for u in range(2):
            k.e(f"v_add_u32 v{T2}, {16*u}, v{T0}", f"v_bfe_u32 v{T2}, s{56+3*f}, v{T2}, 8", f"v_lshl_add_u32 v{AST+2*f+u}, v{T2}, 15, v{T1}")
    mainloop(False)
    k.label("vpath")
    k.e("s_mul_i32 s30, s52, 40960", f"s_add_u32 s30, s30, {WS_V}", "s_add_u32 s31, s30, 40960",
        "s_sub_u32 s53, s25, 10", "s_lshl_b32 s53, s53, 11", "s_lshl_b32 s54, s29, 10", "s_add_u32 s53, s53, s54",
        f"v_mul_u32_u24 v{T0}, 10240, v{H}", f"v_lshl_add_u32 v{T0}, v{TK}, 4, v{T0}", f"v_add_u32 v{AST}, s53, v{T0}",
        f"v_add_u32 v{AST+1}, 20480, v{AST}", f"v_add_u32 v{AST+2}, 512, v{AST}", f"v_add_u32 v{AST+3}, {20480+512}, v{AST}")
    mainloop(True)
    k.label("a_pub")
    stamp(k, 5)
    k.e("s_lshr_b32 s52, s26, 1", "s_lshl_b32 s53, s52, 13", "s_and_b32 s54, s26, 1", "s_add_u32 s54, s54, 2", "s_lshl_b32 s54, s54, 4",
        "s_add_u32 s54, s54, s25", "s_lshl_b32 s54, s54, 2", "s_add_u32 s53, s53, s54", f"s_add_u32 s53, s53, {WS_FB}",
        f"v_mul_u32_u24 v{T0}, {8192-128}, v{H}", f"v_lshl_add_u32 v{T0}, v{TK}, 8, v{T0}",
        f"v_mov_b32 v{T2}, s{TAG}", "s_cmp_eq_u32 s52, 7", "s_cselect_b32 s55, 0, -1", "s_cmp_lt_u32 s25, 5", "s_cselect_b32 s55, 0, s55",
        "s_cmp_ge_u32 s25, 5", "s_cselect_b32 s52, 5, 0", "s_sub_u32 s54, s25, s52", "s_cmp_ge_u32 s25, 10", "s_cselect_b32 s52, 5, 0", "s_sub_u32 s54, s54, s52",
        f"v_lshrrev_b32 v{T1}, 1, v{TK}", f"v_mul_u32_u24 v{T1}, 5, v{T1}", f"v_add_u32 v{T3}, 4, v{T1}", f"v_lshrrev_b32 v{T1}, 4, v{T1}", f"v_lshrrev_b32 v{T3}, 4, v{T3}",
        f"v_cmp_eq_u32 vcc, s54, v{T1}", f"v_cmp_eq_u32 s[56:57], s54, v{T3}", "s_or_b64 s[56:57], s[56:57], vcc", "s_and_b32 s57, s57, s55")
    k.e("s_waitcnt vmcnt(0)")
    stamp(k, 6)
    k.e("s_barrier", "s_cmp_lg_u32 s24, 0", f"s_cbranch_scc1 {k.lab('a_done')}",
        "s_mov_b64 exec, s[56:57]", f"buffer_store_dword v{T2}, v{T0}, s[20:23], s53 offen sc1", "s_mov_b64 exec, -1")

def code_touch(k, n, nthr):
    uid[0] += 1
    k.e("s_getpc_b64 s[52:53]")
    k.label(f"pc{uid[0]}")
    k.e(f"s_sub_u32 s52, s52, {k.lab(f'pc{uid[0]}')}-{k.name}", "s_subb_u32 s53, s53, 0", f"v_lshlrev_b32 v{T0}, 6, v0")
    for i in range(n):
        k.e(f"v_min_u32 v{T1}, {k.lab('end')}-{k.name}, v{T0}", f"global_load_dword v9, v{T1}, s[52:53] ; dummy")
        if i < n - 1: k.e(f"v_add_u32 v{T0}, {64*nthr}, v{T0}")
def spare(k):
    TG = 30
    tag_load(k, TG)
    TL = int(([a[5:] for a in sys.argv if a.startswith("-tlb=")] + ["0"])[0])
    if TL:
        k.e("s_bfe_u32 s54, s2, 0x10003", f"v_lshl_add_u32 v{T1}, v0, 1, s54", f"v_lshlrev_b32 v{T1}, {TL}, v{T1}")
        assert WS_END <= 1024 << TL and TL <= 21
        for m, sz in ((KWS, WS_END), (KW1, 640 * 3072), (KW3, 640 * 3072), (KOUT, X_BYTES), (KW2, 1536 * 1280)):
            srd(k, 16, m, sz)
            k.e(f"buffer_load_dword v32, v{T1}, s[16:19], 0 offen ; dummy")
    if not opt("ect"): code_touch(k, 2, 512)
    mats = [(KWO, 640 * 1280), (KW2, 1536 * 1280)] if not opt("sp13") else [(KWO, 640 * 1280), (KW1, 640 * 3072), (KW3, 640 * 3072)]
    if opt("spall"): mats = [(KWO, 640 * 1280), (KW1, 640 * 3072), (KW3, 640 * 3072), (KW2, 1536 * 1280)]
    sh = 12 if opt("touch") else 10
    k.e("s_sub_u32 s52, s2, 240", "s_lshl_b32 s52, s52, 3", "s_add_u32 s52, s52, s24", f"s_lshl_b32 s52, s52, {sh}", f"v_lshlrev_b32 v{T0}, 6, v{L}")
    for m, sz in mats:
        srd(k, 16, m, sz)
        k.e("s_mov_b32 s53, s52")
        for i in range(-(-sz // (128 << sh))):
            if opt("touch"): k.e(f"buffer_load_dword v32, v{T0}, s[16:19], s53 offen ; dummy")
            else: k.e(f"buffer_load_dwordx4 v[32:35], v{L16}, s[16:19], s53 offen ; dummy")
            k.e(f"s_add_u32 s53, s53, {128 << sh}")
    k.e("s_waitcnt vmcnt(0)")
    tag_make(k, TG)
    stamp(k, 6)

def tag_load(k, d):
    k.e(f"v_mov_b32 v{T0}, 0", f"s_mov_b32 s52, {WS_EP}", f"buffer_load_dword v{d}, v{T0}, s[20:23], s52 offen sc1")
def tag_make(k, d):
    k.e(f"v_readfirstlane_b32 s{TAG}, v{d}", f"s_add_u32 s{TAG}, s{TAG}, 0x9e3779b9")
def misc_init(k):
    k.e(f"v_mov_b32 v20, s{TAG}", f"v_mov_b32 v{T3}, {MISC}", f"ds_write_b32 v{T3}, v20 offset:2048")

def a_loader(k):
    VXO, VWO = 16, 20
    AX, AW = 24, 28
    TG, PL = 30, 31
    D = 32
    vm = VM()
    k.e("s_sub_u32 s31, s24, 4")
    tag_load(k, TG); vm.add("tag")
    srd(k, 16, KWQKV, 640 * 3840)
    k.e("s_lshl_b32 s29, s31, 12",
        "s_mul_i32 s28, s26, 163840", "s_lshl_b32 s52, s27, 7", "s_add_u32 s58, s28, s52", "s_add_u32 s28, s28, 1280",
        "s_lshl_b32 s59, s25, 8", "s_mul_i32 s52, s27, 245760", "s_add_u32 s59, s59, s52")
    k.e(f"v_lshrrev_b32 v{T0}, 3, v{L}", "s_lshl_b32 s52, s31, 5", f"v_add_u32 v{T0}, s52, v{T0}", f"v_mul_u32_u24 v{T0}, 1280, v{T0}",
        f"v_and_b32 v{T1}, 7, v{L}", f"v_lshrrev_b32 v{T2}, 4, v{L}", f"v_xor_b32 v{T1}, v{T1}, v{T2}", f"v_lshl_add_u32 v{VXO}, v{T1}, 4, v{T0}",
        f"v_xor_b32 v{T0}, 64, v{VXO}", f"v_add_u32 v{VXO+1}, {10240-1024}, v{T0}", f"v_add_u32 v{VXO+2}, {2*(10240-1024)}, v{VXO}",
        f"v_add_u32 v{VXO+3}, {3*(10240-1024)}, v{T0}")
    k.e("s_lshl_b32 s52, s31, 4", f"v_add_u32 v{T0}, s52, v{T2}", f"v_mul_u32_u24 v{T0}, 3840, v{T0}",
        f"v_and_b32 v{T1}, 15, v{L}", f"v_lshlrev_b32 v{T3}, 2, v{T2}", f"v_xor_b32 v{T1}, v{T1}, v{T3}", f"v_lshl_add_u32 v{VWO}, v{T1}, 4, v{T0}")
    for j in range(1, 4): k.e(f"v_add_u32 v{VWO+j}, {j*(15360-1024)}, v{VWO}")
    CP = int(([a[4:] for a in sys.argv if a.startswith("-cp=")] + ["12"])[0])
    nxt = [0]
    def issue_to(q):
        while nxt[0] < min(q, 80):
            st, i = divmod(nxt[0], 8)
            sl = st % 4
            if i == 0: k.e(f"s_add_u32 m0, s29, {sl*32768}")
            if i == 4: k.e(f"s_add_u32 m0, s29, {sl*32768+16384}")
            if opt("nodma") and st >= 4:
                if i == 0: k.e(f"buffer_load_dwordx4 v{VXO+i}, s[12:15], s58 offen offset:{1024*i} lds"); vm.add(st)
                nxt[0] += 1; continue
            if i < 4: k.e(f"buffer_load_dwordx4 v{VXO+i}, s[12:15], s58 offen offset:{1024*i} lds")
            else: k.e(f"buffer_load_dwordx4 v{VWO+i-4}, s[16:19], s59 offen offset:{1024*(i-4)} lds")
            vm.add(st)
            if i == 7 and st < 9:
                k.e("s_add_u32 s58, s58, 128", "s_add_u32 s59, s59, 245760", "s_cmp_ge_u32 s58, s28",
                    "s_cselect_b32 s52, 1280, 0", "s_cselect_b32 s53, 2457600, 0", "s_sub_u32 s58, s58, s52", "s_sub_u32 s59, s59, s53")
            nxt[0] += 1
    issue_to(8)
    k.e("s_mov_b32 s60, s58", "s_mov_b32 s30, s59", "s_lshr_b32 s61, s31, 1")
    a_table(k, 61, "lt")
    k.e("s_bitcmp1_b32 s31, 0", "s_cselect_b32 s54, s57, s54", "s_cselect_b32 s55, s58, s55")
    a_waddr(k, AW, 54, 55)
    a_xaddr(k, AX, 29)
    k.e("s_mov_b32 s58, s60", "s_mov_b32 s59, s30")
    k.e("s_mul_i32 s4, s26, 20480", "s_lshl_b32 s56, s31, 9", "s_add_u32 s4, s4, s56", f"s_add_u32 s4, s4, {WS_XST}",
        "s_mul_i32 s5, s25, 10240", "s_lshl_b32 s57, s31, 8", "s_add_u32 s5, s5, s57", f"s_add_u32 s5, s5, {WS_WST}",
        "s_lshl_b32 s55, s27, 11", "s_add_u32 s55, s55, s4", "s_lshl_b32 s56, s27, 10", "s_add_u32 s56, s56, s5", f"s_mov_b32 s54, {ONES}")
    issue_to(8 + CP)
    stamp(k, 1)
    k.e(vm.wait(0), "s_barrier")
    stamp(k, 2)
    tag_make(k, TG)
    for ks in range(4): k.e(f"ds_read_b128 v[{D+4*ks}:{D+4*ks+3}], v{AX+ks}")
    for ks in range(4):
        for u in range(2): k.e(f"ds_read_b64_tr_b16 v[{D+16+4*ks+2*u}:{D+16+4*ks+2*u+1}], v{AW} offset:{16384+ks*4096+u*1024}")
    SX, SXX, CS = 64, 66, 68
    k.e(f"v_mov_b32 v{SX}, 0", f"v_mov_b32 v{SXX}, 0", f"v_mov_b32 v{CS}, 0",
        f"v_mov_b32 v{SX+1}, s{TAG}", f"v_mov_b32 v{SXX+1}, s{TAG}", f"v_mov_b32 v{CS+1}, s{TAG}",
        f"v_lshlrev_b32 v{T2}, 4, v{TK}", f"v_lshlrev_b32 v{T3}, 3, v{TK}")
    issue_to(16 + CP)
    k.e("s_waitcnt lgkmcnt(0)", vm.wait(1), "s_barrier")
    PX, PW = 70, 71
    def partials():
        for i in range(5):
            k.e(f"buffer_load_dwordx4 v[{D+4*i}:{D+4*i+3}], v{PX}, s[20:23], s{(4,6,7)[i//2]} offen offset:{2048*(i%2)} sc1")
            k.e(f"buffer_load_dwordx2 v[{D+20+2*i}:{D+21+2*i}], v{PW}, s[20:23], s{(5,8)[i//4]} offen offset:{1024*(i%4)} sc1")
    for j in range(2, 10):
        if j < 6:
            for i in range(4 * (j - 2), 4 * (j - 1)):
                issue_to(8 * j + CP + 2 * (i % 4 + 1))
                k.e(f"v_lshlrev_b32 v{T0}, 16, v{D+i}", f"v_and_b32 v{D+i}, 0xffff0000, v{D+i}", f"v_lshlrev_b32 v{T1}, 16, v{D+16+i}", f"v_and_b32 v{D+16+i}, 0xffff0000, v{D+16+i}",
                    f"v_add_f32 v{SX}, v{SX}, v{T0}", f"v_fmac_f32 v{SXX}, v{T0}, v{T0}", f"v_add_f32 v{CS}, v{CS}, v{T1}",
                    f"v_add_f32 v{SX}, v{SX}, v{D+i}", f"v_fmac_f32 v{SXX}, v{D+i}, v{D+i}", f"v_add_f32 v{CS}, v{CS}, v{D+16+i}")
        if j == 5:
            half_sum(k, SX, T0); half_sum(k, SXX, T1); half_sum(k, CS, T0)
            k.e("s_mov_b32 exec_hi, 0", f"buffer_store_dwordx4 v[{SX}:{SX+3}], v{T2}, s[20:23], s55 offen sc1",
                f"buffer_store_dwordx2 v[{CS}:{CS+1}], v{T3}, s[20:23], s56 offen sc1", "s_mov_b64 exec, -1")
            vm.add("st", 2)
        if j == 6:
            k.e(f"v_mul_u32_u24 v{PX}, 10240, v{H}", f"v_lshl_add_u32 v{PX}, v{TK}, 4, v{PX}", f"v_lshrrev_b32 v{PW}, 1, v{PX}",
                "s_add_u32 s6, s4, 4096", "s_add_u32 s7, s4, 8192", "s_add_u32 s8, s5, 4096")
        issue_to(8 * (j + 1) + CP)
        if j == 9:
            partials(); vm.add("pt", 10)
        k.e(vm.wait(j), "s_barrier")
    misc_init(k)
    k.e("s_mov_b32 s61, 0")
    k.label("pt_chk")
    k.e("s_waitcnt vmcnt(0)")
    k.e(f"v_xor_b32 v{T0}, s{TAG}, v{D+1}")
    for i in range(1, 15, 2):
        k.e(f"v_xor_b32 v{T1}, s{TAG}, v{D+1+2*i}", f"v_xor_b32 v9, s{TAG}, v{D+3+2*i}", f"v_or3_b32 v{T0}, v{T0}, v{T1}, v9")
    k.e(f"v_cmp_ne_u32 vcc, 0, v{T0}", "s_add_u32 s61, s61, 1", f"s_cbranch_vccz {k.lab('pt_ok')}", f"s_cmp_gt_u32 s61, {SPIN_MAX}", f"s_cbranch_scc1 {k.lab('pt_ok')}")
    partials()
    k.e(f"s_branch {k.lab('pt_chk')}")
    k.label("pt_ok")
    stamp(k, 3)
    if opt("w13a"):
        k.e("s_lshl_b32 s54, s2, 2", "s_add_u32 s54, s54, s31", "s_lshl_b32 s54, s54, 11")
        for m in (KW1, KW3):
            srd(k, 16, m, 640 * 3072)
            for i in range(2): k.e(f"buffer_load_dwordx4 v[84:87], v{L16}, s[16:19], s54 offen offset:{1024*i} ; dummy")
    for i in range(1, 5):
        k.e(f"v_add_f32 v{D}, v{D}, v{D+4*i}", f"v_add_f32 v{D+2}, v{D+2}, v{D+4*i+2}", f"v_add_f32 v{D+20}, v{D+20}, v{D+20+2*i}")
    half_sum(k, D, T0); half_sum(k, D + 2, T1); half_sum(k, D + 20, T2)
    ln_stats(k, D, D + 2, T0, T1, D + 4, D + 5)
    split3(k, D + 20, D + 12, D + 13, T0, T1)
    k.e("s_cmp_lt_u32 s25, 5", f"s_cselect_b32 s52, {f32(CSC)}, {f32(1.0)}", f"v_mul_f32 v{D+5}, s52, v{D+5}",
        f"v_cvt_pk_bf16_f32 v{D+4}, -v{D+4}, -v{D+4}",
        "s_lshl_b32 s52, s31, 7", f"s_add_u32 s52, s52, {MISC}", f"v_lshl_add_u32 v{T0}, v{TK}, 2, s52",
        "s_lshl_b32 s52, s31, 8", f"s_add_u32 s52, s52, {MISC+1024}", f"v_lshl_add_u32 v{T1}, v{TK}, 3, s52",
        f"ds_write_b32 v{T0}, v{D+4}", f"ds_write_b32 v{T0}, v{D+5} offset:512", f"ds_write_b64 v{T1}, v[{D+12}:{D+13}]",
        "s_waitcnt lgkmcnt(0)", "s_barrier")
    stamp(k, 4)
    if UPTO == "A": k.e("s_barrier")

def build():
    k = Kern("mega_kernel", 256, 512, 163840, nvgpr=256, nsgpr=100)
    k.e("s_cmp_ge_u32 s2, 256", f"s_cbranch_scc1 {k.lab('end')}")
    if STAMP:
        k.e("s_memtime s[62:63]", "s_waitcnt lgkmcnt(0)", "s_mov_b32 s94, s62")
        for i in range(1, 30): k.e(f"s_mov_b32 s{64+i}, 0")
    stamp(k, 0)
    k.e("s_load_dwordx16 s[32:47], s[0:1], 0", "s_load_dwordx4 s[48:51], s[0:1], 64")
    if opt("ect"):
        k.e("s_bfe_u32 s54, s2, 0x30003", "s_lshl_b32 exec_lo, 0x01010101, s54", "s_mov_b32 exec_hi, exec_lo")
        code_touch(k, 2, 512)
        k.e("s_mov_b64 exec, -1")
    k.e(f"v_lshrrev_b32 v{T0}, 6, v0", f"v_and_b32 v{L}, 63, v0", f"v_readfirstlane_b32 s24, v{T0}",
        f"v_lshlrev_b32 v{L16}, 4, v{L}", f"v_lshrrev_b32 v{H}, 5, v{L}", f"v_and_b32 v{TK}, 31, v{L}")
    a_map(k)
    k.e("s_waitcnt lgkmcnt(0)")
    WOFF = int(([a[6:] for a in sys.argv if a.startswith("-woff=")] + ["0"])[0]) << 20
    if WOFF: k.e(f"s_add_u32 s{KWS}, s{KWS}, {WOFF}", f"s_addc_u32 s{KWS+1}, s{KWS+1}, 0")
    srd(k, 20, KWS, WS_SRD); srd(k, 12, KX, X_BYTES)
    k.e("s_cmp_ge_u32 s2, 240", f"s_cbranch_scc1 {k.lab('spare')}")
    k.e("s_cmp_lt_u32 s24, 4", f"s_cbranch_scc1 {k.lab('compute')}")
    a_loader(k)
    k.e(f"s_branch {k.lab('a_done')}")
    k.label("spare")
    spare(k)
    k.e(f"s_branch {k.lab('a_done')}")
    k.label("compute")
    if not opt("nocf") and not opt("ect"): code_touch(k, 1, 256)
    k.e(f"v_lshlrev_b32 v{T0}, 6, v{L}", "s_mul_i32 s54, s2, 704", f"s_min_u32 s54, s54, {163840-704}", f"s_add_u32 s54, s54, {WS_FB}", "s_mov_b64 exec, 0x7ff",
        f"buffer_load_dword v9, v{T0}, s[20:23], s54 offen sc1 ; dummy", "s_mov_b64 exec, -1")
    a_compute(k)
    k.label("a_done")
    if UPTO != "A":
        import phases
        phases.rest(k)
    k.label("fin")
    stamp_out(k)
    k.label("end")
    k.e("s_endpgm")
    return k

HEADER = open("cdna_kernels/" + NAME + ".s.ref").read().split("; Override launch geometry")[0].rstrip()

if __name__ == "__main__":
    sys.modules["gen2"] = sys.modules["__main__"]
    out = sys.argv[1] if len(sys.argv) > 1 and not sys.argv[1].startswith("-") else "cdna_kernels/" + NAME + ".s"
    n = write_file(out, [build()], HEADER, verbose="-v" in sys.argv)
    print("errors:", n)
```

```python
import sys
from asmlib import *
from gen2 import *
import gen2 as G

LK, LV, LQ, LX = 139264, 106496, 126976, 106496
SC = '' if opt('plain') else ' sc1'
ER = int(([a[4:] for a in sys.argv if a.startswith('-er=')] + ['3'])[0])

def push_flags(k, base_sgpr, vaddr, mask_lo, wave=0):
    k.e(f"v_mov_b32 v{T3}, s{TAG}", f"s_cmp_eq_u32 s24, {wave}", f"s_cselect_b32 exec_lo, {mask_lo}, 0", "s_mov_b32 exec_hi, 0",
        f"buffer_store_dword v{T3}, v{vaddr}, s[20:23], s{base_sgpr} offen sc1", "s_mov_b64 exec, -1")

WV = 88
def wv_offsets(k, d=WV, sh=0, mul=0):
    for i in range(5):
        k.e(f"v_add_u32 v{T0}, {64*i}, v{L}", f"v_mul_u32_u24 v{T1}, 6554, v{T0}", f"v_lshrrev_b32 v{T1}, 16, v{T1}")
        if mul: k.e(f"v_lshrrev_b32 v{T2}, {sh}, v{T1}", f"v_mul_u32_u24 v{T2}, {1280*mul}, v{T2}")
        k.e(f"v_mul_u32_u24 v{T1}, {1280-160}, v{T1}", f"v_lshl_add_u32 v{d+i}, v{T0}, 4, v{T1}")
        if mul: k.e(f"v_add_u32 v{d+i}, v{d+i}, v{T2}")
        if i % 4: k.e(f"v_subrev_u32 v{d+i}, {1024*(i%4)}, v{d+i}")
def step_dma(d, lds_s, soff, lds_add=0):
    o = [[f"s_add_u32 m0, s{lds_s}, {lds_add}"]] + [[] for _ in range(4)]
    o[4].append(f"s_add_u32 m0, s{lds_s}, {lds_add+4096}")
    for i in range(5): o[i].append(f"buffer_load_dwordx4 v{d+i}, s[16:19], s{soff} offen offset:{1024*(i%4)} lds")
    return o

def phase_b(k):
    AK, AKE, AV = 82, 83, 93
    VV = 20
    QM, QE = 96, 100
    KB = 36
    VB = 60
    OA, MB = 72, 76
    MX, MC = 80, 81
    DUM = 84
    O = 96
    SB = 112
    k.e("s_and_b32 s52, s2, 7", "s_lshr_b32 s53, s2, 3", "s_lshr_b32 s54, s53, 3", "s_lshl_b32 s25, s52, 2", "s_add_u32 s25, s25, s54",
        "s_and_b32 s26, s53, 7")
    k.e("s_and_b32 s31, s24, 3")
    wv_offsets(k, WV, 4, 4)
    srd(k, 16, KWO, 640 * 1280)
    k.e("s_mul_i32 s60, s26, 160", "s_add_u32 s0, s24, s26", "s_and_b32 s0, s0, 7", "s_mul_i32 s0, s0, 51200", "s_add_u32 s0, s0, s60", f"s_add_u32 s1, s0, {8*51200}",
        "s_cmp_ge_u32 s24, 3", "s_cselect_b32 s48, 2, 0", "s_add_u32 s48, s48, s24", "s_mul_i32 s48, s48, 10240")
    wo = step_dma(WV, 48, 0) + step_dma(WV, 48, 1, 5120)
    k.e("s_lshr_b32 s52, s25, 1", "s_mul_i32 s52, s52, 5", "s_and_b32 s53, s25, 1", "s_lshl_b32 s53, s53, 1", "s_add_u32 s53, s53, s52",
        "s_lshl_b32 s4, s53, 15", "s_add_u32 s5, s4, 32768", "s_add_u32 s53, s52, 4", "s_lshl_b32 s6, s53, 15",
        "s_lshr_b32 s52, s52, 4", "s_lshr_b32 s53, s53, 4", "s_lshl_b32 s52, 0x04210421, s52", "s_lshl_b32 s53, 0x04210421, s53", "s_or_b32 s30, s52, s53",
        "s_lshl_b32 s54, s26, 1", "s_add_u32 s54, s54, s31",
        "s_cmp_lt_u32 s54, 2", "s_cselect_b32 s55, 0, 2", "s_sub_u32 s54, s54, s55",
        "s_lshl_b32 s7, s54, 11", f"s_add_u32 s7, s7, {80*32768}",
        "s_lshl_b32 s8, s26, 12", "s_lshl_b32 s55, s31, 10", "s_add_u32 s8, s8, s55",
        "s_mul_i32 s9, s54, 163840", "s_mul_i32 s55, s25, 320", "s_add_u32 s9, s9, s55", f"s_add_u32 s9, s9, {WS_V}",
        "s_lshl_b32 s10, s26, 13", "s_lshl_b32 s55, s25, 8", "s_add_u32 s10, s10, s55", f"s_add_u32 s10, s10, {WS_FB}",
        "s_cmp_eq_u32 s26, 0", "s_cselect_b32 s11, 0, 0x7fe07fe0", "s_and_b32 s11, s11, s30")
    k.e("s_lshl_b32 s52, s24, 9", f"s_add_u32 s53, s52, {LK}", f"v_lshl_add_u32 v{AKE}, v{TK}, 4, s53", f"v_lshl_add_u32 v{AK}, v{H}, 13, v{AKE}",
        "s_mul_i32 s53, s24, 1280", f"s_add_u32 s53, s53, {LV}", f"v_mul_u32_u24 v{T1}, 320, v{H}", f"v_lshl_add_u32 v{T1}, v{TK}, 4, v{T1}", f"v_add_u32 v{AV}, s53, v{T1}",
        f"s_add_u32 s53, s52, {LQ}", f"v_lshl_add_u32 v{MX}, v{TK}, 4, s53", f"v_lshl_add_u32 v{MC}, v{H}, 12, v{MX}")
    k.e("s_lshl_b32 s27, s26, 3", "s_add_u32 s27, s27, s24")
    def s_init():
        k.e(f"v_lshlrev_b32 v{T1}, 2, v{H}", f"v_sub_u32 v{T1}, v{TK}, v{T1}", f"v_mov_b32 v{T2}, {NEGBIG}",
            "s_cmp_ge_u32 s27, 8", f"s_cselect_b32 s55, 0, {NEGBIG}", f"v_mov_b32 v{T3}, s55")
        for r in range(16):
            kk = (r & 3) + 8 * (r >> 2)
            k.e(f"v_cmp_le_i32 vcc, {kk}, v{T1}", f"v_cndmask_b32_e64 v{SB+128+r}, v{T2}, 0, vcc", f"v_cndmask_b32 v{SB+r}, v{T3}, v{T2}, vcc")
        for i in range(1, 8):
            k.e(f"s_cmp_ge_u32 s27, {8-i}", f"s_cselect_b32 s54, 0, {NEGBIG}", "s_mov_b32 s55, s54")
            for r in range(0, 16, 2): k.e(f"v_mov_b64 {v(SB+16*i+r,2)}, s[54:55]")
        k.e(f"s_mov_b32 s54, {ONES}", f"s_mov_b32 s55, {ONES}")
        for r in range(0, 12, 2): k.e(f"v_mov_b64 {v(VB+r,2)}, s[54:55]")
        k.e(f"v_mov_b32 v{OA}, {ONES}", f"v_mov_b32 v{OA+1}, 0x3f80", f"v_mov_b64 {v(OA+2,2)}, 0", f"v_mov_b64 {v(MB+2,2)}, 0")
        d_map(k); d_wsetup(k)
    k.e("s_bitcmp1_b32 s25, 0", "s_cselect_b32 s28, 0, -1", "s_cselect_b32 s56, -1, 0", "s_mov_b32 s29, 0", "s_mov_b32 s57, 0",
        "s_mov_b32 s58, 0x000fffff", "s_mov_b32 s59, 0x000fffff")
    k.e("s_cmp_lt_u32 s24, 4", f"s_cbranch_scc1 {k.lab('b_k')}")
    k.e(f"v_and_b32 v{T0}, 15, v{L}", f"v_mul_u32_u24 v{T0}, 1280, v{T0}", f"v_lshrrev_b32 v{T1}, 4, v{L}", f"v_lshl_add_u32 v{T0}, v{T1}, 3, v{T0}",
        "s_lshl_b32 s52, s25, 2", "s_add_u32 s52, s52, s31", "s_mul_i32 s52, s52, 20480", "s_add_u32 s52, s52, s60")
    for f in range(5): k.e(f"buffer_load_dwordx2 {v(HRES+2*f,2)}, v{T0}, s[12:15], s52 offen offset:{32*f}")
    for i in range(5):
        k.e(f"v_add_u32 v{T0}, {64*i}, v{L}", f"v_mul_u32_u24 v{T1}, 3277, v{T0}", f"v_lshrrev_b32 v{T1}, 16, v{T1}",
            f"v_mul_u32_u24 v{T1}, {10240-320}, v{T1}", f"v_lshl_add_u32 v{VV+i}, v{T0}, 4, v{T1}")
        if i % 4: k.e(f"v_subrev_u32 v{VV+i}, {1024*(i%4)}, v{VV+i}")
    s_init()
    k.e("s_lshl_b32 s53, s31, 10")
    k.e("s_cmp_ge_u32 s2, 240", f"s_cbranch_scc1 {k.lab('b_sp')}", "s_barrier")
    k.label("b_sp")
    stamp(k, 8)
    k.e("s_cmp_lg_u32 s24, 4", f"s_cbranch_scc1 {k.lab('b_np')}", f"v_lshlrev_b32 v{T2}, 2, v{L}")
    poll(k, T2, "s10", T0, "s11", "s30")
    k.label("b_np")
    k.e("s_barrier")
    stamp(k, 7)
    for p_ in range(3):
        k.e(f"s_add_u32 m0, s53, {LQ+4096*p_}", f"s_add_u32 s54, s{4+p_}, s8", f"buffer_load_dwordx4 v{L16}, s[20:23], s54 offen{SC} lds")
    k.e("s_mul_i32 s52, s31, 5120", f"s_add_u32 m0, s52, {LV}")
    for i in range(5):
        if i == 4: k.e(f"s_add_u32 m0, s52, {LV+4096}")
        k.e(f"buffer_load_dwordx4 v{VV+i}, s[20:23], s9 offen offset:{1024*(i%4)}{SC} lds")
    k.e("s_waitcnt vmcnt(5)", f"s_branch {k.lab('b_go')}")
    k.label("b_k")
    wv_offsets(k, VV, 2, 16)
    k.e("s_mul_i32 s9, s31, 204800", "s_add_u32 s9, s9, s60", "s_add_u32 s9, s9, 20480", "s_and_b32 s8, s31, 1", "s_lshl_b32 s8, s8, 1", "s_lshr_b32 s10, s31, 1",
        "s_add_u32 s8, s8, s10", "s_mul_i32 s8, s8, 5120", "s_lshl_b32 s52, s31, 11")
    for r in range(0, 10, 2): k.e(f"v_mov_b64 {v(HRES+r,2)}, 0")
    stamp(k, 8)
    k.e("s_barrier")
    stamp(k, 7)
    for p_ in range(3):
        k.e(f"s_add_u32 m0, s52, {LK+8192*p_}", f"s_add_u32 s54, s{4+p_}, s7", f"buffer_load_dwordx4 v{L16}, s[20:23], s54 offen{SC} lds",
            f"buffer_load_dwordx4 v{L16}, s[20:23], s54 offen offset:1024{SC} lds")
    s_init()
    for x in step_dma(VV, 8, 9, 6 * 5120): k.e(*x)
    k.e("s_waitcnt vmcnt(5)")
    k.label("b_go")
    k.e("s_barrier")
    stamp(k, 9)
    def kread(i):
        b = KB + 8 * (i % 3)
        return [f"ds_read_b128 v[{b}:{b+3}], v{AK} offset:{512*i}", f"ds_read_b128 v[{b+4}:{b+7}], v{AKE} offset:{512*i+16384}"]
    def vread(n):
        b = VB + 4 * (n % 3)
        return ["s_mov_b64 exec, s[58:59]", f"ds_read_b128 v[{b}:{b+3}], v{AV} offset:{640*n}", "s_mov_b64 exec, -1"]
    def maxops(i):
        sb = SB + 16 * i
        o = []
        if i == 0:
            o.append(f"v_max_f32 v{MX}, v{sb}, v{sb+1}"); o.append(f"v_max_f32 v{MC}, v{sb+2}, v{sb+3}")
            rs = list(range(4, 16))
        else: rs = list(range(16))
        for j in range(0, len(rs), 2):
            d = MX if (j // 2) % 2 == 0 else MC
            o.append(f"v_max3_f32 v{d}, v{sb+rs[j]}, v{sb+rs[j+1]}, v{d}")
        return o
    k.e(f"ds_read_b128 v[{QM}:{QM+3}], v{MC}", f"ds_read_b128 v[{QE}:{QE+3}], v{MX} offset:8192")
    k.e(*kread(0)); k.e(*kread(1))
    k.e("s_waitcnt lgkmcnt(4)")
    k.e(f"v_cndmask_b32_e64 v{QE}, 0, v{QE}, s[28:29]", f"v_cndmask_b32_e64 v{QE+1}, 0, v{QE+1}, s[28:29]",
        f"v_cndmask_b32_e64 v{QE+2}, 0, v{QE+2}, s[56:57]", f"v_cndmask_b32_e64 v{QE+3}, 0, v{QE+3}, s[56:57]")
    WQ = [2, 5, 8]; WS_ = [0, 2, 4, 6, 8, 10, 12]
    if opt("wo2"): WQ = []; WS_ = [0, 1, 3, 4, 6, 7, 9, 10, 12, 13]
    for i in range(9):
        b = KB + 8 * (i % 3); sb = SB + 16 * i
        k.e(f"s_waitcnt lgkmcnt({2 if i < 8 else 0})")
        mf = [f"v_mfma_f32_32x32x16_bf16 {v(sb,16)}, {v(b,4)}, {v(QM,4)}, {v(sb,16)}",
              f"v_mfma_f32_32x32x16_bf16 {v(sb,16)}, {v(b+4,4)}, {v(QE,4)}, {v(sb,16)}"]
        fill = []
        if i + 2 < 9: fill += kread(i + 2)
        if i >= 2: fill += maxops(i - 2)
        if i in WQ: fill.append(wo[WQ.index(i)])
        k.e(*interleave(mf, fill))
    k.e(*maxops(7)); k.e(*maxops(8))
    k.e(f"s_waitcnt vmcnt({len(WQ)})", "s_barrier")
    stamp(k, 10)
    k.e("s_lshr_b32 s54, s24, 2", "s_mul_i32 s55, s54, 3072", f"s_add_u32 s55, s55, s{DLP}", "s_mul_i32 s54, s54, 49152", f"s_add_u32 s54, s54, s{DSW}")
    k.e(*d_wtriple(55, d_w(0), 54)); k.e(*d_wadv())
    if not opt("now13"):
        k.e("s_lshl_b32 s54, s2, 3", "s_add_u32 s54, s54, s24", "s_lshl_b32 s54, s54, 10")
        for m in (KW1, KW3):
            srd(k, 4, m, 640 * 3072)
            k.e(f"buffer_load_dwordx4 v[84:87], v{L16}, s[4:7], s54 offen ; dummy")
    k.e(*vread(0)); k.e(*vread(1))
    k.e(f"v_max_f32 v{MX}, v{MX}, v{MC}", f"v_mov_b32 v{MC}, v{MX}", f"v_permlane32_swap_b32 v{MC}, v{MX}", f"v_max_f32 v{MX}, v{MX}, v{MC}")
    split3(k, MX, MB, MB + 1, T0, T1, neg=True)
    k.e(f"v_cmp_gt_u32 vcc, 32, v{L}", f"v_cndmask_b32 v{MB}, 0, v{MB}, vcc", f"v_cndmask_b32 v{MB+1}, 0, v{MB+1}, vcc")
    def sub(i): return f"v_mfma_f32_32x32x16_bf16 {v(SB+16*i,16)}, {v(OA,4)}, {v(MB,4)}, {v(SB+16*i,16)}"
    def soft(i, u):
        sb = SB + 16 * i + 8 * u
        o = [f"v_exp_f32 v{sb+r}, v{sb+r}" for r in range(8)]
        o += [f"v_cvt_pk_bf16_f32 v{sb+j}, v{sb+2*j}, v{sb+2*j+1}" for j in range(4)]
        return o
    k.e(sub(0), sub(1))
    k.e(*soft(0, 0))
    for n in range(18):
        i, u = divmod(n, 2)
        sb = SB + 16 * i + 8 * u
        b = VB + 4 * (n % 3)
        nxt = soft(*divmod(n + 1, 2)) if n + 1 < 18 else []
        k.e(*nxt[:3])
        k.e(f"s_waitcnt lgkmcnt({1 if n < 17 else 0})")
        k.e(f"v_mfma_f32_32x32x16_bf16 {v(O,16)}, {v(b,4)}, {v(sb,4)}, {'0' if n == 0 else v(O,16)}")
        if n + 2 < 18: k.e(*vread(n + 2))
        k.e(*nxt[3:7])
        if u == 0 and i + 2 < 9: k.e(sub(i + 2))
        if n in WS_: k.e(*wo[len(WQ) + WS_.index(n)])
        k.e(*nxt[7:])
    k.e(f"v_lshrrev_b32 v{T0}, 4, v{TK}", f"v_mul_u32_u24 v{T0}, 20480, v{T0}", f"v_and_b32 v{T1}, 15, v{L}",
        f"v_lshl_add_u32 v{T3}, v{T1}, 3, v{T0}", f"v_lshl_add_u32 v{T0}, v{T1}, 4, v{T0}", f"v_lshl_add_u32 v{T1}, v{H}, 8, v{T0}")
    k.e("s_mul_i32 s52, s27, 40960", f"s_add_u32 s52, s52, {WS_O}", "s_lshl_b32 s53, s25, 9", "s_add_u32 s53, s53, s52",
        "s_lshl_b32 s54, s25, 7", "s_add_u32 s54, s54, s52", "s_add_u32 s54, s54, 16384")
    k.e(f"v_rcp_f32 v{T2}, v{O+12}")
    for r in range(12): k.e(f"v_mul_f32 v{O+r}, v{O+r}, v{T2}")
    for j in range(6): k.e(f"v_cvt_pk_bf16_f32 v{O+j}, v{O+2*j}, v{O+2*j+1}")
    k.e(f"buffer_store_dwordx4 v[{O}:{O+3}], v{T1}, s[20:23], s53 offen sc1")
    k.e("s_mov_b32 exec_hi, 0", f"buffer_store_dwordx2 v[{O+4}:{O+5}], v{T3}, s[20:23], s54 offen sc1", "s_mov_b64 exec, -1")
    k.e("s_lshl_b32 s52, s26, 12", "s_lshl_b32 s53, s25, 2", "s_add_u32 s52, s52, s53", f"s_add_u32 s52, s52, {WS_FC}", f"v_lshlrev_b32 v{T0}, 7, v{L}")
    stamp(k, 11)
    k.e("s_waitcnt vmcnt(0)", "s_barrier")
    stamp(k, 12)
    push_flags(k, 52, T0, -1)

WR, ACT, ACC = 96, 56, 36
LA, NAT, XA = 20, 22, 24
TOK = 31
DW = 32
def ce_setup(k, khs, set2, xb):
    k.e("s_and_b32 s52, s2, 7", "s_lshr_b32 s53, s2, 3", "s_lshr_b32 s54, s53, 3", "s_lshl_b32 s25, s52, 2", "s_add_u32 s25, s25, s54",
        "s_and_b32 s26, s53, 7", "s_and_b32 s28, s24, 3", "s_lshr_b32 s29, s24, 2")
    k.e(f"v_bfe_u32 v{T0}, v{L}, 2, 3", f"v_lshl_add_u32 v{T0}, v{H}, 4, v{T0}", f"v_mul_u32_u24 v{T0}, 160, v{T0}",
        f"v_and_b32 v{T1}, 3, v{L}", f"v_lshl_add_u32 v{T0}, v{T1}, 3, v{T0}", f"s_mul_i32 s53, s29, {khs}", f"v_add_u32 v{LA}, s53, v{T0}",
        f"v_add_u32 v{LA+1}, {set2}, v{LA}")
def ce_setup2(k, xb):
    k.e(f"v_lshrrev_b32 v{T1}, 4, v{L}", f"v_and_b32 v{TOK}, 15, v{L}",
        "s_lshl_b32 s52, s25, 2", "s_add_u32 s27, s52, s28", "s_mul_i32 s52, s27, 20480", "s_mul_i32 s53, s26, 160", "s_add_u32 s30, s52, s53",
        f"v_mul_u32_u24 v{NAT}, 1280, v{TOK}", f"v_lshl_add_u32 v{NAT+1}, v{T1}, 3, v{NAT}",
        f"v_lshl_add_u32 v{NAT}, v{H}, 4, v{NAT}", f"v_bfe_u32 v{T0}, v{L}, 4, 1", f"v_lshl_add_u32 v{NAT}, v{T0}, 5, v{NAT}",
        "s_mul_i32 s52, s28, 5120", f"s_add_u32 s52, s52, {xb}", f"v_add_u32 v{XA}, s52, v{L16}")
def w_reads(st, off, dst):
    return [f"ds_read_b64_tr_b16 v[{dst+4*f+2*u}:{dst+4*f+2*u+1}], v{LA+st} offset:{off+1280*u+32*f}" for f in range(5) for u in range(2)]
def ce_mfma(wb, ab):
    return [f"v_mfma_f32_16x16x32_bf16 {v(ACC+4*f,4)}, {v(wb+4*f,4)}, {v(ab,4)}, {v(ACC+4*f,4)}" for f in range(5)]
def unpack(k, src):
    for j in range(10): k.e(f"v_lshlrev_b32 v{ACC+2*j}, 16, v{src+j}", f"v_and_b32 v{ACC+2*j+1}, 0xffff0000, v{src+j}")
def swaps(k, y):
    for j in (0, 1, 4, 5): k.e(f"v_permlane16_swap_b32 v{y+j}, v{y+j+2}")
def ce_epilogue(k, out, skip, pref, k0=()):
    X = WR
    k.e("s_cmp_lg_u32 s29, 0", f"s_cbranch_scc1 {k.lab(pref + '_k1')}")
    for f in range(5): k.e(f"ds_write_b128 v{XA}, {v(ACC+4*f,4)} offset:{1024*f}")
    k.e(*k0)
    k.e("s_waitcnt lgkmcnt(0)", "s_barrier", f"s_branch {k.lab(skip)}")
    k.label(pref + "_k1")
    k.e("s_barrier")
    for f in range(5): k.e(f"ds_read_b128 {v(X+4*f,4)}, v{XA} offset:{1024*f}")
    for f in range(5):
        k.e(f"s_waitcnt lgkmcnt({4-f})")
        for r in (4 * f, 4 * f + 2): k.e(f"v_pk_add_f32 {v(ACC+r,2)}, {v(ACC+r,2)}, {v(X+r,2)}")
        for j in (2 * f, 2 * f + 1): k.e(f"v_cvt_pk_bf16_f32 v{out+j}, v{ACC+2*j}, v{ACC+2*j+1}")

def d_w(st): p = (st + 3) % 4; return 40960 * p + (16384 if p & 1 else 0)
def d_h(st): p = (st + 3) % 4; return 40960 * p + (0 if p & 1 else 24576)
DRB, DNB, DROT, DSW, DLIM, DLP = 96, 97, 98, 99, 38, 39
def d_map(k):
    k.e("s_and_b32 s52, s2, 7", "s_lshr_b32 s53, s2, 3", "s_lshr_b32 s54, s53, 3", "s_lshr_b32 s55, s52, 1", f"s_lshl_b32 s{DRB}, s55, 2", f"s_add_u32 s{DRB}, s{DRB}, s54",
        "s_and_b32 s52, s52, 1", "s_lshl_b32 s52, s52, 3", "s_and_b32 s53, s53, 7", f"s_add_u32 s{DNB}, s52, s53",
        "s_mul_i32 s54, s54, 5", "s_add_u32 s54, s54, 1", "s_lshr_b32 s54, s54, 1", "s_add_u32 s54, s54, s55", f"s_add_u32 s54, s54, s{DNB}",
        "s_cmp_ge_u32 s54, 20", "s_cselect_b32 s55, 20, 0", "s_sub_u32 s54, s54, s55",
        "s_cmp_ge_u32 s54, 10", "s_cselect_b32 s55, 10, 0", f"s_sub_u32 s{DROT}, s54, s55")
def d_wsetup(k):
    k.e("s_bitcmp1_b32 s24, 1", f"s_cselect_b32 s32, s{KW3}, s{KW1}", f"s_cselect_b32 s33, s{KW3+1}, s{KW1+1}", f"s_mov_b32 s34, {640*3072}", "s_mov_b32 s35, 0x20000",
        "s_cselect_b32 s52, 2, 0")
    for i in range(3):
        k.e(f"v_add_u32 v{T0}, {64*i}, v{L}", f"v_mul_u32_u24 v{T1}, 5462, v{T0}", f"v_lshrrev_b32 v{T1}, 16, v{T1}",
            f"v_xor_b32 v{T0}, s52, v{T0}", f"v_mul_u32_u24 v{T1}, {3072-192}, v{T1}", f"v_lshl_add_u32 v{DW+i}, v{T0}, 4, v{T1}")
        if i: k.e(f"v_subrev_u32 v{DW+i}, {1024*i}, v{DW+i}")
    k.e("s_and_b32 s52, s24, 3", f"s_mul_i32 s{DLP}, s52, 6144", "s_and_b32 s52, s24, 1", "s_mul_i32 s52, s52, 98304", f"s_mul_i32 s53, s{DNB}, 192", "s_add_u32 s52, s52, s53",
        f"s_add_u32 s{DLIM}, s52, {640*3072}", f"s_mul_i32 s53, s{DROT}, {64*3072}", f"s_add_u32 s{DSW}, s52, s53")
def d_wtriple(lds_s, lds_add, soff):
    return [f"s_add_u32 m0, s{lds_s}, {lds_add}"] + [f"buffer_load_dwordx4 v{DW+i}, s[32:35], s{soff} offen offset:{1024*i} lds" for i in range(3)]
def d_wadv():
    return [f"s_add_u32 s{DSW}, s{DSW}, {64*3072}", f"s_cmp_ge_u32 s{DSW}, s{DLIM}", f"s_cselect_b32 s52, {640*3072}, 0", f"s_sub_u32 s{DSW}, s{DSW}, s52"]
def d_wstage(st):
    a = d_wtriple(DLP, d_w(st), DSW); b = d_wtriple(DLP, d_w(st) + 3072, 49)
    return [a[:2], [a[2]], [a[3]], [f"s_add_u32 s49, s{DSW}, 49152"] + b[:2], [b[2]], [b[3]] + d_wadv()]

PF1, PF2 = map(int, ([a[4:] for a in sys.argv if a.startswith('-pf=')] + ['12'])[0])
def phase_c(k):
    LE = 35
    ce_setup(k, 5120, 51200, LX)
    def cpos(i):
        o = 10240 * (i + 2 * (i >= 3)) if i < 8 else 10240 * (i - 5)
        return (1, o - 51200) if o >= 51200 else (0, o)
    for i in range(8): k.e(*w_reads(*cpos(i), WR + 20 * i))
    ce_setup2(k, LX)
    HA, SA, FA = 25, 27, 28
    k.e("s_mul_i32 s52, s27, 20480", f"s_add_u32 s52, s52, {WS_O}", "s_lshl_b32 s54, s29, 13", "s_add_u32 s54, s54, s52")
    for i in range(8): k.e(f"s_add_u32 s53, s26, {i}", "s_and_b32 s53, s53, 7", "s_lshl_b32 s53, s53, 10", f"s_add_u32 s{4+i}, s53, s54")
    k.e("s_lshl_b32 s53, s29, 11", "s_add_u32 s56, s52, s53", "s_add_u32 s56, s56, 16384",
        f"v_lshlrev_b32 v{LE}, 9, v{H}", f"v_bfe_u32 v{T0}, v{L}, 4, 1", f"v_lshl_add_u32 v{LE}, v{T0}, 7, v{LE}", f"v_lshl_add_u32 v{LE}, v{TOK}, 3, v{LE}")
    k.e("s_lshr_b32 s52, s27, 1", "s_mul_i32 s52, s52, 40960", "s_mul_i32 s53, s26, 5120", "s_add_u32 s52, s52, s53", "s_and_b32 s53, s28, 1", "s_lshl_b32 s53, s53, 8",
        "s_add_u32 s52, s52, s53", f"s_add_u32 s31, s52, {WS_H}",
        f"v_lshlrev_b32 v{T1}, 9, v{H}", f"v_lshl_add_u32 v{T1}, v{TOK}, 4, v{T1}", f"v_lshl_add_u32 v{HA}, v{T0}, 10, v{T1}", f"v_add_u32 v{HA+1}, 4096, v{T1}",
        "s_lshl_b32 s52, s27, 3", "s_add_u32 s52, s52, s26", "s_lshl_b32 s52, s52, 7", f"s_add_u32 s57, s52, {WS_HST}", f"v_lshlrev_b32 v{SA}, 3, v{TOK}",
        "s_lshr_b32 s52, s25, 1", "s_lshl_b32 s52, s52, 11", "s_and_b32 s53, s25, 1", "s_lshl_b32 s53, s53, 3", "s_add_u32 s53, s53, s26", "s_lshl_b32 s53, s53, 2",
        "s_add_u32 s52, s52, s53", f"s_add_u32 s58, s52, {WS_FD}", f"v_lshlrev_b32 v{FA}, 7, v{L}", f"s_mov_b32 s55, {ONES}")
    unpack(k, HRES)
    k.e("s_cmp_lg_u32 s24, 1", f"s_cbranch_scc1 {k.lab('c_np')}")
    k.e("s_lshl_b32 s52, s25, 3", "s_add_u32 s52, s52, s26", "s_lshl_b32 s52, s52, 7", f"s_add_u32 s52, s52, {WS_FC}", f"v_lshlrev_b32 v{T2}, 2, v{L}")
    poll(k, T2, "s52", T0, -1, 0)
    k.label("c_np")
    k.e("s_waitcnt lgkmcnt(0)", "s_barrier")
    stamp(k, 13)
    for i in range(8): k.e(f"buffer_load_dwordx4 {v(ACT+4*i,4)}, v{L16}, s[20:23], s{4+i} offen{SC}")
    for e in range(2):
        for u in range(2): k.e(f"buffer_load_dwordx2 {v(ACT+32+4*e+2*u,2)}, v{LE}, s[20:23], s56 offen offset:{1024*e+256*u}{SC}")
    for i in range(10):
        k.e(f"s_waitcnt vmcnt({11-i if i < 8 else 2*(9-i)})" + (f" lgkmcnt({10*(9-i)})" if i >= 8 else ""))
        if i == 0: stamp(k, 14)
        k.e(*ce_mfma(WR + 20 * (i % 8), ACT + 4 * i))
        if i in (1, 2): k.e(*w_reads(*cpos(i + 7), WR + 20 * (i - 1)))
    stamp(k, 15)
    ce_epilogue(k, HRES, "c_k0", "c", [x for st in range(1, 1 + PF1) for y in d_wstage(st) for x in y])
    Z, S1 = ACT, ACT + 4
    k.e(f"v_mov_b64 {v(Z,2)}, {v(HRES+8,2)}", f"v_mov_b64 {v(Z+2,2)}, {v(HRES+8,2)}", f"v_mov_b64 {v(S1,2)}, 0", f"v_mov_b64 {v(S1+2,2)}, 0")
    swaps(k, HRES)
    k.e(f"v_permlane16_swap_b32 v{Z}, v{Z+2}", f"v_permlane16_swap_b32 v{Z+1}, v{Z+3}")
    k.e(f"buffer_store_dwordx4 {v(HRES,4)}, v{HA}, s[20:23], s31 offen sc1", f"buffer_store_dwordx4 {v(HRES+4,4)}, v{HA}, s[20:23], s31 offen offset:2048 sc1",
        "s_mov_b32 exec_lo, 0xffff", "s_mov_b32 exec_hi, 0xffff", f"buffer_store_dwordx4 {v(Z,4)}, v{HA+1}, s[20:23], s31 offen sc1", "s_mov_b64 exec, -1")
    for j in range(10): k.e(f"v_dot2c_f32_bf16 v{S1+2*(j&1)}, s55, v{HRES+j}", f"v_dot2c_f32_bf16 v{S1+2*(j&1)+1}, v{HRES+j}, v{HRES+j}")
    k.e(f"v_pk_add_f32 {v(S1,2)}, {v(S1,2)}, {v(S1+2,2)}")
    for sw in ("v_permlane16_swap_b32", "v_permlane32_swap_b32"):
        k.e(f"v_mov_b64 {v(S1+2,2)}, {v(S1,2)}", f"{sw} v{S1+2}, v{S1}", f"{sw} v{S1+3}, v{S1+1}", f"v_pk_add_f32 {v(S1,2)}, {v(S1,2)}, {v(S1+2,2)}")
    k.e("s_mov_b64 exec, 0xffff", f"buffer_store_dwordx2 {v(S1,2)}, v{SA}, s[20:23], s57 offen sc1", "s_mov_b64 exec, -1")
    stamp(k, 16)
    k.e("s_waitcnt vmcnt(0)", f"s_branch {k.lab('c_pub')}")
    k.label("c_k0")
    for st in range(1 + PF1, 1 + PF2):
        for y in d_wstage(st): k.e(*y)
    stamp(k, 16)
    k.label("c_pub")
    k.e("s_barrier")
    stamp(k, 17)
    push_flags(k, 58, FA, "0xffff")

X6, X7, X8, X9 = 40960, 81920, 122880, 0
DMI = X6 + 5120
PK = 60
def e_soff(k, d, G, kh, isg):
    k.e(f"s_mul_i32 s{d}, s26, {ER}", f"s_add_u32 s{d}, s{d}, s{isg}", f"s_add_u32 s{d}, s{d}, {8*G}", f"s_cmp_ge_u32 s{d}, 24", f"s_cselect_b32 s61, {24*kh-24}, {24*kh}",
        f"s_add_u32 s{d}, s{d}, s61", f"s_mul_i32 s{d}, s{d}, 40960", f"s_add_u32 s{d}, s{d}, s58")

def d_compute(k):
    AH, AW, AST, RI, AM = 20, 22, 31, 36, 32
    DA, FR = 160, 40
    ONE = 36
    for st in range(1 + PF2, 4):
        for y in d_wstage(st): k.e(*y)
    k.e("s_lshr_b32 s28, s24, 1", "s_and_b32 s29, s24, 1", "s_lshl_b32 s52, s28, 13", f"v_add_u32 v{AH}, s52, v{L16}", f"v_add_u32 v{AH+1}, 81920, v{AH}")
    k.e(f"v_bfe_u32 v{T0}, v{L}, 2, 2", f"v_lshl_add_u32 v{T0}, v{H}, 3, v{T0}", f"v_mul_u32_u24 v{T0}, 192, v{T0}", f"v_and_b32 v{T1}, 3, v{L}", f"v_lshl_add_u32 v{T0}, v{T1}, 3, v{T0}",
        f"v_bfe_u32 v{T1}, v{L}, 4, 1", f"v_mul_u32_u24 v{T2}, 12288, v{T1}", f"v_add_u32 v{T0}, v{T0}, v{T2}", "s_mul_i32 s52, s29, 3")
    for f in range(3):
        k.e(f"v_xor_b32 v{T2}, s52, v{T1}", f"v_lshl_add_u32 v{AW+f}, v{T2}, 5, v{T0}", f"v_add_u32 v{AW+3+f}, 57344, v{AW+f}", f"v_add_u32 v{AW+6+f}, 139264, v{AW+f}", "s_add_u32 s52, s52, 1")
    def buf(g): return FR + 20 * (g % 4 if g < 38 else g - 34)
    def hreads(g):
        st, ks = divmod(g, 4); o = d_h(st); S = o >= 81920
        return [f"ds_read_b128 {v(buf(g)+4*t,4)}, v{AH+S} offset:{o-81920*S+4096*t+1024*ks}" for t in range(2)]
    def wreads(g):
        st, ks = divmod(g, 4); o = d_w(st); S, b = {0: (0, 0), 57344: (1, 0), 81920: (1, 24576), 139264: (2, 0)}[o]
        return [f"ds_read_b64_tr_b16 {v(buf(g)+8+4*f+2*u,2)}, v{AW+3*S+f} offset:{b+3072*ks+768*u}" for f in range(3) for u in range(2)]
    for g in range(4): k.e(*wreads(g))
    XO, CS = FR + 80, FR + 88
    k.e(f"v_lshrrev_b32 v{T0}, 4, v{TK}", f"v_mul_u32_u24 v{T0}, 49152, v{T0}", f"v_and_b32 v{T1}, 15, v{L}", f"v_lshl_add_u32 v{T0}, v{T1}, 4, v{T0}", f"v_lshl_add_u32 v{AST}, v{H}, 8, v{T0}",
        f"s_lshl_b32 s52, s{DRB}, 1", "s_add_u32 s52, s52, s28", f"s_mul_i32 s52, s52, {4*49152}", f"s_lshl_b32 s53, s{DNB}, 1", "s_add_u32 s53, s53, s29", "s_mul_i32 s54, s53, 1536",
        "s_add_u32 s52, s52, s54", f"s_add_u32 s4, s52, {WS_A}", f"s_add_u32 s5, s4, {2*49152}",
        "s_lshl_b32 s52, s28, 9", f"s_add_u32 s52, s52, {DMI}", f"v_lshl_add_u32 v{AM}, v{TK}, 3, s52",
        "s_mul_i32 s52, s29, 768", f"s_add_u32 s52, s52, {DMI+2048}", f"v_lshl_add_u32 v{AM+1}, v{TK}, 3, s52")
    for r in range(20): k.e(f"v_mov_b32 v{XO+r}, 0")
    k.e("s_cmp_lt_u32 s24, 2", f"s_cbranch_scc1 {k.lab('d_ncs')}")
    for r in range(4): k.e(f"v_mov_b32 v{ONE+r}, {ONES}")
    k.e(f"s_mul_i32 s52, s{DNB}, 15360", f"s_mul_i32 s53, s{DROT}, 1536", "s_add_u32 s52, s52, s53", "s_mul_i32 s53, s29, 768", "s_add_u32 s52, s52, s53", f"s_add_u32 s52, s52, {WS_CS}",
        f"v_lshlrev_b32 v{T0}, 3, v{TK}", "s_waitcnt lgkmcnt(0)")
    for g in range(4):
        for f in range(3): k.e(f"v_mfma_f32_32x32x16_bf16 {v(DA+16*f,16)}, {v(ONE,4)}, {v(buf(g)+8+4*f,4)}, {'0' if g == 0 else v(DA+16*f,16)}")
    k.e("s_mov_b32 exec_hi, 0")
    for f in range(3):
        k.e(f"v_mov_b32 v{DA+16*f+1}, s{TAG}", f"buffer_store_dwordx2 {v(DA+16*f,2)}, v{T0}, s[20:23], s52 offen offset:{256*f} sc1")
    k.e("s_mov_b64 exec, -1")
    k.label("d_ncs")
    k.e("s_barrier")
    stamp(k, 18)
    k.e("s_waitcnt vmcnt(0)", "s_barrier")
    stamp(k, 19)
    lg = VM()
    def rd(ops, tag):
        lg.add(tag, len(ops)); return ops
    def lw(tag):
        if tag not in lg.q: return []
        w = lg.wait(tag); n = int(w[w.index("(") + 1:-1])
        return [f"s_waitcnt lgkmcnt({min(n, 15)})"]
    def mf(g, t, f):
        d = DA + 48 * t + 16 * f
        return f"v_mfma_f32_32x32x16_bf16 {v(d,16)}, {v(buf(g)+8+4*f,4)}, {v(buf(g)+4*t,4)}, {'0' if g == 0 else v(d,16)}"
    k.e(*rd(hreads(0), 0)); k.e(*rd(hreads(1), 1))
    for g in range(36):
        if g % 4 == 2:
            k.e("s_waitcnt lgkmcnt(0)")
            if g // 4 < 8: dstamp(k, "D", 10 + g // 4)
            k.e("s_barrier"); lg.q = []
            dstamp(k, "D", 1 + g // 4)
        else: k.e(*lw(g))
        fill = []
        for n in ([g + 2] if g < 34 else [36, 39] if g == 34 else [37, 38]):
            fill += rd(hreads(n) + (wreads(n) if n >= 4 else []), n)
        if g == 30:
            fill.append(["s_mov_b32 exec_hi, 0"] + rd([f"ds_read_b64 {v(XO+4*t,2)}, v{AM} offset:{256*t}" for t in range(2)], 32) + ["s_mov_b64 exec, -1"])
            fill += rd([f"ds_read_b64 {v(CS+4*f,2)}, v{AM+1} offset:{256*f}" for f in range(3)] + [f"ds_read_b64 {v(RI+2*t,2)}, v{AM} offset:{1024+256*t}" for t in range(2)], 32)
        m = [mf(g, t, f) for t in range(2) for f in range(3)]
        if g in (32, 33):
            t = g - 32
            m = [f"v_mfma_f32_32x32x16_bf16 {v(DA+48*t+16*f,16)}, {v(CS+4*f,4)}, {v(XO+4*t,4)}, {v(DA+48*t+16*f,16)}" for f in range(3)] + m
        k.e(*interleave(m, fill))
    k.e("s_waitcnt lgkmcnt(0)")
    TM = FR + 40
    def epi(t, f, packed):
        d = DA + 48 * t + 16 * f; e = TM + 8 * ((3 * t + f) & 1)
        rn, ir = RI + 2 * t, RI + 2 * t + 1
        s1, s2 = [], []
        if packed:
            s1 += [f"v_pk_mul_f32 {v(e+r,2)}, {v(d+r,2)}, {v(rn,2)} op_sel:[0,0] op_sel_hi:[1,0]" for r in range(0, 8, 2)]
            s1 += [f"v_exp_f32 v{e+r}, v{e+r}" for r in range(8)]
            s1 += [f"v_pk_fma_f32 {v(e+r,2)}, {v(e+r,2)}, {v(rn,2)}, {v(rn,2)} op_sel:[0,1,1] op_sel_hi:[1,1,1]" for r in range(0, 8, 2)]
            s1 += [f"v_rcp_f32 v{e+r}, v{e+r}" for r in range(8)]
            s2 += [f"v_pk_mul_f32 {v(d+r,2)}, {v(d+r,2)}, {v(d+8+r,2)}" for r in range(0, 8, 2)]
            s2 += [f"v_pk_mul_f32 {v(d+r,2)}, {v(d+r,2)}, {v(e+r,2)}" for r in range(0, 8, 2)]
        else:
            s1 += [f"v_mul_f32 v{e+r}, v{d+r}, v{rn}" for r in range(8)]
            s1 += [f"v_exp_f32 v{e+r}, v{e+r}" for r in range(8)]
            s1 += [f"v_fma_f32 v{e+r}, v{e+r}, v{ir}, v{ir}" for r in range(8)]
            s1 += [f"v_rcp_f32 v{e+r}, v{e+r}" for r in range(8)]
            s2 += [f"v_mul_f32 v{d+r}, v{d+r}, v{d+8+r}" for r in range(8)]
            s2 += [f"v_mul_f32 v{d+r}, v{d+r}, v{e+r}" for r in range(8)]
        s2 += [f"v_cvt_pk_bf16_f32 v{d+j}, v{d+2*j}, v{d+2*j+1}" for j in range(4)]
        s2.append(f"buffer_store_dwordx4 {v(d,4)}, v{AST}, s[20:23], s{4+t} offen offset:{512*f} sc1")
        return s1 + s2
    tiles = [(t, f) for t in range(2) for f in range(3)]
    for t, f in tiles: k.e(*[mf(g, t, f) for g in range(36, 40)])
    stamp(k, 20)
    for n, (t, f) in enumerate(tiles):
        k.e(*epi(t, f, True))
        if n == 2: k.e("s_barrier")
    stamp(k, 21)

def d_loader(k):
    D = 40
    vm = VM()
    k.e("s_sub_u32 s31, s24, 4")
    for st in range(3): k.e(*d_wadv())
    k.e(
        f"s_lshl_b32 s52, s{DRB}, 2", "s_add_u32 s52, s52, s31", "s_mul_i32 s52, s52, 40960", f"s_add_u32 s52, s52, {WS_H}", "s_add_u32 s57, s52, 40960",
        f"s_lshl_b32 s53, s{DROT}, 12", "s_add_u32 s56, s52, s53", "s_lshl_b32 s55, s31, 12")
    wv_offsets(k)
    PH, PC = 36, 37
    k.e(f"v_lshrrev_b32 v{T0}, 4, v{L}", f"v_and_b32 v{T1}, 15, v{L}", f"v_lshlrev_b32 v{T1}, 3, v{T1}", f"v_lshl_add_u32 v{PH}, v{T0}, 9, v{T1}", f"v_lshlrev_b32 v{PC}, 3, v{L}",
        f"s_lshl_b32 s52, s{DRB}, 2", "s_add_u32 s52, s52, s31", "s_lshl_b32 s52, s52, 11", f"s_add_u32 s4, s52, {WS_HST}",
        "s_min_u32 s9, s31, 2", "s_lshl_b32 s9, s9, 9", f"s_mul_i32 s52, s{DNB}, 15360", "s_add_u32 s52, s52, s9", f"s_add_u32 s5, s52, {WS_CS}",
        "s_add_u32 s6, s5, 4608", "s_add_u32 s7, s5, 9216", "s_add_u32 s8, s5, 13824", "s_mul_i32 s58, s26, 160")
    srd(k, 16, KW2, 1536 * 1280)
    k.e("s_cmp_lg_u32 s24, 4", f"s_cbranch_scc1 {k.lab('d_np')}")
    k.e(f"s_lshl_b32 s52, s{DRB}, 4", f"s_add_u32 s52, s52, s{DNB}", "s_lshl_b32 s52, s52, 7", f"s_add_u32 s52, s52, {WS_FD}", f"v_lshlrev_b32 v{T2}, 2, v{L}")
    poll(k, T2, "s52", T0, 0xffff, 0)
    k.label("d_np")
    k.e("s_barrier")
    stamp(k, 18)
    def hst(st):
        o = [[f"buffer_load_dwordx4 v{L16}, s[20:23], s56 offen offset:{1024*i}{SC} lds"] for i in range(4)]
        o[0].insert(0, f"s_add_u32 m0, s55, {d_h(st)}")
        o[3] += ["s_add_u32 s56, s56, 4096", "s_cmp_ge_u32 s56, s57", "s_cselect_b32 s52, 40960, 0", "s_sub_u32 s56, s56, s52"]
        return o
    pieces = [(st, x) for st in range(4) for x in hst(st)] + [(st, x) for st in range(4, 10) for x in d_wstage(st) + hst(st)]
    def issue(n):
        for _ in range(n):
            st, x = pieces.pop(0); k.e(*x); vm.add(st)
    QT = [int(c, 16) for c in ([a[4:] for a in sys.argv if a.startswith('-qt=')] + ['9996999'])[0]]
    CSJ = int(([a[5:] for a in sys.argv if a.startswith('-csj=')] + ['4'])[0])
    assert sum(QT) == 60 and all(sum(QT[:j]) <= 10 * j for j in range(8))
    def cs_loads(r=range(10)):
        for j in r: k.e(f"buffer_load_dwordx2 {v(D+16+2*j,2)}, v{PC}, s[20:23], s{5+j//3} offen offset:{1536*(j%3)} sc1")
    def w2(G, kh, b, base, tag):
        k.e("s_lshl_b32 s53, s31, 1", f"s_add_u32 s53, s53, {b}") ; e_soff(k, 54, G, kh, 53)
        k.e("s_mul_i32 s53, s53, 5120")
        for x in step_dma(WV, 53, 54, base): k.e(*x)
        vm.add(tag, 5)
    issue(16)
    for i in range(4): k.e(f"buffer_load_dwordx2 {v(D+2*i,2)}, v{PH}, s[20:23], s4 offen offset:{128*i}{SC}")
    vm.add("pt", 4)
    k.e(vm.wait(0), "s_barrier")
    stamp(k, 19)
    for j in range(1, 10):
        if j < 9: dstamp(k, "D", 9 + j)
        k.e(vm.wait(j))
        dstamp(k, "D", j)
        k.e("s_barrier")
        if j == CSJ: cs_loads(); vm.add("pt", 10)
        if j <= 7: issue(QT[j - 1])
        if j == 6:
            k.e(vm.wait("pt"), "s_mov_b32 s61, 0")
            k.label("d_chk")
            k.e(f"v_xor_b32 v{T0}, s{TAG}, v{D+17}", f"v_xor_b32 v{T1}, s{TAG}, v{D+19}", f"v_or_b32 v{T0}, v{T0}, v{T1}")
            for i in range(2, 10, 2):
                k.e(f"v_xor_b32 v{T1}, s{TAG}, v{D+17+2*i}", f"v_xor_b32 v{T2}, s{TAG}, v{D+19+2*i}", f"v_or3_b32 v{T0}, v{T0}, v{T1}, v{T2}")
            k.e(f"v_cmp_ne_u32 vcc, 0, v{T0}", "s_add_u32 s61, s61, 1", f"s_cbranch_vccz {k.lab('d_ok')}", f"s_cmp_gt_u32 s61, {SPIN_MAX}", f"s_cbranch_scc1 {k.lab('d_ok')}")
            cs_loads()
            k.e("s_waitcnt vmcnt(0)", f"s_branch {k.lab('d_chk')}")
            k.label("d_ok")
            for i in range(1, 4): k.e(f"v_add_f32 v{D}, v{D}, v{D+2*i}", f"v_add_f32 v{D+1}, v{D+1}, v{D+2*i+1}")
            for i in range(1, 10): k.e(f"v_add_f32 v{D+16}, v{D+16}, v{D+16+2*i}")
            for x, t in ((D, T2), (D + 1, T3)):
                k.e(f"v_mov_b32 v{t}, v{x}", f"v_permlane16_swap_b32 v{t}, v{x}", f"v_add_f32 v{x}, v{t}, v{x}")
            ln_stats(k, D, D + 1, T0, T1, D + 4, D + 6, SD=D + 7)
            split3(k, D + 16, D + 8, D + 9, T0, T1)
            k.e(f"v_cvt_pk_bf16_f32 v{D+4}, -v{D+4}, -v{D+4}", f"v_and_b32 v{D+5}, 0xffff, v{D+4}",
                f"v_mul_f32 v{D+6}, {f32(-1.4426950408889634)}, v{D+6}", f"v_mul_f32 v{D+7}, v{D+7}, v{D+7}",
                f"v_and_b32 v{T0}, 15, v{L}", f"v_lshl_add_u32 v{T0}, v{H}, 4, v{T0}", "s_lshl_b32 s52, s31, 8", f"s_add_u32 s52, s52, {DMI}", f"v_lshl_add_u32 v{T0}, v{T0}, 3, s52",
                f"s_add_u32 s52, s9, {DMI+2048}", f"v_add_u32 v{T1}, s52, v{PC}")
        if j == 7:
            k.e(f"ds_write_b64 v{T0}, {v(D+4,2)}", f"ds_write_b64 v{T0}, {v(D+6,2)} offset:1024", f"ds_write_b64 v{T1}, {v(D+8,2)}")
            w2(1, 1, 0, X6, "x6")
            k.e("s_waitcnt lgkmcnt(0)")
        if j == 8:
            w2(0, 0, 0, X7, "x7"); w2(0, 0, 1, X7, "x7")
        if j == 9:
            w2(0, 1, 0, X8, "x8"); w2(0, 1, 1, X8, "x8"); w2(1, 1, 1, X6, "x6b")
    stamp(k, 20)
    k.e(vm.wait("x8"), "s_barrier")
    w2(1, 0, 0, X9, "x9"); w2(1, 0, 1, X9, "x9")
    stamp(k, 21)

def phase_d(k):
    k.e("s_cmp_lt_u32 s24, 4", f"s_cbranch_scc1 {k.lab('d_cmp')}")
    d_loader(k)
    k.e(f"s_branch {k.lab('d_done')}")
    k.label("d_cmp")
    d_compute(k)
    srd(k, 16, KW2, 1536 * 1280)
    wv_offsets(k)
    k.label("d_done")
    ce_setup(k, 40960, 81920, 0)
    for i in range(8): k.e(*w_reads(1, 5120 * i, WR + 20 * i))
    k.e(f"s_lshl_b32 s52, s{DRB}, 11", f"s_lshl_b32 s53, s{DNB}, 2", "s_add_u32 s52, s52, s53", f"s_add_u32 s52, s52, {WS_FE}", f"v_lshlrev_b32 v{T0}, 7, v{L}", "s_mul_i32 s58, s26, 160")
    e_soff(k, 54, 2, 0, 24); k.e(f"s_add_u32 s55, s54, {24*40960}", "s_mul_i32 s53, s24, 5120")
    k.e("s_waitcnt vmcnt(0) lgkmcnt(0)", "s_barrier")
    stamp(k, 22)
    push_flags(k, 52, T0, "0xffff")

def phase_e(k):
    for x in step_dma(WV, 53, 54, X7) + step_dma(WV, 53, 55, X8): k.e(*x)
    ce_setup2(k, 0)
    swaps(k, HRES)
    unpack(k, HRES)
    k.e("s_mul_i32 s52, s27, 49152", f"s_add_u32 s52, s52, {WS_A}", "s_mul_i32 s54, s29, 24576", "s_add_u32 s54, s54, s52",
        "s_add_u32 s5, s54, 24576", f"s_mul_i32 s4, s26, {1024*ER}", "s_add_u32 s4, s4, s54", "s_mov_b32 s6, s54")
    srd(k, 12, KOUT, X_BYTES)
    k.e("s_cmp_lg_u32 s24, 1", f"s_cbranch_scc1 {k.lab('e_np')}")
    k.e("s_lshl_b32 s52, s25, 3", "s_add_u32 s52, s52, s26", "s_lshl_b32 s52, s52, 7", f"s_add_u32 s52, s52, {WS_FE}", f"v_lshlrev_b32 v{T2}, 2, v{L}")
    poll(k, T2, "s52", T0, 0xffff, 0)
    k.label("e_np")
    k.e("s_xor_b32 s52, s24, 2", "s_or_b32 s52, s52, s2", "s_cmp_lg_u32 s52, 0", f"s_cbranch_scc1 {k.lab('e_ne')}")
    k.e(f"v_lshrrev_b32 v{T0}, 3, v{L}", f"v_and_b32 v{T1}, 7, v{L}", f"v_lshlrev_b32 v{T1}, 4, v{T1}", f"v_lshl_add_u32 v{T2}, v{T0}, 12, v{T1}", f"s_mov_b32 s52, {WS_FC}")
    poll(k, T2, "s52", ACT, -1, -1, x4=True)
    k.e(f"v_mov_b32 v{T0}, 0", f"v_mov_b32 v{T1}, s{TAG}", f"s_mov_b32 s52, {WS_EP}", "s_mov_b64 exec, 1", f"buffer_store_dword v{T1}, v{T0}, s[20:23], s52 offen sc1", "s_mov_b64 exec, -1")
    k.label("e_ne")
    k.e("s_waitcnt vmcnt(0)", "s_barrier")
    stamp(k, 23)
    def ald(n): return [f"buffer_load_dwordx4 {v(ACT+4*(n%10),4)}, v{L16}, s[20:23], s4 offen{SC}", "s_add_u32 s4, s4, 1024", "s_cmp_ge_u32 s4, s5", "s_cselect_b32 s4, s6, s4"]
    ED = int(([a[4:] for a in sys.argv if a.startswith('-ed=')] + ['6'])[0])
    for n in range(ED): k.e(*ald(n))
    for n in range(24):
        issued = min(24, n + ED)
        w = f"s_waitcnt vmcnt({issued-1-n})"
        if 8 <= n: w += f" lgkmcnt({10 if n <= 17 else 0})"
        k.e(w)
        if n == 0: stamp(k, 24)
        fill = []
        if n + ED < 24: fill.append(ald(n + ED))
        if 1 <= n <= 16 and not opt('e_nolds'): fill += w_reads(0 if n <= 8 else 1, 5120 * ((n - 1) % 8), WR + 20 * ((n - 1) % 8))
        k.e(*interleave(ce_mfma(WR + 20 * (n % 8), ACT + 4 * (n % 10))[:(1 if opt('e_nomf') else 5)], fill))
        if n == 24 - ED: k.e("s_barrier")
    stamp(k, 25)
    ce_epilogue(k, HRES, "fin", "e")
    swaps(k, HRES)
    k.e(f"buffer_store_dwordx2 {v(HRES+8,2)}, v{NAT+1}, s[12:15], s30 offen offset:128",
        f"buffer_store_dwordx4 {v(HRES,4)}, v{NAT}, s[12:15], s30 offen", f"buffer_store_dwordx4 {v(HRES+4,4)}, v{NAT}, s[12:15], s30 offen offset:64")

def rest(k):
    phase_b(k)
    if G.UPTO == "B": return
    phase_c(k)
    if G.UPTO == "C": return
    phase_d(k)
    if G.UPTO == "D": return
    phase_e(k)
```

```python
import sys
from asmlib import *
from gen2 import *
import gen2 as G

LK, LV, LQ, LX = 139264, 106496, 126976, 106496
SC = '' if opt('plain') else ' sc1'
ER = int(([a[4:] for a in sys.argv if a.startswith('-er=')] + ['3'])[0])

def push_flags(k, base_sgpr, vaddr, mask_lo, wave=0):
    k.e(f"v_mov_b32 v{T3}, s{TAG}", f"s_cmp_eq_u32 s24, {wave}", f"s_cselect_b32 exec_lo, {mask_lo}, 0", "s_mov_b32 exec_hi, 0",
        f"buffer_store_dword v{T3}, v{vaddr}, s[20:23], s{base_sgpr} offen sc1", "s_mov_b64 exec, -1")

WV = 88
def wv_offsets(k, d=WV, sh=0, mul=0):
    for i in range(5):
        k.e(f"v_add_u32 v{T0}, {64*i}, v{L}", f"v_mul_u32_u24 v{T1}, 6554, v{T0}", f"v_lshrrev_b32 v{T1}, 16, v{T1}")
        if mul: k.e(f"v_lshrrev_b32 v{T2}, {sh}, v{T1}", f"v_mul_u32_u24 v{T2}, {1280*mul}, v{T2}")
        k.e(f"v_mul_u32_u24 v{T1}, {1280-160}, v{T1}", f"v_lshl_add_u32 v{d+i}, v{T0}, 4, v{T1}")
        if mul: k.e(f"v_add_u32 v{d+i}, v{d+i}, v{T2}")
        if i % 4: k.e(f"v_subrev_u32 v{d+i}, {1024*(i%4)}, v{d+i}")
def step_dma(d, lds_s, soff, lds_add=0, each=False):
    o = [[f"s_add_u32 m0, s{lds_s}, {lds_add}"] if i == 0 or (each and i < 4) else [] for i in range(5)]
    o[4].append(f"s_add_u32 m0, s{lds_s}, {lds_add+4096}")
    for i in range(5): o[i].append(f"buffer_load_dwordx4 v{d+i}, s[16:19], s{soff} offen offset:{1024*(i%4)} lds")
    return o

def phase_b(k):
    AK, AKE, AV = 82, 83, 93
    VV = 20
    QM, QE = 96, 100
    KB = 36
    VB = 60
    OA, MB = 72, 76
    MX, MC = 80, 81
    DUM = 84
    O = 96
    SB = 112
    k.e("s_and_b32 s52, s2, 7", "s_lshr_b32 s53, s2, 3", "s_lshr_b32 s54, s53, 3", "s_lshl_b32 s25, s52, 2", "s_add_u32 s25, s25, s54",
        "s_and_b32 s26, s53, 7")
    k.e("s_and_b32 s31, s24, 3")
    wv_offsets(k, WV, 4, 4)
    srd(k, 16, KWO, 640 * 1280)
    k.e("s_mul_i32 s60, s26, 160", "s_add_u32 s0, s24, s26", "s_and_b32 s0, s0, 7", "s_mul_i32 s0, s0, 51200", "s_add_u32 s0, s0, s60", f"s_add_u32 s1, s0, {8*51200}",
        "s_cmp_ge_u32 s24, 3", "s_cselect_b32 s48, 2, 0", "s_add_u32 s48, s48, s24", "s_mul_i32 s48, s48, 10240")
    wo = step_dma(WV, 48, 0, 0, True) + step_dma(WV, 48, 1, 5120, True)
    k.e("s_lshr_b32 s52, s25, 1", "s_mul_i32 s52, s52, 5", "s_and_b32 s53, s25, 1", "s_lshl_b32 s53, s53, 1", "s_add_u32 s53, s53, s52",
        "s_lshl_b32 s4, s53, 15", "s_add_u32 s5, s4, 32768", "s_add_u32 s53, s52, 4", "s_lshl_b32 s6, s53, 15",
        "s_lshr_b32 s52, s52, 4", "s_lshr_b32 s53, s53, 4", "s_lshl_b32 s52, 0x04210421, s52", "s_lshl_b32 s53, 0x04210421, s53", "s_or_b32 s30, s52, s53",
        "s_lshl_b32 s54, s26, 1", "s_add_u32 s54, s54, s31",
        "s_cmp_lt_u32 s54, 2", "s_cselect_b32 s55, 0, 2", "s_sub_u32 s54, s54, s55",
        "s_lshl_b32 s7, s54, 11", f"s_add_u32 s7, s7, {80*32768}",
        "s_lshl_b32 s8, s26, 12", "s_lshl_b32 s55, s31, 10", "s_add_u32 s8, s8, s55",
        "s_mul_i32 s9, s54, 163840", "s_mul_i32 s55, s25, 320", "s_add_u32 s9, s9, s55", f"s_add_u32 s9, s9, {WS_V}",
        "s_lshl_b32 s10, s26, 13", "s_lshl_b32 s55, s25, 8", "s_add_u32 s10, s10, s55", f"s_add_u32 s10, s10, {WS_FB}",
        "s_cmp_eq_u32 s26, 0", "s_cselect_b32 s11, 0, 0x7fe07fe0", "s_and_b32 s11, s11, s30")
    k.e("s_lshl_b32 s52, s24, 9", f"s_add_u32 s53, s52, {LK}", f"v_lshl_add_u32 v{AKE}, v{TK}, 4, s53", f"v_lshl_add_u32 v{AK}, v{H}, 13, v{AKE}",
        "s_mul_i32 s53, s24, 1280", f"s_add_u32 s53, s53, {LV}", f"v_mul_u32_u24 v{T1}, 320, v{H}", f"v_lshl_add_u32 v{T1}, v{TK}, 4, v{T1}", f"v_add_u32 v{AV}, s53, v{T1}",
        f"s_add_u32 s53, s52, {LQ}", f"v_lshl_add_u32 v{MX}, v{TK}, 4, s53", f"v_lshl_add_u32 v{MC}, v{H}, 12, v{MX}")
    k.e("s_lshl_b32 s27, s26, 3", "s_add_u32 s27, s27, s24")
    def s_init():
        k.e(f"v_lshlrev_b32 v{T1}, 2, v{H}", f"v_sub_u32 v{T1}, v{TK}, v{T1}", f"v_mov_b32 v{T2}, {NEGBIG}",
            "s_cmp_ge_u32 s27, 8", f"s_cselect_b32 s55, 0, {NEGBIG}", f"v_mov_b32 v{T3}, s55")
        for r in range(16):
            kk = (r & 3) + 8 * (r >> 2)
            k.e(f"v_cmp_le_i32 vcc, {kk}, v{T1}", f"v_cndmask_b32_e64 v{SB+128+r}, v{T2}, 0, vcc", f"v_cndmask_b32 v{SB+r}, v{T3}, v{T2}, vcc")
        for i in range(1, 8):
            k.e(f"s_cmp_ge_u32 s27, {8-i}", f"s_cselect_b32 s54, 0, {NEGBIG}", "s_mov_b32 s55, s54")
            for r in range(0, 16, 2): k.e(f"v_mov_b64 {v(SB+16*i+r,2)}, s[54:55]")
        k.e(f"s_mov_b32 s54, {ONES}", f"s_mov_b32 s55, {ONES}")
        for r in range(0, 12, 2): k.e(f"v_mov_b64 {v(VB+r,2)}, s[54:55]")
        k.e(f"v_mov_b32 v{OA}, {ONES}", f"v_mov_b32 v{OA+1}, 0x3f80", f"v_mov_b64 {v(OA+2,2)}, 0", f"v_mov_b64 {v(MB+2,2)}, 0")
    k.e("s_bitcmp1_b32 s25, 0", "s_cselect_b32 s28, 0, -1", "s_cselect_b32 s56, -1, 0", "s_mov_b32 s29, 0", "s_mov_b32 s57, 0",
        "s_mov_b32 s58, 0x000fffff", "s_mov_b32 s59, 0x000fffff")
    k.e("s_cmp_lt_u32 s24, 4", f"s_cbranch_scc1 {k.lab('b_k')}")
    k.e(f"v_and_b32 v{T0}, 15, v{L}", f"v_mul_u32_u24 v{T0}, 1280, v{T0}", f"v_lshrrev_b32 v{T1}, 4, v{L}", f"v_lshl_add_u32 v{T0}, v{T1}, 3, v{T0}",
        "s_lshl_b32 s52, s25, 2", "s_add_u32 s52, s52, s31", "s_mul_i32 s52, s52, 20480", "s_add_u32 s52, s52, s60")
    for f in range(5): k.e(f"buffer_load_dwordx2 {v(HRES+2*f,2)}, v{T0}, s[12:15], s52 offen offset:{32*f}")
    for i in range(5):
        k.e(f"v_add_u32 v{T0}, {64*i}, v{L}", f"v_mul_u32_u24 v{T1}, 3277, v{T0}", f"v_lshrrev_b32 v{T1}, 16, v{T1}",
            f"v_mul_u32_u24 v{T1}, {10240-320}, v{T1}", f"v_lshl_add_u32 v{VV+i}, v{T0}, 4, v{T1}")
        if i % 4: k.e(f"v_subrev_u32 v{VV+i}, {1024*(i%4)}, v{VV+i}")
    s_init()
    k.e("s_cmp_ge_u32 s2, 240", f"s_cbranch_scc1 {k.lab('b_sp')}", "s_barrier")
    k.label("b_sp")
    stamp(k, 8)
    d_map(k); d_wsetup(k)
    k.e("s_lshl_b32 s53, s31, 10")
    k.e("s_cmp_lg_u32 s24, 4", f"s_cbranch_scc1 {k.lab('b_np')}", f"v_lshlrev_b32 v{T2}, 2, v{L}")
    poll(k, T2, "s10", T0, "s11", "s30")
    k.label("b_np")
    k.e("s_barrier")
    stamp(k, 7)
    for p_ in range(3):
        k.e(f"s_add_u32 m0, s53, {LQ+4096*p_}", f"s_add_u32 s54, s{4+p_}, s8", f"buffer_load_dwordx4 v{L16}, s[20:23], s54 offen{SC} lds")
    k.e("s_mul_i32 s52, s31, 5120", f"s_add_u32 m0, s52, {LV}")
    for i in range(5):
        if i == 4: k.e(f"s_add_u32 m0, s52, {LV+4096}")
        k.e(f"buffer_load_dwordx4 v{VV+i}, s[20:23], s9 offen offset:{1024*(i%4)}{SC} lds")
    k.e("s_waitcnt vmcnt(5)", f"s_branch {k.lab('b_go')}")
    k.label("b_k")
    d_map(k); d_wsetup(k)
    wv_offsets(k, VV, 2, 16)
    k.e("s_mul_i32 s9, s31, 204800", "s_add_u32 s9, s9, s60", "s_add_u32 s9, s9, 20480", "s_and_b32 s8, s31, 1", "s_lshl_b32 s8, s8, 1", "s_lshr_b32 s10, s31, 1",
        "s_add_u32 s8, s8, s10", "s_mul_i32 s8, s8, 5120", "s_lshl_b32 s52, s31, 11")
    for r in range(0, 10, 2): k.e(f"v_mov_b64 {v(HRES+r,2)}, 0")
    stamp(k, 8)
    k.e("s_barrier")
    stamp(k, 7)
    for p_ in range(3):
        k.e(f"s_add_u32 m0, s52, {LK+8192*p_}", f"s_add_u32 s54, s{4+p_}, s7", f"buffer_load_dwordx4 v{L16}, s[20:23], s54 offen{SC} lds",
            f"buffer_load_dwordx4 v{L16}, s[20:23], s54 offen offset:1024{SC} lds")
    s_init()
    for x in step_dma(VV, 8, 9, 6 * 5120): k.e(*x)
    k.e("s_waitcnt vmcnt(5)")
    k.label("b_go")
    k.e("s_barrier")
    stamp(k, 9)
    def kread(i):
        b = KB + 8 * (i % 3)
        return [f"ds_read_b128 v[{b}:{b+3}], v{AK} offset:{512*i}", f"ds_read_b128 v[{b+4}:{b+7}], v{AKE} offset:{512*i+16384}"]
    def vread(n):
        b = VB + 4 * (n % 3)
        return ["s_mov_b64 exec, s[58:59]", f"ds_read_b128 v[{b}:{b+3}], v{AV} offset:{640*n}", "s_mov_b64 exec, -1"]
    def maxops(i):
        sb = SB + 16 * i
        o = []
        if i == 0:
            o.append(f"v_max_f32 v{MX}, v{sb}, v{sb+1}"); o.append(f"v_max_f32 v{MC}, v{sb+2}, v{sb+3}")
            rs = list(range(4, 16))
        else: rs = list(range(16))
        for j in range(0, len(rs), 2):
            d = MX if (j // 2) % 2 == 0 else MC
            o.append(f"v_max3_f32 v{d}, v{sb+rs[j]}, v{sb+rs[j+1]}, v{d}")
        return o
    k.e(f"ds_read_b128 v[{QM}:{QM+3}], v{MC}", f"ds_read_b128 v[{QE}:{QE+3}], v{MX} offset:8192")
    k.e(*kread(0)); k.e(*kread(1))
    k.e("s_waitcnt lgkmcnt(4)")
    k.e(f"v_cndmask_b32_e64 v{QE}, 0, v{QE}, s[28:29]", f"v_cndmask_b32_e64 v{QE+1}, 0, v{QE+1}, s[28:29]",
        f"v_cndmask_b32_e64 v{QE+2}, 0, v{QE+2}, s[56:57]", f"v_cndmask_b32_e64 v{QE+3}, 0, v{QE+3}, s[56:57]")
    W0 = (24, 28, 84)
    k.e("s_lshr_b32 s8, s24, 2", "s_mul_i32 s9, s8, 3072", f"s_add_u32 s9, s9, s{DLP}", "s_mul_i32 s8, s8, 49152", f"s_add_u32 s8, s8, s{DSW}", f"s_add_u32 s9, s9, {d_w(0)}")
    k.e(*d_wadv())
    wo = [[f"buffer_load_dwordx4 {v(W0[i],4)}, v{DW+i}, s[32:35], s8 offen offset:{1024*i}"] for i in range(3)] + wo
    WQ = [0, 1, 2]; WS_ = list(range(3, 13))
    if opt("wo3"): WQ = [0, 1, 2, 6, 8]; WS_ = list(range(0, 12, 3)) + [10, 11, 12, 13]
    for i in range(9):
        b = KB + 8 * (i % 3); sb = SB + 16 * i
        k.e(f"s_waitcnt lgkmcnt({2 if i < 8 else 0})")
        mf = [f"v_mfma_f32_32x32x16_bf16 {v(sb,16)}, {v(b,4)}, {v(QM,4)}, {v(sb,16)}",
              f"v_mfma_f32_32x32x16_bf16 {v(sb,16)}, {v(b+4,4)}, {v(QE,4)}, {v(sb,16)}"]
        fill = []
        if i + 2 < 9: fill += kread(i + 2)
        if i >= 2: fill += maxops(i - 2)
        if i in WQ: fill.append(wo[WQ.index(i)])
        k.e(*interleave(mf, fill))
    k.e(*maxops(7)); k.e(*maxops(8))
    k.e(f"s_waitcnt vmcnt({len(WQ)})", "s_barrier")
    stamp(k, 10)
    rest_ = wo[len(WQ):]
    k.e(*vread(0)); k.e(*vread(1))
    k.e(f"v_max_f32 v{MX}, v{MX}, v{MC}", f"v_mov_b32 v{MC}, v{MX}", f"v_permlane32_swap_b32 v{MC}, v{MX}", f"v_max_f32 v{MX}, v{MX}, v{MC}")
    split3(k, MX, MB, MB + 1, T0, T1, neg=True)
    k.e(f"v_cmp_gt_u32 vcc, 32, v{L}", f"v_cndmask_b32 v{MB}, 0, v{MB}, vcc", f"v_cndmask_b32 v{MB+1}, 0, v{MB+1}, vcc")
    def sub(i): return f"v_mfma_f32_32x32x16_bf16 {v(SB+16*i,16)}, {v(OA,4)}, {v(MB,4)}, {v(SB+16*i,16)}"
    def soft(i, u):
        sb = SB + 16 * i + 8 * u
        o = [f"v_exp_f32 v{sb+r}, v{sb+r}" for r in range(8)]
        o += [f"v_cvt_pk_bf16_f32 v{sb+j}, v{sb+2*j}, v{sb+2*j+1}" for j in range(4)]
        return o
    k.e(sub(0), sub(1))
    k.e(*soft(0, 0))
    for n in range(18):
        i, u = divmod(n, 2)
        sb = SB + 16 * i + 8 * u
        b = VB + 4 * (n % 3)
        nxt = soft(*divmod(n + 1, 2)) if n + 1 < 18 else []
        k.e(*nxt[:3])
        k.e(f"s_waitcnt lgkmcnt({1 if n < 17 else 0})")
        k.e(f"v_mfma_f32_32x32x16_bf16 {v(O,16)}, {v(b,4)}, {v(sb,4)}, {'0' if n == 0 else v(O,16)}")
        if n + 2 < 18: k.e(*vread(n + 2))
        k.e(*nxt[3:7])
        if u == 0 and i + 2 < 9: k.e(sub(i + 2))
        if n in WS_: k.e(*rest_[WS_.index(n)])
        k.e(*nxt[7:])
    k.e(f"v_add_u32 v{T0}, s9, v{L16}", "s_waitcnt vmcnt(10)")
    for i in range(3): k.e(f"ds_write_b128 v{T0}, {v(W0[i],4)} offset:{1024*i}")
    k.e(f"v_lshrrev_b32 v{T0}, 4, v{TK}", f"v_mul_u32_u24 v{T0}, 20480, v{T0}", f"v_and_b32 v{T1}, 15, v{L}",
        f"v_lshl_add_u32 v{T3}, v{T1}, 3, v{T0}", f"v_lshl_add_u32 v{T0}, v{T1}, 4, v{T0}", f"v_lshl_add_u32 v{T1}, v{H}, 8, v{T0}")
    k.e("s_mul_i32 s52, s27, 40960", f"s_add_u32 s52, s52, {WS_O}", "s_lshl_b32 s53, s25, 9", "s_add_u32 s53, s53, s52",
        "s_lshl_b32 s54, s25, 7", "s_add_u32 s54, s54, s52", "s_add_u32 s54, s54, 16384")
    k.e(f"v_rcp_f32 v{T2}, v{O+12}")
    for r in range(12): k.e(f"v_mul_f32 v{O+r}, v{O+r}, v{T2}")
    for j in range(6): k.e(f"v_cvt_pk_bf16_f32 v{O+j}, v{O+2*j}, v{O+2*j+1}")
    k.e(f"buffer_store_dwordx4 v[{O}:{O+3}], v{T1}, s[20:23], s53 offen sc1")
    k.e("s_mov_b32 exec_hi, 0", f"buffer_store_dwordx2 v[{O+4}:{O+5}], v{T3}, s[20:23], s54 offen sc1", "s_mov_b64 exec, -1")
    k.e("s_lshl_b32 s52, s26, 12", "s_lshl_b32 s53, s25, 2", "s_add_u32 s52, s52, s53", f"s_add_u32 s52, s52, {WS_FC}", f"v_lshlrev_b32 v{T0}, 7, v{L}")
    stamp(k, 11)
    k.e("s_waitcnt vmcnt(0) lgkmcnt(0)", "s_barrier")
    stamp(k, 12)
    push_flags(k, 52, T0, -1)
    k.e("s_cmp_lt_u32 s2, 240", f"s_cbranch_scc1 {k.lab('b_end')}", "s_cmp_lt_u32 s24, 4", f"s_cbranch_scc1 {k.lab('b_end')}",
        "s_lshl_b32 s52, s2, 2", "s_lshl_b32 s53, s24, 13", "s_add_u32 s52, s52, s53", f"s_add_u32 s52, s52, {WS_FD+64-960-32768}",
        f"buffer_store_dword v{T3}, v{T0}, s[20:23], s52 offen sc1")
    k.label("b_end")

WR, ACT, ACC = 96, 56, 36
LA, NAT, XA = 20, 22, 24
TOK = 31
DW = 32
def ce_setup(k, khs, set2, xb):
    k.e("s_and_b32 s52, s2, 7", "s_lshr_b32 s53, s2, 3", "s_lshr_b32 s54, s53, 3", "s_lshl_b32 s25, s52, 2", "s_add_u32 s25, s25, s54",
        "s_and_b32 s26, s53, 7", "s_and_b32 s28, s24, 3", "s_lshr_b32 s29, s24, 2")
    k.e(f"v_bfe_u32 v{T0}, v{L}, 2, 3", f"v_lshl_add_u32 v{T0}, v{H}, 4, v{T0}", f"v_mul_u32_u24 v{T0}, 160, v{T0}",
        f"v_and_b32 v{T1}, 3, v{L}", f"v_lshl_add_u32 v{T0}, v{T1}, 3, v{T0}", f"s_mul_i32 s53, s29, {khs}", f"v_add_u32 v{LA}, s53, v{T0}",
        f"v_add_u32 v{LA+1}, {set2}, v{LA}")
def ce_setup2(k, xb):
    k.e(f"v_lshrrev_b32 v{T1}, 4, v{L}", f"v_and_b32 v{TOK}, 15, v{L}",
        "s_lshl_b32 s52, s25, 2", "s_add_u32 s27, s52, s28", "s_mul_i32 s52, s27, 20480", "s_mul_i32 s53, s26, 160", "s_add_u32 s30, s52, s53",
        f"v_mul_u32_u24 v{NAT}, 1280, v{TOK}", f"v_lshl_add_u32 v{NAT+1}, v{T1}, 3, v{NAT}",
        f"v_lshl_add_u32 v{NAT}, v{H}, 4, v{NAT}", f"v_bfe_u32 v{T0}, v{L}, 4, 1", f"v_lshl_add_u32 v{NAT}, v{T0}, 5, v{NAT}",
        "s_mul_i32 s52, s28, 5120", f"s_add_u32 s52, s52, {xb}", f"v_add_u32 v{XA}, s52, v{L16}")
def w_reads(st, off, dst):
    return [f"ds_read_b64_tr_b16 v[{dst+4*f+2*u}:{dst+4*f+2*u+1}], v{LA+st} offset:{off+1280*u+32*f}" for f in range(5) for u in range(2)]
def ce_mfma(wb, ab):
    return [f"v_mfma_f32_16x16x32_bf16 {v(ACC+4*f,4)}, {v(wb+4*f,4)}, {v(ab,4)}, {v(ACC+4*f,4)}" for f in range(5)]
def unpack(k, src):
    for j in range(10): k.e(f"v_lshlrev_b32 v{ACC+2*j}, 16, v{src+j}", f"v_and_b32 v{ACC+2*j+1}, 0xffff0000, v{src+j}")
def swaps(k, y):
    for j in (0, 1, 4, 5): k.e(f"v_permlane16_swap_b32 v{y+j}, v{y+j+2}")
def ce_epilogue(k, out, skip, pref, k0=()):
    X = WR
    k.e("s_cmp_lg_u32 s29, 0", f"s_cbranch_scc1 {k.lab(pref + '_k1')}")
    for f in range(5): k.e(f"ds_write_b128 v{XA}, {v(ACC+4*f,4)} offset:{1024*f}")
    k.e(*k0)
    k.e("s_waitcnt lgkmcnt(0)", "s_barrier", f"s_branch {k.lab(skip)}")
    k.label(pref + "_k1")
    k.e("s_barrier")
    for f in range(5): k.e(f"ds_read_b128 {v(X+4*f,4)}, v{XA} offset:{1024*f}")
    for f in range(5):
        k.e(f"s_waitcnt lgkmcnt({4-f})")
        for r in (4 * f, 4 * f + 2): k.e(f"v_pk_add_f32 {v(ACC+r,2)}, {v(ACC+r,2)}, {v(X+r,2)}")
        for j in (2 * f, 2 * f + 1): k.e(f"v_cvt_pk_bf16_f32 v{out+j}, v{ACC+2*j}, v{ACC+2*j+1}")

def d_w(st): p = (st + 3) % 4; return 40960 * p + (16384 if p & 1 else 0)
def d_h(st): p = (st + 3) % 4; return 40960 * p + (0 if p & 1 else 24576)
DRB, DNB, DROT, DSW, DLIM, DLP = 96, 97, 98, 99, 38, 39
def d_map(k):
    k.e("s_and_b32 s52, s2, 7", "s_lshr_b32 s53, s2, 3", "s_lshr_b32 s54, s53, 3", "s_lshr_b32 s55, s52, 1", f"s_lshl_b32 s{DRB}, s55, 2", f"s_add_u32 s{DRB}, s{DRB}, s54",
        "s_and_b32 s52, s52, 1", "s_lshl_b32 s52, s52, 3", "s_and_b32 s53, s53, 7", f"s_add_u32 s{DNB}, s52, s53",
        "s_mul_i32 s54, s54, 5", "s_add_u32 s54, s54, 1", "s_lshr_b32 s54, s54, 1", "s_add_u32 s54, s54, s55", f"s_add_u32 s54, s54, s{DNB}",
        "s_cmp_ge_u32 s54, 20", "s_cselect_b32 s55, 20, 0", "s_sub_u32 s54, s54, s55",
        "s_cmp_ge_u32 s54, 10", "s_cselect_b32 s55, 10, 0", f"s_sub_u32 s{DROT}, s54, s55")
def d_wsetup(k):
    k.e("s_bitcmp1_b32 s24, 1", f"s_cselect_b32 s32, s{KW3}, s{KW1}", f"s_cselect_b32 s33, s{KW3+1}, s{KW1+1}", f"s_mov_b32 s34, {640*3072}", "s_mov_b32 s35, 0x20000",
        "s_cselect_b32 s52, 2, 0")
    for i in range(3):
        k.e(f"v_add_u32 v{T0}, {64*i}, v{L}", f"v_mul_u32_u24 v{T1}, 5462, v{T0}", f"v_lshrrev_b32 v{T1}, 16, v{T1}",
            f"v_xor_b32 v{T0}, s52, v{T0}", f"v_mul_u32_u24 v{T1}, {3072-192}, v{T1}", f"v_lshl_add_u32 v{DW+i}, v{T0}, 4, v{T1}")
        if i: k.e(f"v_subrev_u32 v{DW+i}, {1024*i}, v{DW+i}")
    k.e("s_and_b32 s52, s24, 3", f"s_mul_i32 s{DLP}, s52, 6144", "s_and_b32 s52, s24, 1", "s_mul_i32 s52, s52, 98304", f"s_mul_i32 s53, s{DNB}, 192", "s_add_u32 s52, s52, s53",
        f"s_add_u32 s{DLIM}, s52, {640*3072}", f"s_mul_i32 s53, s{DROT}, {64*3072}", f"s_add_u32 s{DSW}, s52, s53")
def d_wtriple(lds_s, lds_add, soff):
    return [f"s_add_u32 m0, s{lds_s}, {lds_add}"] + [f"buffer_load_dwordx4 v{DW+i}, s[32:35], s{soff} offen offset:{1024*i} lds" for i in range(3)]
def d_wadv():
    return [f"s_add_u32 s{DSW}, s{DSW}, {64*3072}", f"s_cmp_ge_u32 s{DSW}, s{DLIM}", f"s_cselect_b32 s52, {640*3072}, 0", f"s_sub_u32 s{DSW}, s{DSW}, s52"]
def d_wstage(st):
    a = d_wtriple(DLP, d_w(st), DSW); b = d_wtriple(DLP, d_w(st) + 3072, 49)
    return [a[:2], [a[2]], [a[3]], [f"s_add_u32 s49, s{DSW}, 49152"] + b[:2], [b[2]], [b[3]] + d_wadv()]

PF1, PF2 = map(int, ([a[4:] for a in sys.argv if a.startswith('-pf=')] + ['11'])[0])
def phase_c(k):
    LE = 35
    ce_setup(k, 5120, 51200, LX)
    def cpos(i):
        o = 10240 * (i + 2 * (i >= 3)) if i < 8 else 10240 * (i - 5)
        return (1, o - 51200) if o >= 51200 else (0, o)
    for i in range(8): k.e(*w_reads(*cpos(i), WR + 20 * i))
    ce_setup2(k, LX)
    HA, SA, FA = 25, 27, 28
    k.e("s_mul_i32 s52, s27, 20480", f"s_add_u32 s52, s52, {WS_O}", "s_lshl_b32 s54, s29, 13", "s_add_u32 s54, s54, s52")
    for i in range(8): k.e(f"s_add_u32 s53, s26, {i}", "s_and_b32 s53, s53, 7", "s_lshl_b32 s53, s53, 10", f"s_add_u32 s{4+i}, s53, s54")
    k.e("s_lshl_b32 s53, s29, 11", "s_add_u32 s56, s52, s53", "s_add_u32 s56, s56, 16384",
        f"v_lshlrev_b32 v{LE}, 9, v{H}", f"v_bfe_u32 v{T0}, v{L}, 4, 1", f"v_lshl_add_u32 v{LE}, v{T0}, 7, v{LE}", f"v_lshl_add_u32 v{LE}, v{TOK}, 3, v{LE}")
    k.e("s_lshr_b32 s52, s27, 1", "s_mul_i32 s52, s52, 40960", "s_mul_i32 s53, s26, 5120", "s_add_u32 s52, s52, s53", "s_and_b32 s53, s28, 1", "s_lshl_b32 s53, s53, 8",
        "s_add_u32 s52, s52, s53", f"s_add_u32 s31, s52, {WS_H}",
        f"v_lshlrev_b32 v{T1}, 9, v{H}", f"v_lshl_add_u32 v{T1}, v{TOK}, 4, v{T1}", f"v_lshl_add_u32 v{HA}, v{T0}, 10, v{T1}", f"v_add_u32 v{HA+1}, 4096, v{T1}",
        "s_lshl_b32 s52, s27, 3", "s_add_u32 s52, s52, s26", "s_lshl_b32 s52, s52, 7", f"s_add_u32 s57, s52, {WS_HST}", f"v_lshlrev_b32 v{SA}, 3, v{TOK}",
        "s_lshr_b32 s52, s25, 1", "s_lshl_b32 s52, s52, 11", "s_and_b32 s53, s25, 1", "s_lshl_b32 s53, s53, 3", "s_add_u32 s53, s53, s26", "s_lshl_b32 s53, s53, 2",
        "s_add_u32 s52, s52, s53", f"s_add_u32 s58, s52, {WS_FD}", f"v_lshlrev_b32 v{FA}, 7, v{L}", f"s_mov_b32 s55, {ONES}")
    unpack(k, HRES)
    k.e("s_cmp_lg_u32 s24, 1", f"s_cbranch_scc1 {k.lab('c_np')}")
    k.e("s_lshl_b32 s52, s25, 3", "s_add_u32 s52, s52, s26", "s_lshl_b32 s52, s52, 7", f"s_add_u32 s52, s52, {WS_FC}", f"v_lshlrev_b32 v{T2}, 2, v{L}")
    poll(k, T2, "s52", T0, -1, 0)
    k.label("c_np")
    k.e("s_waitcnt lgkmcnt(0)", "s_barrier")
    stamp(k, 13)
    for i in range(8): k.e(f"buffer_load_dwordx4 {v(ACT+4*i,4)}, v{L16}, s[20:23], s{4+i} offen{SC}")
    for e in range(2):
        for u in range(2): k.e(f"buffer_load_dwordx2 {v(ACT+32+4*e+2*u,2)}, v{LE}, s[20:23], s56 offen offset:{1024*e+256*u}{SC}")
    for i in range(10):
        k.e(f"s_waitcnt vmcnt({11-i if i < 8 else 2*(9-i)})" + (f" lgkmcnt({10*(9-i)})" if i >= 8 else ""))
        if i == 0: stamp(k, 14)
        k.e(*ce_mfma(WR + 20 * (i % 8), ACT + 4 * i))
        if i in (1, 2): k.e(*w_reads(*cpos(i + 7), WR + 20 * (i - 1)))
    stamp(k, 15)
    ce_epilogue(k, HRES, "c_k0", "c", [x for st in range(1, 1 + PF1) for y in d_wstage(st) for x in y])
    Z, S1 = ACT, ACT + 4
    k.e(f"v_mov_b64 {v(Z,2)}, {v(HRES+8,2)}", f"v_mov_b64 {v(Z+2,2)}, {v(HRES+8,2)}", f"v_mov_b64 {v(S1,2)}, 0", f"v_mov_b64 {v(S1+2,2)}, 0")
    swaps(k, HRES)
    k.e(f"v_permlane16_swap_b32 v{Z}, v{Z+2}", f"v_permlane16_swap_b32 v{Z+1}, v{Z+3}")
    k.e(f"buffer_store_dwordx4 {v(HRES,4)}, v{HA}, s[20:23], s31 offen sc1", f"buffer_store_dwordx4 {v(HRES+4,4)}, v{HA}, s[20:23], s31 offen offset:2048 sc1",
        "s_mov_b32 exec_lo, 0xffff", "s_mov_b32 exec_hi, 0xffff", f"buffer_store_dwordx4 {v(Z,4)}, v{HA+1}, s[20:23], s31 offen sc1", "s_mov_b64 exec, -1")
    for j in range(10): k.e(f"v_dot2c_f32_bf16 v{S1+2*(j&1)}, s55, v{HRES+j}", f"v_dot2c_f32_bf16 v{S1+2*(j&1)+1}, v{HRES+j}, v{HRES+j}")
    k.e(f"v_pk_add_f32 {v(S1,2)}, {v(S1,2)}, {v(S1+2,2)}")
    for sw in ("v_permlane16_swap_b32", "v_permlane32_swap_b32"):
        k.e(f"v_mov_b64 {v(S1+2,2)}, {v(S1,2)}", f"{sw} v{S1+2}, v{S1}", f"{sw} v{S1+3}, v{S1+1}", f"v_pk_add_f32 {v(S1,2)}, {v(S1,2)}, {v(S1+2,2)}")
    k.e("s_mov_b64 exec, 0xffff", f"buffer_store_dwordx2 {v(S1,2)}, v{SA}, s[20:23], s57 offen sc1", "s_mov_b64 exec, -1")
    stamp(k, 16)
    k.e("s_waitcnt vmcnt(0)", f"s_branch {k.lab('c_pub')}")
    k.label("c_k0")
    for st in range(1 + PF1, 1 + PF2):
        for y in d_wstage(st): k.e(*y)
    stamp(k, 16)
    k.label("c_pub")
    k.e("s_barrier")
    stamp(k, 17)
    push_flags(k, 58, FA, "0xffff")

X6, X7, X8, X9 = 40960, 81920, 122880, 0
DMI = X6 + 5120
PK = 60
def e_soff(k, d, G, kh, isg):
    k.e(f"s_mul_i32 s{d}, s26, {ER}", f"s_add_u32 s{d}, s{d}, s{isg}", f"s_add_u32 s{d}, s{d}, {8*G}", f"s_cmp_ge_u32 s{d}, 24", f"s_cselect_b32 s61, {24*kh-24}, {24*kh}",
        f"s_add_u32 s{d}, s{d}, s61", f"s_mul_i32 s{d}, s{d}, 5120", f"s_add_u32 s{d}, s{d}, s58")

L4K = 35
def p_dma(lds_s, soff, lds_add):
    return [f"s_add_u32 m0, s{lds_s}, {lds_add}"] + [f"buffer_load_dwordx4 v{L16}, s[20:23], s{soff} offen offset:{1024*i}{SC} lds" for i in range(4)] + \
           [f"s_add_u32 m0, s{lds_s}, {lds_add+4096}", f"buffer_load_dwordx4 v{L4K}, s[20:23], s{soff} offen{SC} lds"]
def p_reads(st, off, dst):
    return [f"ds_read_b128 {v(dst+4*f,4)}, v{LA+st} offset:{off+1024*f}" for f in range(5)]
def p_base(k):
    k.e("s_mul_i32 s58, s26, 245760", f"s_add_u32 s58, s58, {WS_W2}", f"v_add_u32 v{L4K}, 4096, v{L16}")

def d_compute(k):
    AH, AW, AST, RI, AM = 20, 22, 31, 36, 32
    DA, FR = 160, 40
    ONE = 36
    for st in range(1 + PF2, 4):
        for y in d_wstage(st): k.e(*y)
    k.e("s_lshr_b32 s28, s24, 1", "s_and_b32 s29, s24, 1", "s_lshl_b32 s52, s28, 13", f"v_add_u32 v{AH}, s52, v{L16}", f"v_add_u32 v{AH+1}, 81920, v{AH}")
    k.e(f"v_bfe_u32 v{T0}, v{L}, 2, 2", f"v_lshl_add_u32 v{T0}, v{H}, 3, v{T0}", f"v_mul_u32_u24 v{T0}, 192, v{T0}", f"v_and_b32 v{T1}, 3, v{L}", f"v_lshl_add_u32 v{T0}, v{T1}, 3, v{T0}",
        f"v_bfe_u32 v{T1}, v{L}, 4, 1", f"v_mul_u32_u24 v{T2}, 12288, v{T1}", f"v_add_u32 v{T0}, v{T0}, v{T2}", "s_mul_i32 s52, s29, 3")
    for f in range(3):
        k.e(f"v_xor_b32 v{T2}, s52, v{T1}", f"v_lshl_add_u32 v{AW+f}, v{T2}, 5, v{T0}", f"v_add_u32 v{AW+3+f}, 57344, v{AW+f}", f"v_add_u32 v{AW+6+f}, 139264, v{AW+f}", "s_add_u32 s52, s52, 1")
    def buf(g): return FR + 20 * (g % 4 if g < 38 else g - 34)
    def hreads(g):
        st, ks = divmod(g, 4); o = d_h(st); S = o >= 81920
        return [f"ds_read_b128 {v(buf(g)+4*t,4)}, v{AH+S} offset:{o-81920*S+4096*t+1024*ks}" for t in range(2)]
    def wreads(g):
        st, ks = divmod(g, 4); o = d_w(st); S, b = {0: (0, 0), 57344: (1, 0), 81920: (1, 24576), 139264: (2, 0)}[o]
        return [f"ds_read_b64_tr_b16 {v(buf(g)+8+4*f+2*u,2)}, v{AW+3*S+f} offset:{b+3072*ks+768*u}" for f in range(3) for u in range(2)]
    for g in range(4): k.e(*wreads(g))
    XO, CS = FR + 80, FR + 88
    k.e(f"v_lshrrev_b32 v{T0}, 4, v{TK}", f"v_mul_u32_u24 v{T0}, 49152, v{T0}", f"v_and_b32 v{T1}, 15, v{L}", f"v_lshl_add_u32 v{T0}, v{T1}, 4, v{T0}", f"v_lshl_add_u32 v{AST}, v{H}, 8, v{T0}",
        f"s_lshl_b32 s52, s{DRB}, 1", "s_add_u32 s52, s52, s28", f"s_mul_i32 s52, s52, {4*49152}", f"s_lshl_b32 s53, s{DNB}, 1", "s_add_u32 s53, s53, s29", "s_mul_i32 s54, s53, 1536",
        "s_add_u32 s52, s52, s54", f"s_add_u32 s4, s52, {WS_A}", f"s_add_u32 s5, s4, {2*49152}",
        "s_lshl_b32 s52, s28, 9", f"s_add_u32 s52, s52, {DMI}", f"v_lshl_add_u32 v{AM}, v{TK}, 3, s52",
        "s_mul_i32 s52, s29, 768", f"s_add_u32 s52, s52, {DMI+2048}", f"v_lshl_add_u32 v{AM+1}, v{TK}, 3, s52")
    for r in range(20): k.e(f"v_mov_b32 v{XO+r}, 0")
    k.e("s_cmp_lt_u32 s24, 2", f"s_cbranch_scc1 {k.lab('d_ncs')}")
    for r in range(4): k.e(f"v_mov_b32 v{ONE+r}, {ONES}")
    k.e(f"s_mul_i32 s52, s{DNB}, 15360", f"s_mul_i32 s53, s{DROT}, 1536", "s_add_u32 s52, s52, s53", "s_mul_i32 s53, s29, 768", "s_add_u32 s52, s52, s53", f"s_add_u32 s52, s52, {WS_CS}",
        f"v_lshlrev_b32 v{T0}, 3, v{TK}", "s_waitcnt lgkmcnt(0)")
    for g in range(4):
        for f in range(3): k.e(f"v_mfma_f32_32x32x16_bf16 {v(DA+16*f,16)}, {v(ONE,4)}, {v(buf(g)+8+4*f,4)}, {'0' if g == 0 else v(DA+16*f,16)}")
    k.e("s_mov_b32 exec_hi, 0")
    for f in range(3):
        k.e(f"v_mov_b32 v{DA+16*f+1}, s{TAG}", f"buffer_store_dwordx2 {v(DA+16*f,2)}, v{T0}, s[20:23], s52 offen offset:{256*f} sc1")
    k.e("s_mov_b64 exec, -1")
    k.label("d_ncs")
    k.e("s_barrier")
    stamp(k, 18)
    k.e("s_waitcnt vmcnt(0)", "s_barrier")
    stamp(k, 19)
    lg = VM()
    def rd(ops, tag):
        lg.add(tag, len(ops)); return ops
    def lw(tag):
        if tag not in lg.q: return []
        w = lg.wait(tag); n = int(w[w.index("(") + 1:-1])
        return [f"s_waitcnt lgkmcnt({min(n, 15)})"]
    def mf(g, t, f):
        d = DA + 48 * t + 16 * f
        return f"v_mfma_f32_32x32x16_bf16 {v(d,16)}, {v(buf(g)+8+4*f,4)}, {v(buf(g)+4*t,4)}, {'0' if g == 0 else v(d,16)}"
    k.e(*rd(hreads(0), 0)); k.e(*rd(hreads(1), 1))
    for g in range(36):
        if g % 4 == 2:
            k.e("s_waitcnt lgkmcnt(0)")
            if g // 4 < 8: dstamp(k, "D", 10 + g // 4)
            k.e("s_barrier"); lg.q = []
            dstamp(k, "D", 1 + g // 4)
        else: k.e(*lw(g))
        fill = []
        for n in ([g + 2] if g < 34 else [36, 39] if g == 34 else [37, 38]):
            fill += rd(hreads(n) + (wreads(n) if n >= 4 else []), n)
        if g == 30:
            fill.append(["s_mov_b32 exec_hi, 0"] + rd([f"ds_read_b64 {v(XO+4*t,2)}, v{AM} offset:{256*t}" for t in range(2)], 32) + ["s_mov_b64 exec, -1"])
            fill += rd([f"ds_read_b64 {v(CS+4*f,2)}, v{AM+1} offset:{256*f}" for f in range(3)] + [f"ds_read_b64 {v(RI+2*t,2)}, v{AM} offset:{1024+256*t}" for t in range(2)], 32)
        m = [mf(g, t, f) for t in range(2) for f in range(3)]
        if g in (32, 33):
            t = g - 32
            m = [f"v_mfma_f32_32x32x16_bf16 {v(DA+48*t+16*f,16)}, {v(CS+4*f,4)}, {v(XO+4*t,4)}, {v(DA+48*t+16*f,16)}" for f in range(3)] + m
        k.e(*interleave(m, fill))
    k.e("s_waitcnt lgkmcnt(0)")
    TM = FR + 40
    def epi(t, f, packed):
        d = DA + 48 * t + 16 * f; e = TM + 8 * ((3 * t + f) & 1)
        rn, ir = RI + 2 * t, RI + 2 * t + 1
        s1, s2 = [], []
        if packed:
            s1 += [f"v_pk_mul_f32 {v(e+r,2)}, {v(d+r,2)}, {v(rn,2)} op_sel:[0,0] op_sel_hi:[1,0]" for r in range(0, 8, 2)]
            s1 += [f"v_exp_f32 v{e+r}, v{e+r}" for r in range(8)]
            s1 += [f"v_pk_fma_f32 {v(e+r,2)}, {v(e+r,2)}, {v(rn,2)}, {v(rn,2)} op_sel:[0,1,1] op_sel_hi:[1,1,1]" for r in range(0, 8, 2)]
            s1 += [f"v_rcp_f32 v{e+r}, v{e+r}" for r in range(8)]
            s2 += [f"v_pk_mul_f32 {v(d+r,2)}, {v(d+r,2)}, {v(d+8+r,2)}" for r in range(0, 8, 2)]
            s2 += [f"v_pk_mul_f32 {v(d+r,2)}, {v(d+r,2)}, {v(e+r,2)}" for r in range(0, 8, 2)]
        else:
            s1 += [f"v_mul_f32 v{e+r}, v{d+r}, v{rn}" for r in range(8)]
            s1 += [f"v_exp_f32 v{e+r}, v{e+r}" for r in range(8)]
            s1 += [f"v_fma_f32 v{e+r}, v{e+r}, v{ir}, v{ir}" for r in range(8)]
            s1 += [f"v_rcp_f32 v{e+r}, v{e+r}" for r in range(8)]
            s2 += [f"v_mul_f32 v{d+r}, v{d+r}, v{d+8+r}" for r in range(8)]
            s2 += [f"v_mul_f32 v{d+r}, v{d+r}, v{e+r}" for r in range(8)]
        s2 += [f"v_cvt_pk_bf16_f32 v{d+j}, v{d+2*j}, v{d+2*j+1}" for j in range(4)]
        s2.append(f"buffer_store_dwordx4 {v(d,4)}, v{AST}, s[20:23], s{4+t} offen offset:{512*f} sc1")
        return s1 + s2
    tiles = [(t, f) for t in range(2) for f in range(3)]
    for t, f in tiles: k.e(*[mf(g, t, f) for g in range(36, 40)])
    stamp(k, 20)
    for n, (t, f) in enumerate(tiles):
        k.e(*epi(t, f, True))
        if n == 2: k.e("s_barrier")
    stamp(k, 21)

def d_loader(k):
    D = 40
    vm = VM()
    k.e("s_sub_u32 s31, s24, 4")
    for st in range(3): k.e(*d_wadv())
    k.e(
        f"s_lshl_b32 s52, s{DRB}, 2", "s_add_u32 s52, s52, s31", "s_mul_i32 s52, s52, 40960", f"s_add_u32 s52, s52, {WS_H}", "s_add_u32 s57, s52, 40960",
        f"s_lshl_b32 s53, s{DROT}, 12", "s_add_u32 s56, s52, s53", "s_lshl_b32 s55, s31, 12")
    p_base(k)
    PH, PC = 36, 37
    k.e(f"v_lshrrev_b32 v{T0}, 4, v{L}", f"v_and_b32 v{T1}, 15, v{L}", f"v_lshlrev_b32 v{T1}, 3, v{T1}", f"v_lshl_add_u32 v{PH}, v{T0}, 9, v{T1}", f"v_lshlrev_b32 v{PC}, 3, v{L}",
        f"s_lshl_b32 s52, s{DRB}, 2", "s_add_u32 s52, s52, s31", "s_lshl_b32 s52, s52, 11", f"s_add_u32 s4, s52, {WS_HST}",
        "s_min_u32 s9, s31, 2", "s_lshl_b32 s9, s9, 9", f"s_mul_i32 s52, s{DNB}, 15360", "s_add_u32 s52, s52, s9", f"s_add_u32 s5, s52, {WS_CS}",
        "s_add_u32 s6, s5, 4608", "s_add_u32 s7, s5, 9216", "s_add_u32 s8, s5, 13824")
    k.e("s_cmp_lg_u32 s24, 4", f"s_cbranch_scc1 {k.lab('d_np')}")
    k.e(f"s_lshl_b32 s52, s{DRB}, 4", f"s_add_u32 s52, s52, s{DNB}", "s_lshl_b32 s52, s52, 7", f"s_add_u32 s52, s52, {WS_FD}", f"v_lshlrev_b32 v{T2}, 2, v{L}")
    poll(k, T2, "s52", T0, -1, 0)
    k.label("d_np")
    k.e("s_barrier")
    stamp(k, 18)
    def hst(st):
        o = [[f"buffer_load_dwordx4 v{L16}, s[20:23], s56 offen offset:{1024*i}{SC} lds"] for i in range(4)]
        o[0].insert(0, f"s_add_u32 m0, s55, {d_h(st)}")
        o[3] += ["s_add_u32 s56, s56, 4096", "s_cmp_ge_u32 s56, s57", "s_cselect_b32 s52, 40960, 0", "s_sub_u32 s56, s56, s52"]
        return o
    pieces = [(st, x) for st in range(4) for x in hst(st)] + [(st, x) for st in range(4, 10) for x in d_wstage(st) + hst(st)]
    def issue(n):
        for _ in range(n):
            st, x = pieces.pop(0); k.e(*x); vm.add(st)
    QT = [int(c, 16) for c in ([a[4:] for a in sys.argv if a.startswith('-qt=')] + ['9996999'])[0]]
    CSJ = int(([a[5:] for a in sys.argv if a.startswith('-csj=')] + ['4'])[0])
    assert sum(QT) == 60 and all(sum(QT[:j]) <= 10 * j for j in range(8))
    def cs_loads(r=range(10)):
        for j in r: k.e(f"buffer_load_dwordx2 {v(D+16+2*j,2)}, v{PC}, s[20:23], s{5+j//3} offen offset:{1536*(j%3)} sc1")
    def w2(G, kh, b, base, tag):
        k.e("s_lshl_b32 s53, s31, 1", f"s_add_u32 s53, s53, {b}") ; e_soff(k, 54, G, kh, 53)
        k.e("s_mul_i32 s53, s53, 5120")
        k.e(*p_dma(53, 54, base))
        vm.add(tag, 5)
    issue(16)
    for i in range(4): k.e(f"buffer_load_dwordx2 {v(D+2*i,2)}, v{PH}, s[20:23], s4 offen offset:{128*i}{SC}")
    vm.add("pt", 4)
    k.e(vm.wait(0), "s_barrier")
    stamp(k, 19)
    for j in range(1, 10):
        if j < 9: dstamp(k, "D", 9 + j)
        k.e(vm.wait(j))
        dstamp(k, "D", j)
        k.e("s_barrier")
        if j == CSJ: cs_loads(); vm.add("pt", 10)
        if j <= 7: issue(QT[j - 1])
        if j == 6:
            k.e(vm.wait("pt"), "s_mov_b32 s61, 0")
            k.label("d_chk")
            k.e(f"v_xor_b32 v{T0}, s{TAG}, v{D+17}", f"v_xor_b32 v{T1}, s{TAG}, v{D+19}", f"v_or_b32 v{T0}, v{T0}, v{T1}")
            for i in range(2, 10, 2):
                k.e(f"v_xor_b32 v{T1}, s{TAG}, v{D+17+2*i}", f"v_xor_b32 v{T2}, s{TAG}, v{D+19+2*i}", f"v_or3_b32 v{T0}, v{T0}, v{T1}, v{T2}")
            k.e(f"v_cmp_ne_u32 vcc, 0, v{T0}", "s_add_u32 s61, s61, 1", f"s_cbranch_vccz {k.lab('d_ok')}", f"s_cmp_gt_u32 s61, {SPIN_MAX}", f"s_cbranch_scc1 {k.lab('d_ok')}")
            cs_loads()
            k.e("s_waitcnt vmcnt(0)", f"s_branch {k.lab('d_chk')}")
            k.label("d_ok")
            for i in range(1, 4): k.e(f"v_add_f32 v{D}, v{D}, v{D+2*i}", f"v_add_f32 v{D+1}, v{D+1}, v{D+2*i+1}")
            for i in range(1, 10): k.e(f"v_add_f32 v{D+16}, v{D+16}, v{D+16+2*i}")
            for x, t in ((D, T2), (D + 1, T3)):
                k.e(f"v_mov_b32 v{t}, v{x}", f"v_permlane16_swap_b32 v{t}, v{x}", f"v_add_f32 v{x}, v{t}, v{x}")
            ln_stats(k, D, D + 1, T0, T1, D + 4, D + 6, SD=D + 7)
            split3(k, D + 16, D + 8, D + 9, T0, T1)
            k.e(f"v_cvt_pk_bf16_f32 v{D+4}, -v{D+4}, -v{D+4}", f"v_and_b32 v{D+5}, 0xffff, v{D+4}",
                f"v_mul_f32 v{D+6}, {f32(-1.4426950408889634)}, v{D+6}", f"v_mul_f32 v{D+7}, v{D+7}, v{D+7}",
                f"v_and_b32 v{T0}, 15, v{L}", f"v_lshl_add_u32 v{T0}, v{H}, 4, v{T0}", "s_lshl_b32 s52, s31, 8", f"s_add_u32 s52, s52, {DMI}", f"v_lshl_add_u32 v{T0}, v{T0}, 3, s52",
                f"s_add_u32 s52, s9, {DMI+2048}", f"v_add_u32 v{T1}, s52, v{PC}")
        if j == 7:
            k.e(f"ds_write_b64 v{T0}, {v(D+4,2)}", f"ds_write_b64 v{T0}, {v(D+6,2)} offset:1024", f"ds_write_b64 v{T1}, {v(D+8,2)}")
            w2(1, 1, 0, X6, "x6")
            k.e("s_waitcnt lgkmcnt(0)")
        if j == 8:
            w2(0, 0, 0, X7, "x7"); w2(0, 0, 1, X7, "x7")
        if j == 9:
            w2(0, 1, 0, X8, "x8"); w2(0, 1, 1, X8, "x8"); w2(1, 1, 1, X6, "x6b")
    stamp(k, 20)
    k.e(vm.wait("x8"), "s_barrier")
    w2(1, 0, 0, X9, "x9"); w2(1, 0, 1, X9, "x9")
    stamp(k, 21)

def phase_d(k):
    k.e("s_cmp_lt_u32 s24, 4", f"s_cbranch_scc1 {k.lab('d_cmp')}")
    d_loader(k)
    k.e(f"s_branch {k.lab('d_done')}")
    k.label("d_cmp")
    d_compute(k)
    p_base(k)
    k.label("d_done")
    k.e("s_and_b32 s28, s24, 3", "s_lshr_b32 s29, s24, 2", "s_mul_i32 s53, s29, 40960", f"v_add_u32 v{LA}, s53, v{L16}", f"v_add_u32 v{LA+1}, 81920, v{LA}")
    for i in range(8): k.e(*p_reads(1, 5120 * i, WR + 20 * i))
    k.e(f"s_lshl_b32 s52, s{DRB}, 11", f"s_lshl_b32 s53, s{DNB}, 2", "s_add_u32 s52, s52, s53", f"s_add_u32 s52, s52, {WS_FE}", f"v_lshlrev_b32 v{T0}, 7, v{L}")
    e_soff(k, 54, 2, 0, 24); k.e(f"s_add_u32 s55, s54, {24*5120}", "s_mul_i32 s53, s24, 5120")
    k.e("s_waitcnt vmcnt(0) lgkmcnt(0)", "s_barrier")
    stamp(k, 22)
    push_flags(k, 52, T0, "0xffff")

def phase_e(k):
    k.e(*p_dma(53, 54, X7)); k.e(*p_dma(53, 55, X8))
    ce_setup2(k, 0)
    swaps(k, HRES)
    unpack(k, HRES)
    k.e("s_mul_i32 s52, s27, 49152", f"s_add_u32 s52, s52, {WS_A}", "s_mul_i32 s54, s29, 24576", "s_add_u32 s54, s54, s52",
        "s_add_u32 s5, s54, 24576", f"s_mul_i32 s4, s26, {1024*ER}", "s_add_u32 s4, s4, s54", "s_mov_b32 s6, s54")
    srd(k, 12, KOUT, X_BYTES)
    k.e("s_cmp_lg_u32 s24, 1", f"s_cbranch_scc1 {k.lab('e_np')}")
    k.e("s_lshl_b32 s52, s25, 3", "s_add_u32 s52, s52, s26", "s_lshl_b32 s52, s52, 7", f"s_add_u32 s52, s52, {WS_FE}", f"v_lshlrev_b32 v{T2}, 2, v{L}")
    poll(k, T2, "s52", T0, 0xffff, 0)
    k.label("e_np")
    k.e("s_xor_b32 s52, s24, 2", "s_or_b32 s52, s52, s2", "s_cmp_lg_u32 s52, 0", f"s_cbranch_scc1 {k.lab('e_ne')}")
    k.e(f"v_lshrrev_b32 v{T0}, 3, v{L}", f"v_and_b32 v{T1}, 7, v{L}", f"v_lshlrev_b32 v{T1}, 4, v{T1}", f"v_lshl_add_u32 v{T2}, v{T0}, 12, v{T1}", f"s_mov_b32 s52, {WS_FC}")
    poll(k, T2, "s52", ACT, -1, -1, x4=True)
    k.e(f"v_mov_b32 v{T0}, 0", f"v_mov_b32 v{T1}, s{TAG}", f"s_mov_b32 s52, {WS_EP}", "s_mov_b64 exec, 1", f"buffer_store_dword v{T1}, v{T0}, s[20:23], s52 offen sc1", "s_mov_b64 exec, -1")
    k.label("e_ne")
    k.e("s_waitcnt vmcnt(0)", "s_barrier")
    stamp(k, 23)
    def ald(n): return [f"buffer_load_dwordx4 {v(ACT+4*(n%10),4)}, v{L16}, s[20:23], s4 offen{SC}", "s_add_u32 s4, s4, 1024", "s_cmp_ge_u32 s4, s5", "s_cselect_b32 s4, s6, s4"]
    ED = int(([a[4:] for a in sys.argv if a.startswith('-ed=')] + ['6'])[0])
    for n in range(ED): k.e(*ald(n))
    for n in range(24):
        issued = min(24, n + ED)
        w = f"s_waitcnt vmcnt({issued-1-n})"
        if 8 <= n: w += f" lgkmcnt({10 if n <= 17 else 0})"
        k.e(w)
        if n == 0: stamp(k, 24)
        fill = []
        if n + ED < 24: fill.append(ald(n + ED))
        if 1 <= n <= 16 and not opt('e_nolds'): fill += p_reads(0 if n <= 8 else 1, 5120 * ((n - 1) % 8), WR + 20 * ((n - 1) % 8))
        k.e(*interleave(ce_mfma(WR + 20 * (n % 8), ACT + 4 * (n % 10))[:(1 if opt('e_nomf') else 5)], fill))
        if n == 24 - ED: k.e("s_barrier")
    stamp(k, 25)
    ce_epilogue(k, HRES, "fin", "e")
    swaps(k, HRES)
    k.e(f"buffer_store_dwordx2 {v(HRES+8,2)}, v{NAT+1}, s[12:15], s30 offen offset:128",
        f"buffer_store_dwordx4 {v(HRES,4)}, v{NAT}, s[12:15], s30 offen", f"buffer_store_dwordx4 {v(HRES+4,4)}, v{NAT}, s[12:15], s30 offen offset:64")

def rest(k):
    phase_b(k)
    if G.UPTO == "B": return
    phase_c(k)
    if G.UPTO == "C": return
    phase_d(k)
    if G.UPTO == "D": return
    phase_e(k)
```

```python
import sys, struct
from asmlib import *
from qktab import tables

NAME = "sequential_preLN__sliding_block__glu_gated_swiglu__prompt"
WS_QK = 0
WS_V = 5242880
WS_O = 7864320
WS_H = 10485760
WS_A = 13107200
WS_W2 = 19398656
WS_HST = WS_W2 + 1966080
WS_CS = WS_HST + 262144
WS_XST = WS_CS + 245760
WS_WST = WS_XST + 327680
WS_FB = WS_WST + 153600
WS_FC = WS_FB + 65536
WS_FD = WS_FC + 32768
WS_FE = WS_FD + 32768
WS_EP = WS_FE + 32768
WS_END = WS_EP + 128
X_BYTES = 2048 * 1280
SPIN_MAX = 40000 if not any(a in sys.argv for a in ('-xrot', '-norot_a')) else 20

def f32(x): return "0x%08x" % struct.unpack("<I", struct.pack("<f", x))[0]
ONES = "0x3f803f80"
NEGBIG = f32(-1e30)
CSC = (20 ** -0.5) * 1.4426950408889634

STAMP = "-stamp" in sys.argv
UPTO = ([a[6:] for a in sys.argv if a.startswith("-upto=")] + ["E"])[0]
WS_STAMP = 64 << 20
WS_SRD = (1 << 28) if STAMP else WS_END
def opt(name): return ("-" + name) in sys.argv

L, L16, H, TK, T0, T1, T2, T3 = 1, 2, 3, 4, 5, 6, 7, 8
HRES = 10
KX, KWQKV, KWO, KW1, KW3, KW2, KOUT, KWS = 32, 34, 36, 40, 42, 44, 46, 50
TAG = 3

class VM:
    def __init__(s): s.q = []
    def add(s, tag, n=1): s.q += [tag] * n
    def wait(s, tag):
        if tag not in s.q: return "s_nop 0"
        idx = max(i for i, t in enumerate(s.q) if t == tag)
        n = len(s.q) - 1 - idx
        s.q = s.q[idx + 1:]
        assert n <= 63
        return f"s_waitcnt vmcnt({n})"

NST = [0]
DST = ([a[5:] for a in sys.argv if a.startswith("-dst=")] + [""])[0]
def dstamp(k, ph, i):
    if DST == ph: stamp(k, i, True)
ECHO = [tuple(map(int, a[6:].split(":"))) for a in sys.argv if a.startswith("-echo=")]
def stamp(k, i, force=False):
    if ECHO:
        if i in ECHO[0] or i == 29: k.e("s_memrealtime s[62:63]", "s_waitcnt lgkmcnt(0)", f"s_mov_b32 s{64+i}, s62")
        return
    if DST and 1 <= i <= 17 and not force: return
    if STAMP:
        k.e("s_memrealtime s[62:63]", "s_waitcnt lgkmcnt(0)", f"s_mov_b32 s{64+i}, s62")
def stamp_out(k):
    if ECHO:
        i, j = ECHO[0][:2]; wv = ECHO[0][2] if len(ECHO[0]) > 2 else 808
        k.e("s_lshl_b32 s62, s2, 3", "s_add_u32 s62, s62, s24", f"s_cmp_lg_u32 s62, {wv}", f"s_cbranch_scc1 {k.lab('end')}")
        k.e("s_waitcnt vmcnt(0)")
        stamp(k, 29)
        k.e(f"s_sub_u32 s60, s{64+j}, s{64+i}", "s_min_u32 s60, s60, 10000", "s_lshl_b32 s60, s60, 2")
        k.label("echo")
        k.e("s_memrealtime s[62:63]", "s_waitcnt lgkmcnt(0)", "s_sub_u32 s62, s62, s93", "s_cmp_lt_u32 s62, s60", f"s_cbranch_scc1 {k.lab('echo')}")
        return
    if not STAMP: return
    k.e("s_waitcnt vmcnt(0)")
    stamp(k, 29)
    k.e("s_memtime s[62:63]", "s_waitcnt lgkmcnt(0)", "s_mov_b32 s95, s62")
    k.e("s_mov_b64 exec, 1", "s_lshl_b32 s62, s2, 3", "s_add_u32 s62, s62, s24", "s_lshl_b32 s62, s62, 7", f"s_add_u32 s62, s62, {WS_STAMP}")
    k.e("v_mov_b32 v0, 0")
    for i in range(32):
        k.e(f"v_mov_b32 v1, s{64+i}", f"buffer_store_dword v1, v0, s[20:23], s62 offen offset:{4*i}")
    if opt("dbg"):
        k.e("s_lshl_b32 s62, s2, 3", "s_add_u32 s62, s62, s24", "s_cmp_lg_u32 s62, 800", f"s_cbranch_scc1 {k.lab('end')}")
        srd(k, 16, 48, 256)
        for n, i in enumerate((1, 2, 3, 6, 8, 9, 12, 13, 17, 18, 19, 20, 22, 23, 25, 29)):
            k.e(f"s_sub_u32 s62, s{64+i}, s64", "v_mov_b32 v1, s62", f"buffer_store_dword v1, v0, s[16:19], 0 offen offset:{4*n}")

def srd(k, d, base, size):
    k.e(f"s_mov_b32 s{d}, s{base}", f"s_mov_b32 s{d+1}, s{base+1}", f"s_mov_b32 s{d+2}, {size}", f"s_mov_b32 s{d+3}, 0x20000")

def ln_stats(k, sx, sxx, t0, t1, Mout, Rout, SD=None):
    k.e(f"v_mul_f32 v{sx}, {f32(1/640)}, v{sx}")
    k.e(f"v_mul_f32 v{sxx}, {f32(1/640)}, v{sxx}")
    k.e(f"v_fma_f32 v{t0}, -v{sx}, v{sx}, v{sxx}")
    k.e(f"v_max_f32 v{t0}, 0, v{t0}")
    k.e(f"v_cvt_pk_bf16_f32 v{t1}, v{sx}, v{t0}")
    k.e(f"v_lshlrev_b32 v{Mout}, 16, v{t1}")
    k.e(f"v_and_b32 v{t0}, 0xffff0000, v{t1}")
    k.e(f"v_add_f32 v{t0}, {f32(1e-5)}, v{t0}")
    k.e(f"v_cvt_pk_bf16_f32 v{t0}, v{t0}, v{t0}")
    k.e(f"v_lshlrev_b32 v{t0}, 16, v{t0}")
    k.e(f"v_sqrt_f32 v{t0}, v{t0}")
    k.e(f"v_cvt_pk_bf16_f32 v{t0}, v{t0}, v{t0}")
    k.e(f"v_lshlrev_b32 v{t0}, 16, v{t0}")
    if SD is not None: k.e(f"v_mov_b32 v{SD}, v{t0}")
    k.e(f"v_rcp_f32 v{Rout}, v{t0}")

def half_sum(k, x, t):
    k.e(f"v_mov_b32 v{t}, v{x}", f"v_permlane32_swap_b32 v{t}, v{x}", f"v_add_f32 v{x}, v{t}, v{x}")

def split3(k, cs, d0, d1, t0, t1, neg=False):
    n = "-" if neg else ""
    k.e(f"v_cvt_pk_bf16_f32 v{t0}, v{cs}, v{cs}")
    k.e(f"v_lshlrev_b32 v{t0}, 16, v{t0}")
    k.e(f"v_sub_f32 v{t0}, v{cs}, v{t0}")
    k.e(f"v_cvt_pk_bf16_f32 v{t1}, v{t0}, v{t0}")
    k.e(f"v_cvt_pk_bf16_f32 v{d0}, {n}v{cs}, {n}v{t0}")
    k.e(f"v_lshlrev_b32 v{t1}, 16, v{t1}")
    k.e(f"v_sub_f32 v{t0}, v{t0}, v{t1}")
    k.e(f"v_cvt_pk_bf16_f32 v{d1}, {n}v{t0}, 0")

uid = [0]
def poll(k, vaddr, soff, vd, mask_lo, mask_hi, x4=False, preloaded=False):
    uid[0] += 1
    lp, dn = f"pl{uid[0]}", f"pd{uid[0]}"
    k.e(f"s_mov_b32 exec_lo, {mask_lo}", f"s_mov_b32 exec_hi, {mask_hi}", "s_mov_b32 s61, 0")
    ld = f"buffer_load_dwordx4 v[{vd}:{vd+3}], v{vaddr}, s[20:23], {soff} offen sc1" if x4 else f"buffer_load_dword v{vd}, v{vaddr}, s[20:23], {soff} offen sc1"
    def chk():
        if x4:
            k.e(f"v_xor_b32 v{vd}, s{TAG}, v{vd}", f"v_xor_b32 v{vd+1}, s{TAG}, v{vd+1}", f"v_xor_b32 v{vd+2}, s{TAG}, v{vd+2}", f"v_xor_b32 v{vd+3}, s{TAG}, v{vd+3}",
                f"v_or3_b32 v{vd}, v{vd}, v{vd+1}, v{vd+2}", f"v_or_b32 v{vd}, v{vd}, v{vd+3}", f"v_cmp_ne_u32 vcc, 0, v{vd}")
        else:
            k.e(f"v_cmp_ne_u32 vcc, s{TAG}, v{vd}")
    if preloaded:
        chk()
        k.e("s_nop 1", f"s_cbranch_vccz {k.lab(dn)}")
    k.label(lp)
    k.e(ld, "s_waitcnt vmcnt(0)")
    chk()
    k.e("s_add_u32 s61, s61, 1", f"s_cbranch_vccz {k.lab(dn)}", f"s_cmp_lt_u32 s61, {SPIN_MAX}", f"s_cbranch_scc1 {k.lab(lp)}")
    k.label(dn)
    k.e("s_mov_b64 exec, -1")

MISC = 106496

def a_map(k):
    k.e("s_and_b32 s52, s2, 7", "s_lshr_b32 s53, s2, 3",
        "s_and_b32 s54, s52, 1", "s_mul_i32 s54, s54, 30", "s_add_u32 s54, s54, s53",
        "s_lshr_b32 s25, s54, 2",
        "s_and_b32 s54, s54, 3", "s_lshr_b32 s52, s52, 1", "s_lshl_b32 s55, s52, 2", "s_add_u32 s26, s55, s54",
        "s_mul_i32 s54, s54, 5", "s_add_u32 s54, s54, 1", "s_lshr_b32 s54, s54, 1", "s_add_u32 s54, s54, s52",
        "s_add_u32 s27, s54, s25",
        "s_cmp_ge_u32 s27, 20", "s_cselect_b32 s54, 20, 0", "s_sub_u32 s27, s27, s54",
        "s_cmp_ge_u32 s27, 10", "s_cselect_b32 s54, 10, 0", "s_sub_u32 s27, s27, s54")
    if opt("norot_a"): k.e("s_mov_b32 s27, 0")
    if opt("xrot"):
        k.e("s_mul_i32 s54, s52, 5", "s_add_u32 s54, s54, 1", "s_lshr_b32 s54, s54, 1", "s_and_b32 s27, s2, 1", "s_mul_i32 s27, s27, 5", "s_add_u32 s27, s27, s54",
            "s_cmp_ge_u32 s27, 10", "s_cselect_b32 s54, 10, 0", "s_sub_u32 s27, s27, s54")

def a_table(k, wj_sgpr, pref):
    T = tables()
    k.e("s_cmp_ge_u32 s25, 5", "s_cselect_b32 s52, 5, 0", "s_sub_u32 s52, s25, s52", "s_min_u32 s52, s52, 5",
        "s_lshl_b32 s52, s52, 1", f"s_add_u32 s52, s52, s{wj_sgpr}")
    for i in range(12):
        p, wj = divmod(i, 2)
        if i < 11: k.e(f"s_cmp_lg_u32 s52, {i}", f"s_cbranch_scc1 {k.lab(f'{pref}{i+1}')}")
        for f in range(2):
            ch, R = T[p][2 * wj + f]
            b = [8 * c for c in ch]
            lo = b[0] | b[1] << 8 | b[2] << 16 | b[3] << 24
            hi = b[4] | b[5] << 8 | b[6] << 16 | b[7] << 24
            rr = R[0] | R[1] << 8 | R[2] << 16 | R[3] << 24
            k.e(f"s_mov_b32 s{54+3*f}, {lo:#x}", f"s_mov_b32 s{55+3*f}, {hi:#x}", f"s_mov_b32 s{56+3*f}, {rr:#x}")
        if i < 11:
            k.e(f"s_branch {k.lab(pref + 'd')}")
            k.label(f"{pref}{i+1}")
    k.label(pref + "d")

def a_waddr(k, d, lo, hi):
    k.e(f"v_bfe_u32 v{T0}, v{L}, 2, 2",
        f"v_bfe_u32 v{T1}, v{L}, 4, 1", f"v_cmp_eq_u32 vcc, 1, v{T1}",
        f"v_mov_b32 v{T1}, s{lo}", f"v_mov_b32 v{T2}, s{hi}", f"v_cndmask_b32 v{T1}, v{T1}, v{T2}, vcc",
        f"v_and_b32 v{T2}, 3, v{L}", f"v_lshlrev_b32 v{T2}, 3, v{T2}", f"v_bfe_u32 v{T1}, v{T1}, v{T2}, 8",
        f"v_lshlrev_b32 v{T2}, 6, v{T0}", f"v_xor_b32 v{T1}, v{T1}, v{T2}",
        f"v_lshl_add_u32 v{T0}, v{H}, 3, v{T0}", f"v_lshl_add_u32 v{d}, v{T0}, 8, v{T1}")

def a_xaddr(k, d, rowbase_sgpr):
    k.e(f"v_lshlrev_b32 v{T0}, 7, v{TK}", f"v_add_u32 v{T0}, s{rowbase_sgpr}, v{T0}",
        f"v_bfe_u32 v{T1}, v{TK}, 1, 3", f"v_xor_b32 v{T1}, v{T1}, v{H}")
    for ks in range(4):
        k.e(f"v_xor_b32 v{T2}, {2*ks}, v{T1}", f"v_lshl_add_u32 v{d+ks}, v{T2}, 4, v{T0}")

def a_compute(k):
    AX, AW = 16, 24
    AST = 28
    ACC = 64; FR = 128; EX = 176
    k.e("s_lshr_b32 s28, s24, 1", "s_and_b32 s29, s24, 1")
    a_table(k, 29, "ct")
    k.e("s_lshl_b32 s52, s28, 13")
    a_xaddr(k, AX, 52)
    for i in range(4): k.e(f"v_add_u32 v{AX+4+i}, 65536, v{AX+i}")
    a_waddr(k, AW, 54, 55); a_waddr(k, AW + 1, 57, 58)
    for i in range(2): k.e(f"v_add_u32 v{AW+2+i}, 65536, v{AW+i}")
    k.e("s_lshl_b32 s52, s26, 2", "s_lshl_b32 s53, s28, 1", "s_add_u32 s52, s52, s53")

    PW = int(([a[4:] for a in sys.argv if a.startswith("-pw=")] + ["0"])[0])
    PWS = int(([a[5:] for a in sys.argv if a.startswith("-pws=")] + ["1"])[0])
    k.e("s_lshl_b32 s60, s25, 2", "s_add_u32 s60, s60, s24", "s_mul_i32 s60, s60, 3", "s_min_u32 s60, s60, 157", "s_lshl_b32 s60, s60, 10",
        "s_mul_i32 s53, s26, 163840", "s_add_u32 s60, s60, s53", f"s_add_u32 s60, s60, {WS_O}")
    def reads(g):
        st, ks = divmod(g, 4)
        sl = st % 4; S = sl // 2; ob = (sl % 2) * 32768
        b = FR + 16 * (g % 3)
        o = []
        for t in range(2):
            o.append(f"ds_read_b128 v[{b+4*t}:{b+4*t+3}], v{AX+4*S+ks} offset:{ob+4096*t}")
        for f in range(2):
            for u in range(2):
                o.append(f"ds_read_b64_tr_b16 v[{b+8+4*f+2*u}:{b+8+4*f+2*u+1}], v{AW+2*S+f} offset:{ob+16384+ks*4096+u*1024}")
        return o

    def mainloop(vmode):
        if PW >= 40:
            for n in range(8): k.e(f"buffer_store_dwordx4 v[16:19], v{AST+(n&3)}, s[20:23], s{30+(n>>2)} offen sc1")
        stamp(k, 1)
        k.e("s_barrier")
        stamp(k, 2)
        k.e(*reads(0)); k.e(*reads(1))
        for g in range(40):
            b = FR + 16 * (g % 3)
            fill = []
            if g % 4 == 2 and g // 4 + 1 <= 9:
                k.e("s_waitcnt lgkmcnt(0)", "s_barrier")
            else:
                k.e(f"s_waitcnt lgkmcnt({6 if g + 1 < 40 else 0})")
            if g + 2 < 40: fill += reads(g + 2)
            if PW and g >= PW and (g - PW) % PWS == 0 and (g - PW) // PWS < 8:
                n = (g - PW) // PWS
                if opt("pr"): fill.append(f"buffer_load_dwordx4 v[200:203], v{AST+(n&3)}, s[20:23], s{30+(n>>2)} offen sc1 ; dummy")
                else: fill.append(f"buffer_store_dwordx4 v[16:19], v{AST+(n&3)}, s[20:23], s{30+(n>>2)} offen sc1")
            if PW and opt("pwo") and g >= PW and (g - PW) % PWS == 0 and 8 <= (g - PW) // PWS < 11:
                fill.append(f"buffer_store_dwordx4 v[16:19], v{L16}, s[20:23], s60 offen offset:{1024*((g-PW)//PWS-8)} sc1")
            mf = []
            for t in range(2):
                for f in range(2):
                    d = ACC + 32 * t + 16 * f
                    xa, wa = v(b + 4 * t, 4), v(b + 8 + 4 * f, 4)
                    A, B = (xa, wa) if vmode else (wa, xa)
                    c = "0" if g == 0 else v(d, 16)
                    mf.append(f"v_mfma_f32_32x32x16_bf16 {v(d,16)}, {A}, {B}, {c}")
            k.e(*interleave(mf, fill))
        stamp(k, 3)
        XO, WO, R = EX, EX + 8, EX + 16
        RD = FR
        k.e("s_lshl_b32 s53, s28, 8", f"s_add_u32 s53, s53, {MISC}", f"v_lshl_add_u32 v{T0}, v{TK}, 2, s53",
            "s_lshl_b32 s54, s29, 9", f"s_add_u32 s54, s54, {MISC+1024}", f"v_lshl_add_u32 v{T1}, v{TK}, 3, s54",
            f"v_lshl_add_u32 v{T2}, v{H}, 4, s53", f"v_mov_b32 v{T3}, {MISC}")
        for r in (XO+2, XO+3, XO+6, XO+7, WO+2, WO+3, WO+6, WO+7): k.e(f"v_mov_b32 v{r}, 0")
        k.e(f"v_cmp_gt_u32 vcc, 32, v{L}")
        if PW: k.e("s_waitcnt vmcnt(0)")
        k.e("s_barrier")
        stamp(k, 4)
        for t in range(2): k.e(f"ds_read_b32 v{XO+4*t}, v{T0} offset:{128*t}")
        for f in range(2): k.e(f"ds_read_b64 v[{WO+4*f}:{WO+4*f+1}], v{T1} offset:{256*f}")
        k.e(f"ds_read_b32 v{R+2}, v{T3} offset:2048")
        if vmode:
            for t in range(2):
                for q in range(4):
                    k.e(f"ds_read_b128 v[{RD+16*t+4*q}:{RD+16*t+4*q+3}], v{T2} offset:{512+128*t+32*q}")
        else:
            for t in range(2): k.e(f"ds_read_b32 v{R+t}, v{T0} offset:{512+128*t}")
        k.e(f"s_waitcnt lgkmcnt({8 if vmode else 2})")
        for t in range(2):
            k.e(f"v_cndmask_b32 v{XO+4*t}, 0, v{XO+4*t}, vcc", f"v_and_b32 v{XO+4*t+1}, 0xffff, v{XO+4*t}")
        k.e(f"v_readfirstlane_b32 s{TAG}, v{R+2}")
        for t in range(2):
            for f in range(2):
                d = ACC + 32 * t + 16 * f
                xa, wa = v(XO + 4 * t, 4), v(WO + 4 * f, 4)
                A, B = (xa, wa) if vmode else (wa, xa)
                k.e(f"v_mfma_f32_32x32x16_bf16 {v(d,16)}, {A}, {B}, {v(d,16)}")
        k.e("s_waitcnt lgkmcnt(0)")
        for t in range(2):
            for f in range(2):
                d = ACC + 32 * t + 16 * f
                for r in range(0, 16, 2):
                    if vmode: k.e(f"v_pk_mul_f32 v[{d+r}:{d+r+1}], v[{d+r}:{d+r+1}], v[{RD+16*t+r}:{RD+16*t+r+1}]")
                    else: k.e(f"v_pk_mul_f32 v[{d+r}:{d+r+1}], v[{d+r}:{d+r+1}], v[{R}:{R+1}] op_sel:[0,{t}] op_sel_hi:[1,{t}]")
                for j in range(8):
                    k.e(f"v_cvt_pk_bf16_f32 v{d+j}, v{d+2*j}, v{d+2*j+1}")
                for u in range(2):
                    k.e(f"buffer_store_dwordx4 v[{d+4*u}:{d+4*u+3}], v{AST+2*f+u}, s[20:23], s{30+t} offen sc1")
        k.e(f"s_branch {k.lab('a_pub')}")

    k.e("s_cmp_ge_u32 s25, 10", f"s_cbranch_scc1 {k.lab('vpath')}")
    k.e("s_cmp_ge_u32 s25, 5", f"s_cselect_b32 s53, {80*32768}, 0", "s_lshl_b32 s30, s52, 9", "s_add_u32 s30, s30, s53", "s_add_u32 s31, s30, 512")
    k.e(f"v_lshlrev_b32 v{T0}, 3, v{H}", f"v_lshlrev_b32 v{T1}, 4, v{TK}")
    for f in range(2):
        for u in range(2):
            k.e(f"v_add_u32 v{T2}, {16*u}, v{T0}", f"v_bfe_u32 v{T2}, s{56+3*f}, v{T2}, 8", f"v_lshl_add_u32 v{AST+2*f+u}, v{T2}, 15, v{T1}")
    mainloop(False)
    k.label("vpath")
    k.e("s_mul_i32 s30, s52, 40960", f"s_add_u32 s30, s30, {WS_V}", "s_add_u32 s31, s30, 40960",
        "s_sub_u32 s53, s25, 10", "s_lshl_b32 s53, s53, 11", "s_lshl_b32 s54, s29, 10", "s_add_u32 s53, s53, s54",
        f"v_mul_u32_u24 v{T0}, 10240, v{H}", f"v_lshl_add_u32 v{T0}, v{TK}, 4, v{T0}", f"v_add_u32 v{AST}, s53, v{T0}",
        f"v_add_u32 v{AST+1}, 20480, v{AST}", f"v_add_u32 v{AST+2}, 512, v{AST}", f"v_add_u32 v{AST+3}, {20480+512}, v{AST}")
    mainloop(True)
    k.label("a_pub")
    stamp(k, 5)
    k.e("s_lshr_b32 s52, s26, 1", "s_lshl_b32 s53, s52, 13", "s_and_b32 s54, s26, 1", "s_add_u32 s54, s54, 2", "s_lshl_b32 s54, s54, 4",
        "s_add_u32 s54, s54, s25", "s_lshl_b32 s54, s54, 2", "s_add_u32 s53, s53, s54", f"s_add_u32 s53, s53, {WS_FB}",
        f"v_mul_u32_u24 v{T0}, {8192-128}, v{H}", f"v_lshl_add_u32 v{T0}, v{TK}, 8, v{T0}",
        f"v_mov_b32 v{T2}, s{TAG}", "s_cmp_eq_u32 s52, 7", "s_cselect_b32 s55, 0, -1", "s_cmp_lt_u32 s25, 5", "s_cselect_b32 s55, 0, s55",
        "s_cmp_ge_u32 s25, 5", "s_cselect_b32 s52, 5, 0", "s_sub_u32 s54, s25, s52", "s_cmp_ge_u32 s25, 10", "s_cselect_b32 s52, 5, 0", "s_sub_u32 s54, s54, s52",
        f"v_lshrrev_b32 v{T1}, 1, v{TK}", f"v_mul_u32_u24 v{T1}, 5, v{T1}", f"v_add_u32 v{T3}, 4, v{T1}", f"v_lshrrev_b32 v{T1}, 4, v{T1}", f"v_lshrrev_b32 v{T3}, 4, v{T3}",
        f"v_cmp_eq_u32 vcc, s54, v{T1}", f"v_cmp_eq_u32 s[56:57], s54, v{T3}", "s_or_b64 s[56:57], s[56:57], vcc", "s_and_b32 s57, s57, s55")
    k.e("s_waitcnt vmcnt(0)")
    stamp(k, 6)
    k.e("s_barrier", "s_cmp_lg_u32 s24, 0", f"s_cbranch_scc1 {k.lab('a_done')}",
        "s_mov_b64 exec, s[56:57]", f"buffer_store_dword v{T2}, v{T0}, s[20:23], s53 offen sc1", "s_mov_b64 exec, -1")

def code_touch(k, n, nthr, vi=0):
    uid[0] += 1
    k.e("s_getpc_b64 s[52:53]")
    k.label(f"pc{uid[0]}")
    k.e(f"s_sub_u32 s52, s52, {k.lab(f'pc{uid[0]}')}-{k.name}", "s_subb_u32 s53, s53, 0", f"v_lshlrev_b32 v{T0}, 6, v{vi}")
    for i in range(n):
        k.e(f"v_min_u32 v{T1}, {k.lab('end')}-{k.name}, v{T0}", f"global_load_dword v9, v{T1}, s[52:53] ; dummy")
        if i < n - 1: k.e(f"v_add_u32 v{T0}, {64*nthr}, v{T0}")
def spare(k):
    TG = 30
    tag_load(k, TG)
    TL = int(([a[5:] for a in sys.argv if a.startswith("-tlb=")] + ["0"])[0])
    if TL:
        k.e("s_bfe_u32 s54, s2, 0x10003", f"v_lshl_add_u32 v{T1}, v0, 1, s54", f"v_lshlrev_b32 v{T1}, {TL}, v{T1}")
        assert WS_END <= 1024 << TL and TL <= 21
        for m, sz in ((KWS, WS_END), (KW1, 640 * 3072), (KW3, 640 * 3072), (KOUT, X_BYTES), (KW2, 1536 * 1280)):
            srd(k, 16, m, sz)
            k.e(f"buffer_load_dword v32, v{T1}, s[16:19], 0 offen ; dummy")
    srd(k, 16, KW2, 1536 * 1280)
    k.e("s_sub_u32 s4, s2, 240", "s_mul_i32 s5, s4, 122880", "s_mul_i32 s52, s24, 320", f"v_add_u32 v{T0}, s52, v{L}", "s_mul_i32 s6, s24, 5120")
    for i in range(5):
        k.e(f"v_mul_u32_u24 v{T1}, 52429, v{T0}", f"v_bfe_u32 v{T1}, v{T1}, 22, 3", f"v_lshlrev_b32 v{T1}, 1, v{T1}", f"v_xor_b32 v{T1}, v{T1}, v{T0}", f"v_lshlrev_b32 v{20+i}, 4, v{T1}",
            f"s_add_u32 m0, s6, {1024*i}", f"buffer_load_dwordx4 v{20+i}, s[16:19], s5 offen lds", f"v_add_u32 v{T0}, 64, v{T0}")
    k.e("s_bfe_u32 s52, s2, 0x10003", "s_lshl_b32 s52, s52, 8", "s_add_u32 s52, s52, 256", "v_and_b32 v31, 255, v0", "v_add_u32 v31, s52, v31")
    code_touch(k, 1, 256, 31)
    def chunk(ks):
        k.e("s_add_u32 s5, s5, 40960")
        for i in range(5): k.e(f"s_add_u32 m0, s6, {40960*ks+1024*i}", f"buffer_load_dwordx4 v{20+i}, s[16:19], s5 offen lds")
    chunk(1)
    k.e(f"v_bfe_u32 v{T0}, v{L}, 2, 3", f"v_lshl_add_u32 v{T1}, v{H}, 4, v{T0}", f"v_mul_u32_u24 v{T1}, 1280, v{T1}", f"v_xor_b32 v{T0}, s24, v{T0}", f"v_lshl_add_u32 v{T1}, v{T0}, 5, v{T1}",
        f"v_and_b32 v{T0}, 3, v{L}", f"v_lshl_add_u32 v{T1}, v{T0}, 3, v{T1}", f"v_add_u32 v{T2}, 81920, v{T1}")
    k.e(f"v_add_u32 v{T0}, 5120, v{L16}", f"v_add_u32 v{T3}, 10240, v{L16}", "s_mul_i32 s7, s4, 15360", f"s_add_u32 s7, s7, {WS_W2}")
    for a in range(5):
        k.e(f"s_add_u32 s52, s24, {8*a}", "s_mul_i32 s53, s52, 52", "s_lshr_b32 s53, s53, 8", f"s_mul_i32 s53, s53, {245760-5120}", "s_lshl_b32 s52, s52, 10",
            "s_add_u32 s52, s52, s53", f"s_add_u32 s{54+a}, s52, s7")
    for ks in range(3):
        k.e(f"s_waitcnt vmcnt({(6, 10, 10)[ks]})", "s_barrier")
        for a in range(5):
            for u in range(2):
                k.e(f"ds_read_b64_tr_b16 {v(40+20*ks+4*a+2*u,2)}, v{T2 if ks == 2 else T1} offset:{256*a+10240*u+40960*(ks&1)}")
        if ks == 0: chunk(2)
        for a in range(5):
            k.e(f"s_waitcnt lgkmcnt({2*(4-a)})", f"buffer_store_dwordx4 {v(40+20*ks+4*a,4)}, v{(L16, T0, T3)[ks]}, s[20:23], s{54+a} offen sc1")
        stamp(k, 4 + ks)
    tag_make(k, TG)

def tag_load(k, d):
    k.e(f"v_mov_b32 v{T0}, 0", f"s_mov_b32 s52, {WS_EP}", f"buffer_load_dword v{d}, v{T0}, s[20:23], s52 offen sc1")
def tag_make(k, d):
    k.e(f"v_readfirstlane_b32 s{TAG}, v{d}", f"s_add_u32 s{TAG}, s{TAG}, 0x9e3779b9")
def misc_init(k):
    k.e(f"v_mov_b32 v20, s{TAG}", f"v_mov_b32 v{T3}, {MISC}", f"ds_write_b32 v{T3}, v20 offset:2048")

def a_loader(k):
    VXO, VWO = 16, 20
    AX, AW = 24, 28
    TG, PL = 30, 31
    D = 32
    vm = VM()
    k.e("s_sub_u32 s31, s24, 4")
    tag_load(k, TG); vm.add("tag")
    srd(k, 16, KWQKV, 640 * 3840)
    k.e("s_lshl_b32 s29, s31, 12",
        "s_mul_i32 s28, s26, 163840", "s_lshl_b32 s52, s27, 7", "s_add_u32 s58, s28, s52", "s_add_u32 s28, s28, 1280",
        "s_lshl_b32 s59, s25, 8", "s_mul_i32 s52, s27, 245760", "s_add_u32 s59, s59, s52")
    k.e(f"v_lshrrev_b32 v{T0}, 3, v{L}", "s_lshl_b32 s52, s31, 5", f"v_add_u32 v{T0}, s52, v{T0}", f"v_mul_u32_u24 v{T0}, 1280, v{T0}",
        f"v_and_b32 v{T1}, 7, v{L}", f"v_lshrrev_b32 v{T2}, 4, v{L}", f"v_xor_b32 v{T1}, v{T1}, v{T2}", f"v_lshl_add_u32 v{VXO}, v{T1}, 4, v{T0}",
        f"v_xor_b32 v{T0}, 64, v{VXO}", f"v_add_u32 v{VXO+1}, {10240-1024}, v{T0}", f"v_add_u32 v{VXO+2}, {2*(10240-1024)}, v{VXO}",
        f"v_add_u32 v{VXO+3}, {3*(10240-1024)}, v{T0}")
    k.e("s_lshl_b32 s52, s31, 4", f"v_add_u32 v{T0}, s52, v{T2}", f"v_mul_u32_u24 v{T0}, 3840, v{T0}",
        f"v_and_b32 v{T1}, 15, v{L}", f"v_lshlrev_b32 v{T3}, 2, v{T2}", f"v_xor_b32 v{T1}, v{T1}, v{T3}", f"v_lshl_add_u32 v{VWO}, v{T1}, 4, v{T0}")
    for j in range(1, 4): k.e(f"v_add_u32 v{VWO+j}, {j*(15360-1024)}, v{VWO}")
    CP = int(([a[4:] for a in sys.argv if a.startswith("-cp=")] + ["12"])[0])
    nxt = [0]
    def issue_to(q):
        while nxt[0] < min(q, 80):
            st, i = divmod(nxt[0], 8)
            sl = st % 4
            if i == 0: k.e(f"s_add_u32 m0, s29, {sl*32768}")
            if i == 4: k.e(f"s_add_u32 m0, s29, {sl*32768+16384}")
            if opt("nodma") and st >= 4:
                if i == 0: k.e(f"buffer_load_dwordx4 v{VXO+i}, s[12:15], s58 offen offset:{1024*i} lds"); vm.add(st)
                nxt[0] += 1; continue
            if i < 4: k.e(f"buffer_load_dwordx4 v{VXO+i}, s[12:15], s58 offen offset:{1024*i} lds")
            else: k.e(f"buffer_load_dwordx4 v{VWO+i-4}, s[16:19], s59 offen offset:{1024*(i-4)} lds")
            vm.add(st)
            if i == 7 and st < 9:
                k.e("s_add_u32 s58, s58, 128", "s_add_u32 s59, s59, 245760", "s_cmp_ge_u32 s58, s28",
                    "s_cselect_b32 s52, 1280, 0", "s_cselect_b32 s53, 2457600, 0", "s_sub_u32 s58, s58, s52", "s_sub_u32 s59, s59, s53")
            nxt[0] += 1
    issue_to(8)
    k.e("s_mov_b32 s60, s58", "s_mov_b32 s30, s59", "s_lshr_b32 s61, s31, 1")
    a_table(k, 61, "lt")
    k.e("s_bitcmp1_b32 s31, 0", "s_cselect_b32 s54, s57, s54", "s_cselect_b32 s55, s58, s55")
    a_waddr(k, AW, 54, 55)
    a_xaddr(k, AX, 29)
    k.e("s_mov_b32 s58, s60", "s_mov_b32 s59, s30")
    k.e("s_mul_i32 s4, s26, 20480", "s_lshl_b32 s56, s31, 9", "s_add_u32 s4, s4, s56", f"s_add_u32 s4, s4, {WS_XST}",
        "s_mul_i32 s5, s25, 10240", "s_lshl_b32 s57, s31, 8", "s_add_u32 s5, s5, s57", f"s_add_u32 s5, s5, {WS_WST}",
        "s_lshl_b32 s55, s27, 11", "s_add_u32 s55, s55, s4", "s_lshl_b32 s56, s27, 10", "s_add_u32 s56, s56, s5", f"s_mov_b32 s54, {ONES}")
    issue_to(8 + CP)
    stamp(k, 1)
    k.e(vm.wait(0), "s_barrier")
    stamp(k, 2)
    tag_make(k, TG)
    for ks in range(4): k.e(f"ds_read_b128 v[{D+4*ks}:{D+4*ks+3}], v{AX+ks}")
    for ks in range(4):
        for u in range(2): k.e(f"ds_read_b64_tr_b16 v[{D+16+4*ks+2*u}:{D+16+4*ks+2*u+1}], v{AW} offset:{16384+ks*4096+u*1024}")
    SX, SXX, CS = 64, 66, 68
    k.e(f"v_mov_b32 v{SX}, 0", f"v_mov_b32 v{SXX}, 0", f"v_mov_b32 v{CS}, 0",
        f"v_mov_b32 v{SX+1}, s{TAG}", f"v_mov_b32 v{SXX+1}, s{TAG}", f"v_mov_b32 v{CS+1}, s{TAG}",
        f"v_lshlrev_b32 v{T2}, 4, v{TK}", f"v_lshlrev_b32 v{T3}, 3, v{TK}")
    issue_to(16 + CP)
    k.e("s_waitcnt lgkmcnt(0)", vm.wait(1), "s_barrier")
    PX, PW = 70, 71
    def partials():
        for i in range(5):
            k.e(f"buffer_load_dwordx4 v[{D+4*i}:{D+4*i+3}], v{PX}, s[20:23], s{(4,6,7)[i//2]} offen offset:{2048*(i%2)} sc1")
            k.e(f"buffer_load_dwordx2 v[{D+20+2*i}:{D+21+2*i}], v{PW}, s[20:23], s{(5,8)[i//4]} offen offset:{1024*(i%4)} sc1")
    for j in range(2, 10):
        if j < 6:
            for i in range(4 * (j - 2), 4 * (j - 1)):
                issue_to(8 * j + CP + 2 * (i % 4 + 1))
                k.e(f"v_lshlrev_b32 v{T0}, 16, v{D+i}", f"v_and_b32 v{D+i}, 0xffff0000, v{D+i}", f"v_lshlrev_b32 v{T1}, 16, v{D+16+i}", f"v_and_b32 v{D+16+i}, 0xffff0000, v{D+16+i}",
                    f"v_add_f32 v{SX}, v{SX}, v{T0}", f"v_fmac_f32 v{SXX}, v{T0}, v{T0}", f"v_add_f32 v{CS}, v{CS}, v{T1}",
                    f"v_add_f32 v{SX}, v{SX}, v{D+i}", f"v_fmac_f32 v{SXX}, v{D+i}, v{D+i}", f"v_add_f32 v{CS}, v{CS}, v{D+16+i}")
        if j == 5:
            half_sum(k, SX, T0); half_sum(k, SXX, T1); half_sum(k, CS, T0)
            k.e("s_mov_b32 exec_hi, 0", f"buffer_store_dwordx4 v[{SX}:{SX+3}], v{T2}, s[20:23], s55 offen sc1",
                f"buffer_store_dwordx2 v[{CS}:{CS+1}], v{T3}, s[20:23], s56 offen sc1", "s_mov_b64 exec, -1")
            vm.add("st", 2)
        if j == 6:
            k.e(f"v_mul_u32_u24 v{PX}, 10240, v{H}", f"v_lshl_add_u32 v{PX}, v{TK}, 4, v{PX}", f"v_lshrrev_b32 v{PW}, 1, v{PX}",
                "s_add_u32 s6, s4, 4096", "s_add_u32 s7, s4, 8192", "s_add_u32 s8, s5, 4096")
        issue_to(8 * (j + 1) + CP)
        if j == 9:
            partials(); vm.add("pt", 10)
        k.e(vm.wait(j), "s_barrier")
    misc_init(k)
    k.e("s_mov_b32 s61, 0")
    k.label("pt_chk")
    k.e("s_waitcnt vmcnt(0)")
    k.e(f"v_xor_b32 v{T0}, s{TAG}, v{D+1}")
    for i in range(1, 15, 2):
        k.e(f"v_xor_b32 v{T1}, s{TAG}, v{D+1+2*i}", f"v_xor_b32 v9, s{TAG}, v{D+3+2*i}", f"v_or3_b32 v{T0}, v{T0}, v{T1}, v9")
    k.e(f"v_cmp_ne_u32 vcc, 0, v{T0}", "s_add_u32 s61, s61, 1", f"s_cbranch_vccz {k.lab('pt_ok')}", f"s_cmp_gt_u32 s61, {SPIN_MAX}", f"s_cbranch_scc1 {k.lab('pt_ok')}")
    partials()
    k.e(f"s_branch {k.lab('pt_chk')}")
    k.label("pt_ok")
    stamp(k, 3)
    if opt("w13a"):
        k.e("s_lshl_b32 s54, s2, 2", "s_add_u32 s54, s54, s31", "s_lshl_b32 s54, s54, 11")
        for m in (KW1, KW3):
            srd(k, 16, m, 640 * 3072)
            for i in range(2): k.e(f"buffer_load_dwordx4 v[84:87], v{L16}, s[16:19], s54 offen offset:{1024*i} ; dummy")
    for i in range(1, 5):
        k.e(f"v_add_f32 v{D}, v{D}, v{D+4*i}", f"v_add_f32 v{D+2}, v{D+2}, v{D+4*i+2}", f"v_add_f32 v{D+20}, v{D+20}, v{D+20+2*i}")
    half_sum(k, D, T0); half_sum(k, D + 2, T1); half_sum(k, D + 20, T2)
    ln_stats(k, D, D + 2, T0, T1, D + 4, D + 5)
    split3(k, D + 20, D + 12, D + 13, T0, T1)
    k.e("s_cmp_lt_u32 s25, 5", f"s_cselect_b32 s52, {f32(CSC)}, {f32(1.0)}", f"v_mul_f32 v{D+5}, s52, v{D+5}",
        f"v_cvt_pk_bf16_f32 v{D+4}, -v{D+4}, -v{D+4}",
        "s_lshl_b32 s52, s31, 7", f"s_add_u32 s52, s52, {MISC}", f"v_lshl_add_u32 v{T0}, v{TK}, 2, s52",
        "s_lshl_b32 s52, s31, 8", f"s_add_u32 s52, s52, {MISC+1024}", f"v_lshl_add_u32 v{T1}, v{TK}, 3, s52",
        f"ds_write_b32 v{T0}, v{D+4}", f"ds_write_b32 v{T0}, v{D+5} offset:512", f"ds_write_b64 v{T1}, v[{D+12}:{D+13}]",
        "s_waitcnt lgkmcnt(0)", "s_barrier")
    stamp(k, 4)
    if UPTO == "A": k.e("s_barrier")

def build():
    k = Kern("mega_kernel", 256, 512, 163840, nvgpr=256, nsgpr=100)
    k.e("s_cmp_ge_u32 s2, 256", f"s_cbranch_scc1 {k.lab('end')}")
    if STAMP:
        k.e("s_memtime s[62:63]", "s_waitcnt lgkmcnt(0)", "s_mov_b32 s94, s62")
        for i in range(1, 30): k.e(f"s_mov_b32 s{64+i}, 0")
    stamp(k, 0)
    k.e("s_load_dwordx16 s[32:47], s[0:1], 0", "s_load_dwordx4 s[48:51], s[0:1], 64")
    if opt("ect"):
        k.e("s_bfe_u32 s54, s2, 0x30003", "s_lshl_b32 exec_lo, 0x01010101, s54", "s_mov_b32 exec_hi, exec_lo")
        code_touch(k, 2, 512)
        k.e("s_mov_b64 exec, -1")
    k.e(f"v_lshrrev_b32 v{T0}, 6, v0", f"v_and_b32 v{L}, 63, v0", f"v_readfirstlane_b32 s24, v{T0}",
        f"v_lshlrev_b32 v{L16}, 4, v{L}", f"v_lshrrev_b32 v{H}, 5, v{L}", f"v_and_b32 v{TK}, 31, v{L}")
    a_map(k)
    k.e("s_waitcnt lgkmcnt(0)")
    WOFF = int(([a[6:] for a in sys.argv if a.startswith("-woff=")] + ["0"])[0]) << 20
    if WOFF: k.e(f"s_add_u32 s{KWS}, s{KWS}, {WOFF}", f"s_addc_u32 s{KWS+1}, s{KWS+1}, 0")
    srd(k, 20, KWS, WS_SRD); srd(k, 12, KX, X_BYTES)
    k.e("s_cmp_ge_u32 s2, 240", f"s_cbranch_scc1 {k.lab('spare')}")
    k.e("s_cmp_lt_u32 s24, 4", f"s_cbranch_scc1 {k.lab('compute')}")
    a_loader(k)
    k.e(f"s_branch {k.lab('a_done')}")
    k.label("spare")
    spare(k)
    k.e(f"s_branch {k.lab('a_done')}")
    k.label("compute")
    if not opt("nocf") and not opt("ect"): code_touch(k, 1, 256)
    srd(k, 16, KWO, 640 * 1280)
    k.e("s_lshl_b32 s54, s2, 2", "s_add_u32 s54, s54, s24", "s_lshl_b32 s54, s54, 10", f"buffer_load_dwordx4 v[200:203], v{L16}, s[16:19], s54 offen ; dummy")
    k.e(f"v_lshlrev_b32 v{T0}, 6, v{L}", "s_mul_i32 s54, s2, 704", f"s_min_u32 s54, s54, {163840-704}", f"s_add_u32 s54, s54, {WS_FB}", "s_mov_b64 exec, 0x7ff",
        f"buffer_load_dword v9, v{T0}, s[20:23], s54 offen sc1 ; dummy", "s_mov_b64 exec, -1")
    a_compute(k)
    k.label("a_done")
    if UPTO != "A":
        import phases
        phases.rest(k)
    k.label("fin")
    stamp_out(k)
    k.label("end")
    k.e("s_endpgm")
    return k

HEADER = open("cdna_kernels/" + NAME + ".s.ref").read().split("; Override launch geometry")[0].rstrip()

if __name__ == "__main__":
    sys.modules["gen2"] = sys.modules["__main__"]
    out = sys.argv[1] if len(sys.argv) > 1 and not sys.argv[1].startswith("-") else "cdna_kernels/" + NAME + ".s"
    n = write_file(out, [build()], HEADER, verbose="-v" in sys.argv)
    print("errors:", n)
```

```python
import sys
from asmlib import *
from gen2 import *
import gen2 as G

LK, LV, LQ, LX = 139264, 106496, 126976, 106496
SC = '' if opt('plain') else ' sc1'
ER = int(([a[4:] for a in sys.argv if a.startswith('-er=')] + ['3'])[0])

def push_flags(k, base_sgpr, vaddr, mask_lo, wave=0):
    k.e(f"v_mov_b32 v{T3}, s{TAG}", f"s_cmp_eq_u32 s24, {wave}", f"s_cselect_b32 exec_lo, {mask_lo}, 0", "s_mov_b32 exec_hi, 0",
        f"buffer_store_dword v{T3}, v{vaddr}, s[20:23], s{base_sgpr} offen sc1", "s_mov_b64 exec, -1")

WV = 88
def wv_offsets(k, d=WV, sh=0, mul=0):
    for i in range(5):
        k.e(f"v_add_u32 v{T0}, {64*i}, v{L}", f"v_mul_u32_u24 v{T1}, 6554, v{T0}", f"v_lshrrev_b32 v{T1}, 16, v{T1}")
        if mul: k.e(f"v_lshrrev_b32 v{T2}, {sh}, v{T1}", f"v_mul_u32_u24 v{T2}, {1280*mul}, v{T2}")
        k.e(f"v_mul_u32_u24 v{T1}, {1280-160}, v{T1}", f"v_lshl_add_u32 v{d+i}, v{T0}, 4, v{T1}")
        if mul: k.e(f"v_add_u32 v{d+i}, v{d+i}, v{T2}")
        if i % 4: k.e(f"v_subrev_u32 v{d+i}, {1024*(i%4)}, v{d+i}")
def step_dma(d, lds_s, soff, lds_add=0, each=False):
    o = [[f"s_add_u32 m0, s{lds_s}, {lds_add}"] if i == 0 or (each and i < 4) else [] for i in range(5)]
    o[4].append(f"s_add_u32 m0, s{lds_s}, {lds_add+4096}")
    for i in range(5): o[i].append(f"buffer_load_dwordx4 v{d+i}, s[16:19], s{soff} offen offset:{1024*(i%4)} lds")
    return o

def phase_b(k):
    AK, AKE, AV = 82, 83, 93
    VV = 20
    QM, QE = 96, 100
    KB = 36
    VB = 60
    OA, MB = 72, 76
    MX, MC = 80, 81
    DUM = 84
    O = 96
    SB = 112
    k.e("s_and_b32 s52, s2, 7", "s_lshr_b32 s53, s2, 3", "s_lshr_b32 s54, s53, 3", "s_lshl_b32 s25, s52, 2", "s_add_u32 s25, s25, s54",
        "s_and_b32 s26, s53, 7")
    k.e("s_and_b32 s31, s24, 3")
    wv_offsets(k, WV, 4, 4)
    srd(k, 16, KWO, 640 * 1280)
    k.e("s_mul_i32 s60, s26, 160", "s_add_u32 s0, s24, s26", "s_and_b32 s0, s0, 7", "s_mul_i32 s0, s0, 51200", "s_add_u32 s0, s0, s60", f"s_add_u32 s1, s0, {8*51200}",
        "s_cmp_ge_u32 s24, 3", "s_cselect_b32 s48, 2, 0", "s_add_u32 s48, s48, s24", "s_mul_i32 s48, s48, 10240")
    wo = step_dma(WV, 48, 0, 0, True) + step_dma(WV, 48, 1, 5120, True)
    k.e("s_lshr_b32 s52, s25, 1", "s_mul_i32 s52, s52, 5", "s_and_b32 s53, s25, 1", "s_lshl_b32 s53, s53, 1", "s_add_u32 s53, s53, s52",
        "s_lshl_b32 s4, s53, 15", "s_add_u32 s5, s4, 32768", "s_add_u32 s53, s52, 4", "s_lshl_b32 s6, s53, 15",
        "s_lshr_b32 s52, s52, 4", "s_lshr_b32 s53, s53, 4", "s_lshl_b32 s52, 0x04210421, s52", "s_lshl_b32 s53, 0x04210421, s53", "s_or_b32 s30, s52, s53",
        "s_lshl_b32 s54, s26, 1", "s_add_u32 s54, s54, s31",
        "s_cmp_lt_u32 s54, 2", "s_cselect_b32 s55, 0, 2", "s_sub_u32 s54, s54, s55",
        "s_lshl_b32 s7, s54, 11", f"s_add_u32 s7, s7, {80*32768}",
        "s_lshl_b32 s8, s26, 12", "s_lshl_b32 s55, s31, 10", "s_add_u32 s8, s8, s55",
        "s_mul_i32 s9, s54, 163840", "s_mul_i32 s55, s25, 320", "s_add_u32 s9, s9, s55", f"s_add_u32 s9, s9, {WS_V}",
        "s_lshl_b32 s10, s26, 13", "s_lshl_b32 s55, s25, 8", "s_add_u32 s10, s10, s55", f"s_add_u32 s10, s10, {WS_FB}",
        "s_cmp_eq_u32 s26, 0", "s_cselect_b32 s11, 0, 0x7fe07fe0", "s_and_b32 s11, s11, s30")
    k.e("s_lshl_b32 s52, s24, 9", f"s_add_u32 s53, s52, {LK}", f"v_lshl_add_u32 v{AKE}, v{TK}, 4, s53", f"v_lshl_add_u32 v{AK}, v{H}, 13, v{AKE}",
        "s_mul_i32 s53, s24, 1280", f"s_add_u32 s53, s53, {LV}", f"v_mul_u32_u24 v{T1}, 320, v{H}", f"v_lshl_add_u32 v{T1}, v{TK}, 4, v{T1}", f"v_add_u32 v{AV}, s53, v{T1}",
        f"s_add_u32 s53, s52, {LQ}", f"v_lshl_add_u32 v{MX}, v{TK}, 4, s53", f"v_lshl_add_u32 v{MC}, v{H}, 12, v{MX}")
    k.e("s_lshl_b32 s27, s26, 3", "s_add_u32 s27, s27, s24")
    def s_init():
        k.e(f"v_lshlrev_b32 v{T1}, 2, v{H}", f"v_sub_u32 v{T1}, v{TK}, v{T1}", f"v_mov_b32 v{T2}, {NEGBIG}",
            "s_cmp_ge_u32 s27, 8", f"s_cselect_b32 s55, 0, {NEGBIG}", f"v_mov_b32 v{T3}, s55")
        for r in range(16):
            kk = (r & 3) + 8 * (r >> 2)
            k.e(f"v_cmp_le_i32 vcc, {kk}, v{T1}", f"v_cndmask_b32_e64 v{SB+128+r}, v{T2}, 0, vcc", f"v_cndmask_b32 v{SB+r}, v{T3}, v{T2}, vcc")
        for i in range(1, 8):
            k.e(f"s_cmp_ge_u32 s27, {8-i}", f"s_cselect_b32 s54, 0, {NEGBIG}", "s_mov_b32 s55, s54")
            for r in range(0, 16, 2): k.e(f"v_mov_b64 {v(SB+16*i+r,2)}, s[54:55]")
        k.e(f"s_mov_b32 s54, {ONES}", f"s_mov_b32 s55, {ONES}")
        for r in range(0, 12, 2): k.e(f"v_mov_b64 {v(VB+r,2)}, s[54:55]")
        k.e(f"v_mov_b32 v{OA}, {ONES}", f"v_mov_b32 v{OA+1}, 0x3f80", f"v_mov_b64 {v(OA+2,2)}, 0", f"v_mov_b64 {v(MB+2,2)}, 0")
    k.e("s_bitcmp1_b32 s25, 0", "s_cselect_b32 s28, 0, -1", "s_cselect_b32 s56, -1, 0", "s_mov_b32 s29, 0", "s_mov_b32 s57, 0",
        "s_mov_b32 s58, 0x000fffff", "s_mov_b32 s59, 0x000fffff")
    k.e("s_cmp_lt_u32 s24, 4", f"s_cbranch_scc1 {k.lab('b_k')}")
    k.e(f"v_and_b32 v{T0}, 15, v{L}", f"v_mul_u32_u24 v{T0}, 1280, v{T0}", f"v_lshrrev_b32 v{T1}, 4, v{L}", f"v_lshl_add_u32 v{T0}, v{T1}, 3, v{T0}",
        "s_lshl_b32 s52, s25, 2", "s_add_u32 s52, s52, s31", "s_mul_i32 s52, s52, 20480", "s_add_u32 s52, s52, s60")
    for f in range(5): k.e(f"buffer_load_dwordx2 {v(HRES+2*f,2)}, v{T0}, s[12:15], s52 offen offset:{32*f}")
    for i in range(5):
        k.e(f"v_add_u32 v{T0}, {64*i}, v{L}", f"v_mul_u32_u24 v{T1}, 3277, v{T0}", f"v_lshrrev_b32 v{T1}, 16, v{T1}",
            f"v_mul_u32_u24 v{T1}, {10240-320}, v{T1}", f"v_lshl_add_u32 v{VV+i}, v{T0}, 4, v{T1}")
        if i % 4: k.e(f"v_subrev_u32 v{VV+i}, {1024*(i%4)}, v{VV+i}")
    s_init()
    k.e("s_cmp_ge_u32 s2, 240", f"s_cbranch_scc1 {k.lab('b_sp')}", "s_barrier")
    k.label("b_sp")
    stamp(k, 8)
    d_map(k); d_wsetup(k)
    k.e("s_lshl_b32 s53, s31, 10")
    k.e("s_cmp_lg_u32 s24, 4", f"s_cbranch_scc1 {k.lab('b_np')}", f"v_lshlrev_b32 v{T2}, 2, v{L}")
    poll(k, T2, "s10", T0, "s11", "s30")
    k.label("b_np")
    k.e("s_barrier")
    stamp(k, 7)
    for p_ in range(3):
        k.e(f"s_add_u32 m0, s53, {LQ+4096*p_}", f"s_add_u32 s54, s{4+p_}, s8", f"buffer_load_dwordx4 v{L16}, s[20:23], s54 offen{SC} lds")
    k.e("s_mul_i32 s52, s31, 5120", f"s_add_u32 m0, s52, {LV}")
    for i in range(5):
        if i == 4: k.e(f"s_add_u32 m0, s52, {LV+4096}")
        k.e(f"buffer_load_dwordx4 v{VV+i}, s[20:23], s9 offen offset:{1024*(i%4)}{SC} lds")
    k.e("s_waitcnt vmcnt(5)", f"s_branch {k.lab('b_go')}")
    k.label("b_k")
    d_map(k); d_wsetup(k)
    wv_offsets(k, VV, 2, 16)
    k.e("s_mul_i32 s9, s31, 204800", "s_add_u32 s9, s9, s60", "s_add_u32 s9, s9, 20480", "s_and_b32 s8, s31, 1", "s_lshl_b32 s8, s8, 1", "s_lshr_b32 s10, s31, 1",
        "s_add_u32 s8, s8, s10", "s_mul_i32 s8, s8, 5120", "s_lshl_b32 s52, s31, 11")
    for r in range(0, 10, 2): k.e(f"v_mov_b64 {v(HRES+r,2)}, 0")
    stamp(k, 8)
    k.e("s_barrier")
    stamp(k, 7)
    for p_ in range(3):
        k.e(f"s_add_u32 m0, s52, {LK+8192*p_}", f"s_add_u32 s54, s{4+p_}, s7", f"buffer_load_dwordx4 v{L16}, s[20:23], s54 offen{SC} lds",
            f"buffer_load_dwordx4 v{L16}, s[20:23], s54 offen offset:1024{SC} lds")
    s_init()
    for x in step_dma(VV, 8, 9, 6 * 5120): k.e(*x)
    k.e("s_waitcnt vmcnt(5)")
    k.label("b_go")
    k.e("s_barrier")
    stamp(k, 9)
    def kread(i):
        b = KB + 8 * (i % 3)
        return [f"ds_read_b128 v[{b}:{b+3}], v{AK} offset:{512*i}", f"ds_read_b128 v[{b+4}:{b+7}], v{AKE} offset:{512*i+16384}"]
    def vread(n):
        b = VB + 4 * (n % 3)
        return ["s_mov_b64 exec, s[58:59]", f"ds_read_b128 v[{b}:{b+3}], v{AV} offset:{640*n}", "s_mov_b64 exec, -1"]
    def maxops(i):
        sb = SB + 16 * i
        o = []
        if i == 0:
            o.append(f"v_max_f32 v{MX}, v{sb}, v{sb+1}"); o.append(f"v_max_f32 v{MC}, v{sb+2}, v{sb+3}")
            rs = list(range(4, 16))
        else: rs = list(range(16))
        for j in range(0, len(rs), 2):
            d = MX if (j // 2) % 2 == 0 else MC
            o.append(f"v_max3_f32 v{d}, v{sb+rs[j]}, v{sb+rs[j+1]}, v{d}")
        return o
    k.e(f"ds_read_b128 v[{QM}:{QM+3}], v{MC}", f"ds_read_b128 v[{QE}:{QE+3}], v{MX} offset:8192")
    k.e(*kread(0)); k.e(*kread(1))
    k.e("s_waitcnt lgkmcnt(4)")
    k.e(f"v_cndmask_b32_e64 v{QE}, 0, v{QE}, s[28:29]", f"v_cndmask_b32_e64 v{QE+1}, 0, v{QE+1}, s[28:29]",
        f"v_cndmask_b32_e64 v{QE+2}, 0, v{QE+2}, s[56:57]", f"v_cndmask_b32_e64 v{QE+3}, 0, v{QE+3}, s[56:57]")
    W0 = (24, 28, 84)
    k.e("s_lshr_b32 s8, s24, 2", "s_mul_i32 s9, s8, 3072", f"s_add_u32 s9, s9, s{DLP}", "s_mul_i32 s8, s8, 49152", f"s_add_u32 s8, s8, s{DSW}", f"s_add_u32 s9, s9, {d_w(0)}")
    k.e(*d_wadv())
    wo = [[f"buffer_load_dwordx4 {v(W0[i],4)}, v{DW+i}, s[32:35], s8 offen offset:{1024*i}"] for i in range(3)] + wo
    WQ = [0, 1, 2]; WS_ = list(range(3, 13))
    if opt("wo3"): WQ = [0, 1, 2, 6, 8]; WS_ = list(range(0, 12, 3)) + [10, 11, 12, 13]
    for i in range(9):
        b = KB + 8 * (i % 3); sb = SB + 16 * i
        k.e(f"s_waitcnt lgkmcnt({2 if i < 8 else 0})")
        mf = [f"v_mfma_f32_32x32x16_bf16 {v(sb,16)}, {v(b,4)}, {v(QM,4)}, {v(sb,16)}",
              f"v_mfma_f32_32x32x16_bf16 {v(sb,16)}, {v(b+4,4)}, {v(QE,4)}, {v(sb,16)}"]
        fill = []
        if i + 2 < 9: fill += kread(i + 2)
        if i >= 2: fill += maxops(i - 2)
        if i in WQ: fill.append(wo[WQ.index(i)])
        k.e(*interleave(mf, fill))
    k.e(*maxops(7)); k.e(*maxops(8))
    k.e(f"s_waitcnt vmcnt({len(WQ)})", "s_barrier")
    stamp(k, 10)
    rest_ = wo[len(WQ):]
    k.e(*vread(0)); k.e(*vread(1))
    k.e(f"v_max_f32 v{MX}, v{MX}, v{MC}", f"v_mov_b32 v{MC}, v{MX}", f"v_permlane32_swap_b32 v{MC}, v{MX}", f"v_max_f32 v{MX}, v{MX}, v{MC}")
    split3(k, MX, MB, MB + 1, T0, T1, neg=True)
    k.e(f"v_cmp_gt_u32 vcc, 32, v{L}", f"v_cndmask_b32 v{MB}, 0, v{MB}, vcc", f"v_cndmask_b32 v{MB+1}, 0, v{MB+1}, vcc")
    def sub(i): return f"v_mfma_f32_32x32x16_bf16 {v(SB+16*i,16)}, {v(OA,4)}, {v(MB,4)}, {v(SB+16*i,16)}"
    def soft(i, u):
        sb = SB + 16 * i + 8 * u
        o = [f"v_exp_f32 v{sb+r}, v{sb+r}" for r in range(8)]
        o += [f"v_cvt_pk_bf16_f32 v{sb+j}, v{sb+2*j}, v{sb+2*j+1}" for j in range(4)]
        return o
    PB = [int(c, 36) for c in ([a[4:] for a in sys.argv if a.startswith('-pb=')] + [''])[0]]
    if PB: k.e("s_lshl_b32 s61, s2, 3", "s_add_u32 s61, s61, s24", f"s_mul_i32 s61, s61, {len(PB)*1024}", f"s_min_u32 s61, s61, {WS_W2-WS_H-len(PB)*1024}", f"s_add_u32 s61, s61, {WS_H}")
    if opt("prio"): k.e("s_cmp_lt_u32 s24, 4", f"s_cbranch_scc1 {k.lab('b_pr')}", "s_setprio 1"); k.label("b_pr")
    k.e(sub(0), sub(1))
    k.e(*soft(0, 0))
    for n in range(18):
        i, u = divmod(n, 2)
        sb = SB + 16 * i + 8 * u
        b = VB + 4 * (n % 3)
        nxt = soft(*divmod(n + 1, 2)) if n + 1 < 18 else []
        k.e(*nxt[:3])
        k.e(f"s_waitcnt lgkmcnt({1 if n < 17 else 0})")
        k.e(f"v_mfma_f32_32x32x16_bf16 {v(O,16)}, {v(b,4)}, {v(sb,4)}, {'0' if n == 0 else v(O,16)}")
        if n + 2 < 18: k.e(*vread(n + 2))
        k.e(*nxt[3:7])
        if u == 0 and i + 2 < 9: k.e(sub(i + 2))
        if n in WS_ and not opt("nowo"): k.e(*rest_[WS_.index(n)])
        if n in PB: k.e(f"buffer_store_dwordx4 v[36:39], v{L16}, s[20:23], s61 offen offset:{1024*(PB.index(n)%4)} sc1", *(["s_add_u32 s61, s61, 4096"] if PB.index(n) == 3 else []))
        k.e(*nxt[7:])
    k.e(f"v_add_u32 v{T0}, s9, v{L16}", f"s_waitcnt vmcnt({(0 if opt('nowo') else 10)+len(PB)})")
    for i in range(3): k.e(f"ds_write_b128 v{T0}, {v(W0[i],4)} offset:{1024*i}")
    k.e(f"v_lshrrev_b32 v{T0}, 4, v{TK}", f"v_mul_u32_u24 v{T0}, 20480, v{T0}", f"v_and_b32 v{T1}, 15, v{L}",
        f"v_lshl_add_u32 v{T3}, v{T1}, 3, v{T0}", f"v_lshl_add_u32 v{T0}, v{T1}, 4, v{T0}", f"v_lshl_add_u32 v{T1}, v{H}, 8, v{T0}")
    k.e("s_mul_i32 s52, s27, 40960", f"s_add_u32 s52, s52, {WS_O}", "s_lshl_b32 s53, s25, 9", "s_add_u32 s53, s53, s52",
        "s_lshl_b32 s54, s25, 7", "s_add_u32 s54, s54, s52", "s_add_u32 s54, s54, 16384")
    k.e(f"v_rcp_f32 v{T2}, v{O+12}")
    for r in range(12): k.e(f"v_mul_f32 v{O+r}, v{O+r}, v{T2}")
    for j in range(6): k.e(f"v_cvt_pk_bf16_f32 v{O+j}, v{O+2*j}, v{O+2*j+1}")
    k.e(f"buffer_store_dwordx4 v[{O}:{O+3}], v{T1}, s[20:23], s53 offen sc1")
    k.e("s_mov_b32 exec_hi, 0", f"buffer_store_dwordx2 v[{O+4}:{O+5}], v{T3}, s[20:23], s54 offen sc1", "s_mov_b64 exec, -1")
    k.e("s_lshl_b32 s52, s26, 12", "s_lshl_b32 s53, s25, 2", "s_add_u32 s52, s52, s53", f"s_add_u32 s52, s52, {WS_FC}", f"v_lshlrev_b32 v{T0}, 7, v{L}")
    if opt("prio"): k.e("s_setprio 0")
    stamp(k, 11)
    k.e("s_waitcnt vmcnt(0) lgkmcnt(0)", "s_barrier")
    stamp(k, 12)
    push_flags(k, 52, T0, -1)
    k.e("s_cmp_lt_u32 s2, 240", f"s_cbranch_scc1 {k.lab('b_end')}", "s_cmp_lt_u32 s24, 4", f"s_cbranch_scc1 {k.lab('b_end')}",
        "s_lshl_b32 s52, s2, 2", "s_lshl_b32 s53, s24, 13", "s_add_u32 s52, s52, s53", f"s_add_u32 s52, s52, {WS_FD+64-960-32768}",
        f"buffer_store_dword v{T3}, v{T0}, s[20:23], s52 offen sc1")
    k.label("b_end")

WR, ACT, ACC = 96, 56, 36
LA, NAT, XA = 20, 22, 24
TOK = 31
DW = 32
def ce_setup(k, khs, set2, xb):
    k.e("s_and_b32 s52, s2, 7", "s_lshr_b32 s53, s2, 3", "s_lshr_b32 s54, s53, 3", "s_lshl_b32 s25, s52, 2", "s_add_u32 s25, s25, s54",
        "s_and_b32 s26, s53, 7", "s_and_b32 s28, s24, 3", "s_lshr_b32 s29, s24, 2")
    k.e(f"v_bfe_u32 v{T0}, v{L}, 2, 3", f"v_lshl_add_u32 v{T0}, v{H}, 4, v{T0}", f"v_mul_u32_u24 v{T0}, 160, v{T0}",
        f"v_and_b32 v{T1}, 3, v{L}", f"v_lshl_add_u32 v{T0}, v{T1}, 3, v{T0}", f"s_mul_i32 s53, s29, {khs}", f"v_add_u32 v{LA}, s53, v{T0}",
        f"v_add_u32 v{LA+1}, {set2}, v{LA}")
def ce_setup2(k, xb):
    k.e(f"v_lshrrev_b32 v{T1}, 4, v{L}", f"v_and_b32 v{TOK}, 15, v{L}",
        "s_lshl_b32 s52, s25, 2", "s_add_u32 s27, s52, s28", "s_mul_i32 s52, s27, 20480", "s_mul_i32 s53, s26, 160", "s_add_u32 s30, s52, s53",
        f"v_mul_u32_u24 v{NAT}, 1280, v{TOK}", f"v_lshl_add_u32 v{NAT+1}, v{T1}, 3, v{NAT}",
        f"v_lshl_add_u32 v{NAT}, v{H}, 4, v{NAT}", f"v_bfe_u32 v{T0}, v{L}, 4, 1", f"v_lshl_add_u32 v{NAT}, v{T0}, 5, v{NAT}",
        "s_mul_i32 s52, s28, 5120", f"s_add_u32 s52, s52, {xb}", f"v_add_u32 v{XA}, s52, v{L16}")
def w_reads(st, off, dst):
    return [f"ds_read_b64_tr_b16 v[{dst+4*f+2*u}:{dst+4*f+2*u+1}], v{LA+st} offset:{off+1280*u+32*f}" for f in range(5) for u in range(2)]
def ce_mfma(wb, ab):
    return [f"v_mfma_f32_16x16x32_bf16 {v(ACC+4*f,4)}, {v(wb+4*f,4)}, {v(ab,4)}, {v(ACC+4*f,4)}" for f in range(5)]
def unpack(k, src):
    for j in range(10): k.e(f"v_lshlrev_b32 v{ACC+2*j}, 16, v{src+j}", f"v_and_b32 v{ACC+2*j+1}, 0xffff0000, v{src+j}")
def swaps(k, y):
    for j in (0, 1, 4, 5): k.e(f"v_permlane16_swap_b32 v{y+j}, v{y+j+2}")
def ce_epilogue(k, out, skip, pref, k0=()):
    X = WR
    k.e("s_cmp_lg_u32 s29, 0", f"s_cbranch_scc1 {k.lab(pref + '_k1')}")
    for f in range(5): k.e(f"ds_write_b128 v{XA}, {v(ACC+4*f,4)} offset:{1024*f}")
    k.e(*k0)
    k.e("s_waitcnt lgkmcnt(0)", "s_barrier", f"s_branch {k.lab(skip)}")
    k.label(pref + "_k1")
    k.e("s_barrier")
    for f in range(5): k.e(f"ds_read_b128 {v(X+4*f,4)}, v{XA} offset:{1024*f}")
    for f in range(5):
        k.e(f"s_waitcnt lgkmcnt({4-f})")
        for r in (4 * f, 4 * f + 2): k.e(f"v_pk_add_f32 {v(ACC+r,2)}, {v(ACC+r,2)}, {v(X+r,2)}")
        for j in (2 * f, 2 * f + 1): k.e(f"v_cvt_pk_bf16_f32 v{out+j}, v{ACC+2*j}, v{ACC+2*j+1}")

def d_w(st): p = (st + 3) % 4; return 40960 * p + (16384 if p & 1 else 0)
def d_h(st): p = (st + 3) % 4; return 40960 * p + (0 if p & 1 else 24576)
DRB, DNB, DROT, DSW, DLIM, DLP = 96, 97, 98, 99, 38, 39
def d_map(k):
    k.e("s_and_b32 s52, s2, 7", "s_lshr_b32 s53, s2, 3", "s_lshr_b32 s54, s53, 3", "s_lshr_b32 s55, s52, 1", f"s_lshl_b32 s{DRB}, s55, 2", f"s_add_u32 s{DRB}, s{DRB}, s54",
        "s_and_b32 s52, s52, 1", "s_lshl_b32 s52, s52, 3", "s_and_b32 s53, s53, 7", f"s_add_u32 s{DNB}, s52, s53",
        "s_mul_i32 s54, s54, 5", "s_add_u32 s54, s54, 1", "s_lshr_b32 s54, s54, 1", "s_add_u32 s54, s54, s55", f"s_add_u32 s54, s54, s{DNB}",
        "s_cmp_ge_u32 s54, 20", "s_cselect_b32 s55, 20, 0", "s_sub_u32 s54, s54, s55",
        "s_cmp_ge_u32 s54, 10", "s_cselect_b32 s55, 10, 0", f"s_sub_u32 s{DROT}, s54, s55")
def d_wsetup(k):
    k.e("s_bitcmp1_b32 s24, 1", f"s_cselect_b32 s32, s{KW3}, s{KW1}", f"s_cselect_b32 s33, s{KW3+1}, s{KW1+1}", f"s_mov_b32 s34, {640*3072}", "s_mov_b32 s35, 0x20000",
        "s_cselect_b32 s52, 2, 0")
    for i in range(3):
        k.e(f"v_add_u32 v{T0}, {64*i}, v{L}", f"v_mul_u32_u24 v{T1}, 5462, v{T0}", f"v_lshrrev_b32 v{T1}, 16, v{T1}",
            f"v_xor_b32 v{T0}, s52, v{T0}", f"v_mul_u32_u24 v{T1}, {3072-192}, v{T1}", f"v_lshl_add_u32 v{DW+i}, v{T0}, 4, v{T1}")
        if i: k.e(f"v_subrev_u32 v{DW+i}, {1024*i}, v{DW+i}")
    k.e("s_and_b32 s52, s24, 3", f"s_mul_i32 s{DLP}, s52, 6144", "s_and_b32 s52, s24, 1", "s_mul_i32 s52, s52, 98304", f"s_mul_i32 s53, s{DNB}, 192", "s_add_u32 s52, s52, s53",
        f"s_add_u32 s{DLIM}, s52, {640*3072}", f"s_mul_i32 s53, s{DROT}, {64*3072}", f"s_add_u32 s{DSW}, s52, s53")
def d_wtriple(lds_s, lds_add, soff):
    return [f"s_add_u32 m0, s{lds_s}, {lds_add}"] + [f"buffer_load_dwordx4 v{DW+i}, s[32:35], s{soff} offen offset:{1024*i} lds" for i in range(3)]
def d_wadv():
    return [f"s_add_u32 s{DSW}, s{DSW}, {64*3072}", f"s_cmp_ge_u32 s{DSW}, s{DLIM}", f"s_cselect_b32 s52, {640*3072}, 0", f"s_sub_u32 s{DSW}, s{DSW}, s52"]
def d_wstage(st):
    a = d_wtriple(DLP, d_w(st), DSW); b = d_wtriple(DLP, d_w(st) + 3072, 49)
    return [a[:2], [a[2]], [a[3]], [f"s_add_u32 s49, s{DSW}, 49152"] + b[:2], [b[2]], [b[3]] + d_wadv()]

PF1, PF2 = map(int, ([a[4:] for a in sys.argv if a.startswith('-pf=')] + ['11'])[0])
def phase_c(k):
    LE = 35
    ce_setup(k, 5120, 51200, LX)
    def cpos(i):
        o = 10240 * (i + 2 * (i >= 3)) if i < 8 else 10240 * (i - 5)
        return (1, o - 51200) if o >= 51200 else (0, o)
    for i in range(8): k.e(*w_reads(*cpos(i), WR + 20 * i))
    ce_setup2(k, LX)
    HA, SA, FA = 25, 27, 28
    k.e("s_mul_i32 s52, s27, 20480", f"s_add_u32 s52, s52, {WS_O}", "s_lshl_b32 s54, s29, 13", "s_add_u32 s54, s54, s52")
    for i in range(8): k.e(f"s_add_u32 s53, s26, {i}", "s_and_b32 s53, s53, 7", "s_lshl_b32 s53, s53, 10", f"s_add_u32 s{4+i}, s53, s54")
    k.e("s_lshl_b32 s53, s29, 11", "s_add_u32 s56, s52, s53", "s_add_u32 s56, s56, 16384",
        f"v_lshlrev_b32 v{LE}, 9, v{H}", f"v_bfe_u32 v{T0}, v{L}, 4, 1", f"v_lshl_add_u32 v{LE}, v{T0}, 7, v{LE}", f"v_lshl_add_u32 v{LE}, v{TOK}, 3, v{LE}")
    k.e("s_lshr_b32 s52, s27, 1", "s_mul_i32 s52, s52, 40960", "s_mul_i32 s53, s26, 5120", "s_add_u32 s52, s52, s53", "s_and_b32 s53, s28, 1", "s_lshl_b32 s53, s53, 8",
        "s_add_u32 s52, s52, s53", f"s_add_u32 s31, s52, {WS_H}",
        f"v_lshlrev_b32 v{T1}, 9, v{H}", f"v_lshl_add_u32 v{T1}, v{TOK}, 4, v{T1}", f"v_lshl_add_u32 v{HA}, v{T0}, 10, v{T1}", f"v_add_u32 v{HA+1}, 4096, v{T1}",
        "s_lshl_b32 s52, s27, 3", "s_add_u32 s52, s52, s26", "s_lshl_b32 s52, s52, 7", f"s_add_u32 s57, s52, {WS_HST}", f"v_lshlrev_b32 v{SA}, 3, v{TOK}",
        "s_lshr_b32 s52, s25, 1", "s_lshl_b32 s52, s52, 11", "s_and_b32 s53, s25, 1", "s_lshl_b32 s53, s53, 3", "s_add_u32 s53, s53, s26", "s_lshl_b32 s53, s53, 2",
        "s_add_u32 s52, s52, s53", f"s_add_u32 s58, s52, {WS_FD}", f"v_lshlrev_b32 v{FA}, 7, v{L}", f"s_mov_b32 s55, {ONES}")
    unpack(k, HRES)
    k.e("s_cmp_lg_u32 s24, 1", f"s_cbranch_scc1 {k.lab('c_np')}")
    k.e("s_lshl_b32 s52, s25, 3", "s_add_u32 s52, s52, s26", "s_lshl_b32 s52, s52, 7", f"s_add_u32 s52, s52, {WS_FC}", f"v_lshlrev_b32 v{T2}, 2, v{L}")
    poll(k, T2, "s52", T0, -1, 0)
    k.label("c_np")
    k.e("s_waitcnt lgkmcnt(0)", "s_barrier")
    stamp(k, 13)
    for i in range(8): k.e(f"buffer_load_dwordx4 {v(ACT+4*i,4)}, v{L16}, s[20:23], s{4+i} offen{SC}")
    for e in range(2):
        for u in range(2): k.e(f"buffer_load_dwordx2 {v(ACT+32+4*e+2*u,2)}, v{LE}, s[20:23], s56 offen offset:{1024*e+256*u}{SC}")
    for i in range(10):
        k.e(f"s_waitcnt vmcnt({11-i if i < 8 else 2*(9-i)})" + (f" lgkmcnt({10*(9-i)})" if i >= 8 else ""))
        if i == 0: stamp(k, 14)
        k.e(*ce_mfma(WR + 20 * (i % 8), ACT + 4 * i))
        if i in (1, 2): k.e(*w_reads(*cpos(i + 7), WR + 20 * (i - 1)))
    stamp(k, 15)
    ce_epilogue(k, HRES, "c_k0", "c", [x for st in range(1, 1 + PF1) for y in d_wstage(st) for x in y])
    Z, S1 = ACT, ACT + 4
    k.e(f"v_mov_b64 {v(Z,2)}, {v(HRES+8,2)}", f"v_mov_b64 {v(Z+2,2)}, {v(HRES+8,2)}", f"v_mov_b64 {v(S1,2)}, 0", f"v_mov_b64 {v(S1+2,2)}, 0")
    swaps(k, HRES)
    k.e(f"v_permlane16_swap_b32 v{Z}, v{Z+2}", f"v_permlane16_swap_b32 v{Z+1}, v{Z+3}")
    k.e(f"buffer_store_dwordx4 {v(HRES,4)}, v{HA}, s[20:23], s31 offen sc1", f"buffer_store_dwordx4 {v(HRES+4,4)}, v{HA}, s[20:23], s31 offen offset:2048 sc1",
        "s_mov_b32 exec_lo, 0xffff", "s_mov_b32 exec_hi, 0xffff", f"buffer_store_dwordx4 {v(Z,4)}, v{HA+1}, s[20:23], s31 offen sc1", "s_mov_b64 exec, -1")
    for j in range(10): k.e(f"v_dot2c_f32_bf16 v{S1+2*(j&1)}, s55, v{HRES+j}", f"v_dot2c_f32_bf16 v{S1+2*(j&1)+1}, v{HRES+j}, v{HRES+j}")
    k.e(f"v_pk_add_f32 {v(S1,2)}, {v(S1,2)}, {v(S1+2,2)}")
    for sw in ("v_permlane16_swap_b32", "v_permlane32_swap_b32"):
        k.e(f"v_mov_b64 {v(S1+2,2)}, {v(S1,2)}", f"{sw} v{S1+2}, v{S1}", f"{sw} v{S1+3}, v{S1+1}", f"v_pk_add_f32 {v(S1,2)}, {v(S1,2)}, {v(S1+2,2)}")
    k.e("s_mov_b64 exec, 0xffff", f"buffer_store_dwordx2 {v(S1,2)}, v{SA}, s[20:23], s57 offen sc1", "s_mov_b64 exec, -1")
    stamp(k, 16)
    k.e("s_waitcnt vmcnt(0)", f"s_branch {k.lab('c_pub')}")
    k.label("c_k0")
    for st in range(1 + PF1, 1 + PF2):
        for y in d_wstage(st): k.e(*y)
    stamp(k, 16)
    k.label("c_pub")
    k.e("s_barrier")
    stamp(k, 17)
    push_flags(k, 58, FA, "0xffff")

X6, X7, X8, X9 = 40960, 81920, 122880, 0
DMI = X6 + 5120
PK = 60
def e_soff(k, d, G, kh, isg):
    k.e(f"s_mul_i32 s{d}, s26, {ER}", f"s_add_u32 s{d}, s{d}, s{isg}", f"s_add_u32 s{d}, s{d}, {8*G}", f"s_cmp_ge_u32 s{d}, 24", f"s_cselect_b32 s61, {24*kh-24}, {24*kh}",
        f"s_add_u32 s{d}, s{d}, s61", f"s_mul_i32 s{d}, s{d}, 5120", f"s_add_u32 s{d}, s{d}, s58")

L4K = 35
def p_dma(lds_s, soff, lds_add):
    return [f"s_add_u32 m0, s{lds_s}, {lds_add}"] + [f"buffer_load_dwordx4 v{L16}, s[20:23], s{soff} offen offset:{1024*i}{SC} lds" for i in range(4)] + \
           [f"s_add_u32 m0, s{lds_s}, {lds_add+4096}", f"buffer_load_dwordx4 v{L4K}, s[20:23], s{soff} offen{SC} lds"]
def p_reads(st, off, dst):
    return [f"ds_read_b128 {v(dst+4*f,4)}, v{LA+st} offset:{off+1024*f}" for f in range(5)]
def p_base(k):
    k.e("s_mul_i32 s58, s26, 245760", f"s_add_u32 s58, s58, {WS_W2}", f"v_add_u32 v{L4K}, 4096, v{L16}")

def d_compute(k):
    AH, AW, AST, RI, AM = 20, 22, 31, 36, 32
    DA, FR = 160, 40
    ONE = 36
    for st in range(1 + PF2, 4):
        for y in d_wstage(st): k.e(*y)
    k.e("s_lshr_b32 s28, s24, 1", "s_and_b32 s29, s24, 1", "s_lshl_b32 s52, s28, 13", f"v_add_u32 v{AH}, s52, v{L16}", f"v_add_u32 v{AH+1}, 81920, v{AH}")
    k.e(f"v_bfe_u32 v{T0}, v{L}, 2, 2", f"v_lshl_add_u32 v{T0}, v{H}, 3, v{T0}", f"v_mul_u32_u24 v{T0}, 192, v{T0}", f"v_and_b32 v{T1}, 3, v{L}", f"v_lshl_add_u32 v{T0}, v{T1}, 3, v{T0}",
        f"v_bfe_u32 v{T1}, v{L}, 4, 1", f"v_mul_u32_u24 v{T2}, 12288, v{T1}", f"v_add_u32 v{T0}, v{T0}, v{T2}", "s_mul_i32 s52, s29, 3")
    for f in range(3):
        k.e(f"v_xor_b32 v{T2}, s52, v{T1}", f"v_lshl_add_u32 v{AW+f}, v{T2}, 5, v{T0}", f"v_add_u32 v{AW+3+f}, 57344, v{AW+f}", f"v_add_u32 v{AW+6+f}, 139264, v{AW+f}", "s_add_u32 s52, s52, 1")
    def buf(g): return FR + 20 * (g % 4 if g < 38 else g - 34)
    def hreads(g):
        st, ks = divmod(g, 4); o = d_h(st); S = o >= 81920
        return [f"ds_read_b128 {v(buf(g)+4*t,4)}, v{AH+S} offset:{o-81920*S+4096*t+1024*ks}" for t in range(2)]
    def wreads(g):
        st, ks = divmod(g, 4); o = d_w(st); S, b = {0: (0, 0), 57344: (1, 0), 81920: (1, 24576), 139264: (2, 0)}[o]
        return [f"ds_read_b64_tr_b16 {v(buf(g)+8+4*f+2*u,2)}, v{AW+3*S+f} offset:{b+3072*ks+768*u}" for f in range(3) for u in range(2)]
    for g in range(4): k.e(*wreads(g))
    XO, CS = FR + 80, FR + 88
    k.e(f"v_lshrrev_b32 v{T0}, 4, v{TK}", f"v_mul_u32_u24 v{T0}, 49152, v{T0}", f"v_and_b32 v{T1}, 15, v{L}", f"v_lshl_add_u32 v{T0}, v{T1}, 4, v{T0}", f"v_lshl_add_u32 v{AST}, v{H}, 8, v{T0}",
        f"s_lshl_b32 s52, s{DRB}, 1", "s_add_u32 s52, s52, s28", f"s_mul_i32 s52, s52, {4*49152}", f"s_lshl_b32 s53, s{DNB}, 1", "s_add_u32 s53, s53, s29", "s_mul_i32 s54, s53, 1536",
        "s_add_u32 s52, s52, s54", f"s_add_u32 s4, s52, {WS_A}", f"s_add_u32 s5, s4, {2*49152}",
        "s_lshl_b32 s52, s28, 9", f"s_add_u32 s52, s52, {DMI}", f"v_lshl_add_u32 v{AM}, v{TK}, 3, s52",
        "s_mul_i32 s52, s29, 768", f"s_add_u32 s52, s52, {DMI+2048}", f"v_lshl_add_u32 v{AM+1}, v{TK}, 3, s52")
    for r in range(20): k.e(f"v_mov_b32 v{XO+r}, 0")
    k.e("s_cmp_lt_u32 s24, 2", f"s_cbranch_scc1 {k.lab('d_ncs')}")
    for r in range(4): k.e(f"v_mov_b32 v{ONE+r}, {ONES}")
    k.e(f"s_mul_i32 s52, s{DNB}, 15360", f"s_mul_i32 s53, s{DROT}, 1536", "s_add_u32 s52, s52, s53", "s_mul_i32 s53, s29, 768", "s_add_u32 s52, s52, s53", f"s_add_u32 s52, s52, {WS_CS}",
        f"v_lshlrev_b32 v{T0}, 3, v{TK}", "s_waitcnt lgkmcnt(0)")
    for g in range(4):
        for f in range(3): k.e(f"v_mfma_f32_32x32x16_bf16 {v(DA+16*f,16)}, {v(ONE,4)}, {v(buf(g)+8+4*f,4)}, {'0' if g == 0 else v(DA+16*f,16)}")
    k.e("s_mov_b32 exec_hi, 0")
    for f in range(3):
        k.e(f"v_mov_b32 v{DA+16*f+1}, s{TAG}", f"buffer_store_dwordx2 {v(DA+16*f,2)}, v{T0}, s[20:23], s52 offen offset:{256*f} sc1")
    k.e("s_mov_b64 exec, -1")
    k.label("d_ncs")
    k.e("s_barrier")
    stamp(k, 18)
    k.e("s_waitcnt vmcnt(0)", "s_barrier")
    stamp(k, 19)
    lg = VM()
    def rd(ops, tag):
        lg.add(tag, len(ops)); return ops
    def lw(tag):
        if tag not in lg.q: return []
        w = lg.wait(tag); n = int(w[w.index("(") + 1:-1])
        return [f"s_waitcnt lgkmcnt({min(n, 15)})"]
    def mf(g, t, f):
        d = DA + 48 * t + 16 * f
        return f"v_mfma_f32_32x32x16_bf16 {v(d,16)}, {v(buf(g)+8+4*f,4)}, {v(buf(g)+4*t,4)}, {'0' if g == 0 else v(d,16)}"
    k.e(*rd(hreads(0), 0)); k.e(*rd(hreads(1), 1))
    for g in range(36):
        if g % 4 == 2:
            k.e("s_waitcnt lgkmcnt(0)")
            if g // 4 < 8: dstamp(k, "D", 10 + g // 4)
            k.e("s_barrier"); lg.q = []
            dstamp(k, "D", 1 + g // 4)
        else: k.e(*lw(g))
        fill = []
        for n in ([g + 2] if g < 34 else [36, 39] if g == 34 else [37, 38]):
            fill += rd(hreads(n) + (wreads(n) if n >= 4 else []), n)
        if g == 30:
            fill.append(["s_mov_b32 exec_hi, 0"] + rd([f"ds_read_b64 {v(XO+4*t,2)}, v{AM} offset:{256*t}" for t in range(2)], 32) + ["s_mov_b64 exec, -1"])
            fill += rd([f"ds_read_b64 {v(CS+4*f,2)}, v{AM+1} offset:{256*f}" for f in range(3)] + [f"ds_read_b64 {v(RI+2*t,2)}, v{AM} offset:{1024+256*t}" for t in range(2)], 32)
        m = [mf(g, t, f) for t in range(2) for f in range(3)]
        if g in (32, 33):
            t = g - 32
            m = [f"v_mfma_f32_32x32x16_bf16 {v(DA+48*t+16*f,16)}, {v(CS+4*f,4)}, {v(XO+4*t,4)}, {v(DA+48*t+16*f,16)}" for f in range(3)] + m
        k.e(*interleave(m, fill))
    k.e("s_waitcnt lgkmcnt(0)")
    TM = FR + 40
    def epi(t, f, packed):
        d = DA + 48 * t + 16 * f; e = TM + 8 * ((3 * t + f) & 1)
        rn, ir = RI + 2 * t, RI + 2 * t + 1
        s1, s2 = [], []
        if packed:
            s1 += [f"v_pk_mul_f32 {v(e+r,2)}, {v(d+r,2)}, {v(rn,2)} op_sel:[0,0] op_sel_hi:[1,0]" for r in range(0, 8, 2)]
            s1 += [f"v_exp_f32 v{e+r}, v{e+r}" for r in range(8)]
            s1 += [f"v_pk_fma_f32 {v(e+r,2)}, {v(e+r,2)}, {v(rn,2)}, {v(rn,2)} op_sel:[0,1,1] op_sel_hi:[1,1,1]" for r in range(0, 8, 2)]
            s1 += [f"v_rcp_f32 v{e+r}, v{e+r}" for r in range(8)]
            s2 += [f"v_pk_mul_f32 {v(d+r,2)}, {v(d+r,2)}, {v(d+8+r,2)}" for r in range(0, 8, 2)]
            s2 += [f"v_pk_mul_f32 {v(d+r,2)}, {v(d+r,2)}, {v(e+r,2)}" for r in range(0, 8, 2)]
        else:
            s1 += [f"v_mul_f32 v{e+r}, v{d+r}, v{rn}" for r in range(8)]
            s1 += [f"v_exp_f32 v{e+r}, v{e+r}" for r in range(8)]
            s1 += [f"v_fma_f32 v{e+r}, v{e+r}, v{ir}, v{ir}" for r in range(8)]
            s1 += [f"v_rcp_f32 v{e+r}, v{e+r}" for r in range(8)]
            s2 += [f"v_mul_f32 v{d+r}, v{d+r}, v{d+8+r}" for r in range(8)]
            s2 += [f"v_mul_f32 v{d+r}, v{d+r}, v{e+r}" for r in range(8)]
        s2 += [f"v_cvt_pk_bf16_f32 v{d+j}, v{d+2*j}, v{d+2*j+1}" for j in range(4)]
        s2.append(f"buffer_store_dwordx4 {v(d,4)}, v{AST}, s[20:23], s{4+t} offen offset:{512*f} sc1")
        return s1 + s2
    tiles = [(t, f) for t in range(2) for f in range(3)]
    for t, f in tiles: k.e(*[mf(g, t, f) for g in range(36, 40)])
    stamp(k, 20)
    for n, (t, f) in enumerate(tiles):
        k.e(*epi(t, f, True))
        if n == 2: k.e("s_barrier")
    stamp(k, 21)

def d_loader(k):
    D = 40
    vm = VM()
    k.e("s_sub_u32 s31, s24, 4")
    for st in range(3): k.e(*d_wadv())
    k.e(
        f"s_lshl_b32 s52, s{DRB}, 2", "s_add_u32 s52, s52, s31", "s_mul_i32 s52, s52, 40960", f"s_add_u32 s52, s52, {WS_H}", "s_add_u32 s57, s52, 40960",
        f"s_lshl_b32 s53, s{DROT}, 12", "s_add_u32 s56, s52, s53", "s_lshl_b32 s55, s31, 12")
    p_base(k)
    PH, PC = 36, 37
    k.e(f"v_lshrrev_b32 v{T0}, 4, v{L}", f"v_and_b32 v{T1}, 15, v{L}", f"v_lshlrev_b32 v{T1}, 3, v{T1}", f"v_lshl_add_u32 v{PH}, v{T0}, 9, v{T1}", f"v_lshlrev_b32 v{PC}, 3, v{L}",
        f"s_lshl_b32 s52, s{DRB}, 2", "s_add_u32 s52, s52, s31", "s_lshl_b32 s52, s52, 11", f"s_add_u32 s4, s52, {WS_HST}",
        "s_min_u32 s9, s31, 2", "s_lshl_b32 s9, s9, 9", f"s_mul_i32 s52, s{DNB}, 15360", "s_add_u32 s52, s52, s9", f"s_add_u32 s5, s52, {WS_CS}",
        "s_add_u32 s6, s5, 4608", "s_add_u32 s7, s5, 9216", "s_add_u32 s8, s5, 13824")
    k.e("s_cmp_lg_u32 s24, 4", f"s_cbranch_scc1 {k.lab('d_np')}")
    k.e(f"s_lshl_b32 s52, s{DRB}, 4", f"s_add_u32 s52, s52, s{DNB}", "s_lshl_b32 s52, s52, 7", f"s_add_u32 s52, s52, {WS_FD}", f"v_lshlrev_b32 v{T2}, 2, v{L}")
    poll(k, T2, "s52", T0, -1, 0)
    k.label("d_np")
    k.e("s_barrier")
    stamp(k, 18)
    def hst(st):
        o = [[f"buffer_load_dwordx4 v{L16}, s[20:23], s56 offen offset:{1024*i}{SC} lds"] for i in range(4)]
        o[0].insert(0, f"s_add_u32 m0, s55, {d_h(st)}")
        o[3] += ["s_add_u32 s56, s56, 4096", "s_cmp_ge_u32 s56, s57", "s_cselect_b32 s52, 40960, 0", "s_sub_u32 s56, s56, s52"]
        return o
    pieces = [(st, x) for st in range(4) for x in hst(st)] + [(st, x) for st in range(4, 10) for x in d_wstage(st) + hst(st)]
    def issue(n):
        for _ in range(n):
            st, x = pieces.pop(0); k.e(*x); vm.add(st)
    QT = [int(c, 16) for c in ([a[4:] for a in sys.argv if a.startswith('-qt=')] + ['9996999'])[0]]
    CSJ = int(([a[5:] for a in sys.argv if a.startswith('-csj=')] + ['4'])[0])
    assert sum(QT) == 60 and all(sum(QT[:j]) <= 10 * j for j in range(8))
    def cs_loads(r=range(10)):
        for j in r: k.e(f"buffer_load_dwordx2 {v(D+16+2*j,2)}, v{PC}, s[20:23], s{5+j//3} offen offset:{1536*(j%3)} sc1")
    def w2(G, kh, b, base, tag):
        k.e("s_lshl_b32 s53, s31, 1", f"s_add_u32 s53, s53, {b}") ; e_soff(k, 54, G, kh, 53)
        k.e("s_mul_i32 s53, s53, 5120")
        k.e(*p_dma(53, 54, base))
        vm.add(tag, 5)
    issue(16)
    for i in range(4): k.e(f"buffer_load_dwordx2 {v(D+2*i,2)}, v{PH}, s[20:23], s4 offen offset:{128*i}{SC}")
    vm.add("pt", 4)
    k.e(vm.wait(0), "s_barrier")
    stamp(k, 19)
    for j in range(1, 10):
        if j < 9: dstamp(k, "D", 9 + j)
        k.e(vm.wait(j))
        dstamp(k, "D", j)
        k.e("s_barrier")
        if j == CSJ: cs_loads(); vm.add("pt", 10)
        if j <= 7: issue(QT[j - 1])
        if j == 6:
            k.e(vm.wait("pt"), "s_mov_b32 s61, 0")
            k.label("d_chk")
            k.e(f"v_xor_b32 v{T0}, s{TAG}, v{D+17}", f"v_xor_b32 v{T1}, s{TAG}, v{D+19}", f"v_or_b32 v{T0}, v{T0}, v{T1}")
            for i in range(2, 10, 2):
                k.e(f"v_xor_b32 v{T1}, s{TAG}, v{D+17+2*i}", f"v_xor_b32 v{T2}, s{TAG}, v{D+19+2*i}", f"v_or3_b32 v{T0}, v{T0}, v{T1}, v{T2}")
            k.e(f"v_cmp_ne_u32 vcc, 0, v{T0}", "s_add_u32 s61, s61, 1", f"s_cbranch_vccz {k.lab('d_ok')}", f"s_cmp_gt_u32 s61, {SPIN_MAX}", f"s_cbranch_scc1 {k.lab('d_ok')}")
            cs_loads()
            k.e("s_waitcnt vmcnt(0)", f"s_branch {k.lab('d_chk')}")
            k.label("d_ok")
            for i in range(1, 4): k.e(f"v_add_f32 v{D}, v{D}, v{D+2*i}", f"v_add_f32 v{D+1}, v{D+1}, v{D+2*i+1}")
            for i in range(1, 10): k.e(f"v_add_f32 v{D+16}, v{D+16}, v{D+16+2*i}")
            for x, t in ((D, T2), (D + 1, T3)):
                k.e(f"v_mov_b32 v{t}, v{x}", f"v_permlane16_swap_b32 v{t}, v{x}", f"v_add_f32 v{x}, v{t}, v{x}")
            ln_stats(k, D, D + 1, T0, T1, D + 4, D + 6, SD=D + 7)
            split3(k, D + 16, D + 8, D + 9, T0, T1)
            k.e(f"v_cvt_pk_bf16_f32 v{D+4}, -v{D+4}, -v{D+4}", f"v_and_b32 v{D+5}, 0xffff, v{D+4}",
                f"v_mul_f32 v{D+6}, {f32(-1.4426950408889634)}, v{D+6}", f"v_mul_f32 v{D+7}, v{D+7}, v{D+7}",
                f"v_and_b32 v{T0}, 15, v{L}", f"v_lshl_add_u32 v{T0}, v{H}, 4, v{T0}", "s_lshl_b32 s52, s31, 8", f"s_add_u32 s52, s52, {DMI}", f"v_lshl_add_u32 v{T0}, v{T0}, 3, s52",
                f"s_add_u32 s52, s9, {DMI+2048}", f"v_add_u32 v{T1}, s52, v{PC}")
        if j == 7:
            k.e(f"ds_write_b64 v{T0}, {v(D+4,2)}", f"ds_write_b64 v{T0}, {v(D+6,2)} offset:1024", f"ds_write_b64 v{T1}, {v(D+8,2)}")
            w2(1, 1, 0, X6, "x6")
            k.e("s_waitcnt lgkmcnt(0)")
        if j == 8:
            w2(0, 0, 0, X7, "x7"); w2(0, 0, 1, X7, "x7")
        if j == 9:
            w2(0, 1, 0, X8, "x8"); w2(0, 1, 1, X8, "x8"); w2(1, 1, 1, X6, "x6b")
    stamp(k, 20)
    k.e(vm.wait("x8"), "s_barrier")
    w2(1, 0, 0, X9, "x9"); w2(1, 0, 1, X9, "x9")
    stamp(k, 21)

def phase_d(k):
    k.e("s_cmp_lt_u32 s24, 4", f"s_cbranch_scc1 {k.lab('d_cmp')}")
    d_loader(k)
    k.e(f"s_branch {k.lab('d_done')}")
    k.label("d_cmp")
    d_compute(k)
    p_base(k)
    k.label("d_done")
    k.e("s_and_b32 s28, s24, 3", "s_lshr_b32 s29, s24, 2", "s_mul_i32 s53, s29, 40960", f"v_add_u32 v{LA}, s53, v{L16}", f"v_add_u32 v{LA+1}, 81920, v{LA}")
    for i in range(8): k.e(*p_reads(1, 5120 * i, WR + 20 * i))
    k.e(f"s_lshl_b32 s52, s{DRB}, 11", f"s_lshl_b32 s53, s{DNB}, 2", "s_add_u32 s52, s52, s53", f"s_add_u32 s52, s52, {WS_FE}", f"v_lshlrev_b32 v{T0}, 7, v{L}")
    e_soff(k, 54, 2, 0, 24); k.e(f"s_add_u32 s55, s54, {24*5120}", "s_mul_i32 s53, s24, 5120")
    k.e("s_waitcnt vmcnt(0) lgkmcnt(0)", "s_barrier")
    stamp(k, 22)
    push_flags(k, 52, T0, "0xffff")

def phase_e(k):
    k.e(*p_dma(53, 54, X7)); k.e(*p_dma(53, 55, X8))
    ce_setup2(k, 0)
    swaps(k, HRES)
    unpack(k, HRES)
    k.e("s_mul_i32 s52, s27, 49152", f"s_add_u32 s52, s52, {WS_A}", "s_mul_i32 s54, s29, 24576", "s_add_u32 s54, s54, s52",
        "s_add_u32 s5, s54, 24576", f"s_mul_i32 s4, s26, {1024*ER}", "s_add_u32 s4, s4, s54", "s_mov_b32 s6, s54")
    srd(k, 12, KOUT, X_BYTES)
    k.e("s_cmp_lg_u32 s24, 1", f"s_cbranch_scc1 {k.lab('e_np')}")
    k.e("s_lshl_b32 s52, s25, 3", "s_add_u32 s52, s52, s26", "s_lshl_b32 s52, s52, 7", f"s_add_u32 s52, s52, {WS_FE}", f"v_lshlrev_b32 v{T2}, 2, v{L}")
    poll(k, T2, "s52", T0, 0xffff, 0)
    k.label("e_np")
    k.e("s_xor_b32 s52, s24, 2", "s_or_b32 s52, s52, s2", "s_cmp_lg_u32 s52, 0", f"s_cbranch_scc1 {k.lab('e_ne')}")
    k.e(f"v_lshrrev_b32 v{T0}, 3, v{L}", f"v_and_b32 v{T1}, 7, v{L}", f"v_lshlrev_b32 v{T1}, 4, v{T1}", f"v_lshl_add_u32 v{T2}, v{T0}, 12, v{T1}", f"s_mov_b32 s52, {WS_FC}")
    poll(k, T2, "s52", ACT, -1, -1, x4=True)
    k.e(f"v_mov_b32 v{T0}, 0", f"v_mov_b32 v{T1}, s{TAG}", f"s_mov_b32 s52, {WS_EP}", "s_mov_b64 exec, 1", f"buffer_store_dword v{T1}, v{T0}, s[20:23], s52 offen sc1", "s_mov_b64 exec, -1")
    k.label("e_ne")
    k.e("s_waitcnt vmcnt(0)", "s_barrier")
    stamp(k, 23)
    def ald(n): return [f"buffer_load_dwordx4 {v(ACT+4*(n%10),4)}, v{L16}, s[20:23], s4 offen{SC}", "s_add_u32 s4, s4, 1024", "s_cmp_ge_u32 s4, s5", "s_cselect_b32 s4, s6, s4"]
    ED = int(([a[4:] for a in sys.argv if a.startswith('-ed=')] + ['6'])[0])
    for n in range(ED): k.e(*ald(n))
    for n in range(24):
        issued = min(24, n + ED)
        w = f"s_waitcnt vmcnt({issued-1-n})"
        if 8 <= n: w += f" lgkmcnt({10 if n <= 17 else 0})"
        k.e(w)
        if n == 0: stamp(k, 24)
        fill = []
        if n + ED < 24: fill.append(ald(n + ED))
        if 1 <= n <= 16 and not opt('e_nolds'): fill += p_reads(0 if n <= 8 else 1, 5120 * ((n - 1) % 8), WR + 20 * ((n - 1) % 8))
        k.e(*interleave(ce_mfma(WR + 20 * (n % 8), ACT + 4 * (n % 10))[:(1 if opt('e_nomf') else 5)], fill))
        if n == 24 - ED: k.e("s_barrier")
    stamp(k, 25)
    ce_epilogue(k, HRES, "fin", "e")
    swaps(k, HRES)
    OS = ([" " + a[4:].replace("+", " ") for a in sys.argv if a.startswith('-os=')] + [''])[0]
    k.e(f"buffer_store_dwordx2 {v(HRES+8,2)}, v{NAT+1}, s[12:15], s30 offen offset:128{OS}",
        f"buffer_store_dwordx4 {v(HRES,4)}, v{NAT}, s[12:15], s30 offen{OS}", f"buffer_store_dwordx4 {v(HRES+4,4)}, v{NAT}, s[12:15], s30 offen offset:64{OS}")

def rest(k):
    phase_b(k)
    if G.UPTO == "B": return
    phase_c(k)
    if G.UPTO == "C": return
    phase_d(k)
    if G.UPTO == "D": return
    phase_e(k)
```

```python
import sys, struct
from asmlib import *
from qktab import tables

NAME = "sequential_preLN__sliding_block__glu_gated_swiglu__prompt"
WS_QK = 0
WS_V = 5242880
WS_O = 7864320
WS_H = 10485760
WS_A = 13107200
WS_W2 = 19398656
WS_HST = WS_W2 + 1966080
WS_CS = WS_HST + 262144
WS_XST = WS_CS + 245760
WS_WST = WS_XST + 327680
WS_FB = WS_WST + 153600
WS_FC = WS_FB + 65536
WS_FD = WS_FC + 32768
WS_FE = WS_FD + 32768
WS_EP = WS_FE + 32768
WS_END = WS_EP + 128
X_BYTES = 2048 * 1280
SPIN_MAX = 40000 if not any(a in sys.argv for a in ('-xrot', '-norot_a')) else 20

def f32(x): return "0x%08x" % struct.unpack("<I", struct.pack("<f", x))[0]
ONES = "0x3f803f80"
NEGBIG = f32(-1e30)
CSC = (20 ** -0.5) * 1.4426950408889634

STAMP = "-stamp" in sys.argv
UPTO = ([a[6:] for a in sys.argv if a.startswith("-upto=")] + ["E"])[0]
WS_STAMP = 64 << 20
WS_SRD = (1 << 28) if STAMP else WS_END
def opt(name): return ("-" + name) in sys.argv

L, L16, H, TK, T0, T1, T2, T3 = 1, 2, 3, 4, 5, 6, 7, 8
HRES = 10
KX, KWQKV, KWO, KW1, KW3, KW2, KOUT, KWS = 32, 34, 36, 40, 42, 44, 46, 50
TAG = 3

class VM:
    def __init__(s): s.q = []
    def add(s, tag, n=1): s.q += [tag] * n
    def wait(s, tag):
        if tag not in s.q: return "s_nop 0"
        idx = max(i for i, t in enumerate(s.q) if t == tag)
        n = len(s.q) - 1 - idx
        s.q = s.q[idx + 1:]
        assert n <= 63
        return f"s_waitcnt vmcnt({n})"

NST = [0]
DST = ([a[5:] for a in sys.argv if a.startswith("-dst=")] + [""])[0]
def dstamp(k, ph, i):
    if DST == ph: stamp(k, i, True)
ECHO = [tuple(map(int, a[6:].split(":"))) for a in sys.argv if a.startswith("-echo=")]
def stamp(k, i, force=False):
    if ECHO:
        if i in ECHO[0] or i == 29: k.e("s_memrealtime s[62:63]", "s_waitcnt lgkmcnt(0)", f"s_mov_b32 s{64+i}, s62")
        return
    if DST and 1 <= i <= 17 and not force: return
    if STAMP:
        k.e("s_memrealtime s[62:63]", "s_waitcnt lgkmcnt(0)", f"s_mov_b32 s{64+i}, s62")
def stamp_out(k):
    if ECHO:
        i, j = ECHO[0][:2]; wv = ECHO[0][2] if len(ECHO[0]) > 2 else 808
        k.e("s_lshl_b32 s62, s2, 3", "s_add_u32 s62, s62, s24", f"s_cmp_lg_u32 s62, {wv}", f"s_cbranch_scc1 {k.lab('end')}")
        k.e("s_waitcnt vmcnt(0)")
        stamp(k, 29)
        k.e(f"s_sub_u32 s60, s{64+j}, s{64+i}", "s_min_u32 s60, s60, 10000", "s_lshl_b32 s60, s60, 2")
        k.label("echo")
        k.e("s_memrealtime s[62:63]", "s_waitcnt lgkmcnt(0)", "s_sub_u32 s62, s62, s93", "s_cmp_lt_u32 s62, s60", f"s_cbranch_scc1 {k.lab('echo')}")
        return
    if not STAMP: return
    k.e("s_waitcnt vmcnt(0)")
    stamp(k, 29)
    k.e("s_memtime s[62:63]", "s_waitcnt lgkmcnt(0)", "s_mov_b32 s95, s62")
    k.e("s_mov_b64 exec, 1", "s_lshl_b32 s62, s2, 3", "s_add_u32 s62, s62, s24", "s_lshl_b32 s62, s62, 7", f"s_add_u32 s62, s62, {WS_STAMP}")
    k.e("v_mov_b32 v0, 0")
    for i in range(32):
        k.e(f"v_mov_b32 v1, s{64+i}", f"buffer_store_dword v1, v0, s[20:23], s62 offen offset:{4*i}")
    if opt("dbg"):
        k.e("s_lshl_b32 s62, s2, 3", "s_add_u32 s62, s62, s24", "s_cmp_lg_u32 s62, 800", f"s_cbranch_scc1 {k.lab('end')}")
        srd(k, 16, 48, 256)
        for n, i in enumerate((1, 2, 3, 6, 8, 9, 12, 13, 17, 18, 19, 20, 22, 23, 25, 29)):
            k.e(f"s_sub_u32 s62, s{64+i}, s64", "v_mov_b32 v1, s62", f"buffer_store_dword v1, v0, s[16:19], 0 offen offset:{4*n}")

def srd(k, d, base, size):
    k.e(f"s_mov_b32 s{d}, s{base}", f"s_mov_b32 s{d+1}, s{base+1}", f"s_mov_b32 s{d+2}, {size}", f"s_mov_b32 s{d+3}, 0x20000")

def ln_stats(k, sx, sxx, t0, t1, Mout, Rout, SD=None):
    k.e(f"v_mul_f32 v{sx}, {f32(1/640)}, v{sx}")
    k.e(f"v_mul_f32 v{sxx}, {f32(1/640)}, v{sxx}")
    k.e(f"v_fma_f32 v{t0}, -v{sx}, v{sx}, v{sxx}")
    k.e(f"v_max_f32 v{t0}, 0, v{t0}")
    k.e(f"v_cvt_pk_bf16_f32 v{t1}, v{sx}, v{t0}")
    k.e(f"v_lshlrev_b32 v{Mout}, 16, v{t1}")
    k.e(f"v_and_b32 v{t0}, 0xffff0000, v{t1}")
    k.e(f"v_add_f32 v{t0}, {f32(1e-5)}, v{t0}")
    k.e(f"v_cvt_pk_bf16_f32 v{t0}, v{t0}, v{t0}")
    k.e(f"v_lshlrev_b32 v{t0}, 16, v{t0}")
    k.e(f"v_sqrt_f32 v{t0}, v{t0}")
    k.e(f"v_cvt_pk_bf16_f32 v{t0}, v{t0}, v{t0}")
    k.e(f"v_lshlrev_b32 v{t0}, 16, v{t0}")
    if SD is not None: k.e(f"v_mov_b32 v{SD}, v{t0}")
    k.e(f"v_rcp_f32 v{Rout}, v{t0}")

def half_sum(k, x, t):
    k.e(f"v_mov_b32 v{t}, v{x}", f"v_permlane32_swap_b32 v{t}, v{x}", f"v_add_f32 v{x}, v{t}, v{x}")

def split3(k, cs, d0, d1, t0, t1, neg=False):
    n = "-" if neg else ""
    k.e(f"v_cvt_pk_bf16_f32 v{t0}, v{cs}, v{cs}")
    k.e(f"v_lshlrev_b32 v{t0}, 16, v{t0}")
    k.e(f"v_sub_f32 v{t0}, v{cs}, v{t0}")
    k.e(f"v_cvt_pk_bf16_f32 v{t1}, v{t0}, v{t0}")
    k.e(f"v_cvt_pk_bf16_f32 v{d0}, {n}v{cs}, {n}v{t0}")
    k.e(f"v_lshlrev_b32 v{t1}, 16, v{t1}")
    k.e(f"v_sub_f32 v{t0}, v{t0}, v{t1}")
    k.e(f"v_cvt_pk_bf16_f32 v{d1}, {n}v{t0}, 0")

uid = [0]
def poll(k, vaddr, soff, vd, mask_lo, mask_hi, x4=False, preloaded=False):
    uid[0] += 1
    lp, dn = f"pl{uid[0]}", f"pd{uid[0]}"
    k.e(f"s_mov_b32 exec_lo, {mask_lo}", f"s_mov_b32 exec_hi, {mask_hi}", "s_mov_b32 s61, 0")
    ld = f"buffer_load_dwordx4 v[{vd}:{vd+3}], v{vaddr}, s[20:23], {soff} offen sc1" if x4 else f"buffer_load_dword v{vd}, v{vaddr}, s[20:23], {soff} offen sc1"
    def chk():
        if x4:
            k.e(f"v_xor_b32 v{vd}, s{TAG}, v{vd}", f"v_xor_b32 v{vd+1}, s{TAG}, v{vd+1}", f"v_xor_b32 v{vd+2}, s{TAG}, v{vd+2}", f"v_xor_b32 v{vd+3}, s{TAG}, v{vd+3}",
                f"v_or3_b32 v{vd}, v{vd}, v{vd+1}, v{vd+2}", f"v_or_b32 v{vd}, v{vd}, v{vd+3}", f"v_cmp_ne_u32 vcc, 0, v{vd}")
        else:
            k.e(f"v_cmp_ne_u32 vcc, s{TAG}, v{vd}")
    if preloaded:
        chk()
        k.e("s_nop 1", f"s_cbranch_vccz {k.lab(dn)}")
    k.label(lp)
    k.e(ld, "s_waitcnt vmcnt(0)")
    chk()
    k.e("s_add_u32 s61, s61, 1", f"s_cbranch_vccz {k.lab(dn)}", f"s_cmp_lt_u32 s61, {SPIN_MAX}", f"s_cbranch_scc1 {k.lab(lp)}")
    k.label(dn)
    k.e("s_mov_b64 exec, -1")

MISC = 106496

def a_map(k):
    k.e("s_and_b32 s52, s2, 7", "s_lshr_b32 s53, s2, 3",
        "s_and_b32 s54, s52, 1", "s_mul_i32 s54, s54, 30", "s_add_u32 s54, s54, s53",
        "s_lshr_b32 s25, s54, 2",
        "s_and_b32 s54, s54, 3", "s_lshr_b32 s52, s52, 1", "s_lshl_b32 s55, s52, 2", "s_add_u32 s26, s55, s54",
        "s_mul_i32 s54, s54, 5", "s_add_u32 s54, s54, 1", "s_lshr_b32 s54, s54, 1", "s_add_u32 s54, s54, s52",
        "s_add_u32 s27, s54, s25",
        "s_cmp_ge_u32 s27, 20", "s_cselect_b32 s54, 20, 0", "s_sub_u32 s27, s27, s54",
        "s_cmp_ge_u32 s27, 10", "s_cselect_b32 s54, 10, 0", "s_sub_u32 s27, s27, s54")
    if opt("norot_a"): k.e("s_mov_b32 s27, 0")
    if opt("xrot"):
        k.e("s_mul_i32 s54, s52, 5", "s_add_u32 s54, s54, 1", "s_lshr_b32 s54, s54, 1", "s_and_b32 s27, s2, 1", "s_mul_i32 s27, s27, 5", "s_add_u32 s27, s27, s54",
            "s_cmp_ge_u32 s27, 10", "s_cselect_b32 s54, 10, 0", "s_sub_u32 s27, s27, s54")

def a_table(k, wj_sgpr, pref):
    T = tables()
    k.e("s_cmp_ge_u32 s25, 5", "s_cselect_b32 s52, 5, 0", "s_sub_u32 s52, s25, s52", "s_min_u32 s52, s52, 5",
        "s_lshl_b32 s52, s52, 1", f"s_add_u32 s52, s52, s{wj_sgpr}")
    for i in range(12):
        p, wj = divmod(i, 2)
        if i < 11: k.e(f"s_cmp_lg_u32 s52, {i}", f"s_cbranch_scc1 {k.lab(f'{pref}{i+1}')}")
        for f in range(2):
            ch, R = T[p][2 * wj + f]
            b = [8 * c for c in ch]
            lo = b[0] | b[1] << 8 | b[2] << 16 | b[3] << 24
            hi = b[4] | b[5] << 8 | b[6] << 16 | b[7] << 24
            rr = R[0] | R[1] << 8 | R[2] << 16 | R[3] << 24
            k.e(f"s_mov_b32 s{54+3*f}, {lo:#x}", f"s_mov_b32 s{55+3*f}, {hi:#x}", f"s_mov_b32 s{56+3*f}, {rr:#x}")
        if i < 11:
            k.e(f"s_branch {k.lab(pref + 'd')}")
            k.label(f"{pref}{i+1}")
    k.label(pref + "d")

def a_waddr(k, d, lo, hi):
    k.e(f"v_bfe_u32 v{T0}, v{L}, 2, 2",
        f"v_bfe_u32 v{T1}, v{L}, 4, 1", f"v_cmp_eq_u32 vcc, 1, v{T1}",
        f"v_mov_b32 v{T1}, s{lo}", f"v_mov_b32 v{T2}, s{hi}", f"v_cndmask_b32 v{T1}, v{T1}, v{T2}, vcc",
        f"v_and_b32 v{T2}, 3, v{L}", f"v_lshlrev_b32 v{T2}, 3, v{T2}", f"v_bfe_u32 v{T1}, v{T1}, v{T2}, 8",
        f"v_lshlrev_b32 v{T2}, 6, v{T0}", f"v_xor_b32 v{T1}, v{T1}, v{T2}",
        f"v_lshl_add_u32 v{T0}, v{H}, 3, v{T0}", f"v_lshl_add_u32 v{d}, v{T0}, 8, v{T1}")

def a_xaddr(k, d, rowbase_sgpr):
    k.e(f"v_lshlrev_b32 v{T0}, 7, v{TK}", f"v_add_u32 v{T0}, s{rowbase_sgpr}, v{T0}",
        f"v_bfe_u32 v{T1}, v{TK}, 1, 3", f"v_xor_b32 v{T1}, v{T1}, v{H}")
    for ks in range(4):
        k.e(f"v_xor_b32 v{T2}, {2*ks}, v{T1}", f"v_lshl_add_u32 v{d+ks}, v{T2}, 4, v{T0}")

def a_compute(k):
    AX, AW = 16, 24
    AST = 28
    ACC = 64; FR = 128; EX = 176
    k.e("s_lshr_b32 s28, s24, 1", "s_and_b32 s29, s24, 1")
    a_table(k, 29, "ct")
    k.e("s_lshl_b32 s52, s28, 13")
    a_xaddr(k, AX, 52)
    for i in range(4): k.e(f"v_add_u32 v{AX+4+i}, 65536, v{AX+i}")
    a_waddr(k, AW, 54, 55); a_waddr(k, AW + 1, 57, 58)
    for i in range(2): k.e(f"v_add_u32 v{AW+2+i}, 65536, v{AW+i}")
    k.e("s_lshl_b32 s52, s26, 2", "s_lshl_b32 s53, s28, 1", "s_add_u32 s52, s52, s53")

    PW = int(([a[4:] for a in sys.argv if a.startswith("-pw=")] + ["0"])[0])
    PWS = int(([a[5:] for a in sys.argv if a.startswith("-pws=")] + ["1"])[0])
    k.e("s_lshl_b32 s60, s25, 2", "s_add_u32 s60, s60, s24", "s_mul_i32 s60, s60, 3", "s_min_u32 s60, s60, 157", "s_lshl_b32 s60, s60, 10",
        "s_mul_i32 s53, s26, 163840", "s_add_u32 s60, s60, s53", f"s_add_u32 s60, s60, {WS_O}")
    def reads(g):
        st, ks = divmod(g, 4)
        sl = st % 4; S = sl // 2; ob = (sl % 2) * 32768
        b = FR + 16 * (g % 3)
        o = []
        for t in range(2):
            o.append(f"ds_read_b128 v[{b+4*t}:{b+4*t+3}], v{AX+4*S+ks} offset:{ob+4096*t}")
        for f in range(2):
            for u in range(2):
                o.append(f"ds_read_b64_tr_b16 v[{b+8+4*f+2*u}:{b+8+4*f+2*u+1}], v{AW+2*S+f} offset:{ob+16384+ks*4096+u*1024}")
        return o

    def mainloop(vmode):
        if PW >= 40:
            for n in range(8): k.e(f"buffer_store_dwordx4 v[16:19], v{AST+(n&3)}, s[20:23], s{30+(n>>2)} offen sc1")
        stamp(k, 1)
        k.e("s_barrier")
        stamp(k, 2)
        k.e(*reads(0)); k.e(*reads(1))
        for g in range(40):
            b = FR + 16 * (g % 3)
            fill = []
            if g % 4 == 2 and g // 4 + 1 <= 9:
                k.e("s_waitcnt lgkmcnt(0)", "s_barrier")
            else:
                k.e(f"s_waitcnt lgkmcnt({6 if g + 1 < 40 else 0})")
            if g + 2 < 40: fill += reads(g + 2)
            if PW and g >= PW and (g - PW) % PWS == 0 and (g - PW) // PWS < 8:
                n = (g - PW) // PWS
                if opt("pr"): fill.append(f"buffer_load_dwordx4 v[200:203], v{AST+(n&3)}, s[20:23], s{30+(n>>2)} offen sc1 ; dummy")
                else: fill.append(f"buffer_store_dwordx4 v[16:19], v{AST+(n&3)}, s[20:23], s{30+(n>>2)} offen sc1")
            if PW and opt("pwo") and g >= PW and (g - PW) % PWS == 0 and 8 <= (g - PW) // PWS < 11:
                fill.append(f"buffer_store_dwordx4 v[16:19], v{L16}, s[20:23], s60 offen offset:{1024*((g-PW)//PWS-8)} sc1")
            if PRE and PREG >= 0 and g >= PREG and (g - PREG) % PWS == 0 and (g - PREG) // PWS < PRE: fill.append(prefill_ops()[(g - PREG) // PWS])
            mf = []
            for t in range(2):
                for f in range(2):
                    d = ACC + 32 * t + 16 * f
                    xa, wa = v(b + 4 * t, 4), v(b + 8 + 4 * f, 4)
                    A, B = (xa, wa) if vmode else (wa, xa)
                    c = "0" if g == 0 else v(d, 16)
                    mf.append(f"v_mfma_f32_32x32x16_bf16 {v(d,16)}, {A}, {B}, {c}")
            k.e(*interleave(mf, fill))
        stamp(k, 3)
        XO, WO, R = EX, EX + 8, EX + 16
        RD = FR
        k.e("s_lshl_b32 s53, s28, 8", f"s_add_u32 s53, s53, {MISC}", f"v_lshl_add_u32 v{T0}, v{TK}, 2, s53",
            "s_lshl_b32 s54, s29, 9", f"s_add_u32 s54, s54, {MISC+1024}", f"v_lshl_add_u32 v{T1}, v{TK}, 3, s54",
            f"v_lshl_add_u32 v{T2}, v{H}, 4, s53", f"v_mov_b32 v{T3}, {MISC}")
        for r in (XO+2, XO+3, XO+6, XO+7, WO+2, WO+3, WO+6, WO+7): k.e(f"v_mov_b32 v{r}, 0")
        k.e(f"v_cmp_gt_u32 vcc, 32, v{L}")
        if PW: k.e("s_waitcnt vmcnt(0)")
        k.e("s_barrier")
        stamp(k, 4)
        for t in range(2): k.e(f"ds_read_b32 v{XO+4*t}, v{T0} offset:{128*t}")
        for f in range(2): k.e(f"ds_read_b64 v[{WO+4*f}:{WO+4*f+1}], v{T1} offset:{256*f}")
        k.e(f"ds_read_b32 v{R+2}, v{T3} offset:2048")
        if vmode:
            for t in range(2):
                for q in range(4):
                    k.e(f"ds_read_b128 v[{RD+16*t+4*q}:{RD+16*t+4*q+3}], v{T2} offset:{512+128*t+32*q}")
        else:
            for t in range(2): k.e(f"ds_read_b32 v{R+t}, v{T0} offset:{512+128*t}")
        k.e(f"s_waitcnt lgkmcnt({8 if vmode else 2})")
        for t in range(2):
            k.e(f"v_cndmask_b32 v{XO+4*t}, 0, v{XO+4*t}, vcc", f"v_and_b32 v{XO+4*t+1}, 0xffff, v{XO+4*t}")
        k.e(f"v_readfirstlane_b32 s{TAG}, v{R+2}")
        for t in range(2):
            for f in range(2):
                d = ACC + 32 * t + 16 * f
                xa, wa = v(XO + 4 * t, 4), v(WO + 4 * f, 4)
                A, B = (xa, wa) if vmode else (wa, xa)
                k.e(f"v_mfma_f32_32x32x16_bf16 {v(d,16)}, {A}, {B}, {v(d,16)}")
        k.e("s_waitcnt lgkmcnt(0)")
        for t in range(2):
            for f in range(2):
                d = ACC + 32 * t + 16 * f
                for r in range(0, 16, 2):
                    if vmode: k.e(f"v_pk_mul_f32 v[{d+r}:{d+r+1}], v[{d+r}:{d+r+1}], v[{RD+16*t+r}:{RD+16*t+r+1}]")
                    else: k.e(f"v_pk_mul_f32 v[{d+r}:{d+r+1}], v[{d+r}:{d+r+1}], v[{R}:{R+1}] op_sel:[0,{t}] op_sel_hi:[1,{t}]")
                for j in range(8):
                    k.e(f"v_cvt_pk_bf16_f32 v{d+j}, v{d+2*j}, v{d+2*j+1}")
                for u in range(2):
                    k.e(f"buffer_store_dwordx4 v[{d+4*u}:{d+4*u+3}], v{AST+2*f+u}, s[20:23], s{30+t} offen sc1")
        k.e(f"s_branch {k.lab('a_pub')}")

    k.e("s_cmp_ge_u32 s25, 10", f"s_cbranch_scc1 {k.lab('vpath')}")
    k.e("s_cmp_ge_u32 s25, 5", f"s_cselect_b32 s53, {80*32768}, 0", "s_lshl_b32 s30, s52, 9", "s_add_u32 s30, s30, s53", "s_add_u32 s31, s30, 512")
    k.e(f"v_lshlrev_b32 v{T0}, 3, v{H}", f"v_lshlrev_b32 v{T1}, 4, v{TK}")
    for f in range(2):
        for u in range(2):
            k.e(f"v_add_u32 v{T2}, {16*u}, v{T0}", f"v_bfe_u32 v{T2}, s{56+3*f}, v{T2}, 8", f"v_lshl_add_u32 v{AST+2*f+u}, v{T2}, 15, v{T1}")
    mainloop(False)
    k.label("vpath")
    k.e("s_mul_i32 s30, s52, 40960", f"s_add_u32 s30, s30, {WS_V}", "s_add_u32 s31, s30, 40960",
        "s_sub_u32 s53, s25, 10", "s_lshl_b32 s53, s53, 11", "s_lshl_b32 s54, s29, 10", "s_add_u32 s53, s53, s54",
        f"v_mul_u32_u24 v{T0}, 10240, v{H}", f"v_lshl_add_u32 v{T0}, v{TK}, 4, v{T0}", f"v_add_u32 v{AST}, s53, v{T0}",
        f"v_add_u32 v{AST+1}, 20480, v{AST}", f"v_add_u32 v{AST+2}, 512, v{AST}", f"v_add_u32 v{AST+3}, {20480+512}, v{AST}")
    mainloop(True)
    k.label("a_pub")
    stamp(k, 5)
    k.e("s_lshr_b32 s52, s26, 1", "s_lshl_b32 s53, s52, 13", "s_and_b32 s54, s26, 1", "s_add_u32 s54, s54, 2", "s_lshl_b32 s54, s54, 4",
        "s_add_u32 s54, s54, s25", "s_lshl_b32 s54, s54, 2", "s_add_u32 s53, s53, s54", f"s_add_u32 s53, s53, {WS_FB}",
        f"v_mul_u32_u24 v{T0}, {8192-128}, v{H}", f"v_lshl_add_u32 v{T0}, v{TK}, 8, v{T0}",
        f"v_mov_b32 v{T2}, s{TAG}", "s_cmp_eq_u32 s52, 7", "s_cselect_b32 s55, 0, -1", "s_cmp_lt_u32 s25, 5", "s_cselect_b32 s55, 0, s55",
        "s_cmp_ge_u32 s25, 5", "s_cselect_b32 s52, 5, 0", "s_sub_u32 s54, s25, s52", "s_cmp_ge_u32 s25, 10", "s_cselect_b32 s52, 5, 0", "s_sub_u32 s54, s54, s52",
        f"v_lshrrev_b32 v{T1}, 1, v{TK}", f"v_mul_u32_u24 v{T1}, 5, v{T1}", f"v_add_u32 v{T3}, 4, v{T1}", f"v_lshrrev_b32 v{T1}, 4, v{T1}", f"v_lshrrev_b32 v{T3}, 4, v{T3}",
        f"v_cmp_eq_u32 vcc, s54, v{T1}", f"v_cmp_eq_u32 s[56:57], s54, v{T3}", "s_or_b64 s[56:57], s[56:57], vcc", "s_and_b32 s57, s57, s55")
    k.e("s_waitcnt vmcnt(0)")
    stamp(k, 6)
    k.e("s_barrier", "s_cmp_lg_u32 s24, 0", f"s_cbranch_scc1 {k.lab('a_done')}",
        "s_mov_b64 exec, s[56:57]", f"buffer_store_dword v{T2}, v{T0}, s[20:23], s53 offen sc1", "s_mov_b64 exec, -1")

def code_touch(k, n, nthr, vi=0):
    uid[0] += 1
    k.e("s_getpc_b64 s[52:53]")
    k.label(f"pc{uid[0]}")
    k.e(f"s_sub_u32 s52, s52, {k.lab(f'pc{uid[0]}')}-{k.name}", "s_subb_u32 s53, s53, 0", f"v_lshlrev_b32 v{T0}, 6, v{vi}")
    for i in range(n):
        k.e(f"v_min_u32 v{T1}, {k.lab('end')}-{k.name}, v{T0}", f"global_load_dword v9, v{T1}, s[52:53] ; dummy")
        if i < n - 1: k.e(f"v_add_u32 v{T0}, {64*nthr}, v{T0}")
def spare(k):
    TG = 30
    tag_load(k, TG)
    TL = int(([a[5:] for a in sys.argv if a.startswith("-tlb=")] + ["0"])[0])
    if TL:
        k.e("s_bfe_u32 s54, s2, 0x10003", f"v_lshl_add_u32 v{T1}, v0, 1, s54", f"v_lshlrev_b32 v{T1}, {TL}, v{T1}")
        assert WS_END <= 1024 << TL and TL <= 21
        for m, sz in ((KWS, WS_END), (KW1, 640 * 3072), (KW3, 640 * 3072), (KOUT, X_BYTES), (KW2, 1536 * 1280)):
            srd(k, 16, m, sz)
            k.e(f"buffer_load_dword v32, v{T1}, s[16:19], 0 offen ; dummy")
    srd(k, 16, KW2, 1536 * 1280)
    k.e("s_sub_u32 s4, s2, 240", "s_mul_i32 s5, s4, 122880", "s_mul_i32 s52, s24, 320", f"v_add_u32 v{T0}, s52, v{L}", "s_mul_i32 s6, s24, 5120")
    for i in range(5):
        k.e(f"v_mul_u32_u24 v{T1}, 52429, v{T0}", f"v_bfe_u32 v{T1}, v{T1}, 22, 3", f"v_lshlrev_b32 v{T1}, 1, v{T1}", f"v_xor_b32 v{T1}, v{T1}, v{T0}", f"v_lshlrev_b32 v{20+i}, 4, v{T1}",
            f"s_add_u32 m0, s6, {1024*i}", f"buffer_load_dwordx4 v{20+i}, s[16:19], s5 offen lds", f"v_add_u32 v{T0}, 64, v{T0}")
    k.e("s_bfe_u32 s52, s2, 0x10003", "s_lshl_b32 s52, s52, 8", "s_add_u32 s52, s52, 256", "v_and_b32 v31, 255, v0", "v_add_u32 v31, s52, v31")
    code_touch(k, 1, 256, 31)
    def chunk(ks):
        k.e("s_add_u32 s5, s5, 40960")
        for i in range(5): k.e(f"s_add_u32 m0, s6, {40960*ks+1024*i}", f"buffer_load_dwordx4 v{20+i}, s[16:19], s5 offen lds")
    chunk(1)
    k.e(f"v_bfe_u32 v{T0}, v{L}, 2, 3", f"v_lshl_add_u32 v{T1}, v{H}, 4, v{T0}", f"v_mul_u32_u24 v{T1}, 1280, v{T1}", f"v_xor_b32 v{T0}, s24, v{T0}", f"v_lshl_add_u32 v{T1}, v{T0}, 5, v{T1}",
        f"v_and_b32 v{T0}, 3, v{L}", f"v_lshl_add_u32 v{T1}, v{T0}, 3, v{T1}", f"v_add_u32 v{T2}, 81920, v{T1}")
    k.e(f"v_add_u32 v{T0}, 5120, v{L16}", f"v_add_u32 v{T3}, 10240, v{L16}", "s_mul_i32 s7, s4, 15360", f"s_add_u32 s7, s7, {WS_W2}")
    for a in range(5):
        k.e(f"s_add_u32 s52, s24, {8*a}", "s_mul_i32 s53, s52, 52", "s_lshr_b32 s53, s53, 8", f"s_mul_i32 s53, s53, {245760-5120}", "s_lshl_b32 s52, s52, 10",
            "s_add_u32 s52, s52, s53", f"s_add_u32 s{54+a}, s52, s7")
    for ks in range(3):
        k.e(f"s_waitcnt vmcnt({(6, 10, 10)[ks]})", "s_barrier")
        for a in range(5):
            for u in range(2):
                k.e(f"ds_read_b64_tr_b16 {v(40+20*ks+4*a+2*u,2)}, v{T2 if ks == 2 else T1} offset:{256*a+10240*u+40960*(ks&1)}")
        if ks == 0: chunk(2)
        for a in range(5):
            k.e(f"s_waitcnt lgkmcnt({2*(4-a)})", f"buffer_store_dwordx4 {v(40+20*ks+4*a,4)}, v{(L16, T0, T3)[ks]}, s[20:23], s{54+a} offen sc1")
        stamp(k, 4 + ks)
    tag_make(k, TG)

def tag_load(k, d):
    k.e(f"v_mov_b32 v{T0}, 0", f"s_mov_b32 s52, {WS_EP}", f"buffer_load_dword v{d}, v{T0}, s[20:23], s52 offen sc1")
def tag_make(k, d):
    k.e(f"v_readfirstlane_b32 s{TAG}, v{d}", f"s_add_u32 s{TAG}, s{TAG}, 0x9e3779b9")
def misc_init(k):
    k.e(f"v_mov_b32 v20, s{TAG}", f"v_mov_b32 v{T3}, {MISC}", f"ds_write_b32 v{T3}, v20 offset:2048")

def a_loader(k):
    VXO, VWO = 16, 20
    AX, AW = 24, 28
    TG, PL = 30, 31
    D = 32
    vm = VM()
    k.e("s_sub_u32 s31, s24, 4")
    tag_load(k, TG); vm.add("tag")
    srd(k, 16, KWQKV, 640 * 3840)
    k.e("s_lshl_b32 s29, s31, 12",
        "s_mul_i32 s28, s26, 163840", "s_lshl_b32 s52, s27, 7", "s_add_u32 s58, s28, s52", "s_add_u32 s28, s28, 1280",
        "s_lshl_b32 s59, s25, 8", "s_mul_i32 s52, s27, 245760", "s_add_u32 s59, s59, s52")
    k.e(f"v_lshrrev_b32 v{T0}, 3, v{L}", "s_lshl_b32 s52, s31, 5", f"v_add_u32 v{T0}, s52, v{T0}", f"v_mul_u32_u24 v{T0}, 1280, v{T0}",
        f"v_and_b32 v{T1}, 7, v{L}", f"v_lshrrev_b32 v{T2}, 4, v{L}", f"v_xor_b32 v{T1}, v{T1}, v{T2}", f"v_lshl_add_u32 v{VXO}, v{T1}, 4, v{T0}",
        f"v_xor_b32 v{T0}, 64, v{VXO}", f"v_add_u32 v{VXO+1}, {10240-1024}, v{T0}", f"v_add_u32 v{VXO+2}, {2*(10240-1024)}, v{VXO}",
        f"v_add_u32 v{VXO+3}, {3*(10240-1024)}, v{T0}")
    k.e("s_lshl_b32 s52, s31, 4", f"v_add_u32 v{T0}, s52, v{T2}", f"v_mul_u32_u24 v{T0}, 3840, v{T0}",
        f"v_and_b32 v{T1}, 15, v{L}", f"v_lshlrev_b32 v{T3}, 2, v{T2}", f"v_xor_b32 v{T1}, v{T1}, v{T3}", f"v_lshl_add_u32 v{VWO}, v{T1}, 4, v{T0}")
    for j in range(1, 4): k.e(f"v_add_u32 v{VWO+j}, {j*(15360-1024)}, v{VWO}")
    CP = int(([a[4:] for a in sys.argv if a.startswith("-cp=")] + ["12"])[0])
    nxt = [0]
    def issue_to(q):
        while nxt[0] < min(q, 80):
            st, i = divmod(nxt[0], 8)
            sl = st % 4
            if i == 0: k.e(f"s_add_u32 m0, s29, {sl*32768}")
            if i == 4: k.e(f"s_add_u32 m0, s29, {sl*32768+16384}")
            if opt("nodma") and st >= 4:
                if i == 0: k.e(f"buffer_load_dwordx4 v{VXO+i}, s[12:15], s58 offen offset:{1024*i} lds"); vm.add(st)
                nxt[0] += 1; continue
            if i < 4: k.e(f"buffer_load_dwordx4 v{VXO+i}, s[12:15], s58 offen offset:{1024*i} lds")
            else: k.e(f"buffer_load_dwordx4 v{VWO+i-4}, s[16:19], s59 offen offset:{1024*(i-4)} lds")
            vm.add(st)
            if i == 7 and st < 9:
                k.e("s_add_u32 s58, s58, 128", "s_add_u32 s59, s59, 245760", "s_cmp_ge_u32 s58, s28",
                    "s_cselect_b32 s52, 1280, 0", "s_cselect_b32 s53, 2457600, 0", "s_sub_u32 s58, s58, s52", "s_sub_u32 s59, s59, s53")
            nxt[0] += 1
    issue_to(8)
    k.e("s_mov_b32 s60, s58", "s_mov_b32 s30, s59", "s_lshr_b32 s61, s31, 1")
    a_table(k, 61, "lt")
    k.e("s_bitcmp1_b32 s31, 0", "s_cselect_b32 s54, s57, s54", "s_cselect_b32 s55, s58, s55")
    a_waddr(k, AW, 54, 55)
    a_xaddr(k, AX, 29)
    k.e("s_mov_b32 s58, s60", "s_mov_b32 s59, s30")
    k.e("s_mul_i32 s4, s26, 20480", "s_lshl_b32 s56, s31, 9", "s_add_u32 s4, s4, s56", f"s_add_u32 s4, s4, {WS_XST}",
        "s_mul_i32 s5, s25, 10240", "s_lshl_b32 s57, s31, 8", "s_add_u32 s5, s5, s57", f"s_add_u32 s5, s5, {WS_WST}",
        "s_lshl_b32 s55, s27, 11", "s_add_u32 s55, s55, s4", "s_lshl_b32 s56, s27, 10", "s_add_u32 s56, s56, s5", f"s_mov_b32 s54, {ONES}")
    issue_to(8 + CP)
    stamp(k, 1)
    k.e(vm.wait(0), "s_barrier")
    stamp(k, 2)
    tag_make(k, TG)
    for ks in range(4): k.e(f"ds_read_b128 v[{D+4*ks}:{D+4*ks+3}], v{AX+ks}")
    for ks in range(4):
        for u in range(2): k.e(f"ds_read_b64_tr_b16 v[{D+16+4*ks+2*u}:{D+16+4*ks+2*u+1}], v{AW} offset:{16384+ks*4096+u*1024}")
    SX, SXX, CS = 64, 66, 68
    k.e(f"v_mov_b32 v{SX}, 0", f"v_mov_b32 v{SXX}, 0", f"v_mov_b32 v{CS}, 0",
        f"v_mov_b32 v{SX+1}, s{TAG}", f"v_mov_b32 v{SXX+1}, s{TAG}", f"v_mov_b32 v{CS+1}, s{TAG}",
        f"v_lshlrev_b32 v{T2}, 4, v{TK}", f"v_lshlrev_b32 v{T3}, 3, v{TK}")
    issue_to(16 + CP)
    k.e("s_waitcnt lgkmcnt(0)", vm.wait(1), "s_barrier")
    PX, PW = 70, 71
    def partials():
        for i in range(5):
            k.e(f"buffer_load_dwordx4 v[{D+4*i}:{D+4*i+3}], v{PX}, s[20:23], s{(4,6,7)[i//2]} offen offset:{2048*(i%2)} sc1")
            k.e(f"buffer_load_dwordx2 v[{D+20+2*i}:{D+21+2*i}], v{PW}, s[20:23], s{(5,8)[i//4]} offen offset:{1024*(i%4)} sc1")
    for j in range(2, 10):
        if j < 6:
            for i in range(4 * (j - 2), 4 * (j - 1)):
                issue_to(8 * j + CP + 2 * (i % 4 + 1))
                k.e(f"v_lshlrev_b32 v{T0}, 16, v{D+i}", f"v_and_b32 v{D+i}, 0xffff0000, v{D+i}", f"v_lshlrev_b32 v{T1}, 16, v{D+16+i}", f"v_and_b32 v{D+16+i}, 0xffff0000, v{D+16+i}",
                    f"v_add_f32 v{SX}, v{SX}, v{T0}", f"v_fmac_f32 v{SXX}, v{T0}, v{T0}", f"v_add_f32 v{CS}, v{CS}, v{T1}",
                    f"v_add_f32 v{SX}, v{SX}, v{D+i}", f"v_fmac_f32 v{SXX}, v{D+i}, v{D+i}", f"v_add_f32 v{CS}, v{CS}, v{D+16+i}")
        if j == 5:
            half_sum(k, SX, T0); half_sum(k, SXX, T1); half_sum(k, CS, T0)
            k.e("s_mov_b32 exec_hi, 0", f"buffer_store_dwordx4 v[{SX}:{SX+3}], v{T2}, s[20:23], s55 offen sc1",
                f"buffer_store_dwordx2 v[{CS}:{CS+1}], v{T3}, s[20:23], s56 offen sc1", "s_mov_b64 exec, -1")
            vm.add("st", 2)
        if j == 6:
            k.e(f"v_mul_u32_u24 v{PX}, 10240, v{H}", f"v_lshl_add_u32 v{PX}, v{TK}, 4, v{PX}", f"v_lshrrev_b32 v{PW}, 1, v{PX}",
                "s_add_u32 s6, s4, 4096", "s_add_u32 s7, s4, 8192", "s_add_u32 s8, s5, 4096")
        issue_to(8 * (j + 1) + CP)
        if j == 9:
            partials(); vm.add("pt", 10)
        k.e(vm.wait(j), "s_barrier")
    misc_init(k)
    k.e("s_mov_b32 s61, 0")
    k.label("pt_chk")
    k.e("s_waitcnt vmcnt(0)")
    k.e(f"v_xor_b32 v{T0}, s{TAG}, v{D+1}")
    for i in range(1, 15, 2):
        k.e(f"v_xor_b32 v{T1}, s{TAG}, v{D+1+2*i}", f"v_xor_b32 v9, s{TAG}, v{D+3+2*i}", f"v_or3_b32 v{T0}, v{T0}, v{T1}, v9")
    k.e(f"v_cmp_ne_u32 vcc, 0, v{T0}", "s_add_u32 s61, s61, 1", f"s_cbranch_vccz {k.lab('pt_ok')}", f"s_cmp_gt_u32 s61, {SPIN_MAX}", f"s_cbranch_scc1 {k.lab('pt_ok')}")
    partials()
    k.e(f"s_branch {k.lab('pt_chk')}")
    k.label("pt_ok")
    stamp(k, 3)
    if opt("w13a"):
        k.e("s_lshl_b32 s54, s2, 2", "s_add_u32 s54, s54, s31", "s_lshl_b32 s54, s54, 11")
        for m in (KW1, KW3):
            srd(k, 16, m, 640 * 3072)
            for i in range(2): k.e(f"buffer_load_dwordx4 v[84:87], v{L16}, s[16:19], s54 offen offset:{1024*i} ; dummy")
    for i in range(1, 5):
        k.e(f"v_add_f32 v{D}, v{D}, v{D+4*i}", f"v_add_f32 v{D+2}, v{D+2}, v{D+4*i+2}", f"v_add_f32 v{D+20}, v{D+20}, v{D+20+2*i}")
    half_sum(k, D, T0); half_sum(k, D + 2, T1); half_sum(k, D + 20, T2)
    ln_stats(k, D, D + 2, T0, T1, D + 4, D + 5)
    split3(k, D + 20, D + 12, D + 13, T0, T1)
    k.e("s_cmp_lt_u32 s25, 5", f"s_cselect_b32 s52, {f32(CSC)}, {f32(1.0)}", f"v_mul_f32 v{D+5}, s52, v{D+5}",
        f"v_cvt_pk_bf16_f32 v{D+4}, -v{D+4}, -v{D+4}",
        "s_lshl_b32 s52, s31, 7", f"s_add_u32 s52, s52, {MISC}", f"v_lshl_add_u32 v{T0}, v{TK}, 2, s52",
        "s_lshl_b32 s52, s31, 8", f"s_add_u32 s52, s52, {MISC+1024}", f"v_lshl_add_u32 v{T1}, v{TK}, 3, s52",
        f"ds_write_b32 v{T0}, v{D+4}", f"ds_write_b32 v{T0}, v{D+5} offset:512", f"ds_write_b64 v{T1}, v[{D+12}:{D+13}]",
        "s_waitcnt lgkmcnt(0)", "s_barrier")
    stamp(k, 4)
    if UPTO == "A": k.e("s_barrier")

PRE = int(([a[5:] for a in sys.argv if a.startswith("-pre=")] + ["0"])[0])
PRE_LO, PRE_HI = WS_O, WS_W2
def prefill_ops():
    o = []
    for i in range(PRE):
        x = [f"buffer_store_dwordx4 v[204:207], v{L16}, s[20:23], s61 offen offset:{1024*(i%4)} sc1"]
        if i % 4 == 3: x.append("s_add_u32 s61, s61, 4096")
        o.append(x)
    return o
PREG = int(([a[6:] for a in sys.argv if a.startswith("-preg=")] + ["-1"])[0])
def prefill(k):
    if not PRE: return
    k.e("s_lshl_b32 s61, s2, 2", "s_add_u32 s61, s61, s24", f"s_mul_i32 s61, s61, {PRE*1024}", f"s_min_u32 s61, s61, {PRE_HI-PRE_LO-PRE*1024}", f"s_add_u32 s61, s61, {PRE_LO}",
        "v_mov_b64 v[204:205], -1", "v_mov_b64 v[206:207], -1")
    if PREG < 0:
        for x in prefill_ops(): k.e(*x)

def build():
    k = Kern("mega_kernel", 256, 512, 163840, nvgpr=256, nsgpr=100)
    k.e("s_cmp_ge_u32 s2, 256", f"s_cbranch_scc1 {k.lab('end')}")
    if STAMP:
        k.e("s_memtime s[62:63]", "s_waitcnt lgkmcnt(0)", "s_mov_b32 s94, s62")
        for i in range(1, 30): k.e(f"s_mov_b32 s{64+i}, 0")
    stamp(k, 0)
    k.e("s_load_dwordx16 s[32:47], s[0:1], 0", "s_load_dwordx4 s[48:51], s[0:1], 64")
    if opt("ect"):
        k.e("s_bfe_u32 s54, s2, 0x30003", "s_lshl_b32 exec_lo, 0x01010101, s54", "s_mov_b32 exec_hi, exec_lo")
        code_touch(k, 2, 512)
        k.e("s_mov_b64 exec, -1")
    k.e(f"v_lshrrev_b32 v{T0}, 6, v0", f"v_and_b32 v{L}, 63, v0", f"v_readfirstlane_b32 s24, v{T0}",
        f"v_lshlrev_b32 v{L16}, 4, v{L}", f"v_lshrrev_b32 v{H}, 5, v{L}", f"v_and_b32 v{TK}, 31, v{L}")
    a_map(k)
    k.e("s_waitcnt lgkmcnt(0)")
    WOFF = int(([a[6:] for a in sys.argv if a.startswith("-woff=")] + ["0"])[0]) << 20
    if WOFF: k.e(f"s_add_u32 s{KWS}, s{KWS}, {WOFF}", f"s_addc_u32 s{KWS+1}, s{KWS+1}, 0")
    srd(k, 20, KWS, WS_SRD); srd(k, 12, KX, X_BYTES)
    k.e("s_cmp_ge_u32 s2, 240", f"s_cbranch_scc1 {k.lab('spare')}")
    k.e("s_cmp_lt_u32 s24, 4", f"s_cbranch_scc1 {k.lab('compute')}")
    a_loader(k)
    k.e(f"s_branch {k.lab('a_done')}")
    k.label("spare")
    spare(k)
    k.e(f"s_branch {k.lab('a_done')}")
    k.label("compute")
    if not opt("nocf") and not opt("ect"): code_touch(k, 1, 256)
    srd(k, 16, KWO, 640 * 1280)
    k.e("s_lshl_b32 s54, s2, 2", "s_add_u32 s54, s54, s24", "s_lshl_b32 s54, s54, 10", f"buffer_load_dwordx4 v[200:203], v{L16}, s[16:19], s54 offen ; dummy")
    k.e(f"v_lshlrev_b32 v{T0}, 6, v{L}", "s_mul_i32 s54, s2, 704", f"s_min_u32 s54, s54, {163840-704}", f"s_add_u32 s54, s54, {WS_FB}", "s_mov_b64 exec, 0x7ff",
        f"buffer_load_dword v9, v{T0}, s[20:23], s54 offen sc1 ; dummy", "s_mov_b64 exec, -1")
    prefill(k)
    a_compute(k)
    k.label("a_done")
    if UPTO != "A":
        import phases
        phases.rest(k)
    k.label("fin")
    stamp_out(k)
    k.label("end")
    k.e("s_endpgm")
    return k

HEADER = open("cdna_kernels/" + NAME + ".s.ref").read().split("; Override launch geometry")[0].rstrip()

if __name__ == "__main__":
    sys.modules["gen2"] = sys.modules["__main__"]
    out = sys.argv[1] if len(sys.argv) > 1 and not sys.argv[1].startswith("-") else "cdna_kernels/" + NAME + ".s"
    n = write_file(out, [build()], HEADER, verbose="-v" in sys.argv)
    print("errors:", n)
```

```python
import re

def v(n, c=1):
    return f"v{n}" if c == 1 else f"v[{n}:{n+c-1}]"
def a(n, c=1):
    return f"a{n}" if c == 1 else f"a[{n}:{n+c-1}]"
def s(n, c=1):
    return f"s{n}" if c == 1 else f"s[{n}:{n+c-1}]"

REG_RE = re.compile(r"^(-|abs\(|\|)?([vas])(\d+|\[(\d+):(\d+)\])\)?\|?$")

def parse_reg(tok):
    tok = tok.strip()
    neg = tok.lstrip("-")
    if neg.startswith("abs(") and neg.endswith(")"):
        neg = neg[4:-1]
    if neg.startswith("|") and neg.endswith("|"):
        neg = neg[1:-1]
    if neg == "vcc": return {("s", 106), ("s", 107)}
    if neg == "vcc_lo": return {("s", 106)}
    if neg == "vcc_hi": return {("s", 107)}
    if neg == "exec": return {("s", 126), ("s", 127)}
    if neg == "exec_lo": return {("s", 126)}
    if neg == "exec_hi": return {("s", 127)}
    if neg == "m0": return {("s", 124)}
    m = re.match(r"^([vas])(\d+)$", neg)
    if m: return {(m.group(1), int(m.group(2)))}
    m = re.match(r"^([vas])\[(\d+):(\d+)\]$", neg)
    if m: return {(m.group(1), i) for i in range(int(m.group(2)), int(m.group(3)) + 1)}
    return set()

TRANS = ("v_exp_f32", "v_log_f32", "v_rcp_f32", "v_rsq_f32", "v_sqrt_f32", "v_sin_f32", "v_cos_f32", "v_rcp_iflag_f32")
EXEC = {("s", 126), ("s", 127)}
VCC = {("s", 106), ("s", 107)}
M0 = {("s", 124)}

class Ins:
    __slots__ = ("text", "op", "ops", "mods", "dst", "src", "cls", "label", "target", "srcA", "srcB", "srcC", "passes", "lds", "width")
    def __init__(self, text):
        self.text = text
        t = text.split(";")[0].strip()
        self.label = None; self.target = None
        self.dst = set(); self.src = set(); self.cls = "other"; self.op = ""; self.ops = []; self.mods = ""
        self.srcA = self.srcB = self.srcC = set(); self.passes = 0; self.lds = False; self.width = 0
        if t.endswith(":"):
            self.label = t[:-1]; self.cls = "label"; return
        if t.startswith(".") or not t:
            self.cls = "dir"; return
        parts = t.split(None, 1)
        op = parts[0]; self.op = op
        rest = parts[1] if len(parts) > 1 else ""
        rest = re.sub(r"(op_sel(_hi)?|neg_lo|neg_hi):\[([^\]]*)\]", lambda m: m.group(1) + ":" + m.group(3).replace(",", "_"), rest)
        ops = [x.strip() for x in re.split(r",(?![^\(]*\))", rest)] if rest else []
        mods = ""
        if ops:
            lp = ops[-1].split(None, 1)
            if len(lp) > 1 and not ops[-1].startswith("hwreg") and not ops[-1].startswith("vmcnt") and not ops[-1].startswith("lgkmcnt"):
                ops[-1] = lp[0]; mods = lp[1]
        self.ops = ops; self.mods = mods
        R = [parse_reg(o) for o in ops]
        base = re.sub(r"_(e32|e64|dpp|sdwa)$", "", op)
        if op.startswith("v_mfma"):
            self.cls = "mfma"
            self.dst = R[0]; self.srcA = R[1]; self.srcB = R[2]; self.srcC = R[3]
            self.src = R[1] | R[2] | R[3]
            self.passes = 8 if "32x32x16" in op else 4 if "16x16x32" in op else None
            assert self.passes, op
        elif op.startswith("v_"):
            self.cls = "valu"
            if base.startswith("v_cmp"):
                self.dst = R[0]; self.src = set().union(*R[1:])
                if base.startswith("v_cmpx"): self.dst = self.dst | EXEC
            elif base.startswith("v_permlane") and "swap" in base:
                self.dst = R[0] | R[1]; self.src = R[0] | R[1]
            elif base in ("v_add_co_u32", "v_sub_co_u32", "v_subrev_co_u32", "v_addc_co_u32", "v_subb_co_u32", "v_mad_u64_u32"):
                self.dst = R[0] | R[1]; self.src = set().union(*R[2:])
            elif base in ("v_nop",):
                pass
            else:
                self.dst = R[0]; self.src = set().union(*R[1:]) if len(R) > 1 else set()
                if base.startswith("v_fmac") or base.startswith("v_dot2c") or base.startswith("v_writelane") or "dpp" in op or "row_" in mods or "quad_perm" in mods:
                    self.src = self.src | R[0]
        elif op.startswith("buffer_") or op.startswith("global_"):
            self.cls = "vmem"
            if op in ("buffer_wbl2", "buffer_inv"):
                pass
            elif "lds" in mods.split() or op.startswith("global_load_lds"):
                self.lds = True
                self.src = set().union(*R) | M0
            elif "_load" in op:
                self.dst = R[0]; self.src = set().union(*R[1:])
            elif "atomic" in op:
                self.src = set().union(*R)
                if "sc0" in mods.split():
                    self.dst = R[0]
            else:
                self.src = set().union(*R)
                m = re.search(r"dwordx(\d)", op)
                self.width = int(m.group(1)) if m else 1
        elif op.startswith("ds_"):
            self.cls = "ds"
            if op.startswith("ds_read") or op.startswith("ds_bpermute") or op.startswith("ds_permute") or op.startswith("ds_swizzle") or "_rtn" in op:
                self.dst = R[0]; self.src = set().union(*R[1:])
            else:
                self.src = set().union(*R)
        elif op.startswith("s_"):
            if op.startswith("s_load") or op.startswith("s_buffer_load") or op in ("s_memtime", "s_memrealtime") or op.startswith("s_atomic"):
                self.cls = "smem"
                self.dst = R[0]; self.src = set().union(*R[1:]) if len(R) > 1 else set()
                if op.startswith("s_atomic"): self.src |= R[0]
            elif op in ("s_branch",) or op.startswith("s_cbranch"):
                self.cls = "branch"; self.target = ops[0]
            elif op == "s_call_b64":
                self.cls = "call"; self.target = ops[1]; self.dst = R[0]
            elif op == "s_setpc_b64":
                self.cls = "ret"; self.src = R[0]
            elif op in ("s_waitcnt", "s_barrier", "s_nop", "s_endpgm", "s_setprio", "s_sleep"):
                self.cls = op
            elif op.startswith("s_cmp") or op.startswith("s_bitcmp"):
                self.cls = "salu"; self.src = set().union(*R)
            else:
                self.cls = "salu"
                self.dst = R[0]; self.src = set().union(*R[1:]) if len(R) > 1 else set()
                if "saveexec" in op: self.dst = self.dst | EXEC; self.src = self.src | EXEC
                if op.startswith("s_addk") or op.startswith("s_mulk") or op.startswith("s_cmov"): self.src |= R[0]
        else:
            raise ValueError("unknown instruction: " + text)

    def states(self):
        if self.cls in ("label", "dir"): return 0
        if self.cls == "s_nop": return int(self.ops[0], 0) + 1
        return 1

def is_sgpr(r): return r[0] == "s"
def vg(rs): return {r for r in rs if r[0] in "va"}
def sg(rs): return {r for r in rs if r[0] == "s"}

def need(p, c):
    n = 0
    pb = re.sub(r"_(e32|e64|dpp|sdwa)$", "", p.op); cb = re.sub(r"_(e32|e64|dpp|sdwa)$", "", c.op)
    if p.cls == "valu":
        sw = sg(p.dst)
        if sw:
            if c.cls == "vmem" and (sw & c.src): n = max(n, 5)
            if c.cls == "valu" and (sw & c.src):
                n = max(n, 4 if cb in ("v_readlane_b32", "v_writelane_b32") else 2)
            if sw & EXEC:
                if c.cls == "mfma": n = max(n, 4)
                if c.cls == "valu" and ("dpp" in c.op or "row_" in c.mods or "quad_perm" in c.mods): n = max(n, 5)
                if c.cls == "valu" and (cb.startswith("v_readlane") or cb.startswith("v_readfirstlane") or cb.startswith("v_permlane")): n = max(n, 4)
            if c.cls in ("salu", "branch", "smem") and (sw & c.src): n = max(n, 1)
        vw = vg(p.dst)
        if vw:
            if c.cls == "mfma" and (vw & c.src): n = max(n, 2)
            if c.cls == "valu" and (vw & c.src):
                if "dpp" in c.op or "row_" in c.mods or "quad_perm" in c.mods: n = max(n, 2)
                if cb.startswith("v_permlane"): n = max(n, 2)
                if cb.startswith("v_readlane") or cb.startswith("v_readfirstlane"): n = max(n, 1)
                if pb in TRANS and cb not in TRANS: n = max(n, 1)
                if "sdwa" in p.op or ("op_sel" in p.mods and not pb.startswith("v_pk_")): n = max(n, 1)
            if pb.startswith("v_dot"):
                if c.cls in ("valu", "mfma", "vmem", "ds") and (vw & (c.src | c.dst)):
                    same_acc = (cb == pb and c.cls == "valu" and not (vw & set().union(*[parse_reg(o) for o in c.ops[1:3]])))
                    if not same_acc: n = max(n, 3)
    if p.cls == "salu":
        if (p.dst & M0) and ((c.cls == "vmem" and c.lds) or "addtid" in c.op): n = max(n, 1)
    if p.cls == "vmem" and p.width >= 3:
        data = parse_reg(p.ops[0]) if p.op.startswith("buffer") else parse_reg(p.ops[1])
        if data & c.dst:
            n = max(n, 2 if c.cls in ("valu",) else 1)
    if p.cls == "mfma":
        P = p.passes
        if c.cls == "mfma":
            if p.dst & c.srcC:
                if p.dst == c.srcC and c.passes == P: pass
                else: n = max(n, P + 2)
            if p.dst & (c.srcA | c.srcB): n = max(n, P + 4)
            if (p.dst & c.dst) and not (p.dst == c.srcC and c.passes == P): n = max(n, P + 4)
        elif c.cls in ("valu", "vmem", "ds"):
            if p.dst & (c.src | c.dst): n = max(n, P + 4)
            if c.cls == "valu" and (p.srcC & c.dst): n = max(n, P - 1)
    return n

def fix_hazards(lines, verbose=False):
    ins = [Ins(l) for l in lines]
    total = 0
    def build():
        labels = {x.label: i for i, x in enumerate(ins) if x.label}
        preds = [[] for _ in ins]
        for i, x in enumerate(ins):
            if i + 1 < len(ins) and not (x.op in ("s_branch", "s_endpgm", "s_call_b64", "s_setpc_b64")):
                preds[i + 1].append(i)
            if x.cls in ("branch", "call") and x.target in labels:
                preds[labels[x.target]].append(i)
            if x.cls == "call":
                j = labels[x.target]
                while ins[j].cls != "ret": j += 1
                preds[i + 1].append(j)
        return preds
    preds = build()
    ci = 0
    while ci < len(ins):
        c = ins[ci]
        if c.cls in ("label", "dir", "s_nop", "s_waitcnt", "s_barrier", "s_endpgm"):
            ci += 1; continue
        worst = 0
        stack = [(p, 0) for p in preds[ci]]
        seen = {}
        while stack:
            pi, d = stack.pop()
            if d >= 14: continue
            if pi in seen and seen[pi] <= d: continue
            seen[pi] = d
            p = ins[pi]
            if p.cls in ("valu", "salu", "vmem", "mfma"):
                r = need(p, c)
                if r - d > worst:
                    worst = r - d; wp = p
            nd = d + p.states()
            for q in preds[pi]: stack.append((q, nd))
        if worst > 0:
            if verbose: print(f"  nop {worst}: [{wp.text.strip()}] -> [{c.text.strip()}]")
            ins.insert(ci, Ins(f"s_nop {worst-1}"))
            total += worst
            preds = build()
            ci += 1
        ci += 1
    return [x.text for x in ins], total

def check_waitcnt(lines, name=""):
    ins = [Ins(l) for l in lines]
    labels = {x.label: i for i, x in enumerate(ins) if x.label}
    errors = set()
    import sys
    sys.setrecursionlimit(10000)
    seen = set()
    stack = [(0, (), (), (), None)]
    while stack:
        pc, vm, lg, taken, ret = stack.pop()
        vm = list(vm); lg = list(lg)
        while pc < len(ins):
            x = ins[pc]
            if x.cls in ("label",):
                key = (pc, tuple(vm), tuple(lg), ret)
                if key in seen: break
                seen.add(key)
            if x.cls == "s_endpgm": break
            if x.cls == "s_waitcnt":
                t = x.text.split(";")[0]
                m = re.search(r"vmcnt\((\d+)\)", t)
                if m:
                    n = int(m.group(1))
                    while len(vm) > n: vm.pop(0)
                m = re.search(r"lgkmcnt\((\d+)\)", t)
                if m:
                    n = int(m.group(1))
                    if n == 0: lg = []
                    elif not any(k == "smem" for k, _ in lg):
                        while len(lg) > n: lg.pop(0)
            else:
                touched = x.src | x.dst
                for k, d in vm + lg:
                    if d & touched and 'dummy' not in x.text:
                        errors.add(f"{name}: line {pc}: '{x.text.strip()}' touches pending {k} dst {sorted(d & touched)[:4]}")
                if x.cls == "vmem" and x.op not in ("buffer_wbl2", "buffer_inv"):
                    vm.append(("vm", frozenset(x.dst)))
                    if len(vm) > 63: errors.add(f"{name}: line {pc}: vmcnt overflow >63")
                elif x.cls == "ds":
                    lg.append(("ds", frozenset(x.dst)))
                    if len(lg) > 15: lg_over = True
                elif x.cls == "smem":
                    lg.append(("smem", frozenset(x.dst)))
            if x.cls == "branch":
                tgt = labels.get(x.target)
                if x.op == "s_branch":
                    pc = tgt; continue
                cnt = taken.count(pc)
                if cnt < 2:
                    stack.append((tgt, tuple(vm), tuple(lg), taken + (pc,), ret))
            if x.cls == "call":
                ret = pc + 1; pc = labels[x.target]; continue
            if x.cls == "ret":
                pc = ret; ret = None; continue
            pc += 1
    return sorted(errors)

class Kern:
    def __init__(self, name, grid, block, lds, nvgpr, nagpr=0, nsgpr=96):
        self.name = name; self.grid = grid; self.block = block; self.lds = lds
        self.nvgpr = nvgpr; self.nagpr = nagpr; self.nsgpr = nsgpr
        self.L = []
    def e(self, *lines):
        for l in lines:
            for x in l.split("\n"):
                x = x.strip()
                if x: self.L.append(x)
    def label(self, n): self.L.append(f"{self.name}_{n}:")
    def lab(self, n): return f"{self.name}_{n}"
    def finish(self, verbose=False):
        body, tot = fix_hazards(self.L, verbose)
        errs = check_waitcnt(body, self.name)
        for e in errs: print("WAITCNT ERROR:", e)
        mv = ma = ms = -1
        for l in body:
            x = Ins(l)
            for r in x.src | x.dst:
                if r[0] == "v": mv = max(mv, r[1])
                elif r[0] == "a": ma = max(ma, r[1])
                elif r[1] < 102: ms = max(ms, r[1])
        assert mv < self.nvgpr, (self.name, mv, self.nvgpr)
        assert ma < self.nagpr, (self.name, ma, self.nagpr)
        assert ms < self.nsgpr, (self.name, ms)
        print(f"{self.name}: {len(body)} lines, nops inserted {tot}, max v{mv} a{ma} s{ms}")
        txt = [f".globl {self.name}", ".p2align 8", f".type {self.name},@function", f"{self.name}:"]
        txt += [("" if l.endswith(":") else "    ") + l for l in body]
        return "\n".join(txt), len(errs)
    def launch_line(self):
        g = self.grid; b = self.block
        return f"; @launch kernel={self.name} grid=({g},1,1) block=({b},1,1) lds={self.lds}"
    def desc(self):
        acc = (self.nvgpr + 3) // 4 * 4
        nfv = acc + self.nagpr if self.nagpr else self.nvgpr
        return f""".p2align 6
.amdhsa_kernel {self.name}
  .amdhsa_next_free_vgpr {nfv}
  .amdhsa_next_free_sgpr {self.nsgpr}
  .amdhsa_accum_offset {acc}
  .amdhsa_group_segment_fixed_size 0
  .amdhsa_kernarg_size 80
  .amdhsa_user_sgpr_count 2
  .amdhsa_user_sgpr_kernarg_segment_ptr 1
  .amdhsa_system_sgpr_workgroup_id_x 1
  .amdhsa_float_denorm_mode_32 3
.end_amdhsa_kernel"""

def interleave(main, fill, lead=0):
    out = []
    n = len(main); m = len(fill)
    fi = 0
    for i, x in enumerate(main):
        out.append(x)
        want = (m * (i + 1) + n - 1) // n if n else m
        while fi < want:
            f = fill[fi]; fi += 1
            if isinstance(f, (list, tuple)): out.extend(f)
            else: out.append(f)
    while fi < m:
        f = fill[fi]; fi += 1
        if isinstance(f, (list, tuple)): out.extend(f)
        else: out.append(f)
    return out

def write_file(path, kerns, header, verbose=False):
    parts = [header]
    for k in kerns: parts.append(k.launch_line())
    parts.append('.amdgcn_target "amdgcn-amd-amdhsa--gfx950"')
    parts.append(".text")
    nerr = 0
    done = set()
    for k in kerns:
        if k.name in done: continue
        done.add(k.name)
        t, e = k.finish(verbose); nerr += e
        parts.append(t)
    parts.append(".fill 64, 4, 0xbf800000")
    parts.append('.section .rodata,"a"')
    done = set()
    for k in kerns:
        if k.name in done: continue
        done.add(k.name)
        parts.append(k.desc())
    open(path, "w").write("\n".join(parts) + "\n")
    return nerr
```

```python
import sys
from asmlib import *
from gen2 import *
import gen2 as G

LK, LV, LQ, LX = 139264, 106496, 126976, 106496
SC = '' if opt('plain') else ' sc1'
ER = int(([a[4:] for a in sys.argv if a.startswith('-er=')] + ['3'])[0])

def push_flags(k, base_sgpr, vaddr, mask_lo, wave=0):
    k.e(f"v_mov_b32 v{T3}, s{TAG}", f"s_cmp_eq_u32 s24, {wave}", f"s_cselect_b32 exec_lo, {mask_lo}, 0", "s_mov_b32 exec_hi, 0",
        f"buffer_store_dword v{T3}, v{vaddr}, s[20:23], s{base_sgpr} offen sc1", "s_mov_b64 exec, -1")

W0 = (20, 24, 28)
LCNT = 102400
def signal(k, c):
    if isinstance(c, int): k.e(f"v_mov_b32 v{T2}, {LCNT+4*c}")
    else: k.e(f"s_lshl_b32 s52, {c}, 2", f"s_add_u32 s52, s52, {LCNT}", f"v_mov_b32 v{T2}, s52")
    k.e(f"v_mov_b32 v{T3}, 1", "s_mov_b64 exec, 1", f"ds_add_u32 v{T2}, v{T3}", "s_mov_b64 exec, -1")
def spin(k, name, need, mid=()):
    k.e(f"v_and_b32 v{T0}, 3, v{L}", f"s_mov_b32 s52, {LCNT}", f"v_lshl_add_u32 v{T2}, v{T0}, 2, s52", f"ds_read_b32 v{T3}, v{T2}",
        f"v_lshlrev_b32 v{T0}, 3, v{T0}", f"s_mov_b32 s52, {need:#x}", f"v_bfe_u32 v{T0}, s52, v{T0}, 8", "s_mov_b32 s61, 0", *mid)
    k.label(name)
    k.e("s_waitcnt lgkmcnt(0)", f"v_cmp_gt_u32 vcc, v{T0}, v{T3}", "s_add_u32 s61, s61, 1", f"s_cmp_gt_u32 s61, {SPIN_MAX}", f"s_cbranch_vccz {k.lab(name + 'x')}",
        f"s_cbranch_scc1 {k.lab(name + 'x')}", f"ds_read_b32 v{T3}, v{T2}", f"s_branch {k.lab(name)}")
    k.label(name + "x")
WV = 88
def wv_offsets(k, d=WV, sh=0, mul=0):
    for i in range(5):
        k.e(f"v_add_u32 v{T0}, {64*i}, v{L}", f"v_mul_u32_u24 v{T1}, 6554, v{T0}", f"v_lshrrev_b32 v{T1}, 16, v{T1}")
        if mul: k.e(f"v_lshrrev_b32 v{T2}, {sh}, v{T1}", f"v_mul_u32_u24 v{T2}, {1280*mul}, v{T2}")
        k.e(f"v_mul_u32_u24 v{T1}, {1280-160}, v{T1}", f"v_lshl_add_u32 v{d+i}, v{T0}, 4, v{T1}")
        if mul: k.e(f"v_add_u32 v{d+i}, v{d+i}, v{T2}")
        if i % 4: k.e(f"v_subrev_u32 v{d+i}, {1024*(i%4)}, v{d+i}")
def step_dma(d, lds_s, soff, lds_add=0, each=False):
    o = [[f"s_add_u32 m0, s{lds_s}, {lds_add}"] if i == 0 or (each and i < 4) else [] for i in range(5)]
    o[4].append(f"s_add_u32 m0, s{lds_s}, {lds_add+4096}")
    for i in range(5): o[i].append(f"buffer_load_dwordx4 v{d+i}, s[16:19], s{soff} offen offset:{1024*(i%4)} lds")
    return o

def phase_b(k):
    AK, AKE, AV = 82, 83, 93
    VV = 20
    QM, QE = 96, 100
    KB = 36
    VB = 60
    OA, MB = 72, 76
    MX, MC = 80, 81
    FL = 84
    PR = ([a[4:] for a in sys.argv if a.startswith('-pr=')] + ['100'])[0]
    VP = int(([a[4:] for a in sys.argv if a.startswith('-vp=')] + ['2'])[0])
    O = 96
    SB = 112
    k.e("s_and_b32 s52, s2, 7", "s_lshr_b32 s53, s2, 3", "s_lshr_b32 s54, s53, 3", "s_lshl_b32 s25, s52, 2", "s_add_u32 s25, s25, s54",
        "s_and_b32 s26, s53, 7")
    k.e("s_and_b32 s31, s24, 3")
    wv_offsets(k, WV, 4, 4)
    srd(k, 16, KWO, 640 * 1280)
    k.e("s_mul_i32 s60, s26, 160", "s_add_u32 s0, s24, s26", "s_and_b32 s0, s0, 7", "s_mul_i32 s0, s0, 51200", "s_add_u32 s52, s0, s60", f"s_add_u32 s53, s52, {8*51200}",
        "s_bitcmp1_b32 s2, 7", "s_cselect_b32 s0, s53, s52", "s_cselect_b32 s1, s52, s53", "s_mul_i32 s48, s24, 5120")
    wo = step_dma(WV, 48, 0, 0, True) + step_dma(WV, 48, 1, 51200, True)
    k.e("s_lshr_b32 s52, s25, 1", "s_mul_i32 s52, s52, 5", "s_and_b32 s53, s25, 1", "s_lshl_b32 s53, s53, 1", "s_add_u32 s53, s53, s52",
        "s_lshl_b32 s4, s53, 15", "s_add_u32 s5, s4, 32768", "s_add_u32 s53, s52, 4", "s_lshl_b32 s6, s53, 15",
        "s_lshr_b32 s52, s52, 4", "s_lshr_b32 s53, s53, 4", "s_lshl_b32 s52, 0x04210421, s52", "s_lshl_b32 s53, 0x04210421, s53", "s_or_b32 s30, s52, s53",
        "s_lshl_b32 s54, s26, 1", "s_add_u32 s54, s54, s31",
        "s_cmp_lt_u32 s54, 2", "s_cselect_b32 s55, 0, 2", "s_sub_u32 s54, s54, s55",
        "s_lshl_b32 s7, s54, 11", f"s_add_u32 s7, s7, {80*32768}",
        "s_lshl_b32 s8, s26, 12", "s_lshl_b32 s55, s31, 10", "s_add_u32 s8, s8, s55",
        "s_mul_i32 s9, s54, 163840", "s_mul_i32 s55, s25, 320", "s_add_u32 s9, s9, s55", f"s_add_u32 s9, s9, {WS_V}",
        "s_lshl_b32 s10, s26, 13", "s_lshl_b32 s55, s25, 8", "s_add_u32 s10, s10, s55", f"s_add_u32 s10, s10, {WS_FB}",
        "s_cmp_eq_u32 s26, 0", "s_cselect_b32 s11, 0, 0x7fe07fe0", "s_and_b32 s11, s11, s30")
    k.e("s_and_b32 s27, s2, 4", "s_xor_b32 s27, s27, s24")
    k.e("s_lshl_b32 s52, s27, 9", f"s_add_u32 s53, s52, {LK}", f"v_lshl_add_u32 v{AKE}, v{TK}, 4, s53", f"v_lshl_add_u32 v{AK}, v{H}, 13, v{AKE}",
        "s_mul_i32 s53, s27, 1280", f"s_add_u32 s53, s53, {LV}", f"v_mul_u32_u24 v{T1}, 320, v{H}", f"v_lshl_add_u32 v{T1}, v{TK}, 4, v{T1}", f"v_add_u32 v{AV}, s53, v{T1}",
        f"s_add_u32 s53, s52, {LQ}", f"v_lshl_add_u32 v{MX}, v{TK}, 4, s53", f"v_lshl_add_u32 v{MC}, v{H}, 12, v{MX}")
    k.e("s_lshl_b32 s52, s26, 3", "s_add_u32 s27, s27, s52")
    o_addr(k)
    k.e(f"v_lshlrev_b32 v{FL+1}, 2, v{TK}")
    def s_init():
        k.e(f"v_lshlrev_b32 v{T1}, 2, v{H}", f"v_sub_u32 v{T1}, v{TK}, v{T1}", f"v_mov_b32 v{T2}, {NEGBIG}",
            "s_cmp_ge_u32 s27, 8", f"s_cselect_b32 s55, 0, {NEGBIG}", f"v_mov_b32 v{T3}, s55")
        for r in range(16):
            kk = (r & 3) + 8 * (r >> 2)
            k.e(f"v_cmp_le_i32 vcc, {kk}, v{T1}", f"v_cndmask_b32_e64 v{SB+128+r}, v{T2}, 0, vcc", f"v_cndmask_b32 v{SB+r}, v{T3}, v{T2}, vcc")
        for i in range(1, 8):
            k.e(f"s_cmp_ge_u32 s27, {8-i}", f"s_cselect_b32 s54, 0, {NEGBIG}", "s_mov_b32 s55, s54")
            for r in range(0, 16, 2): k.e(f"v_mov_b64 {v(SB+16*i+r,2)}, s[54:55]")
        k.e(f"s_mov_b32 s54, {ONES}", f"s_mov_b32 s55, {ONES}")
        for r in range(0, 12, 2): k.e(f"v_mov_b64 {v(VB+r,2)}, s[54:55]")
        k.e(f"v_mov_b32 v{OA}, {ONES}", f"v_mov_b32 v{OA+1}, 0x3f80", f"v_mov_b64 {v(OA+2,2)}, 0", f"v_mov_b64 {v(MB+2,2)}, 0")
    k.e("s_bitcmp1_b32 s25, 0", "s_cselect_b32 s28, 0, -1", "s_cselect_b32 s56, -1, 0", "s_mov_b32 s29, 0", "s_mov_b32 s57, 0",
        "s_mov_b32 s58, 0x000fffff", "s_mov_b32 s59, 0x000fffff")
    k.e("s_cmp_lt_u32 s24, 4", f"s_cbranch_scc1 {k.lab('b_k')}")
    k.e(f"v_and_b32 v{T0}, 15, v{L}", f"v_mul_u32_u24 v{T0}, 1280, v{T0}", f"v_lshrrev_b32 v{T1}, 4, v{L}", f"v_lshl_add_u32 v{T0}, v{T1}, 3, v{T0}",
        "s_lshl_b32 s52, s25, 2", "s_add_u32 s52, s52, s31", "s_mul_i32 s52, s52, 20480", "s_add_u32 s52, s52, s60")
    for f in range(5): k.e(f"buffer_load_dwordx2 {v(HRES+2*f,2)}, v{T0}, s[12:15], s52 offen offset:{32*f}")
    for i in range(5):
        k.e(f"v_add_u32 v{T0}, {64*i}, v{L}", f"v_mul_u32_u24 v{T1}, 3277, v{T0}", f"v_lshrrev_b32 v{T1}, 16, v{T1}",
            f"v_mul_u32_u24 v{T1}, {10240-320}, v{T1}", f"v_lshl_add_u32 v{VV+i}, v{T0}, 4, v{T1}")
        if i % 4: k.e(f"v_subrev_u32 v{VV+i}, {1024*(i%4)}, v{VV+i}")
    s_init()
    k.e("s_lshl_b32 s52, s26, 12", "s_lshl_b32 s53, s25, 2", "s_add_u32 s52, s52, s53", f"s_add_u32 s52, s52, {WS_FC}", f"v_lshlrev_b32 v{T0}, 7, v{L}")
    k.e("s_cmp_ge_u32 s2, 240", f"s_cbranch_scc1 {k.lab('b_sp')}", "s_waitcnt vmcnt(5)", "s_barrier")
    k.label("b_sp")
    push_flags(k, 52, T0, -1, 5)
    stamp(k, 8)
    d_map(k); d_wsetup(k)
    k.e("s_lshl_b32 s53, s31, 10")
    k.e("s_cmp_lg_u32 s24, 4", f"s_cbranch_scc1 {k.lab('b_np')}", f"v_lshlrev_b32 v{T2}, 2, v{L}")
    poll(k, T2, "s10", T0, "s11", "s30")
    k.label("b_np")
    k.e("s_barrier")
    stamp(k, 7)
    for p_ in range(3):
        k.e(f"s_add_u32 m0, s53, {LQ+4096*p_}", f"s_add_u32 s54, s{4+p_}, s8", f"buffer_load_dwordx4 v{L16}, s[20:23], s54 offen{SC} lds")
    k.e("s_mul_i32 s52, s31, 5120", f"s_add_u32 m0, s52, {LV}")
    for i in range(5):
        if i == 4: k.e(f"s_add_u32 m0, s52, {LV+4096}")
        k.e(f"buffer_load_dwordx4 v{VV+i}, s[20:23], s9 offen offset:{1024*(i%4)}{SC} lds")
    k.e(f"v_mov_b32 v{T0}, {LCNT}", f"v_mov_b64 {v(T1,2)}, 0", f"ds_write2_b64 v{T0}, {v(T1,2)}, {v(T1,2)} offset1:1")
    k.e(f"s_setprio {PR[1]}", "s_waitcnt vmcnt(5) lgkmcnt(0)", f"s_branch {k.lab('b_go')}")
    k.label("b_k")
    d_map(k); d_wsetup(k)
    wv_offsets(k, VV, 2, 16)
    k.e("s_mul_i32 s9, s31, 204800", "s_add_u32 s9, s9, s60", "s_add_u32 s9, s9, 20480", "s_lshr_b32 s10, s2, 6", "s_xor_b32 s10, s10, s31", "s_and_b32 s10, s10, 2", "s_mul_i32 s10, s10, 5",
        "s_and_b32 s8, s31, 1", "s_add_u32 s8, s8, s10", "s_mul_i32 s8, s8, 5120", "s_lshl_b32 s52, s31, 11")
    for r in range(0, 10, 2): k.e(f"v_mov_b64 {v(HRES+r,2)}, 0")
    stamp(k, 8)
    k.e("s_barrier")
    stamp(k, 7)
    for p_ in range(3):
        k.e(f"s_add_u32 m0, s52, {LK+8192*p_}", f"s_add_u32 s54, s{4+p_}, s7", f"buffer_load_dwordx4 v{L16}, s[20:23], s54 offen{SC} lds",
            f"buffer_load_dwordx4 v{L16}, s[20:23], s54 offen offset:1024{SC} lds")
    s_init()
    for x in step_dma(VV, 8, 9, 8 * 5120): k.e(*x)
    k.e(f"s_setprio {PR[0]}", "s_waitcnt vmcnt(5)")
    k.label("b_go")
    k.e("s_barrier")
    stamp(k, 9)
    def kread(i):
        b = KB + 8 * (i % 3)
        return [f"ds_read_b128 v[{b}:{b+3}], v{AK} offset:{512*i}", f"ds_read_b128 v[{b+4}:{b+7}], v{AKE} offset:{512*i+16384}"]
    def vread(n):
        b = VB + 4 * (n % 3)
        return ["s_mov_b64 exec, s[58:59]", f"ds_read_b128 v[{b}:{b+3}], v{AV} offset:{640*n}", "s_mov_b64 exec, -1"]
    def maxops(i):
        sb = SB + 16 * i
        o = []
        if i == 0:
            o.append(f"v_max_f32 v{MX}, v{sb}, v{sb+1}"); o.append(f"v_max_f32 v{MC}, v{sb+2}, v{sb+3}")
            rs = list(range(4, 16))
        else: rs = list(range(16))
        for j in range(0, len(rs), 2):
            d = MX if (j // 2) % 2 == 0 else MC
            o.append(f"v_max3_f32 v{d}, v{sb+rs[j]}, v{sb+rs[j+1]}, v{d}")
        return o
    k.e(f"ds_read_b128 v[{QM}:{QM+3}], v{MC}", f"ds_read_b128 v[{QE}:{QE+3}], v{MX} offset:8192")
    k.e(*kread(0)); k.e(*kread(1))
    k.e("s_waitcnt lgkmcnt(4)")
    k.e(f"v_cndmask_b32_e64 v{QE}, 0, v{QE}, s[28:29]", f"v_cndmask_b32_e64 v{QE+1}, 0, v{QE+1}, s[28:29]",
        f"v_cndmask_b32_e64 v{QE+2}, 0, v{QE+2}, s[56:57]", f"v_cndmask_b32_e64 v{QE+3}, 0, v{QE+3}, s[56:57]")
    k.e("s_lshr_b32 s8, s24, 2", "s_mul_i32 s9, s8, 3072", f"s_add_u32 s9, s9, s{DLP}", "s_mul_i32 s8, s8, 49152", f"s_add_u32 s8, s8, s{DSW}", f"s_add_u32 s43, s9, {d_w(0)}")
    k.e(*d_wadv())
    k.e("s_lshl_b32 s52, s25, 3", "s_add_u32 s52, s52, s26", "s_lshl_b32 s52, s52, 7", f"s_add_u32 s42, s52, {WS_FC}")
    wo = [[f"buffer_load_dwordx4 {v(W0[i],4)}, v{DW+i}, s[32:35], s8 offen offset:{1024*i}"] for i in range(3)] + wo
    WQ = [0, 1, 2]; W1 = int(([a[4:] for a in sys.argv if a.startswith('-w1=')] + ['3'])[0]); WS_ = list(range(W1, W1 + 10))
    for i in range(9):
        b = KB + 8 * (i % 3); sb = SB + 16 * i
        k.e(f"s_waitcnt lgkmcnt({2 if i < 8 else 0})")
        mf = [f"v_mfma_f32_32x32x16_bf16 {v(sb,16)}, {v(b,4)}, {v(QM,4)}, {v(sb,16)}",
              f"v_mfma_f32_32x32x16_bf16 {v(sb,16)}, {v(b+4,4)}, {v(QE,4)}, {v(sb,16)}"]
        fill = []
        if i + 2 < 9: fill += kread(i + 2)
        if i >= 2: fill += maxops(i - 2)
        if i in WQ: fill.append(wo[WQ.index(i)])
        k.e(*interleave(mf, fill))
    k.e(*maxops(7)); k.e(*maxops(8))
    k.e("s_waitcnt vmcnt(3)", "s_barrier")
    stamp(k, 10)
    cpre = c_scalar()
    NS = int(([a[4:] for a in sys.argv if a.startswith('-ns=')] + ['8'])[0])
    rest_ = wo[len(WQ):]
    k.e(*vread(0)); k.e(*vread(1))
    k.e(f"v_max_f32 v{MX}, v{MX}, v{MC}", f"v_mov_b32 v{MC}, v{MX}", f"v_permlane32_swap_b32 v{MC}, v{MX}", f"v_max_f32 v{MX}, v{MX}, v{MC}")
    split3(k, MX, MB, MB + 1, T0, T1, neg=True)
    k.e(f"v_cmp_gt_u32 vcc, 32, v{L}", f"v_cndmask_b32 v{MB}, 0, v{MB}, vcc", f"v_cndmask_b32 v{MB+1}, 0, v{MB+1}, vcc")
    def sub(i): return f"v_mfma_f32_32x32x16_bf16 {v(SB+16*i,16)}, {v(OA,4)}, {v(MB,4)}, {v(SB+16*i,16)}"
    def soft(i, u):
        sb = SB + 16 * i + 8 * u
        o = [f"v_exp_f32 v{sb+r}, v{sb+r}" for r in range(8)]
        o += [f"v_cvt_pk_bf16_f32 v{sb+j}, v{sb+2*j}, v{sb+2*j+1}" for j in range(4)]
        return o
    PB = [int(c, 36) for c in ([a[4:] for a in sys.argv if a.startswith('-pb=')] + [''])[0]]
    if PB: k.e("s_lshl_b32 s61, s2, 3", "s_add_u32 s61, s61, s24", f"s_mul_i32 s61, s61, {len(PB)*1024}", f"s_min_u32 s61, s61, {WS_W2-WS_H-len(PB)*1024}", f"s_add_u32 s61, s61, {WS_H}")
    k.e(sub(0), sub(1))
    k.e(*soft(0, 0))
    for n in range(18):
        i, u = divmod(n, 2)
        sb = SB + 16 * i + 8 * u
        b = VB + 4 * (n % 3)
        nxt = soft(*divmod(n + 1, 2)) if n + 1 < 18 else []
        k.e(*nxt[:3])
        k.e(f"s_waitcnt lgkmcnt({1 if n < 17 else 0})")
        k.e(f"v_mfma_f32_32x32x16_bf16 {v(O,16)}, {v(b,4)}, {v(sb,4)}, {'0' if n == 0 else v(O,16)}")
        if n + 2 < 18: k.e(*vread(n + 2))
        k.e(*nxt[3:7])
        if u == 0 and i + 2 < 9: k.e(sub(i + 2))
        if n in WS_: k.e(*rest_[WS_.index(n)])
        if n == NS: k.e(f"buffer_load_dword v{FL}, v{FL+1}, s[20:23], s42 offen sc1")
        if n in PB: k.e(f"buffer_store_dwordx4 v[36:39], v{L16}, s[20:23], s61 offen offset:{1024*(PB.index(n)%4)} sc1", *(["s_add_u32 s61, s61, 4096"] if PB.index(n) == 3 else []))
        k.e(*interleave(nxt[7:], cpre[4*n:4*n+4]))
    assert len(cpre) <= 60
    k.e(f"v_and_b32 v{T1}, 15, v{L}", f"v_lshlrev_b32 v{LE}, 9, v{H}", f"v_bfe_u32 v{T0}, v{L}, 4, 1", f"v_lshl_add_u32 v{LE}, v{T0}, 7, v{LE}")
    k.e(f"v_rcp_f32 v{T2}, v{O+12}")
    for r in range(12): k.e(f"v_mul_f32 v{O+r}, v{O+r}, v{T2}")
    for j in range(6): k.e(f"v_cvt_pk_bf16_f32 v{O+j}, v{O+2*j}, v{O+2*j+1}")
    k.e(f"v_min_u32 v{O}, -2, v{O}", f"v_min_u32 v{O+4}, -2, v{O+4}")
    k.e(*o_stores(O, O + 4))
    k.e(f"v_lshl_add_u32 v{LE}, v{T1}, 3, v{LE}")
    stamp(k, 11)
    k.e("s_waitcnt vmcnt(2)")
    poll(k, FL + 1, "s42", FL, -1, -1, preloaded=True)
    k.e("s_setprio 0", "s_barrier")
    stamp(k, 12)

WR, ACT, ACC = 96, 56, 36
LA, NAT, XA = 20, 22, 24
TOK = 31
DW = 32
def ce_setup(k, khs, set2, xb):
    k.e("s_and_b32 s52, s2, 7", "s_lshr_b32 s53, s2, 3", "s_lshr_b32 s54, s53, 3", "s_lshl_b32 s25, s52, 2", "s_add_u32 s25, s25, s54",
        "s_and_b32 s26, s53, 7", "s_and_b32 s28, s24, 3", "s_lshr_b32 s29, s24, 2")
    k.e(f"v_bfe_u32 v{T0}, v{L}, 2, 3", f"v_lshl_add_u32 v{T0}, v{H}, 4, v{T0}", f"v_mul_u32_u24 v{T0}, 160, v{T0}",
        f"v_and_b32 v{T1}, 3, v{L}", f"v_lshl_add_u32 v{T0}, v{T1}, 3, v{T0}", f"s_mul_i32 s53, s29, {khs}", f"v_add_u32 v{LA}, s53, v{T0}",
        f"v_add_u32 v{LA+1}, {set2}, v{LA}")
def ce_setup2(k, xb):
    k.e(f"v_lshrrev_b32 v{T1}, 4, v{L}", f"v_and_b32 v{TOK}, 15, v{L}",
        "s_lshl_b32 s52, s25, 2", "s_add_u32 s27, s52, s28", "s_mul_i32 s52, s27, 20480", "s_mul_i32 s53, s26, 160", "s_add_u32 s30, s52, s53",
        f"v_mul_u32_u24 v{NAT}, 1280, v{TOK}", f"v_lshl_add_u32 v{NAT+1}, v{T1}, 3, v{NAT}",
        f"v_lshl_add_u32 v{NAT}, v{H}, 4, v{NAT}", f"v_bfe_u32 v{T0}, v{L}, 4, 1", f"v_lshl_add_u32 v{NAT}, v{T0}, 5, v{NAT}",
        "s_mul_i32 s52, s28, 5120", f"s_add_u32 s52, s52, {xb}", f"v_add_u32 v{XA}, s52, v{L16}")
def w_reads(st, off, dst):
    return [f"ds_read_b64_tr_b16 v[{dst+4*f+2*u}:{dst+4*f+2*u+1}], v{LA+st} offset:{off+1280*u+32*f}" for f in range(5) for u in range(2)]
def ce_mfma(wb, ab):
    return [f"v_mfma_f32_16x16x32_bf16 {v(ACC+4*f,4)}, {v(wb+4*f,4)}, {v(ab,4)}, {v(ACC+4*f,4)}" for f in range(5)]
def unpack(k, src):
    for j in range(10): k.e(f"v_lshlrev_b32 v{ACC+2*j}, 16, v{src+j}", f"v_and_b32 v{ACC+2*j+1}, 0xffff0000, v{src+j}")
def swaps(k, y):
    for j in (0, 1, 4, 5): k.e(f"v_permlane16_swap_b32 v{y+j}, v{y+j+2}")
def ce_epilogue(k, out, skip, pref, k0=(), pre=None):
    X = WR
    k.e("s_cmp_lg_u32 s29, 0", f"s_cbranch_scc1 {k.lab(pref + '_k1')}")
    if pre: pre()
    for f in range(5): k.e(f"ds_write_b128 v{XA}, {v(ACC+4*f,4)} offset:{1024*f}")
    k.e(*k0)
    k.e("s_waitcnt lgkmcnt(0)", "s_barrier", f"s_branch {k.lab(skip)}")
    k.label(pref + "_k1")
    k.e("s_barrier")
    for f in range(5): k.e(f"ds_read_b128 {v(X+4*f,4)}, v{XA} offset:{1024*f}")
    for f in range(5):
        k.e(f"s_waitcnt lgkmcnt({4-f})")
        for r in (4 * f, 4 * f + 2): k.e(f"v_pk_add_f32 {v(ACC+r,2)}, {v(ACC+r,2)}, {v(X+r,2)}")
        for j in (2 * f, 2 * f + 1): k.e(f"v_cvt_pk_bf16_f32 v{out+j}, v{ACC+2*j}, v{ACC+2*j+1}")

def d_w(st): p = (st + 3) % 4; return 40960 * p + (16384 if p & 1 else 0)
def d_h(st): p = (st + 3) % 4; return 40960 * p + (0 if p & 1 else 24576)
DRB, DNB, DROT, DSW, DLIM, DLP = 96, 97, 98, 99, 38, 39
def d_map(k):
    k.e("s_and_b32 s52, s2, 7", "s_lshr_b32 s53, s2, 3", "s_lshr_b32 s54, s53, 3", "s_lshr_b32 s55, s52, 1", f"s_lshl_b32 s{DRB}, s55, 2", f"s_add_u32 s{DRB}, s{DRB}, s54",
        "s_and_b32 s52, s52, 1", "s_lshl_b32 s52, s52, 3", "s_and_b32 s53, s53, 7", f"s_add_u32 s{DNB}, s52, s53",
        "s_mul_i32 s54, s54, 5", "s_add_u32 s54, s54, 1", "s_lshr_b32 s54, s54, 1", "s_add_u32 s54, s54, s55", f"s_add_u32 s54, s54, s{DNB}",
        "s_cmp_ge_u32 s54, 20", "s_cselect_b32 s55, 20, 0", "s_sub_u32 s54, s54, s55",
        "s_cmp_ge_u32 s54, 10", "s_cselect_b32 s55, 10, 0", f"s_sub_u32 s{DROT}, s54, s55")
def d_wsetup(k):
    k.e("s_bitcmp1_b32 s24, 1", f"s_cselect_b32 s32, s{KW3}, s{KW1}", f"s_cselect_b32 s33, s{KW3+1}, s{KW1+1}", f"s_mov_b32 s34, {640*3072}", "s_mov_b32 s35, 0x20000",
        "s_cselect_b32 s52, 2, 0")
    for i in range(3):
        k.e(f"v_add_u32 v{T0}, {64*i}, v{L}", f"v_mul_u32_u24 v{T1}, 5462, v{T0}", f"v_lshrrev_b32 v{T1}, 16, v{T1}",
            f"v_xor_b32 v{T0}, s52, v{T0}", f"v_mul_u32_u24 v{T1}, {3072-192}, v{T1}", f"v_lshl_add_u32 v{DW+i}, v{T0}, 4, v{T1}")
        if i: k.e(f"v_subrev_u32 v{DW+i}, {1024*i}, v{DW+i}")
    k.e("s_and_b32 s52, s24, 3", f"s_mul_i32 s{DLP}, s52, 6144", "s_and_b32 s52, s24, 1", "s_mul_i32 s52, s52, 98304", f"s_mul_i32 s53, s{DNB}, 192", "s_add_u32 s52, s52, s53",
        f"s_add_u32 s{DLIM}, s52, {640*3072}", f"s_mul_i32 s53, s{DROT}, {64*3072}", f"s_add_u32 s{DSW}, s52, s53")
def d_wtriple(lds_s, lds_add, soff):
    return [f"s_add_u32 m0, s{lds_s}, {lds_add}"] + [f"buffer_load_dwordx4 v{DW+i}, s[32:35], s{soff} offen offset:{1024*i} lds" for i in range(3)]
def d_wadv():
    return [f"s_add_u32 s{DSW}, s{DSW}, {64*3072}", f"s_cmp_ge_u32 s{DSW}, s{DLIM}", f"s_cselect_b32 s52, {640*3072}, 0", f"s_sub_u32 s{DSW}, s{DSW}, s52"]
def d_wstage(st):
    a = d_wtriple(DLP, d_w(st), DSW); b = d_wtriple(DLP, d_w(st) + 3072, 49)
    return [a[:2], [a[2]], [a[3]], [f"s_add_u32 s49, s{DSW}, 49152"] + b[:2], [b[2]], [b[3]] + d_wadv()]

PF1, PF2 = map(int, ([a[4:] for a in sys.argv if a.startswith('-pf=')] + ['11'])[0])
LE = 35
def c_scalar():
    o = ["s_and_b32 s28, s24, 3", "s_lshr_b32 s29, s24, 2", "s_lshl_b32 s52, s25, 2", "s_add_u32 s27, s52, s28",
         "s_bfe_u32 s55, s2, 0x10007", "s_xor_b32 s55, s55, s29",
         "s_mul_i32 s52, s27, 20480", f"s_add_u32 s52, s52, {WS_O}", "s_lshl_b32 s54, s55, 13", "s_add_u32 s54, s54, s52"]
    for i in range(8): o += [f"s_add_u32 s53, s26, {i}", "s_and_b32 s53, s53, 7", "s_lshl_b32 s53, s53, 10", f"s_add_u32 s{4+i}, s53, s54"]
    o += ["s_lshl_b32 s53, s55, 11", "s_add_u32 s56, s52, s53", "s_add_u32 s56, s56, 16384"]
    return o
LNK = 50
def retry_sub(k, name, loads, nchk):
    for i in range(nchk):
        k.label(f"{name}_s{i}")
        k.e(f"s_call_b64 s[{LNK}:{LNK+1}], {k.lab(name + '_r')}", f"s_branch {k.lab(f'{name}_c{i}')}")
    k.label(name + "_r")
    k.e("s_waitcnt vmcnt(0)")
    M = (40, 44, 52, 54)
    for j in range(0, len(loads), 4):
        grp = loads[j:j + 4]
        for n, (r, _) in enumerate(grp): k.e(f"v_cmp_eq_u32 s[{M[n]}:{M[n]+1}], -1, v{r}")
        for n, (_, t) in enumerate(grp): k.e(f"s_mov_b64 exec, s[{M[n]}:{M[n]+1}]", t)
        k.e("s_mov_b64 exec, -1")
    k.e("s_add_u32 s61, s61, 1", f"s_cmp_lt_u32 s61, {SPIN_MAX}", "s_waitcnt vmcnt(0)", f"s_cbranch_scc1 {k.lab(name + '_x')}")
    for r, _ in loads: k.e(f"v_min_u32 v{r}, -2, v{r}")
    k.label(name + "_x")
    k.e(f"s_setpc_b64 s[{LNK}:{LNK+1}]")
def check(k, name, i, regs):
    k.label(f"{name}_c{i}")
    if len(regs) == 1: r = regs[0]
    else:
        r = T0
        k.e(f"v_max_u32 v{T0}, v{regs[0]}, v{regs[1]}" if len(regs) % 2 == 0 else f"v_max3_u32 v{T0}, v{regs[0]}, v{regs[1]}, v{regs[2]}")
        for j in range(2 + len(regs) % 2, len(regs), 2): k.e(f"v_max3_u32 v{T0}, v{T0}, v{regs[j]}, v{regs[j+1]}")
    k.e(f"v_cmp_eq_u32 vcc, -1, v{r}", "s_nop 1", f"s_cbranch_vccnz {k.lab(f'{name}_s{i}')}")

def phase_c(k):
    loads = [(ACT + 4 * i, f"buffer_load_dwordx4 {v(ACT+4*i,4)}, v{L16}, s[20:23], s{4+i} offen sc1") for i in range(8)]
    loads += [(ACT + 32 + 4 * e + 2 * u, f"buffer_load_dwordx2 {v(ACT+32+4*e+2*u,2)}, v{LE}, s[20:23], s56 offen offset:{1024*e+256*u} sc1") for e in range(2) for u in range(2)]
    k.e("s_cmp_lg_u32 s29, 0", f"s_cbranch_scc1 {k.lab('c_e1')}")
    for _, t in loads: k.e(t)
    k.label("c_e1")
    k.e(f"v_add_u32 v{T1}, s43, v{L16}")
    for i in range(3): k.e(f"ds_write_b128 v{T1}, {v(W0[i],4)} offset:{1024*i}")
    ce_setup(k, 51200, 0, LX)
    def cpos(i): return (0, 5120 * i)
    CU = int(([a[4:] for a in sys.argv if a.startswith('-cu=')] + ['6'])[0])
    assert 5 <= CU <= 8
    CK = int(([a[4:] for a in sys.argv if a.startswith('-ck=')] + ['3'])[0])
    CL = int(([a[4:] for a in sys.argv if a.startswith('-cl=')] + ['3'])[0])
    def late():
        k.e("s_cmp_eq_u32 s29, 0", f"s_cbranch_scc1 {k.lab('c_l1')}")
        for _, t in loads: k.e(t + " ; dummy")
        k.label("c_l1")
        stamp(k, 13)
    for i in range(CU):
        if i == CL: late()
        k.e(*w_reads(*cpos(i), WR + 20 * i))
    if CL == CU: late()
    ce_setup2(k, LX)
    HA, SA, FA = 25, 27, 28
    k.e("s_lshr_b32 s52, s27, 1", "s_mul_i32 s52, s52, 40960", "s_mul_i32 s53, s26, 5120", "s_add_u32 s52, s52, s53", "s_and_b32 s53, s28, 1", "s_lshl_b32 s53, s53, 8",
        "s_add_u32 s52, s52, s53", f"s_add_u32 s31, s52, {WS_H}", f"v_bfe_u32 v{T0}, v{L}, 4, 1",
        f"v_lshlrev_b32 v{T1}, 9, v{H}", f"v_lshl_add_u32 v{T1}, v{TOK}, 4, v{T1}", f"v_lshl_add_u32 v{HA}, v{T0}, 10, v{T1}", f"v_add_u32 v{HA+1}, 4096, v{T1}",
        "s_lshl_b32 s52, s27, 3", "s_add_u32 s52, s52, s26", "s_lshl_b32 s52, s52, 7", f"s_add_u32 s57, s52, {WS_HST}", f"v_lshlrev_b32 v{SA}, 3, v{TOK}",
        "s_lshr_b32 s52, s25, 1", "s_lshl_b32 s52, s52, 11", "s_and_b32 s53, s25, 1", "s_lshl_b32 s53, s53, 3", "s_add_u32 s53, s53, s26", "s_lshl_b32 s53, s53, 2",
        "s_add_u32 s52, s52, s53", f"s_add_u32 s58, s52, {WS_FD}", f"v_lshlrev_b32 v{FA}, 7, v{L}", f"s_mov_b32 s59, {ONES}")
    unpack(k, HRES)
    if CL > CU: late()
    k.e("s_mov_b32 s61, 0", "s_waitcnt lgkmcnt(0)")
    signal(k, "s29")
    def chk(i):
        k.e(f"s_waitcnt vmcnt({11-i if i < 8 else 2*(9-i)})")
        check(k, "c", i, [ACT + 4 * i] + ([ACT + 4 * i + 2] if i >= 8 else []))
    lag = max(0, CU - 7)
    chk(0)
    stamp(k, 14)
    for i in range(10):
        if i >= CU: k.e(f"s_waitcnt lgkmcnt({10 if i - 1 + CU - lag < 10 else 0})")
        j = i + CU - lag
        body = interleave(ce_mfma(WR + 20 * (i % 8), ACT + 4 * i), w_reads(*cpos(j), WR + 20 * (j % 8)) if CU <= j < 10 else [])
        cut = [n for n, x in enumerate(body) if x.startswith("v_mfma")][CK]
        k.e(*body[:cut])
        if i < 9: chk(i + 1)
        k.e(*body[cut:])
    stamp(k, 15)
    if STAMP: k.e("s_mov_b32 s90, s61")
    def pre(): spin(k, "c_w", 0x04)
    ce_epilogue(k, HRES, "c_k0", "c", [x for st in range(1, 1 + PF1) for y in d_wstage(st) for x in y], pre)
    Z, S1 = ACT, ACT + 4
    k.e(f"v_mov_b64 {v(Z,2)}, {v(HRES+8,2)}", f"v_mov_b64 {v(Z+2,2)}, {v(HRES+8,2)}", f"v_mov_b64 {v(S1,2)}, 0", f"v_mov_b64 {v(S1+2,2)}, 0")
    swaps(k, HRES)
    k.e(f"v_permlane16_swap_b32 v{Z}, v{Z+2}", f"v_permlane16_swap_b32 v{Z+1}, v{Z+3}")
    k.e(f"buffer_store_dwordx4 {v(HRES,4)}, v{HA}, s[20:23], s31 offen sc1", f"buffer_store_dwordx4 {v(HRES+4,4)}, v{HA}, s[20:23], s31 offen offset:2048 sc1",
        "s_mov_b32 exec_lo, 0xffff", "s_mov_b32 exec_hi, 0xffff", f"buffer_store_dwordx4 {v(Z,4)}, v{HA+1}, s[20:23], s31 offen sc1", "s_mov_b64 exec, -1")
    for j in range(10): k.e(f"v_dot2c_f32_bf16 v{S1+2*(j&1)}, s59, v{HRES+j}", f"v_dot2c_f32_bf16 v{S1+2*(j&1)+1}, v{HRES+j}, v{HRES+j}")
    k.e(f"v_pk_add_f32 {v(S1,2)}, {v(S1,2)}, {v(S1+2,2)}")
    for sw in ("v_permlane16_swap_b32", "v_permlane32_swap_b32"):
        k.e(f"v_mov_b64 {v(S1+2,2)}, {v(S1,2)}", f"{sw} v{S1+2}, v{S1}", f"{sw} v{S1+3}, v{S1+1}", f"v_pk_add_f32 {v(S1,2)}, {v(S1,2)}, {v(S1+2,2)}")
    k.e("s_mov_b64 exec, 0xffff", f"buffer_store_dwordx2 {v(S1,2)}, v{SA}, s[20:23], s57 offen sc1", "s_mov_b64 exec, -1")
    stamp(k, 16)
    k.e("s_waitcnt vmcnt(0)", f"s_branch {k.lab('c_pub')}")
    retry_sub(k, "c", loads, 10)
    k.label("c_k0")
    k.e("s_cmp_lt_u32 s2, 240", f"s_cbranch_scc1 {k.lab('c_ns')}",
        "s_lshl_b32 s52, s2, 2", "s_lshl_b32 s53, s24, 13", "s_add_u32 s52, s52, s53", f"s_add_u32 s52, s52, {WS_FD+64-960}",
        f"v_mov_b32 v{T3}, s{TAG}", f"buffer_store_dword v{T3}, v{FA}, s[20:23], s52 offen sc1")
    k.label("c_ns")
    for st in range(1 + PF1, 1 + PF2):
        for y in d_wstage(st): k.e(*y)
    stamp(k, 16)
    k.label("c_pub")
    k.e("s_barrier")
    stamp(k, 17)
    push_flags(k, 58, FA, "0xffff")

X6, X7, X8, X9 = 40960, 81920, 122880, 0
DMI = X6 + 5120
PK = 60
def e_soff(k, d, G, kh, isg):
    k.e(f"s_mul_i32 s{d}, s26, {ER}", f"s_add_u32 s{d}, s{d}, s{isg}", f"s_add_u32 s{d}, s{d}, {8*G}", f"s_cmp_ge_u32 s{d}, 24", f"s_cselect_b32 s61, {24*kh-24}, {24*kh}",
        f"s_add_u32 s{d}, s{d}, s61", f"s_mul_i32 s{d}, s{d}, 5120", f"s_add_u32 s{d}, s{d}, s58")

L4K = 35
def p_dma(lds_s, soff, lds_add):
    return [f"s_add_u32 m0, s{lds_s}, {lds_add}"] + [f"buffer_load_dwordx4 v{L16}, s[20:23], s{soff} offen offset:{1024*i}{SC} lds" for i in range(4)] + \
           [f"s_add_u32 m0, s{lds_s}, {lds_add+4096}", f"buffer_load_dwordx4 v{L4K}, s[20:23], s{soff} offen{SC} lds"]
def p_reads(st, off, dst):
    return [f"ds_read_b128 {v(dst+4*f,4)}, v{LA+st} offset:{off+1024*f}" for f in range(5)]
def p_base(k):
    k.e("s_mul_i32 s58, s26, 245760", f"s_add_u32 s58, s58, {WS_W2}", f"v_add_u32 v{L4K}, 4096, v{L16}")

def d_compute(k):
    AH, AW, AST, RI, AM = 20, 22, 31, 36, 32
    DA, FR = 160, 40
    ONE = 36
    for st in range(1 + PF2, 4):
        for y in d_wstage(st): k.e(*y)
    k.e("s_lshr_b32 s28, s24, 1", "s_and_b32 s29, s24, 1", "s_lshl_b32 s52, s28, 13", f"v_add_u32 v{AH}, s52, v{L16}", f"v_add_u32 v{AH+1}, 81920, v{AH}")
    k.e(f"v_bfe_u32 v{T0}, v{L}, 2, 2", f"v_lshl_add_u32 v{T0}, v{H}, 3, v{T0}", f"v_mul_u32_u24 v{T0}, 192, v{T0}", f"v_and_b32 v{T1}, 3, v{L}", f"v_lshl_add_u32 v{T0}, v{T1}, 3, v{T0}",
        f"v_bfe_u32 v{T1}, v{L}, 4, 1", f"v_mul_u32_u24 v{T2}, 12288, v{T1}", f"v_add_u32 v{T0}, v{T0}, v{T2}", "s_mul_i32 s52, s29, 3")
    for f in range(3):
        k.e(f"v_xor_b32 v{T2}, s52, v{T1}", f"v_lshl_add_u32 v{AW+f}, v{T2}, 5, v{T0}", f"v_add_u32 v{AW+3+f}, 57344, v{AW+f}", f"v_add_u32 v{AW+6+f}, 139264, v{AW+f}", "s_add_u32 s52, s52, 1")
    def buf(g): return FR + 20 * (g % 4 if g < 38 else g - 34)
    def hreads(g):
        st, ks = divmod(g, 4); o = d_h(st); S = o >= 81920
        return [f"ds_read_b128 {v(buf(g)+4*t,4)}, v{AH+S} offset:{o-81920*S+4096*t+1024*ks}" for t in range(2)]
    def wreads(g):
        st, ks = divmod(g, 4); o = d_w(st); S, b = {0: (0, 0), 57344: (1, 0), 81920: (1, 24576), 139264: (2, 0)}[o]
        return [f"ds_read_b64_tr_b16 {v(buf(g)+8+4*f+2*u,2)}, v{AW+3*S+f} offset:{b+3072*ks+768*u}" for f in range(3) for u in range(2)]
    for g in range(4): k.e(*wreads(g))
    XO, CS = FR + 80, FR + 88
    k.e(f"v_lshrrev_b32 v{T0}, 4, v{TK}", f"v_mul_u32_u24 v{T0}, 49152, v{T0}", f"v_and_b32 v{T1}, 15, v{L}", f"v_lshl_add_u32 v{T0}, v{T1}, 4, v{T0}", f"v_lshl_add_u32 v{AST}, v{H}, 8, v{T0}",
        f"s_lshl_b32 s52, s{DRB}, 1", "s_add_u32 s52, s52, s28", f"s_mul_i32 s52, s52, {4*49152}", f"s_lshl_b32 s53, s{DNB}, 1", "s_add_u32 s53, s53, s29", "s_mul_i32 s54, s53, 1536",
        "s_add_u32 s52, s52, s54", f"s_add_u32 s4, s52, {WS_A}", f"s_add_u32 s5, s4, {2*49152}",
        "s_lshl_b32 s52, s28, 9", f"s_add_u32 s52, s52, {DMI}", f"v_lshl_add_u32 v{AM}, v{TK}, 3, s52",
        "s_mul_i32 s52, s29, 768", f"s_add_u32 s52, s52, {DMI+2048}", f"v_lshl_add_u32 v{AM+1}, v{TK}, 3, s52")
    for r in range(20): k.e(f"v_mov_b32 v{XO+r}, 0")
    k.e("s_cmp_lt_u32 s24, 2", f"s_cbranch_scc1 {k.lab('d_ncs')}")
    for r in range(4): k.e(f"v_mov_b32 v{ONE+r}, {ONES}")
    k.e(f"s_mul_i32 s52, s{DNB}, 15360", f"s_mul_i32 s53, s{DROT}, 1536", "s_add_u32 s52, s52, s53", "s_mul_i32 s53, s29, 768", "s_add_u32 s52, s52, s53", f"s_add_u32 s52, s52, {WS_CS}",
        f"v_lshlrev_b32 v{T0}, 3, v{TK}", "s_waitcnt lgkmcnt(0)")
    for g in range(4):
        for f in range(3): k.e(f"v_mfma_f32_32x32x16_bf16 {v(DA+16*f,16)}, {v(ONE,4)}, {v(buf(g)+8+4*f,4)}, {'0' if g == 0 else v(DA+16*f,16)}")
    k.e("s_mov_b32 exec_hi, 0")
    for f in range(3):
        k.e(f"v_mov_b32 v{DA+16*f+1}, s{TAG}", f"buffer_store_dwordx2 {v(DA+16*f,2)}, v{T0}, s[20:23], s52 offen offset:{256*f} sc1")
    k.e("s_mov_b64 exec, -1")
    k.label("d_ncs")
    k.e("s_barrier")
    stamp(k, 18)
    k.e("s_waitcnt vmcnt(0)", "s_barrier")
    stamp(k, 19)
    lg = VM()
    def rd(ops, tag):
        lg.add(tag, len(ops)); return ops
    def lw(tag):
        if tag not in lg.q: return []
        w = lg.wait(tag); n = int(w[w.index("(") + 1:-1])
        return [f"s_waitcnt lgkmcnt({min(n, 15)})"]
    def mf(g, t, f):
        d = DA + 48 * t + 16 * f
        return f"v_mfma_f32_32x32x16_bf16 {v(d,16)}, {v(buf(g)+8+4*f,4)}, {v(buf(g)+4*t,4)}, {'0' if g == 0 else v(d,16)}"
    k.e(*rd(hreads(0), 0)); k.e(*rd(hreads(1), 1))
    for g in range(36):
        if g % 4 == 2:
            k.e("s_waitcnt lgkmcnt(0)")
            if g // 4 < 8: dstamp(k, "D", 10 + g // 4)
            k.e("s_barrier"); lg.q = []
            dstamp(k, "D", 1 + g // 4)
        else: k.e(*lw(g))
        fill = []
        for n in ([g + 2] if g < 34 else [36, 39] if g == 34 else [37, 38]):
            fill += rd(hreads(n) + (wreads(n) if n >= 4 else []), n)
        if g == 30:
            fill.append(["s_mov_b32 exec_hi, 0"] + rd([f"ds_read_b64 {v(XO+4*t,2)}, v{AM} offset:{256*t}" for t in range(2)], 32) + ["s_mov_b64 exec, -1"])
            fill += rd([f"ds_read_b64 {v(CS+4*f,2)}, v{AM+1} offset:{256*f}" for f in range(3)] + [f"ds_read_b64 {v(RI+2*t,2)}, v{AM} offset:{1024+256*t}" for t in range(2)], 32)
        m = [mf(g, t, f) for t in range(2) for f in range(3)]
        if opt("d16") and g > 0:
            m = [f"v_mfma_f32_16x16x32_bf16 {v(DA+48*t+16*f+q,4)}, {v(buf(g)+8+4*f,4)}, {v(buf(g)+4*t,4)}, {v(DA+48*t+16*f+q,4)}" for q in (8*(g&1), 8*(g&1)+4) for t in range(2) for f in range(3)]
        if g in (32, 33):
            t = g - 32
            m = [f"v_mfma_f32_32x32x16_bf16 {v(DA+48*t+16*f,16)}, {v(CS+4*f,4)}, {v(XO+4*t,4)}, {v(DA+48*t+16*f,16)}" for f in range(3)] + m
        k.e(*interleave(m, fill))
    k.e("s_waitcnt lgkmcnt(0)")
    TM = FR + 40
    def epi(t, f, packed):
        d = DA + 48 * t + 16 * f; e = TM + 8 * ((3 * t + f) & 1)
        rn, ir = RI + 2 * t, RI + 2 * t + 1
        s1, s2 = [], []
        if packed:
            s1 += [f"v_pk_mul_f32 {v(e+r,2)}, {v(d+r,2)}, {v(rn,2)} op_sel:[0,0] op_sel_hi:[1,0]" for r in range(0, 8, 2)]
            s1 += [f"v_exp_f32 v{e+r}, v{e+r}" for r in range(8)]
            s1 += [f"v_pk_fma_f32 {v(e+r,2)}, {v(e+r,2)}, {v(rn,2)}, {v(rn,2)} op_sel:[0,1,1] op_sel_hi:[1,1,1]" for r in range(0, 8, 2)]
            s1 += [f"v_rcp_f32 v{e+r}, v{e+r}" for r in range(8)]
            s2 += [f"v_pk_mul_f32 {v(d+r,2)}, {v(d+r,2)}, {v(d+8+r,2)}" for r in range(0, 8, 2)]
            s2 += [f"v_pk_mul_f32 {v(d+r,2)}, {v(d+r,2)}, {v(e+r,2)}" for r in range(0, 8, 2)]
        else:
            s1 += [f"v_mul_f32 v{e+r}, v{d+r}, v{rn}" for r in range(8)]
            s1 += [f"v_exp_f32 v{e+r}, v{e+r}" for r in range(8)]
            s1 += [f"v_fma_f32 v{e+r}, v{e+r}, v{ir}, v{ir}" for r in range(8)]
            s1 += [f"v_rcp_f32 v{e+r}, v{e+r}" for r in range(8)]
            s2 += [f"v_mul_f32 v{d+r}, v{d+r}, v{d+8+r}" for r in range(8)]
            s2 += [f"v_mul_f32 v{d+r}, v{d+r}, v{e+r}" for r in range(8)]
        s2 += [f"v_cvt_pk_bf16_f32 v{d+j}, v{d+2*j}, v{d+2*j+1}" for j in range(4)]
        s2.append(f"buffer_store_dwordx4 {v(d,4)}, v{AST}, s[20:23], s{4+t} offen offset:{512*f} sc1")
        return s1 + s2
    tiles = [(t, f) for t in range(2) for f in range(3)]
    for t, f in tiles: k.e(*[mf(g, t, f) for g in range(36, 40)])
    stamp(k, 20)
    for n, (t, f) in enumerate(tiles):
        k.e(*epi(t, f, True))
        if n == 2: k.e("s_barrier")
    stamp(k, 21)

def d_loader(k):
    D = 40
    vm = VM()
    k.e("s_sub_u32 s31, s24, 4")
    for st in range(3): k.e(*d_wadv())
    k.e(
        f"s_lshl_b32 s52, s{DRB}, 2", "s_add_u32 s52, s52, s31", "s_mul_i32 s52, s52, 40960", f"s_add_u32 s52, s52, {WS_H}", "s_add_u32 s57, s52, 40960",
        f"s_lshl_b32 s53, s{DROT}, 12", "s_add_u32 s56, s52, s53", "s_lshl_b32 s55, s31, 12")
    p_base(k)
    PH, PC = 36, 37
    k.e(f"v_lshrrev_b32 v{T0}, 4, v{L}", f"v_and_b32 v{T1}, 15, v{L}", f"v_lshlrev_b32 v{T1}, 3, v{T1}", f"v_lshl_add_u32 v{PH}, v{T0}, 9, v{T1}", f"v_lshlrev_b32 v{PC}, 3, v{L}",
        f"s_lshl_b32 s52, s{DRB}, 2", "s_add_u32 s52, s52, s31", "s_lshl_b32 s52, s52, 11", f"s_add_u32 s4, s52, {WS_HST}",
        "s_min_u32 s9, s31, 2", "s_lshl_b32 s9, s9, 9", f"s_mul_i32 s52, s{DNB}, 15360", "s_add_u32 s52, s52, s9", f"s_add_u32 s5, s52, {WS_CS}",
        "s_add_u32 s6, s5, 4608", "s_add_u32 s7, s5, 9216", "s_add_u32 s8, s5, 13824")
    k.e("s_cmp_lg_u32 s24, 4", f"s_cbranch_scc1 {k.lab('d_np')}")
    k.e(f"s_lshl_b32 s52, s{DRB}, 4", f"s_add_u32 s52, s52, s{DNB}", "s_lshl_b32 s52, s52, 7", f"s_add_u32 s52, s52, {WS_FD}", f"v_lshlrev_b32 v{T2}, 2, v{L}")
    poll(k, T2, "s52", T0, -1, 0)
    k.label("d_np")
    k.e("s_barrier")
    stamp(k, 18)
    def hst(st):
        o = [[f"buffer_load_dwordx4 v{L16}, s[20:23], s56 offen offset:{1024*i}{SC} lds"] for i in range(4)]
        o[0].insert(0, f"s_add_u32 m0, s55, {d_h(st)}")
        o[3] += ["s_add_u32 s56, s56, 4096", "s_cmp_ge_u32 s56, s57", "s_cselect_b32 s52, 40960, 0", "s_sub_u32 s56, s56, s52"]
        return o
    pieces = [(st, x) for st in range(4) for x in hst(st)] + [(st, x) for st in range(4, 10) for x in d_wstage(st) + hst(st)]
    def issue(n):
        for _ in range(n):
            st, x = pieces.pop(0); k.e(*x); vm.add(st)
    QT = [int(c, 16) for c in ([a[4:] for a in sys.argv if a.startswith('-qt=')] + ['9996999'])[0]]
    CSJ = int(([a[5:] for a in sys.argv if a.startswith('-csj=')] + ['4'])[0])
    assert sum(QT) == 60 and all(sum(QT[:j]) <= 10 * j for j in range(8))
    def cs_loads(r=range(10)):
        for j in r: k.e(f"buffer_load_dwordx2 {v(D+16+2*j,2)}, v{PC}, s[20:23], s{5+j//3} offen offset:{1536*(j%3)} sc1")
    def w2(G, kh, b, base, tag):
        k.e("s_lshl_b32 s53, s31, 1", f"s_add_u32 s53, s53, {b}") ; e_soff(k, 54, G, kh, 53)
        k.e("s_mul_i32 s53, s53, 5120")
        k.e(*p_dma(53, 54, base))
        vm.add(tag, 5)
    issue(16)
    for i in range(4): k.e(f"buffer_load_dwordx2 {v(D+2*i,2)}, v{PH}, s[20:23], s4 offen offset:{128*i}{SC}")
    vm.add("pt", 4)
    k.e(vm.wait(0), "s_barrier")
    stamp(k, 19)
    for j in range(1, 10):
        if j < 9: dstamp(k, "D", 9 + j)
        k.e(vm.wait(j))
        dstamp(k, "D", j)
        k.e("s_barrier")
        if j == CSJ: cs_loads(); vm.add("pt", 10)
        if j <= 7: issue(QT[j - 1])
        if j == 6:
            k.e(vm.wait("pt"), "s_mov_b32 s61, 0")
            k.label("d_chk")
            k.e(f"v_xor_b32 v{T0}, s{TAG}, v{D+17}", f"v_xor_b32 v{T1}, s{TAG}, v{D+19}", f"v_or_b32 v{T0}, v{T0}, v{T1}")
            for i in range(2, 10, 2):
                k.e(f"v_xor_b32 v{T1}, s{TAG}, v{D+17+2*i}", f"v_xor_b32 v{T2}, s{TAG}, v{D+19+2*i}", f"v_or3_b32 v{T0}, v{T0}, v{T1}, v{T2}")
            k.e(f"v_cmp_ne_u32 vcc, 0, v{T0}", "s_add_u32 s61, s61, 1", f"s_cbranch_vccz {k.lab('d_ok')}", f"s_cmp_gt_u32 s61, {SPIN_MAX}", f"s_cbranch_scc1 {k.lab('d_ok')}")
            cs_loads()
            k.e("s_waitcnt vmcnt(0)", f"s_branch {k.lab('d_chk')}")
            k.label("d_ok")
            for i in range(1, 4): k.e(f"v_add_f32 v{D}, v{D}, v{D+2*i}", f"v_add_f32 v{D+1}, v{D+1}, v{D+2*i+1}")
            for i in range(1, 10): k.e(f"v_add_f32 v{D+16}, v{D+16}, v{D+16+2*i}")
            for x, t in ((D, T2), (D + 1, T3)):
                k.e(f"v_mov_b32 v{t}, v{x}", f"v_permlane16_swap_b32 v{t}, v{x}", f"v_add_f32 v{x}, v{t}, v{x}")
            ln_stats(k, D, D + 1, T0, T1, D + 4, D + 6, SD=D + 7)
            split3(k, D + 16, D + 8, D + 9, T0, T1)
            k.e(f"v_cvt_pk_bf16_f32 v{D+4}, -v{D+4}, -v{D+4}", f"v_and_b32 v{D+5}, 0xffff, v{D+4}",
                f"v_mul_f32 v{D+6}, {f32(-1.4426950408889634)}, v{D+6}", f"v_mul_f32 v{D+7}, v{D+7}, v{D+7}",
                f"v_and_b32 v{T0}, 15, v{L}", f"v_lshl_add_u32 v{T0}, v{H}, 4, v{T0}", "s_lshl_b32 s52, s31, 8", f"s_add_u32 s52, s52, {DMI}", f"v_lshl_add_u32 v{T0}, v{T0}, 3, s52",
                f"s_add_u32 s52, s9, {DMI+2048}", f"v_add_u32 v{T1}, s52, v{PC}")
        if j == 7:
            k.e(f"ds_write_b64 v{T0}, {v(D+4,2)}", f"ds_write_b64 v{T0}, {v(D+6,2)} offset:1024", f"ds_write_b64 v{T1}, {v(D+8,2)}")
            w2(1, 1, 0, X6, "x6")
            k.e("s_waitcnt lgkmcnt(0)")
        if j == 8:
            w2(0, 0, 0, X7, "x7"); w2(0, 0, 1, X7, "x7")
        if j == 9:
            w2(0, 1, 0, X8, "x8"); w2(0, 1, 1, X8, "x8"); w2(1, 1, 1, X6, "x6b")
    stamp(k, 20)
    k.e(vm.wait("x8"), "s_barrier")
    w2(1, 0, 0, X9, "x9"); w2(1, 0, 1, X9, "x9")
    stamp(k, 21)

def phase_d(k):
    k.e("s_cmp_lt_u32 s24, 4", f"s_cbranch_scc1 {k.lab('d_cmp')}")
    d_loader(k)
    k.e(f"s_branch {k.lab('d_done')}")
    k.label("d_cmp")
    d_compute(k)
    p_base(k)
    k.label("d_done")
    k.e("s_and_b32 s28, s24, 3", "s_lshr_b32 s29, s24, 2", "s_mul_i32 s53, s29, 40960", f"v_add_u32 v{LA}, s53, v{L16}", f"v_add_u32 v{LA+1}, 81920, v{LA}")
    for i in range(8): k.e(*p_reads(1, 5120 * i, WR + 20 * i))
    k.e(f"s_lshl_b32 s52, s{DRB}, 11", f"s_lshl_b32 s53, s{DNB}, 2", "s_add_u32 s52, s52, s53", f"s_add_u32 s52, s52, {WS_FE}", f"v_lshlrev_b32 v{T0}, 7, v{L}")
    e_soff(k, 54, 2, 0, 24); k.e(f"s_add_u32 s55, s54, {24*5120}", "s_mul_i32 s53, s24, 5120")
    k.e("s_waitcnt vmcnt(0) lgkmcnt(0)", "s_barrier")
    stamp(k, 22)
    push_flags(k, 52, T0, "0xffff")

def phase_e(k):
    k.e(*p_dma(53, 54, X7)); k.e(*p_dma(53, 55, X8))
    ce_setup2(k, 0)
    swaps(k, HRES)
    unpack(k, HRES)
    k.e("s_mul_i32 s52, s27, 49152", f"s_add_u32 s52, s52, {WS_A}", "s_mul_i32 s54, s29, 24576", "s_add_u32 s54, s54, s52",
        "s_add_u32 s5, s54, 24576", f"s_mul_i32 s4, s26, {1024*ER}", "s_add_u32 s4, s4, s54", "s_mov_b32 s6, s54")
    srd(k, 12, KOUT, X_BYTES)
    k.e("s_cmp_lg_u32 s24, 1", f"s_cbranch_scc1 {k.lab('e_np')}")
    k.e("s_lshl_b32 s52, s25, 3", "s_add_u32 s52, s52, s26", "s_lshl_b32 s52, s52, 7", f"s_add_u32 s52, s52, {WS_FE}", f"v_lshlrev_b32 v{T2}, 2, v{L}")
    poll(k, T2, "s52", T0, 0xffff, 0)
    k.label("e_np")
    k.e("s_xor_b32 s52, s24, 2", "s_or_b32 s52, s52, s2", "s_cmp_lg_u32 s52, 0", f"s_cbranch_scc1 {k.lab('e_ne')}")
    k.e(f"v_lshrrev_b32 v{T0}, 3, v{L}", f"v_and_b32 v{T1}, 7, v{L}", f"v_lshlrev_b32 v{T1}, 4, v{T1}", f"v_lshl_add_u32 v{T2}, v{T0}, 12, v{T1}", f"s_mov_b32 s52, {WS_FC}")
    poll(k, T2, "s52", ACT, -1, -1, x4=True)
    k.e(f"v_mov_b32 v{T0}, 0", f"v_mov_b32 v{T1}, s{TAG}", f"s_mov_b32 s52, {WS_EP}", "s_mov_b64 exec, 1", f"buffer_store_dword v{T1}, v{T0}, s[20:23], s52 offen sc1", "s_mov_b64 exec, -1")
    k.label("e_ne")
    k.e("s_waitcnt vmcnt(0)", "s_barrier")
    stamp(k, 23)
    def ald(n): return [f"buffer_load_dwordx4 {v(ACT+4*(n%10),4)}, v{L16}, s[20:23], s4 offen{SC}", "s_add_u32 s4, s4, 1024", "s_cmp_ge_u32 s4, s5", "s_cselect_b32 s4, s6, s4"]
    ED = int(([a[4:] for a in sys.argv if a.startswith('-ed=')] + ['6'])[0])
    for n in range(ED): k.e(*ald(n))
    for n in range(24):
        issued = min(24, n + ED)
        w = f"s_waitcnt vmcnt({issued-1-n})"
        if 8 <= n: w += f" lgkmcnt({10 if n <= 17 else 0})"
        k.e(w)
        if n == 0: stamp(k, 24)
        fill = []
        if n + ED < 24: fill.append(ald(n + ED))
        if 1 <= n <= 16 and not opt('e_nolds'): fill += p_reads(0 if n <= 8 else 1, 5120 * ((n - 1) % 8), WR + 20 * ((n - 1) % 8))
        k.e(*interleave(ce_mfma(WR + 20 * (n % 8), ACT + 4 * (n % 10))[:(1 if opt('e_nomf') else 5)], fill))
        if n == 24 - ED: k.e("s_barrier")
    stamp(k, 25)
    ce_epilogue(k, HRES, "fin", "e")
    swaps(k, HRES)
    OS = ([" " + a[4:].replace("+", " ") for a in sys.argv if a.startswith('-os=')] + [''])[0]
    k.e(f"buffer_store_dwordx2 {v(HRES+8,2)}, v{NAT+1}, s[12:15], s30 offen offset:128{OS}",
        f"buffer_store_dwordx4 {v(HRES,4)}, v{NAT}, s[12:15], s30 offen{OS}", f"buffer_store_dwordx4 {v(HRES+4,4)}, v{NAT}, s[12:15], s30 offen offset:64{OS}")

def rest(k):
    phase_b(k)
    if G.UPTO == "B": return
    phase_c(k)
    if G.UPTO == "C": return
    phase_d(k)
    if G.UPTO == "D": return
    phase_e(k)
```

```python
import sys, struct
from asmlib import *
from qktab import tables

NAME = "sequential_preLN__sliding_block__glu_gated_swiglu__prompt"
WS_QK = 0
WS_V = 5242880
WS_O = 7864320
WS_H = 10485760
WS_A = 13107200
WS_W2 = 19398656
WS_HST = WS_W2 + 1966080
WS_CS = WS_HST + 262144
WS_XST = WS_CS + 245760
WS_WST = WS_XST + 327680
WS_FB = WS_WST + 153600
WS_FC = WS_FB + 65536
WS_FD = WS_FC + 32768
WS_FE = WS_FD + 32768
WS_EP = WS_FE + 32768
WS_END = WS_EP + 128
X_BYTES = 2048 * 1280
SPIN_MAX = 40000 if not any(a in sys.argv for a in ('-xrot', '-norot_a')) else 20

def f32(x): return "0x%08x" % struct.unpack("<I", struct.pack("<f", x))[0]
ONES = "0x3f803f80"
NEGBIG = f32(-1e30)
CSC = (20 ** -0.5) * 1.4426950408889634

STAMP = "-stamp" in sys.argv
UPTO = ([a[6:] for a in sys.argv if a.startswith("-upto=")] + ["E"])[0]
WS_STAMP = 64 << 20
WS_SRD = (1 << 28) if STAMP else WS_END
def opt(name): return ("-" + name) in sys.argv

L, L16, H, TK, T0, T1, T2, T3 = 1, 2, 3, 4, 5, 6, 7, 8
HRES = 10
KX, KWQKV, KWO, KW1, KW3, KW2, KOUT, KWS = 32, 34, 36, 40, 42, 44, 46, 50
TAG = 3

class VM:
    def __init__(s): s.q = []
    def add(s, tag, n=1): s.q += [tag] * n
    def wait(s, tag):
        if tag not in s.q: return "s_nop 0"
        idx = max(i for i, t in enumerate(s.q) if t == tag)
        n = len(s.q) - 1 - idx
        s.q = s.q[idx + 1:]
        assert n <= 63
        return f"s_waitcnt vmcnt({n})"

NST = [0]
DST = ([a[5:] for a in sys.argv if a.startswith("-dst=")] + [""])[0]
def dstamp(k, ph, i):
    if DST == ph: stamp(k, i, True)
ECHO = [tuple(map(int, a[6:].split(":"))) for a in sys.argv if a.startswith("-echo=")]
def stamp(k, i, force=False):
    if ECHO:
        if i in ECHO[0] or i == 29: k.e("s_memrealtime s[62:63]", "s_waitcnt lgkmcnt(0)", f"s_mov_b32 s{64+i}, s62")
        return
    if DST and 1 <= i <= 17 and not force: return
    if STAMP:
        k.e("s_memrealtime s[62:63]", "s_waitcnt lgkmcnt(0)", f"s_mov_b32 s{64+i}, s62")
def stamp_out(k):
    if ECHO:
        i, j = ECHO[0][:2]; wv = ECHO[0][2] if len(ECHO[0]) > 2 else 808
        k.e("s_lshl_b32 s62, s2, 3", "s_add_u32 s62, s62, s24", f"s_cmp_lg_u32 s62, {wv}", f"s_cbranch_scc1 {k.lab('end')}")
        k.e("s_waitcnt vmcnt(0)")
        stamp(k, 29)
        k.e(f"s_sub_u32 s60, s{64+j}, s{64+i}", "s_min_u32 s60, s60, 10000", "s_lshl_b32 s60, s60, 2")
        k.label("echo")
        k.e("s_memrealtime s[62:63]", "s_waitcnt lgkmcnt(0)", "s_sub_u32 s62, s62, s93", "s_cmp_lt_u32 s62, s60", f"s_cbranch_scc1 {k.lab('echo')}")
        return
    if not STAMP: return
    k.e("s_waitcnt vmcnt(0)")
    stamp(k, 29)
    k.e("s_memtime s[62:63]", "s_waitcnt lgkmcnt(0)", "s_mov_b32 s95, s62")
    k.e("s_mov_b64 exec, 1", "s_lshl_b32 s62, s2, 3", "s_add_u32 s62, s62, s24", "s_lshl_b32 s62, s62, 7", f"s_add_u32 s62, s62, {WS_STAMP}")
    k.e("v_mov_b32 v0, 0")
    for i in range(32):
        k.e(f"v_mov_b32 v1, s{64+i}", f"buffer_store_dword v1, v0, s[20:23], s62 offen offset:{4*i}")
    if opt("dbg"):
        k.e("s_lshl_b32 s62, s2, 3", "s_add_u32 s62, s62, s24", "s_cmp_lg_u32 s62, 800", f"s_cbranch_scc1 {k.lab('end')}")
        srd(k, 16, 48, 256)
        for n, i in enumerate((1, 2, 3, 6, 8, 9, 12, 13, 17, 18, 19, 20, 22, 23, 25, 29)):
            k.e(f"s_sub_u32 s62, s{64+i}, s64", "v_mov_b32 v1, s62", f"buffer_store_dword v1, v0, s[16:19], 0 offen offset:{4*n}")

def srd(k, d, base, size):
    k.e(f"s_mov_b32 s{d}, s{base}", f"s_mov_b32 s{d+1}, s{base+1}", f"s_mov_b32 s{d+2}, {size}", f"s_mov_b32 s{d+3}, 0x20000")

def ln_stats(k, sx, sxx, t0, t1, Mout, Rout, SD=None):
    k.e(f"v_mul_f32 v{sx}, {f32(1/640)}, v{sx}")
    k.e(f"v_mul_f32 v{sxx}, {f32(1/640)}, v{sxx}")
    k.e(f"v_fma_f32 v{t0}, -v{sx}, v{sx}, v{sxx}")
    k.e(f"v_max_f32 v{t0}, 0, v{t0}")
    k.e(f"v_cvt_pk_bf16_f32 v{t1}, v{sx}, v{t0}")
    k.e(f"v_lshlrev_b32 v{Mout}, 16, v{t1}")
    k.e(f"v_and_b32 v{t0}, 0xffff0000, v{t1}")
    k.e(f"v_add_f32 v{t0}, {f32(1e-5)}, v{t0}")
    k.e(f"v_cvt_pk_bf16_f32 v{t0}, v{t0}, v{t0}")
    k.e(f"v_lshlrev_b32 v{t0}, 16, v{t0}")
    k.e(f"v_sqrt_f32 v{t0}, v{t0}")
    k.e(f"v_cvt_pk_bf16_f32 v{t0}, v{t0}, v{t0}")
    k.e(f"v_lshlrev_b32 v{t0}, 16, v{t0}")
    if SD is not None: k.e(f"v_mov_b32 v{SD}, v{t0}")
    k.e(f"v_rcp_f32 v{Rout}, v{t0}")

def half_sum(k, x, t):
    k.e(f"v_mov_b32 v{t}, v{x}", f"v_permlane32_swap_b32 v{t}, v{x}", f"v_add_f32 v{x}, v{t}, v{x}")

def split3(k, cs, d0, d1, t0, t1, neg=False):
    n = "-" if neg else ""
    k.e(f"v_cvt_pk_bf16_f32 v{t0}, v{cs}, v{cs}")
    k.e(f"v_lshlrev_b32 v{t0}, 16, v{t0}")
    k.e(f"v_sub_f32 v{t0}, v{cs}, v{t0}")
    k.e(f"v_cvt_pk_bf16_f32 v{t1}, v{t0}, v{t0}")
    k.e(f"v_cvt_pk_bf16_f32 v{d0}, {n}v{cs}, {n}v{t0}")
    k.e(f"v_lshlrev_b32 v{t1}, 16, v{t1}")
    k.e(f"v_sub_f32 v{t0}, v{t0}, v{t1}")
    k.e(f"v_cvt_pk_bf16_f32 v{d1}, {n}v{t0}, 0")

uid = [0]
def poll(k, vaddr, soff, vd, mask_lo, mask_hi, x4=False, preloaded=False):
    uid[0] += 1
    lp, dn = f"pl{uid[0]}", f"pd{uid[0]}"
    k.e(f"s_mov_b32 exec_lo, {mask_lo}", f"s_mov_b32 exec_hi, {mask_hi}", "s_mov_b32 s61, 0")
    ld = f"buffer_load_dwordx4 v[{vd}:{vd+3}], v{vaddr}, s[20:23], {soff} offen sc1" if x4 else f"buffer_load_dword v{vd}, v{vaddr}, s[20:23], {soff} offen sc1"
    def chk():
        if x4:
            k.e(f"v_xor_b32 v{vd}, s{TAG}, v{vd}", f"v_xor_b32 v{vd+1}, s{TAG}, v{vd+1}", f"v_xor_b32 v{vd+2}, s{TAG}, v{vd+2}", f"v_xor_b32 v{vd+3}, s{TAG}, v{vd+3}",
                f"v_or3_b32 v{vd}, v{vd}, v{vd+1}, v{vd+2}", f"v_or_b32 v{vd}, v{vd}, v{vd+3}", f"v_cmp_ne_u32 vcc, 0, v{vd}")
        else:
            k.e(f"v_cmp_ne_u32 vcc, s{TAG}, v{vd}")
    if preloaded:
        chk()
        k.e("s_nop 1", f"s_cbranch_vccz {k.lab(dn)}")
    k.label(lp)
    k.e(ld, "s_waitcnt vmcnt(0)")
    chk()
    k.e("s_add_u32 s61, s61, 1", f"s_cbranch_vccz {k.lab(dn)}", f"s_cmp_lt_u32 s61, {SPIN_MAX}", f"s_cbranch_scc1 {k.lab(lp)}")
    k.label(dn)
    k.e("s_mov_b64 exec, -1")

AB0 = 98304
MISC = 106496

def a_map(k):
    k.e("s_and_b32 s52, s2, 7", "s_lshr_b32 s53, s2, 3",
        "s_and_b32 s54, s52, 1", "s_mul_i32 s54, s54, 30", "s_add_u32 s54, s54, s53",
        "s_lshr_b32 s25, s54, 2",
        "s_and_b32 s54, s54, 3", "s_lshr_b32 s52, s52, 1", "s_lshl_b32 s55, s52, 2", "s_add_u32 s26, s55, s54",
        "s_mul_i32 s54, s54, 5", "s_add_u32 s54, s54, 1", "s_lshr_b32 s54, s54, 1", "s_add_u32 s54, s54, s52",
        "s_add_u32 s27, s54, s25",
        "s_cmp_ge_u32 s27, 20", "s_cselect_b32 s54, 20, 0", "s_sub_u32 s27, s27, s54",
        "s_cmp_ge_u32 s27, 10", "s_cselect_b32 s54, 10, 0", "s_sub_u32 s27, s27, s54")
    if opt("norot_a"): k.e("s_mov_b32 s27, 0")
    if opt("xrot"):
        k.e("s_mul_i32 s54, s52, 5", "s_add_u32 s54, s54, 1", "s_lshr_b32 s54, s54, 1", "s_and_b32 s27, s2, 1", "s_mul_i32 s27, s27, 5", "s_add_u32 s27, s27, s54",
            "s_cmp_ge_u32 s27, 10", "s_cselect_b32 s54, 10, 0", "s_sub_u32 s27, s27, s54")

def a_table(k, wj_sgpr, pref):
    T = tables()
    k.e("s_cmp_ge_u32 s25, 5", "s_cselect_b32 s52, 5, 0", "s_sub_u32 s52, s25, s52", "s_min_u32 s52, s52, 5",
        "s_lshl_b32 s52, s52, 1", f"s_add_u32 s52, s52, s{wj_sgpr}")
    for i in range(12):
        p, wj = divmod(i, 2)
        if i < 11: k.e(f"s_cmp_lg_u32 s52, {i}", f"s_cbranch_scc1 {k.lab(f'{pref}{i+1}')}")
        for f in range(2):
            ch, R = T[p][2 * wj + f]
            b = [8 * c for c in ch]
            lo = b[0] | b[1] << 8 | b[2] << 16 | b[3] << 24
            hi = b[4] | b[5] << 8 | b[6] << 16 | b[7] << 24
            rr = R[0] | R[1] << 8 | R[2] << 16 | R[3] << 24
            k.e(f"s_mov_b32 s{54+3*f}, {lo:#x}", f"s_mov_b32 s{55+3*f}, {hi:#x}", f"s_mov_b32 s{56+3*f}, {rr:#x}")
        if i < 11:
            k.e(f"s_branch {k.lab(pref + 'd')}")
            k.label(f"{pref}{i+1}")
    k.label(pref + "d")

def a_waddr(k, d, lo, hi):
    k.e(f"v_bfe_u32 v{T0}, v{L}, 2, 2",
        f"v_bfe_u32 v{T1}, v{L}, 4, 1", f"v_cmp_eq_u32 vcc, 1, v{T1}",
        f"v_mov_b32 v{T1}, s{lo}", f"v_mov_b32 v{T2}, s{hi}", f"v_cndmask_b32 v{T1}, v{T1}, v{T2}, vcc",
        f"v_and_b32 v{T2}, 3, v{L}", f"v_lshlrev_b32 v{T2}, 3, v{T2}", f"v_bfe_u32 v{T1}, v{T1}, v{T2}, 8",
        f"v_lshlrev_b32 v{T2}, 6, v{T0}", f"v_xor_b32 v{T1}, v{T1}, v{T2}",
        f"v_lshl_add_u32 v{T0}, v{H}, 3, v{T0}", f"v_lshl_add_u32 v{d}, v{T0}, 8, v{T1}", f"v_add_u32 v{d}, {AB0}, v{d}")

def a_xaddr(k, d, rowbase_sgpr):
    k.e(f"v_lshlrev_b32 v{T0}, 7, v{TK}", f"v_add_u32 v{T0}, s{rowbase_sgpr}, v{T0}",
        f"v_bfe_u32 v{T1}, v{TK}, 1, 3", f"v_xor_b32 v{T1}, v{T1}, v{H}")
    for ks in range(4):
        k.e(f"v_xor_b32 v{T2}, {2*ks}, v{T1}", f"v_lshl_add_u32 v{d+ks}, v{T2}, 4, v{T0}")

APACE = int(([a[7:] for a in sys.argv if a.startswith("-apace=")] + ["-1"])[0])
APC = list(map(int, ([a[5:] for a in sys.argv if a.startswith("-apc=")] + ["12,12"])[0].split(",")))
def nops(n): return "".join(f"\ns_nop {min(16, n - i) - 1}" for i in range(0, n, 16))
RAMP = list(map(int, ([a[6:] for a in sys.argv if a.startswith("-ramp=")] + ["0,0"])[0].split(",")))
def a_compute(k):
    AX, AW = 16, 24
    AST = 28
    ACC = 64; FR = 128; EX = 176
    k.e("s_lshr_b32 s28, s24, 1", "s_and_b32 s29, s24, 1")
    a_table(k, 29, "ct")
    k.e("s_lshl_b32 s52, s28, 13", f"s_add_u32 s52, s52, {AB0}")
    a_xaddr(k, AX, 52)
    for i in range(4): k.e(f"v_subrev_u32 v{AX+4+i}, 65536, v{AX+i}")
    a_waddr(k, AW, 54, 55); a_waddr(k, AW + 1, 57, 58)
    for i in range(2): k.e(f"v_subrev_u32 v{AW+2+i}, 65536, v{AW+i}")
    k.e("s_lshl_b32 s52, s26, 2", "s_lshl_b32 s53, s28, 1", "s_add_u32 s52, s52, s53")

    PW = int(([a[4:] for a in sys.argv if a.startswith("-pw=")] + ["0"])[0])
    PWS = int(([a[5:] for a in sys.argv if a.startswith("-pws=")] + ["1"])[0])
    k.e("s_lshl_b32 s60, s25, 2", "s_add_u32 s60, s60, s24", "s_mul_i32 s60, s60, 3", "s_min_u32 s60, s60, 157", "s_lshl_b32 s60, s60, 10",
        "s_mul_i32 s53, s26, 163840", "s_add_u32 s60, s60, s53", f"s_add_u32 s60, s60, {WS_O}")
    def reads(g):
        st, ks = divmod(g, 4)
        sl = st % 4; S = sl // 2; ob = (sl % 2) * 32768
        b = FR + 16 * (g % 3)
        o = []
        for t in range(2):
            o.append(f"ds_read_b128 v[{b+4*t}:{b+4*t+3}], v{AX+4*S+ks} offset:{ob+4096*t}")
        for f in range(2):
            for u in range(2):
                o.append(f"ds_read_b64_tr_b16 v[{b+8+4*f+2*u}:{b+8+4*f+2*u+1}], v{AW+2*S+f} offset:{ob+16384+ks*4096+u*1024}")
        return o

    def mainloop(vmode):
        if PW >= 40:
            for n in range(8): k.e(f"buffer_store_dwordx4 v[16:19], v{AST+(n&3)}, s[20:23], s{30+(n>>2)} offen sc1")
        if RAMP[0]:
            for r in range(16): k.e(f"v_mul_u32_u24 v{FR+r}, {0x9e3779 + 0x1234*r}, v0", f"v_and_b32 v{FR+r}, 0xbfffbfff, v{FR+r}")
            k.e(f"s_mov_b32 s53, {RAMP[0]}")
            k.label(f"ramp{int(vmode)}")
            for i in range(4): k.e(f"v_mfma_f32_32x32x16_bf16 {v(ACC+16*i,16)}, {v(FR+4*i,4)}, {v(FR+4*((i+1)%4),4)}, 0" + nops(RAMP[1]))
            k.e("s_sub_u32 s53, s53, 1", "s_cmp_lg_u32 s53, 0", f"s_cbranch_scc1 {k.lab(f'ramp{int(vmode)}')}")
        stamp(k, 1)
        k.e("s_barrier")
        stamp(k, 2)
        k.e(*reads(0)); k.e(*reads(1))
        for g in range(40):
            b = FR + 16 * (g % 3)
            fill = []
            if g % 4 == 2 and g // 4 + 1 <= 9:
                k.e("s_waitcnt lgkmcnt(0)", "s_barrier")
            else:
                k.e(f"s_waitcnt lgkmcnt({6 if g + 1 < 40 else 0})")
            if g + 2 < 40: fill += reads(g + 2)
            if PW and g >= PW and (g - PW) % PWS == 0 and (g - PW) // PWS < 8:
                n = (g - PW) // PWS
                if opt("pr"): fill.append(f"buffer_load_dwordx4 v[200:203], v{AST+(n&3)}, s[20:23], s{30+(n>>2)} offen sc1 ; dummy")
                else: fill.append(f"buffer_store_dwordx4 v[16:19], v{AST+(n&3)}, s[20:23], s{30+(n>>2)} offen sc1")
            if PW and opt("pwo") and g >= PW and (g - PW) % PWS == 0 and 8 <= (g - PW) // PWS < 11:
                fill.append(f"buffer_store_dwordx4 v[16:19], v{L16}, s[20:23], s60 offen offset:{1024*((g-PW)//PWS-8)} sc1")
            if PRE and PREG >= 0 and g >= PREG and (g - PREG) % PWS == 0 and (g - PREG) // PWS < PRE: fill.append(prefill_ops()[(g - PREG) // PWS])
            mf = []
            for t in range(2):
                for f in range(2):
                    d = ACC + 32 * t + 16 * f
                    xa, wa = v(b + 4 * t, 4), v(b + 8 + 4 * f, 4)
                    A, B = (xa, wa) if vmode else (wa, xa)
                    c = "0" if g == 0 else v(d, 16)
                    if opt("a_nomf") and 0 < g < 38: mf.append("s_nop 7"); continue
                    if opt("a_half") and 0 < g < 38 and f == 1: mf.append("s_nop 7"); continue
                    if opt("a_early") and 20 <= g < 38: mf.append("s_nop 7"); continue
                    if opt("a_late") and 0 < g < 20: mf.append("s_nop 7"); continue
                    mf.append(f"v_mfma_f32_32x32x16_bf16 {v(d,16)}, {A}, {B}, {c}" + nops(APC[g // 4] if g // 4 < len(APC) else 0))
            k.e(*interleave(mf, fill))
        stamp(k, 3)
        XO, WO, R = EX, EX + 8, EX + 16
        RD = FR
        k.e("s_lshl_b32 s53, s28, 8", f"s_add_u32 s53, s53, {MISC}", f"v_lshl_add_u32 v{T0}, v{TK}, 2, s53",
            "s_lshl_b32 s54, s29, 9", f"s_add_u32 s54, s54, {MISC+1024}", f"v_lshl_add_u32 v{T1}, v{TK}, 3, s54",
            f"v_lshl_add_u32 v{T2}, v{H}, 4, s53", f"v_mov_b32 v{T3}, {MISC}")
        for r in (XO+2, XO+3, XO+6, XO+7, WO+2, WO+3, WO+6, WO+7): k.e(f"v_mov_b32 v{r}, 0")
        k.e(f"v_cmp_gt_u32 vcc, 32, v{L}")
        if PW: k.e("s_waitcnt vmcnt(0)")
        k.e("s_barrier")
        stamp(k, 4)
        for t in range(2): k.e(f"ds_read_b32 v{XO+4*t}, v{T0} offset:{128*t}")
        for f in range(2): k.e(f"ds_read_b64 v[{WO+4*f}:{WO+4*f+1}], v{T1} offset:{256*f}")
        k.e(f"ds_read_b32 v{R+2}, v{T3} offset:2048")
        if vmode:
            for t in range(2):
                for q in range(4):
                    k.e(f"ds_read_b128 v[{RD+16*t+4*q}:{RD+16*t+4*q+3}], v{T2} offset:{512+128*t+32*q}")
        else:
            for t in range(2): k.e(f"ds_read_b32 v{R+t}, v{T0} offset:{512+128*t}")
        k.e(f"s_waitcnt lgkmcnt({8 if vmode else 2})")
        for t in range(2):
            k.e(f"v_cndmask_b32 v{XO+4*t}, 0, v{XO+4*t}, vcc", f"v_and_b32 v{XO+4*t+1}, 0xffff, v{XO+4*t}")
        k.e(f"v_readfirstlane_b32 s{TAG}, v{R+2}")
        for t in range(2):
            for f in range(2):
                d = ACC + 32 * t + 16 * f
                xa, wa = v(XO + 4 * t, 4), v(WO + 4 * f, 4)
                A, B = (xa, wa) if vmode else (wa, xa)
                k.e(f"v_mfma_f32_32x32x16_bf16 {v(d,16)}, {A}, {B}, {v(d,16)}")
        k.e("s_waitcnt lgkmcnt(0)")
        for t in range(2):
            for f in range(2):
                d = ACC + 32 * t + 16 * f
                for r in range(0, 16, 2):
                    if vmode: k.e(f"v_pk_mul_f32 v[{d+r}:{d+r+1}], v[{d+r}:{d+r+1}], v[{RD+16*t+r}:{RD+16*t+r+1}]")
                    else: k.e(f"v_pk_mul_f32 v[{d+r}:{d+r+1}], v[{d+r}:{d+r+1}], v[{R}:{R+1}] op_sel:[0,{t}] op_sel_hi:[1,{t}]")
                for j in range(8):
                    k.e(f"v_cvt_pk_bf16_f32 v{d+j}, v{d+2*j}, v{d+2*j+1}")
                for u in range(2):
                    if APACE >= 0: k.e(f"s_waitcnt vmcnt({APACE})")
                    k.e(f"buffer_store_dwordx4 v[{d+4*u}:{d+4*u+3}], v{AST+2*f+u}, s[20:23], s{30+t} offen sc1")
        k.e(f"s_branch {k.lab('a_pub')}")

    k.e("s_cmp_ge_u32 s25, 10", f"s_cbranch_scc1 {k.lab('vpath')}")
    k.e("s_cmp_ge_u32 s25, 5", f"s_cselect_b32 s53, {80*32768}, 0", "s_lshl_b32 s30, s52, 9", "s_add_u32 s30, s30, s53", "s_add_u32 s31, s30, 512")
    k.e(f"v_lshlrev_b32 v{T0}, 3, v{H}", f"v_lshlrev_b32 v{T1}, 4, v{TK}")
    for f in range(2):
        for u in range(2):
            k.e(f"v_add_u32 v{T2}, {16*u}, v{T0}", f"v_bfe_u32 v{T2}, s{56+3*f}, v{T2}, 8", f"v_lshl_add_u32 v{AST+2*f+u}, v{T2}, 15, v{T1}")
    mainloop(False)
    k.label("vpath")
    k.e("s_mul_i32 s30, s52, 40960", f"s_add_u32 s30, s30, {WS_V}", "s_add_u32 s31, s30, 40960",
        "s_sub_u32 s53, s25, 10", "s_lshl_b32 s53, s53, 11", "s_lshl_b32 s54, s29, 10", "s_add_u32 s53, s53, s54",
        f"v_mul_u32_u24 v{T0}, 10240, v{H}", f"v_lshl_add_u32 v{T0}, v{TK}, 4, v{T0}", f"v_add_u32 v{AST}, s53, v{T0}",
        f"v_add_u32 v{AST+1}, 20480, v{AST}", f"v_add_u32 v{AST+2}, 512, v{AST}", f"v_add_u32 v{AST+3}, {20480+512}, v{AST}")
    mainloop(True)
    k.label("a_pub")
    stamp(k, 5)
    k.e("s_lshr_b32 s52, s26, 1", "s_lshl_b32 s53, s52, 13", "s_and_b32 s54, s26, 1", "s_add_u32 s54, s54, 2", "s_lshl_b32 s54, s54, 4",
        "s_add_u32 s54, s54, s25", "s_lshl_b32 s54, s54, 2", "s_add_u32 s53, s53, s54", f"s_add_u32 s53, s53, {WS_FB}",
        f"v_mul_u32_u24 v{T0}, {8192-128}, v{H}", f"v_lshl_add_u32 v{T0}, v{TK}, 8, v{T0}",
        f"v_mov_b32 v{T2}, s{TAG}", "s_cmp_eq_u32 s52, 7", "s_cselect_b32 s55, 0, -1", "s_cmp_lt_u32 s25, 5", "s_cselect_b32 s55, 0, s55",
        "s_cmp_ge_u32 s25, 5", "s_cselect_b32 s52, 5, 0", "s_sub_u32 s54, s25, s52", "s_cmp_ge_u32 s25, 10", "s_cselect_b32 s52, 5, 0", "s_sub_u32 s54, s54, s52",
        f"v_lshrrev_b32 v{T1}, 1, v{TK}", f"v_mul_u32_u24 v{T1}, 5, v{T1}", f"v_add_u32 v{T3}, 4, v{T1}", f"v_lshrrev_b32 v{T1}, 4, v{T1}", f"v_lshrrev_b32 v{T3}, 4, v{T3}",
        f"v_cmp_eq_u32 vcc, s54, v{T1}", f"v_cmp_eq_u32 s[56:57], s54, v{T3}", "s_or_b64 s[56:57], s[56:57], vcc", "s_and_b32 s57, s57, s55")
    k.e("s_waitcnt vmcnt(0)")
    stamp(k, 6)
    k.e("s_barrier", "s_cmp_lg_u32 s24, 0", f"s_cbranch_scc1 {k.lab('a_done')}",
        "s_mov_b64 exec, s[56:57]", f"buffer_store_dword v{T2}, v{T0}, s[20:23], s53 offen sc1", "s_mov_b64 exec, -1")

def code_touch(k, n, nthr, vi=0):
    uid[0] += 1
    k.e("s_getpc_b64 s[52:53]")
    k.label(f"pc{uid[0]}")
    k.e(f"s_sub_u32 s52, s52, {k.lab(f'pc{uid[0]}')}-{k.name}", "s_subb_u32 s53, s53, 0", f"v_lshlrev_b32 v{T0}, 6, v{vi}")
    for i in range(n):
        k.e(f"v_min_u32 v{T1}, {k.lab('end')}-{k.name}, v{T0}", f"global_load_dword v9, v{T1}, s[52:53] ; dummy")
        if i < n - 1: k.e(f"v_add_u32 v{T0}, {64*nthr}, v{T0}")
def spare(k):
    TG = 30
    tag_load(k, TG)
    o_mark(k, False)
    TL = int(([a[5:] for a in sys.argv if a.startswith("-tlb=")] + ["0"])[0])
    if TL:
        k.e("s_bfe_u32 s54, s2, 0x10003", f"v_lshl_add_u32 v{T1}, v0, 1, s54", f"v_lshlrev_b32 v{T1}, {TL}, v{T1}")
        assert WS_END <= 1024 << TL and TL <= 21
        for m, sz in ((KWS, WS_END), (KW1, 640 * 3072), (KW3, 640 * 3072), (KOUT, X_BYTES), (KW2, 1536 * 1280)):
            srd(k, 16, m, sz)
            k.e(f"buffer_load_dword v32, v{T1}, s[16:19], 0 offen ; dummy")
    srd(k, 16, KW2, 1536 * 1280)
    k.e("s_sub_u32 s4, s2, 240", "s_mul_i32 s5, s4, 122880", "s_mul_i32 s52, s24, 320", f"v_add_u32 v{T0}, s52, v{L}", "s_mul_i32 s6, s24, 5120")
    for i in range(5):
        k.e(f"v_mul_u32_u24 v{T1}, 52429, v{T0}", f"v_bfe_u32 v{T1}, v{T1}, 22, 3", f"v_lshlrev_b32 v{T1}, 1, v{T1}", f"v_xor_b32 v{T1}, v{T1}, v{T0}", f"v_lshlrev_b32 v{20+i}, 4, v{T1}",
            f"s_add_u32 m0, s6, {1024*i}", f"buffer_load_dwordx4 v{20+i}, s[16:19], s5 offen lds", f"v_add_u32 v{T0}, 64, v{T0}")
    k.e("s_bfe_u32 s52, s2, 0x10003", "s_lshl_b32 s52, s52, 8", "s_add_u32 s52, s52, 256", "v_and_b32 v31, 255, v0", "v_add_u32 v31, s52, v31")
    code_touch(k, 1, 256, 31)
    def chunk(ks):
        k.e("s_add_u32 s5, s5, 40960")
        for i in range(5): k.e(f"s_add_u32 m0, s6, {40960*ks+1024*i}", f"buffer_load_dwordx4 v{20+i}, s[16:19], s5 offen lds")
    chunk(1)
    k.e(f"v_bfe_u32 v{T0}, v{L}, 2, 3", f"v_lshl_add_u32 v{T1}, v{H}, 4, v{T0}", f"v_mul_u32_u24 v{T1}, 1280, v{T1}", f"v_xor_b32 v{T0}, s24, v{T0}", f"v_lshl_add_u32 v{T1}, v{T0}, 5, v{T1}",
        f"v_and_b32 v{T0}, 3, v{L}", f"v_lshl_add_u32 v{T1}, v{T0}, 3, v{T1}", f"v_add_u32 v{T2}, 81920, v{T1}")
    k.e(f"v_add_u32 v{T0}, 5120, v{L16}", f"v_add_u32 v{T3}, 10240, v{L16}", "s_mul_i32 s7, s4, 15360", f"s_add_u32 s7, s7, {WS_W2}")
    for a in range(5):
        k.e(f"s_add_u32 s52, s24, {8*a}", "s_mul_i32 s53, s52, 52", "s_lshr_b32 s53, s53, 8", f"s_mul_i32 s53, s53, {245760-5120}", "s_lshl_b32 s52, s52, 10",
            "s_add_u32 s52, s52, s53", f"s_add_u32 s{54+a}, s52, s7")
    for ks in range(3):
        k.e(f"s_waitcnt vmcnt({(6, 10, 10)[ks]})", "s_barrier")
        for a in range(5):
            for u in range(2):
                k.e(f"ds_read_b64_tr_b16 {v(40+20*ks+4*a+2*u,2)}, v{T2 if ks == 2 else T1} offset:{256*a+10240*u+40960*(ks&1)}")
        if ks == 0: chunk(2)
        for a in range(5):
            k.e(f"s_waitcnt lgkmcnt({2*(4-a)})", f"buffer_store_dwordx4 {v(40+20*ks+4*a,4)}, v{(L16, T0, T3)[ks]}, s[20:23], s{54+a} offen sc1")
        stamp(k, 4 + ks)
    tag_make(k, TG)

OM, OE, NW = 94, 95, 104
def o_addr(k):
    k.e(f"v_lshrrev_b32 v{T0}, 4, v{TK}", f"v_mul_u32_u24 v{T0}, 20480, v{T0}", f"v_and_b32 v{T1}, 15, v{L}",
        f"v_lshl_add_u32 v{OE}, v{T1}, 3, v{T0}", f"v_lshl_add_u32 v{T0}, v{T1}, 4, v{T0}", f"v_lshl_add_u32 v{OM}, v{H}, 8, v{T0}")
    k.e("s_and_b32 s52, s2, 0x3c", "s_xor_b32 s52, s52, s24", "s_mul_i32 s52, s52, 40960", f"s_add_u32 s52, s52, {WS_O}",
        "s_and_b32 s53, s2, 7", "s_lshl_b32 s53, s53, 2", "s_lshr_b32 s54, s2, 6", "s_add_u32 s53, s53, s54",
        "s_lshl_b32 s54, s53, 9", "s_add_u32 s50, s54, s52", "s_lshl_b32 s54, s53, 7", "s_add_u32 s54, s54, s52", "s_add_u32 s51, s54, 16384")
def o_stores(d, e, sm=50):
    return [f"buffer_store_dwordx4 {v(d,4)}, v{OM}, s[20:23], s{sm} offen sc1",
            "s_mov_b32 exec_hi, 0", f"buffer_store_dwordx2 {v(e,2)}, v{OE}, s[20:23], s{sm+1} offen sc1", "s_mov_b64 exec, -1"]
def o_mark(k, both):
    o_addr(k)
    k.e(f"v_mov_b64 {v(NW,2)}, -1", f"v_mov_b64 {v(NW+2,2)}, -1", *o_stores(NW, NW))
    if both: k.e("s_bitcmp1_b32 s2, 2", "s_cselect_b32 s53, 1, -1", f"s_mul_i32 s53, s53, {4*40960}", "s_add_u32 s52, s50, s53", "s_add_u32 s53, s51, s53", *o_stores(NW, NW, 52))

def tag_load(k, d):
    k.e(f"v_mov_b32 v{T0}, 0", f"s_mov_b32 s52, {WS_EP}", f"buffer_load_dword v{d}, v{T0}, s[20:23], s52 offen sc1")
def tag_make(k, d):
    k.e(f"v_readfirstlane_b32 s{TAG}, v{d}", f"s_add_u32 s{TAG}, s{TAG}, 0x9e3779b9")
def misc_init(k):
    k.e(f"v_mov_b32 v20, s{TAG}", f"v_mov_b32 v{T3}, {MISC}", f"ds_write_b32 v{T3}, v20 offset:2048")

def a_loader(k):
    VXO, VWO = 16, 20
    AX, AW = 24, 28
    TG, PL = 30, 31
    D = 32
    vm = VM()
    k.e("s_sub_u32 s31, s24, 4")
    tag_load(k, TG); vm.add("tag")
    srd(k, 16, KWQKV, 640 * 3840)
    k.e("s_lshl_b32 s29, s31, 12", f"s_add_u32 s29, s29, {AB0}",
        "s_mul_i32 s28, s26, 163840", "s_lshl_b32 s52, s27, 7", "s_add_u32 s58, s28, s52", "s_add_u32 s28, s28, 1280",
        "s_lshl_b32 s59, s25, 8", "s_mul_i32 s52, s27, 245760", "s_add_u32 s59, s59, s52")
    k.e(f"v_lshrrev_b32 v{T0}, 3, v{L}", "s_lshl_b32 s52, s31, 5", f"v_add_u32 v{T0}, s52, v{T0}", f"v_mul_u32_u24 v{T0}, 1280, v{T0}",
        f"v_and_b32 v{T1}, 7, v{L}", f"v_lshrrev_b32 v{T2}, 4, v{L}", f"v_xor_b32 v{T1}, v{T1}, v{T2}", f"v_lshl_add_u32 v{VXO}, v{T1}, 4, v{T0}",
        f"v_xor_b32 v{T0}, 64, v{VXO}", f"v_add_u32 v{VXO+1}, {10240-1024}, v{T0}", f"v_add_u32 v{VXO+2}, {2*(10240-1024)}, v{VXO}",
        f"v_add_u32 v{VXO+3}, {3*(10240-1024)}, v{T0}")
    k.e("s_lshl_b32 s52, s31, 4", f"v_add_u32 v{T0}, s52, v{T2}", f"v_mul_u32_u24 v{T0}, 3840, v{T0}",
        f"v_and_b32 v{T1}, 15, v{L}", f"v_lshlrev_b32 v{T3}, 2, v{T2}", f"v_xor_b32 v{T1}, v{T1}, v{T3}", f"v_lshl_add_u32 v{VWO}, v{T1}, 4, v{T0}")
    for j in range(1, 4): k.e(f"v_add_u32 v{VWO+j}, {j*(15360-1024)}, v{VWO}")
    CP = int(([a[4:] for a in sys.argv if a.startswith("-cp=")] + ["12"])[0])
    nxt = [0]
    def issue_to(q):
        while nxt[0] < min(q, 80):
            st, i = divmod(nxt[0], 8)
            sl = st % 4
            ob = 32768 * (sl & 1) - 65536 * (sl >> 1)
            if i == 0: k.e(f"s_add_i32 m0, s29, {ob}")
            if i == 4: k.e(f"s_add_i32 m0, s29, {ob+16384}")
            if opt("nodma") and st >= 4:
                if i == 0: k.e(f"buffer_load_dwordx4 v{VXO+i}, s[12:15], s58 offen offset:{1024*i} lds"); vm.add(st)
                nxt[0] += 1; continue
            if i < 4: k.e(f"buffer_load_dwordx4 v{VXO+i}, s[12:15], s58 offen offset:{1024*i} lds")
            else: k.e(f"buffer_load_dwordx4 v{VWO+i-4}, s[16:19], s59 offen offset:{1024*(i-4)} lds")
            vm.add(st)
            if i == 7 and st < 9:
                k.e("s_add_u32 s58, s58, 128", "s_add_u32 s59, s59, 245760", "s_cmp_ge_u32 s58, s28",
                    "s_cselect_b32 s52, 1280, 0", "s_cselect_b32 s53, 2457600, 0", "s_sub_u32 s58, s58, s52", "s_sub_u32 s59, s59, s53")
            nxt[0] += 1
    issue_to(8)
    k.e("s_mov_b32 s60, s58", "s_mov_b32 s30, s59", "s_lshr_b32 s61, s31, 1")
    a_table(k, 61, "lt")
    k.e("s_bitcmp1_b32 s31, 0", "s_cselect_b32 s54, s57, s54", "s_cselect_b32 s55, s58, s55")
    a_waddr(k, AW, 54, 55)
    a_xaddr(k, AX, 29)
    k.e("s_mov_b32 s58, s60", "s_mov_b32 s59, s30")
    k.e("s_mul_i32 s4, s26, 20480", "s_lshl_b32 s56, s31, 9", "s_add_u32 s4, s4, s56", f"s_add_u32 s4, s4, {WS_XST}",
        "s_mul_i32 s5, s25, 10240", "s_lshl_b32 s57, s31, 8", "s_add_u32 s5, s5, s57", f"s_add_u32 s5, s5, {WS_WST}",
        "s_lshl_b32 s55, s27, 11", "s_add_u32 s55, s55, s4", "s_lshl_b32 s56, s27, 10", "s_add_u32 s56, s56, s5", f"s_mov_b32 s54, {ONES}")
    issue_to(8 + CP)
    stamp(k, 1)
    k.e(vm.wait(0), "s_barrier")
    stamp(k, 2)
    tag_make(k, TG)
    for ks in range(4): k.e(f"ds_read_b128 v[{D+4*ks}:{D+4*ks+3}], v{AX+ks}")
    for ks in range(4):
        for u in range(2): k.e(f"ds_read_b64_tr_b16 v[{D+16+4*ks+2*u}:{D+16+4*ks+2*u+1}], v{AW} offset:{16384+ks*4096+u*1024}")
    SX, SXX, CS = 64, 66, 68
    k.e(f"v_mov_b32 v{SX}, 0", f"v_mov_b32 v{SXX}, 0", f"v_mov_b32 v{CS}, 0",
        f"v_mov_b32 v{SX+1}, s{TAG}", f"v_mov_b32 v{SXX+1}, s{TAG}", f"v_mov_b32 v{CS+1}, s{TAG}",
        f"v_lshlrev_b32 v{T2}, 4, v{TK}", f"v_lshlrev_b32 v{T3}, 3, v{TK}")
    issue_to(16 + CP)
    k.e("s_waitcnt lgkmcnt(0)", vm.wait(1), "s_barrier")
    PX, PW = 70, 71
    def partials():
        for i in range(5):
            k.e(f"buffer_load_dwordx4 v[{D+4*i}:{D+4*i+3}], v{PX}, s[20:23], s{(4,6,7)[i//2]} offen offset:{2048*(i%2)} sc1")
            k.e(f"buffer_load_dwordx2 v[{D+20+2*i}:{D+21+2*i}], v{PW}, s[20:23], s{(5,8)[i//4]} offen offset:{1024*(i%4)} sc1")
    for j in range(2, 10):
        if j < 6:
            for i in range(4 * (j - 2), 4 * (j - 1)):
                issue_to(8 * j + CP + 2 * (i % 4 + 1))
                k.e(f"v_lshlrev_b32 v{T0}, 16, v{D+i}", f"v_and_b32 v{D+i}, 0xffff0000, v{D+i}", f"v_lshlrev_b32 v{T1}, 16, v{D+16+i}", f"v_and_b32 v{D+16+i}, 0xffff0000, v{D+16+i}",
                    f"v_add_f32 v{SX}, v{SX}, v{T0}", f"v_fmac_f32 v{SXX}, v{T0}, v{T0}", f"v_add_f32 v{CS}, v{CS}, v{T1}",
                    f"v_add_f32 v{SX}, v{SX}, v{D+i}", f"v_fmac_f32 v{SXX}, v{D+i}, v{D+i}", f"v_add_f32 v{CS}, v{CS}, v{D+16+i}")
        if j == 5:
            half_sum(k, SX, T0); half_sum(k, SXX, T1); half_sum(k, CS, T0)
            k.e("s_mov_b32 exec_hi, 0", f"buffer_store_dwordx4 v[{SX}:{SX+3}], v{T2}, s[20:23], s55 offen sc1",
                f"buffer_store_dwordx2 v[{CS}:{CS+1}], v{T3}, s[20:23], s56 offen sc1", "s_mov_b64 exec, -1")
            vm.add("st", 2)
        if j == 6:
            k.e(f"v_mul_u32_u24 v{PX}, 10240, v{H}", f"v_lshl_add_u32 v{PX}, v{TK}, 4, v{PX}", f"v_lshrrev_b32 v{PW}, 1, v{PX}",
                "s_add_u32 s6, s4, 4096", "s_add_u32 s7, s4, 8192", "s_add_u32 s8, s5, 4096")
        issue_to(8 * (j + 1) + CP)
        if j == 9:
            partials(); vm.add("pt", 10)
            o_mark(k, True); vm.add("mk", 4)
        k.e(vm.wait(j), "s_barrier")
    misc_init(k)
    k.e("s_mov_b32 s61, 0", vm.wait("pt"))
    k.label("pt_chk")
    k.e(f"v_xor_b32 v{T0}, s{TAG}, v{D+1}")
    for i in range(1, 15, 2):
        k.e(f"v_xor_b32 v{T1}, s{TAG}, v{D+1+2*i}", f"v_xor_b32 v9, s{TAG}, v{D+3+2*i}", f"v_or3_b32 v{T0}, v{T0}, v{T1}, v9")
    k.e(f"v_cmp_ne_u32 vcc, 0, v{T0}", "s_add_u32 s61, s61, 1", f"s_cbranch_vccz {k.lab('pt_ok')}", f"s_cmp_gt_u32 s61, {SPIN_MAX}", f"s_cbranch_scc1 {k.lab('pt_ok')}")
    partials()
    k.e("s_waitcnt vmcnt(0)", f"s_branch {k.lab('pt_chk')}")
    k.label("pt_ok")
    stamp(k, 3)
    if opt("w13a"):
        k.e("s_lshl_b32 s54, s2, 2", "s_add_u32 s54, s54, s31", "s_lshl_b32 s54, s54, 11")
        for m in (KW1, KW3):
            srd(k, 16, m, 640 * 3072)
            for i in range(2): k.e(f"buffer_load_dwordx4 v[84:87], v{L16}, s[16:19], s54 offen offset:{1024*i} ; dummy")
    for i in range(1, 5):
        k.e(f"v_add_f32 v{D}, v{D}, v{D+4*i}", f"v_add_f32 v{D+2}, v{D+2}, v{D+4*i+2}", f"v_add_f32 v{D+20}, v{D+20}, v{D+20+2*i}")
    half_sum(k, D, T0); half_sum(k, D + 2, T1); half_sum(k, D + 20, T2)
    ln_stats(k, D, D + 2, T0, T1, D + 4, D + 5)
    split3(k, D + 20, D + 12, D + 13, T0, T1)
    k.e("s_cmp_lt_u32 s25, 5", f"s_cselect_b32 s52, {f32(CSC)}, {f32(1.0)}", f"v_mul_f32 v{D+5}, s52, v{D+5}",
        f"v_cvt_pk_bf16_f32 v{D+4}, -v{D+4}, -v{D+4}",
        "s_lshl_b32 s52, s31, 7", f"s_add_u32 s52, s52, {MISC}", f"v_lshl_add_u32 v{T0}, v{TK}, 2, s52",
        "s_lshl_b32 s52, s31, 8", f"s_add_u32 s52, s52, {MISC+1024}", f"v_lshl_add_u32 v{T1}, v{TK}, 3, s52",
        f"ds_write_b32 v{T0}, v{D+4}", f"ds_write_b32 v{T0}, v{D+5} offset:512", f"ds_write_b64 v{T1}, v[{D+12}:{D+13}]",
        "s_waitcnt lgkmcnt(0)", "s_barrier")
    stamp(k, 4)
    if UPTO == "A": k.e("s_barrier")

PRE = int(([a[5:] for a in sys.argv if a.startswith("-pre=")] + ["0"])[0])
PRE_LO, PRE_HI = WS_O, WS_W2
def prefill_ops():
    o = []
    for i in range(PRE):
        x = [f"buffer_store_dwordx4 v[204:207], v{L16}, s[20:23], s61 offen offset:{1024*(i%4)} sc1"]
        if i % 4 == 3: x.append("s_add_u32 s61, s61, 4096")
        o.append(x)
    return o
PREG = int(([a[6:] for a in sys.argv if a.startswith("-preg=")] + ["-1"])[0])
def prefill(k):
    if not PRE: return
    k.e("s_lshl_b32 s61, s2, 2", "s_add_u32 s61, s61, s24", f"s_mul_i32 s61, s61, {PRE*1024}", f"s_min_u32 s61, s61, {PRE_HI-PRE_LO-PRE*1024}", f"s_add_u32 s61, s61, {PRE_LO}",
        "v_mov_b64 v[204:205], -1", "v_mov_b64 v[206:207], -1")
    if PREG < 0:
        for x in prefill_ops(): k.e(*x)

def build():
    k = Kern("mega_kernel", 256, 512, 163840, nvgpr=256, nsgpr=100)
    k.e("s_cmp_ge_u32 s2, 256", f"s_cbranch_scc1 {k.lab('end')}")
    if STAMP:
        k.e("s_memtime s[62:63]", "s_waitcnt lgkmcnt(0)", "s_mov_b32 s94, s62")
        for i in range(1, 30): k.e(f"s_mov_b32 s{64+i}, 0")
    stamp(k, 0)
    k.e("s_load_dwordx16 s[32:47], s[0:1], 0", "s_load_dwordx4 s[48:51], s[0:1], 64")
    if opt("ect"):
        k.e("s_bfe_u32 s54, s2, 0x30003", "s_lshl_b32 exec_lo, 0x01010101, s54", "s_mov_b32 exec_hi, exec_lo")
        code_touch(k, 2, 512)
        k.e("s_mov_b64 exec, -1")
    k.e(f"v_lshrrev_b32 v{T0}, 6, v0", f"v_and_b32 v{L}, 63, v0", f"v_readfirstlane_b32 s24, v{T0}",
        f"v_lshlrev_b32 v{L16}, 4, v{L}", f"v_lshrrev_b32 v{H}, 5, v{L}", f"v_and_b32 v{TK}, 31, v{L}")
    a_map(k)
    k.e("s_waitcnt lgkmcnt(0)")
    WOFF = int(([a[6:] for a in sys.argv if a.startswith("-woff=")] + ["0"])[0]) << 20
    if WOFF: k.e(f"s_add_u32 s{KWS}, s{KWS}, {WOFF}", f"s_addc_u32 s{KWS+1}, s{KWS+1}, 0")
    srd(k, 20, KWS, WS_SRD); srd(k, 12, KX, X_BYTES)
    k.e("s_cmp_ge_u32 s2, 240", f"s_cbranch_scc1 {k.lab('spare')}")
    k.e("s_cmp_lt_u32 s24, 4", f"s_cbranch_scc1 {k.lab('compute')}")
    a_loader(k)
    k.e(f"s_branch {k.lab('a_done')}")
    k.label("spare")
    spare(k)
    k.e(f"s_branch {k.lab('a_done')}")
    k.label("compute")
    if not opt("nocf") and not opt("ect"): code_touch(k, 1, 256)
    srd(k, 16, KWO, 640 * 1280)
    k.e("s_lshl_b32 s54, s2, 2", "s_add_u32 s54, s54, s24", "s_lshl_b32 s54, s54, 10", f"buffer_load_dwordx4 v[200:203], v{L16}, s[16:19], s54 offen ; dummy")
    k.e(f"v_lshlrev_b32 v{T0}, 6, v{L}", "s_mul_i32 s54, s2, 704", f"s_min_u32 s54, s54, {163840-704}", f"s_add_u32 s54, s54, {WS_FB}", "s_mov_b64 exec, 0x7ff",
        f"buffer_load_dword v9, v{T0}, s[20:23], s54 offen sc1 ; dummy", "s_mov_b64 exec, -1")
    prefill(k)
    a_compute(k)
    k.label("a_done")
    if UPTO != "A":
        import phases
        phases.rest(k)
    k.label("fin")
    stamp_out(k)
    k.label("end")
    k.e("s_endpgm")
    return k

HEADER = open("cdna_kernels/" + NAME + ".s.ref").read().split("; Override launch geometry")[0].rstrip()

if __name__ == "__main__":
    sys.modules["gen2"] = sys.modules["__main__"]
    out = sys.argv[1] if len(sys.argv) > 1 and not sys.argv[1].startswith("-") else "cdna_kernels/" + NAME + ".s"
    n = write_file(out, [build()], HEADER, verbose="-v" in sys.argv)
    print("errors:", n)
```

```python
import itertools
EXT = {h: 4 for h in range(32)}; EXT[19] = 0; EXT[25] = 2
def base():
    out = []
    for h in range(32):
        m = [j for j in range(5) if j != EXT[h]]
        for hh in range(2):
            out.append((5 * (h >> 1) + 2 * (h & 1) + hh, 5 * h + m[2 * hh], 5 * h + m[2 * hh + 1], True))
    for p in range(16):
        out.append((5 * p + 4, 5 * (2 * p) + EXT[2 * p], 5 * (2 * p + 1) + EXT[2 * p + 1], False))
    return out
def solve(p):
    recs = [r for r in base() if r[1] // 32 == p]
    assert len(recs) == 16 and all(r[2] // 32 == p for r in recs)
    def rec(rem, tiles):
        if not rem: return tiles
        first = rem[0]
        for comb in itertools.combinations(rem[1:], 3):
            t = (first,) + comb
            for sw in itertools.product((0, 1), repeat=4):
                if any(s and not r[3] for s, r in zip(sw, t)): continue
                o = [(r[0], r[2], r[1]) if s else r[:3] for s, r in zip(sw, t)]
                if len({x[1] % 4 for x in o}) == 4 and len({x[2] % 4 for x in o}) == 4:
                    x = rec([r for r in rem[1:] if r not in comb], tiles + [o])
                    if x: return x
                    break
        return None
    return rec(recs, [])
SOL = [solve(p) for p in range(5)]
def records():
    return [r for s in SOL for t in s for r in t]
def tables():
    T = []
    for p in range(5):
        T.append([([r[1] - 32 * p for r in t] + [r[2] - 32 * p for r in t], [r[0] for r in t]) for t in SOL[p]])
    T.append([([8 * ft + m for m in range(8)], [0] * 4) for ft in range(4)])
    return T
if __name__ == "__main__":
    for p, tp in enumerate(tables()): print(p, tp)
```

```python
import sys, struct
from asmlib import *
from qktab import tables

NAME = "sequential_preLN__sliding_block__glu_gated_swiglu__prompt"
WS_QK = 0
WS_V = 5242880
WS_O = 7864320
WS_H = 10485760
WS_A = 13107200
WS_W2 = 19398656
WS_HST = WS_W2 + 1966080
WS_CS = WS_HST + 262144
WS_XST = WS_CS + 245760
WS_WST = WS_XST + 327680
WS_FB = WS_WST + 153600
WS_FC = WS_FB + 65536
WS_FD = WS_FC + 32768
WS_FE = WS_FD + 32768
WS_EP = WS_FE + 32768
WS_END = WS_EP + 128
X_BYTES = 2048 * 1280
SPIN_MAX = 40000 if not any(a in sys.argv for a in ('-xrot', '-norot_a')) else 20

def f32(x): return "0x%08x" % struct.unpack("<I", struct.pack("<f", x))[0]
ONES = "0x3f803f80"
NEGBIG = f32(-1e30)
CSC = (20 ** -0.5) * 1.4426950408889634

STAMP = "-stamp" in sys.argv
UPTO = ([a[6:] for a in sys.argv if a.startswith("-upto=")] + ["E"])[0]
WS_STAMP = 64 << 20
WS_SRD = (1 << 28) if STAMP else WS_END
def opt(name): return ("-" + name) in sys.argv

L, L16, H, TK, T0, T1, T2, T3 = 1, 2, 3, 4, 5, 6, 7, 8
HRES = 10
KX, KWQKV, KWO, KW1, KW3, KW2, KOUT, KWS = 32, 34, 36, 40, 42, 44, 46, 50
TAG = 3

class VM:
    def __init__(s): s.q = []
    def add(s, tag, n=1): s.q += [tag] * n
    def wait(s, tag):
        if tag not in s.q: return "s_nop 0"
        idx = max(i for i, t in enumerate(s.q) if t == tag)
        n = len(s.q) - 1 - idx
        s.q = s.q[idx + 1:]
        assert n <= 63
        return f"s_waitcnt vmcnt({n})"

NST = [0]
DST = ([a[5:] for a in sys.argv if a.startswith("-dst=")] + [""])[0]
def dstamp(k, ph, i):
    if DST == ph: stamp(k, i, True)
ECHO = [tuple(map(int, a[6:].split(":"))) for a in sys.argv if a.startswith("-echo=")]
def stamp(k, i, force=False):
    if ECHO:
        if i in ECHO[0] or i == 29: k.e("s_memrealtime s[62:63]", "s_waitcnt lgkmcnt(0)", f"s_mov_b32 s{64+i}, s62")
        return
    if DST and 1 <= i <= 17 and not force: return
    if STAMP:
        k.e("s_memrealtime s[62:63]", "s_waitcnt lgkmcnt(0)", f"s_mov_b32 s{64+i}, s62")
def stamp_out(k):
    if ECHO:
        i, j = ECHO[0][:2]; wv = ECHO[0][2] if len(ECHO[0]) > 2 else 808
        k.e("s_lshl_b32 s62, s2, 3", "s_add_u32 s62, s62, s24", f"s_cmp_lg_u32 s62, {wv}", f"s_cbranch_scc1 {k.lab('end')}")
        k.e("s_waitcnt vmcnt(0)")
        stamp(k, 29)
        k.e(f"s_sub_u32 s60, s{64+j}, s{64+i}", "s_min_u32 s60, s60, 10000", "s_lshl_b32 s60, s60, 2")
        k.label("echo")
        k.e("s_memrealtime s[62:63]", "s_waitcnt lgkmcnt(0)", "s_sub_u32 s62, s62, s93", "s_cmp_lt_u32 s62, s60", f"s_cbranch_scc1 {k.lab('echo')}")
        return
    if not STAMP: return
    k.e("s_waitcnt vmcnt(0)")
    stamp(k, 29)
    k.e("s_memtime s[62:63]", "s_waitcnt lgkmcnt(0)", "s_mov_b32 s95, s62")
    k.e("s_mov_b64 exec, 1", "s_lshl_b32 s62, s2, 3", "s_add_u32 s62, s62, s24", "s_lshl_b32 s62, s62, 7", f"s_add_u32 s62, s62, {WS_STAMP}")
    k.e("v_mov_b32 v0, 0")
    for i in range(32):
        k.e(f"v_mov_b32 v1, s{64+i}", f"buffer_store_dword v1, v0, s[20:23], s62 offen offset:{4*i}")
    if opt("dbg"):
        k.e("s_lshl_b32 s62, s2, 3", "s_add_u32 s62, s62, s24", "s_cmp_lg_u32 s62, 800", f"s_cbranch_scc1 {k.lab('end')}")
        srd(k, 16, 48, 256)
        for n, i in enumerate((1, 2, 3, 6, 8, 9, 12, 13, 17, 18, 19, 20, 22, 23, 25, 29)):
            k.e(f"s_sub_u32 s62, s{64+i}, s64", "v_mov_b32 v1, s62", f"buffer_store_dword v1, v0, s[16:19], 0 offen offset:{4*n}")

def srd(k, d, base, size):
    k.e(f"s_mov_b32 s{d}, s{base}", f"s_mov_b32 s{d+1}, s{base+1}", f"s_mov_b32 s{d+2}, {size}", f"s_mov_b32 s{d+3}, 0x20000")

def ln_stats(k, sx, sxx, t0, t1, Mout, Rout, SD=None):
    k.e(f"v_mul_f32 v{sx}, {f32(1/640)}, v{sx}")
    k.e(f"v_mul_f32 v{sxx}, {f32(1/640)}, v{sxx}")
    k.e(f"v_fma_f32 v{t0}, -v{sx}, v{sx}, v{sxx}")
    k.e(f"v_max_f32 v{t0}, 0, v{t0}")
    k.e(f"v_cvt_pk_bf16_f32 v{t1}, v{sx}, v{t0}")
    k.e(f"v_lshlrev_b32 v{Mout}, 16, v{t1}")
    k.e(f"v_and_b32 v{t0}, 0xffff0000, v{t1}")
    k.e(f"v_add_f32 v{t0}, {f32(1e-5)}, v{t0}")
    k.e(f"v_cvt_pk_bf16_f32 v{t0}, v{t0}, v{t0}")
    k.e(f"v_lshlrev_b32 v{t0}, 16, v{t0}")
    k.e(f"v_sqrt_f32 v{t0}, v{t0}")
    k.e(f"v_cvt_pk_bf16_f32 v{t0}, v{t0}, v{t0}")
    k.e(f"v_lshlrev_b32 v{t0}, 16, v{t0}")
    if SD is not None: k.e(f"v_mov_b32 v{SD}, v{t0}")
    k.e(f"v_rcp_f32 v{Rout}, v{t0}")

def half_sum(k, x, t):
    k.e(f"v_mov_b32 v{t}, v{x}", f"v_permlane32_swap_b32 v{t}, v{x}", f"v_add_f32 v{x}, v{t}, v{x}")

def split3(k, cs, d0, d1, t0, t1, neg=False):
    n = "-" if neg else ""
    k.e(f"v_cvt_pk_bf16_f32 v{t0}, v{cs}, v{cs}")
    k.e(f"v_lshlrev_b32 v{t0}, 16, v{t0}")
    k.e(f"v_sub_f32 v{t0}, v{cs}, v{t0}")
    k.e(f"v_cvt_pk_bf16_f32 v{t1}, v{t0}, v{t0}")
    k.e(f"v_cvt_pk_bf16_f32 v{d0}, {n}v{cs}, {n}v{t0}")
    k.e(f"v_lshlrev_b32 v{t1}, 16, v{t1}")
    k.e(f"v_sub_f32 v{t0}, v{t0}, v{t1}")
    k.e(f"v_cvt_pk_bf16_f32 v{d1}, {n}v{t0}, 0")

uid = [0]
def poll(k, vaddr, soff, vd, mask_lo, mask_hi, x4=False, preloaded=False):
    uid[0] += 1
    lp, dn = f"pl{uid[0]}", f"pd{uid[0]}"
    k.e(f"s_mov_b32 exec_lo, {mask_lo}", f"s_mov_b32 exec_hi, {mask_hi}", "s_mov_b32 s61, 0")
    ld = f"buffer_load_dwordx4 v[{vd}:{vd+3}], v{vaddr}, s[20:23], {soff} offen sc1" if x4 else f"buffer_load_dword v{vd}, v{vaddr}, s[20:23], {soff} offen sc1"
    def chk():
        if x4:
            k.e(f"v_xor_b32 v{vd}, s{TAG}, v{vd}", f"v_xor_b32 v{vd+1}, s{TAG}, v{vd+1}", f"v_xor_b32 v{vd+2}, s{TAG}, v{vd+2}", f"v_xor_b32 v{vd+3}, s{TAG}, v{vd+3}",
                f"v_or3_b32 v{vd}, v{vd}, v{vd+1}, v{vd+2}", f"v_or_b32 v{vd}, v{vd}, v{vd+3}", f"v_cmp_ne_u32 vcc, 0, v{vd}")
        else:
            k.e(f"v_cmp_ne_u32 vcc, s{TAG}, v{vd}")
    if preloaded:
        chk()
        k.e("s_nop 1", f"s_cbranch_vccz {k.lab(dn)}")
    k.label(lp)
    k.e(ld, "s_waitcnt vmcnt(0)")
    chk()
    k.e("s_add_u32 s61, s61, 1", f"s_cbranch_vccz {k.lab(dn)}", f"s_cmp_lt_u32 s61, {SPIN_MAX}", f"s_cbranch_scc1 {k.lab(lp)}")
    k.label(dn)
    k.e("s_mov_b64 exec, -1")

AB0 = 98304
MISC = 106496

def a_map(k):
    k.e("s_and_b32 s52, s2, 7", "s_lshr_b32 s53, s2, 3",
        "s_and_b32 s54, s52, 1", "s_mul_i32 s54, s54, 30", "s_add_u32 s54, s54, s53",
        "s_lshr_b32 s25, s54, 2",
        "s_and_b32 s54, s54, 3", "s_lshr_b32 s52, s52, 1", "s_lshl_b32 s55, s52, 2", "s_add_u32 s26, s55, s54",
        "s_mul_i32 s54, s54, 5", "s_add_u32 s54, s54, 1", "s_lshr_b32 s54, s54, 1", "s_add_u32 s54, s54, s52",
        "s_add_u32 s27, s54, s25",
        "s_cmp_ge_u32 s27, 20", "s_cselect_b32 s54, 20, 0", "s_sub_u32 s27, s27, s54",
        "s_cmp_ge_u32 s27, 10", "s_cselect_b32 s54, 10, 0", "s_sub_u32 s27, s27, s54")
    if opt("norot_a"): k.e("s_mov_b32 s27, 0")
    if opt("xrot"):
        k.e("s_mul_i32 s54, s52, 5", "s_add_u32 s54, s54, 1", "s_lshr_b32 s54, s54, 1", "s_and_b32 s27, s2, 1", "s_mul_i32 s27, s27, 5", "s_add_u32 s27, s27, s54",
            "s_cmp_ge_u32 s27, 10", "s_cselect_b32 s54, 10, 0", "s_sub_u32 s27, s27, s54")

def a_table(k, wj_sgpr, pref):
    T = tables()
    k.e("s_cmp_ge_u32 s25, 5", "s_cselect_b32 s52, 5, 0", "s_sub_u32 s52, s25, s52", "s_min_u32 s52, s52, 5",
        "s_lshl_b32 s52, s52, 1", f"s_add_u32 s52, s52, s{wj_sgpr}")
    for i in range(12):
        p, wj = divmod(i, 2)
        if i < 11: k.e(f"s_cmp_lg_u32 s52, {i}", f"s_cbranch_scc1 {k.lab(f'{pref}{i+1}')}")
        for f in range(2):
            ch, R = T[p][2 * wj + f]
            b = [8 * c for c in ch]
            lo = b[0] | b[1] << 8 | b[2] << 16 | b[3] << 24
            hi = b[4] | b[5] << 8 | b[6] << 16 | b[7] << 24
            rr = R[0] | R[1] << 8 | R[2] << 16 | R[3] << 24
            k.e(f"s_mov_b32 s{54+3*f}, {lo:#x}", f"s_mov_b32 s{55+3*f}, {hi:#x}", f"s_mov_b32 s{56+3*f}, {rr:#x}")
        if i < 11:
            k.e(f"s_branch {k.lab(pref + 'd')}")
            k.label(f"{pref}{i+1}")
    k.label(pref + "d")

def a_waddr(k, d, lo, hi):
    k.e(f"v_bfe_u32 v{T0}, v{L}, 2, 2",
        f"v_bfe_u32 v{T1}, v{L}, 4, 1", f"v_cmp_eq_u32 vcc, 1, v{T1}",
        f"v_mov_b32 v{T1}, s{lo}", f"v_mov_b32 v{T2}, s{hi}", f"v_cndmask_b32 v{T1}, v{T1}, v{T2}, vcc",
        f"v_and_b32 v{T2}, 3, v{L}", f"v_lshlrev_b32 v{T2}, 3, v{T2}", f"v_bfe_u32 v{T1}, v{T1}, v{T2}, 8",
        f"v_lshl_add_u32 v{T2}, v{T0}, 1, v{H}", f"v_lshlrev_b32 v{T2}, 5, v{T2}", f"v_xor_b32 v{T1}, v{T1}, v{T2}",
        f"v_lshl_add_u32 v{T0}, v{H}, 3, v{T0}", f"v_lshl_add_u32 v{d}, v{T0}, 8, v{T1}", f"v_add_u32 v{d}, {AB0}, v{d}")

def a_xaddr(k, d, rowbase_sgpr):
    k.e(f"v_lshlrev_b32 v{T0}, 7, v{TK}", f"v_add_u32 v{T0}, s{rowbase_sgpr}, v{T0}",
        f"v_bfe_u32 v{T1}, v{TK}, 1, 3", f"v_xor_b32 v{T1}, v{T1}, v{H}")
    for ks in range(4):
        k.e(f"v_xor_b32 v{T2}, {2*ks}, v{T1}", f"v_lshl_add_u32 v{d+ks}, v{T2}, 4, v{T0}")

APC = list(map(int, ([a[5:] for a in sys.argv if a.startswith("-apc=")] + ["0"])[0].split(",")))
def nops(n): return "".join(f"\ns_nop {min(16, n - i) - 1}" for i in range(0, n, 16))
ASP = int(([a[5:] for a in sys.argv if a.startswith("-asp=")] + ["8"])[0])
def a_compute(k):
    AX, AW = 16, 20
    AST, PT, GK = 28, 30, 31
    ACC = 64; FR = 128
    XO, WO, RD = 192, 208, 224
    k.e("s_lshr_b32 s28, s24, 1", "s_and_b32 s29, s24, 1")
    a_table(k, 29, "ct")
    k.e(f"v_lshrrev_b32 v{GK}, 4, v{L}", f"v_and_b32 v{T0}, 8, v{L}", f"v_and_b32 v{T1}, 15, v{L}", f"v_add_u32 v{PT}, v{T0}, v{T1}",
        "s_lshl_b32 s52, s28, 13", f"s_add_u32 s52, s52, {AB0}", f"v_lshl_add_u32 v{T0}, v{PT}, 7, s52",
        f"v_lshrrev_b32 v{T1}, 1, v{T1}", f"v_xor_b32 v{T1}, v{T1}, v{GK}", f"v_lshl_add_u32 v{AX}, v{T1}, 4, v{T0}", f"v_xor_b32 v{AX+1}, 64, v{AX}")
    for i in range(2): k.e(f"v_subrev_u32 v{AX+2+i}, 65536, v{AX+i}")
    k.e(f"v_bfe_u32 v{T0}, v{L}, 2, 2", f"v_lshl_add_u32 v{T1}, v{GK}, 3, v{T0}", f"v_lshlrev_b32 v{T1}, 8, v{T1}", f"v_add_u32 v{T1}, {AB0}, v{T1}",
        f"v_and_b32 v{T2}, 1, v{GK}", f"v_lshl_add_u32 v{T0}, v{T0}, 1, v{T2}", f"v_lshl_add_u32 v{T1}, v{T0}, 5, v{T1}",
        f"v_and_b32 v{T2}, 3, v{L}", f"v_lshlrev_b32 v{T2}, 3, v{T2}")
    for ft in range(4):
        k.e(f"v_bfe_u32 v{T0}, s{(54,55,57,58)[ft]}, v{T2}, 8", f"v_xor_b32 v{AW+ft}, v{T0}, v{T1}", f"v_subrev_u32 v{AW+4+ft}, 65536, v{AW+ft}")
    k.e("s_lshl_b32 s52, s26, 2", "s_lshl_b32 s53, s28, 1", "s_add_u32 s52, s52, s53")
    for i in range(8): k.e(f"v_mov_b64 {v(XO+4*i+2,2)}, 0")

    def reads(s_):
        st, ks = divmod(s_, 2)
        sl = st % 4; S = sl // 2; ob = (sl % 2) * 32768
        b = FR + 32 * (s_ % 2)
        x = [f"ds_read_b128 {v(b+4*t,4)}, v{AX+2*S+ks} offset:{ob+4096*(t>>1)+1024*(t&1)}" for t in range(4)]
        w = [[f"ds_read_b64_tr_b16 {v(b+16+4*f+2*u,2)}, v{AW+4*S+f} offset:{ob+16384+ks*8192+u*1024}" for u in range(2)] for f in range(4)]
        return [x[0]] + w[0] + w[1] + [x[1]] + w[2] + w[3] + x[2:]
    order = [(0, 0), (0, 1), (1, 1), (1, 0), (1, 2), (0, 2), (0, 3), (1, 3), (2, 3), (2, 2), (2, 1), (2, 0), (3, 0), (3, 1), (3, 2), (3, 3)]

    def mainloop(vmode):
        def acc(t, f): return ACC + (16 * f + 4 * t if vmode else 16 * t + 4 * f)
        def mfma(t, f, xb, wb, c0=False):
            xa, wa = v(xb + 4 * t, 4), v(wb + 4 * f, 4)
            A, B = (xa, wa) if vmode else (wa, xa)
            return f"v_mfma_f32_16x16x32_bf16 {v(acc(t,f),4)}, {A}, {B}, {'0' if c0 else v(acc(t,f),4)}"
        stamp(k, 1)
        k.e("s_barrier")
        stamp(k, 2)
        k.e(*reads(0))
        for s_ in range(20):
            b = FR + 32 * (s_ % 2)
            k.e("s_waitcnt lgkmcnt(0)")
            if s_ % 2 == 1 and s_ < 19: k.e("s_barrier")
            mf = [mfma(t, f, b, b + 16, s_ == 0) + nops(APC[s_ // 2] if s_ // 2 < len(APC) else 0) for t, f in order]
            k.e(*interleave(mf[:ASP], reads(s_ + 1) if s_ < 19 else []), *mf[ASP:])
        stamp(k, 3)
        k.e("s_lshl_b32 s53, s28, 8", f"s_add_u32 s53, s53, {MISC}", f"v_lshl_add_u32 v{T0}, v{PT}, 2, s53",
            "s_lshl_b32 s54, s29, 9", f"s_add_u32 s54, s54, {MISC+1024}", f"v_and_b32 v{T1}, 15, v{L}", f"v_lshl_add_u32 v{T1}, v{T1}, 3, s54",
            f"v_mov_b32 v{T3}, {MISC}")
        if vmode: k.e(f"v_lshl_add_u32 v{T2}, v{H}, 6, s53", f"v_and_b32 v{RD}, 16, v{L}", f"v_add_u32 v{T2}, v{T2}, v{RD}")
        k.e(f"v_cmp_gt_u32 vcc, 16, v{L}")
        k.e("s_barrier")
        stamp(k, 4)
        def to(t): return 128 * (t >> 1) + 32 * (t & 1)
        for t in range(4): k.e(f"ds_read_b32 v{XO+4*t}, v{T0} offset:{to(t)}")
        for f in range(4): k.e(f"ds_read_b64 {v(WO+4*f,2)}, v{T1} offset:{128*f}")
        k.e(f"ds_read_b32 v{T3}, v{T3} offset:2048")
        for t in range(4):
            if vmode: k.e(f"ds_read_b128 {v(RD+4*t,4)}, v{T2} offset:{512+to(t)}")
            else: k.e(f"ds_read_b32 v{RD+t}, v{T0} offset:{512+to(t)}")
        k.e("s_waitcnt lgkmcnt(4)")
        for t in range(4):
            k.e(f"v_cndmask_b32 v{XO+4*t}, 0, v{XO+4*t}, vcc", f"v_and_b32 v{XO+4*t+1}, 0xffff, v{XO+4*t}")
        k.e(f"v_readfirstlane_b32 s{TAG}, v{T3}")
        def cm(o): return [mfma(*((i, o) if vmode else (o, i)), XO, WO) for i in range(4)]
        k.e(*cm(0), *cm(1)[:2])
        k.e("s_waitcnt lgkmcnt(0)")
        rest = cm(1)[2:] + cm(2) + cm(3)
        for o in range(4):
            for p_ in range(2):
                d = ACC + 16 * o + 8 * p_
                e = []
                for r in range(0, 8, 2):
                    if vmode: e.append(f"v_pk_mul_f32 {v(d+r,2)}, {v(d+r,2)}, {v(RD+8*p_+r,2)}")
                    else: e.append(f"v_pk_mul_f32 {v(d+r,2)}, {v(d+r,2)}, {v(RD+(o&2),2)} op_sel:[0,{o&1}] op_sel_hi:[1,{o&1}]")
                c = [f"v_cvt_pk_bf16_f32 v{d+j}, v{d+2*j}, v{d+2*j+1}" for j in range(4)]
                k.e(*e, *rest[:1], *c[:2], *rest[1:2], *c[2:]); rest = rest[2:]
                if vmode: k.e(f"buffer_store_dwordx4 {v(d,4)}, v{AST}, s[20:23], s{30+p_} offen offset:{256*o} sc1")
                else: k.e(f"buffer_store_dwordx4 {v(d,4)}, v{AST+p_}, s[20:23], s30 offen offset:{512*(o>>1)+128*(o&1)} sc1")
        k.e(f"s_branch {k.lab('a_pub')}")

    k.e("s_cmp_ge_u32 s25, 10", f"s_cbranch_scc1 {k.lab('vpath')}")
    k.e("s_cmp_ge_u32 s25, 5", f"s_cselect_b32 s53, {80*32768}, 0", "s_lshl_b32 s30, s52, 9", "s_add_u32 s30, s30, s53")
    k.e(f"v_lshlrev_b32 v{T0}, 3, v{GK}", f"v_lshlrev_b32 v{T1}, 4, v{PT}")
    for f in range(2):
        k.e(f"v_bfe_u32 v{T2}, s{56+3*f}, v{T0}, 8", f"v_lshl_add_u32 v{AST+f}, v{T2}, 15, v{T1}")
    mainloop(False)
    k.label("vpath")
    k.e("s_mul_i32 s30, s52, 40960", f"s_add_u32 s30, s30, {WS_V}",
        "s_sub_u32 s53, s25, 10", "s_lshl_b32 s53, s53, 11", "s_lshl_b32 s54, s29, 10", "s_add_u32 s53, s53, s54", "s_add_u32 s30, s30, s53", "s_add_u32 s31, s30, 40960",
        f"v_mul_u32_u24 v{T0}, 10240, v{GK}", f"v_and_b32 v{T1}, 15, v{L}", f"v_lshl_add_u32 v{AST}, v{T1}, 4, v{T0}")
    mainloop(True)
    k.label("a_pub")
    stamp(k, 5)
    k.e("s_lshr_b32 s52, s26, 1", "s_lshl_b32 s53, s52, 13", "s_and_b32 s54, s26, 1", "s_add_u32 s54, s54, 2", "s_lshl_b32 s54, s54, 4",
        "s_add_u32 s54, s54, s25", "s_lshl_b32 s54, s54, 2", "s_add_u32 s53, s53, s54", f"s_add_u32 s53, s53, {WS_FB}",
        f"v_mul_u32_u24 v{T0}, {8192-128}, v{H}", f"v_lshl_add_u32 v{T0}, v{TK}, 8, v{T0}",
        f"v_mov_b32 v{T2}, s{TAG}", "s_cmp_eq_u32 s52, 7", "s_cselect_b32 s55, 0, -1", "s_cmp_lt_u32 s25, 5", "s_cselect_b32 s55, 0, s55",
        "s_cmp_ge_u32 s25, 5", "s_cselect_b32 s52, 5, 0", "s_sub_u32 s54, s25, s52", "s_cmp_ge_u32 s25, 10", "s_cselect_b32 s52, 5, 0", "s_sub_u32 s54, s54, s52",
        f"v_lshrrev_b32 v{T1}, 1, v{TK}", f"v_mul_u32_u24 v{T1}, 5, v{T1}", f"v_add_u32 v{T3}, 4, v{T1}", f"v_lshrrev_b32 v{T1}, 4, v{T1}", f"v_lshrrev_b32 v{T3}, 4, v{T3}",
        f"v_cmp_eq_u32 vcc, s54, v{T1}", f"v_cmp_eq_u32 s[56:57], s54, v{T3}", "s_or_b64 s[56:57], s[56:57], vcc", "s_and_b32 s57, s57, s55")
    k.e("s_waitcnt vmcnt(0)")
    stamp(k, 6)
    k.e("s_barrier", "s_cmp_lg_u32 s24, 0", f"s_cbranch_scc1 {k.lab('a_done')}",
        "s_mov_b64 exec, s[56:57]", f"buffer_store_dword v{T2}, v{T0}, s[20:23], s53 offen sc1", "s_mov_b64 exec, -1")

def code_touch(k, n, nthr, vi=0):
    uid[0] += 1
    k.e("s_getpc_b64 s[52:53]")
    k.label(f"pc{uid[0]}")
    k.e(f"s_sub_u32 s52, s52, {k.lab(f'pc{uid[0]}')}-{k.name}", "s_subb_u32 s53, s53, 0", f"v_lshlrev_b32 v{T0}, 6, v{vi}")
    for i in range(n):
        k.e(f"v_min_u32 v{T1}, {k.lab('end')}-{k.name}, v{T0}", f"global_load_dword v9, v{T1}, s[52:53] ; dummy")
        if i < n - 1: k.e(f"v_add_u32 v{T0}, {64*nthr}, v{T0}")
def spare(k):
    TG = 30
    tag_load(k, TG)
    o_mark(k, False)
    TL = int(([a[5:] for a in sys.argv if a.startswith("-tlb=")] + ["0"])[0])
    if TL:
        k.e("s_bfe_u32 s54, s2, 0x10003", f"v_lshl_add_u32 v{T1}, v0, 1, s54", f"v_lshlrev_b32 v{T1}, {TL}, v{T1}")
        assert WS_END <= 1024 << TL and TL <= 21
        for m, sz in ((KWS, WS_END), (KW1, 640 * 3072), (KW3, 640 * 3072), (KOUT, X_BYTES), (KW2, 1536 * 1280)):
            srd(k, 16, m, sz)
            k.e(f"buffer_load_dword v32, v{T1}, s[16:19], 0 offen ; dummy")
    srd(k, 16, KW2, 1536 * 1280)
    k.e("s_sub_u32 s4, s2, 240", "s_mul_i32 s5, s4, 122880", "s_mul_i32 s52, s24, 320", f"v_add_u32 v{T0}, s52, v{L}", "s_mul_i32 s6, s24, 5120")
    for i in range(5):
        k.e(f"v_mul_u32_u24 v{T1}, 52429, v{T0}", f"v_bfe_u32 v{T1}, v{T1}, 22, 3", f"v_lshlrev_b32 v{T1}, 1, v{T1}", f"v_xor_b32 v{T1}, v{T1}, v{T0}", f"v_lshlrev_b32 v{20+i}, 4, v{T1}",
            f"s_add_u32 m0, s6, {1024*i}", f"buffer_load_dwordx4 v{20+i}, s[16:19], s5 offen lds", f"v_add_u32 v{T0}, 64, v{T0}")
    k.e("s_bfe_u32 s52, s2, 0x10003", "s_lshl_b32 s52, s52, 8", "s_add_u32 s52, s52, 256", "v_and_b32 v31, 255, v0", "v_add_u32 v31, s52, v31")
    code_touch(k, 1, 256, 31)
    def chunk(ks):
        k.e("s_add_u32 s5, s5, 40960")
        for i in range(5): k.e(f"s_add_u32 m0, s6, {40960*ks+1024*i}", f"buffer_load_dwordx4 v{20+i}, s[16:19], s5 offen lds")
    chunk(1)
    k.e(f"v_bfe_u32 v{T0}, v{L}, 2, 3", f"v_lshl_add_u32 v{T1}, v{H}, 4, v{T0}", f"v_mul_u32_u24 v{T1}, 1280, v{T1}", f"v_xor_b32 v{T0}, s24, v{T0}", f"v_lshl_add_u32 v{T1}, v{T0}, 5, v{T1}",
        f"v_and_b32 v{T0}, 3, v{L}", f"v_lshl_add_u32 v{T1}, v{T0}, 3, v{T1}", f"v_add_u32 v{T2}, 81920, v{T1}")
    k.e(f"v_add_u32 v{T0}, 5120, v{L16}", f"v_add_u32 v{T3}, 10240, v{L16}", "s_mul_i32 s7, s4, 15360", f"s_add_u32 s7, s7, {WS_W2}")
    for a in range(5):
        k.e(f"s_add_u32 s52, s24, {8*a}", "s_mul_i32 s53, s52, 52", "s_lshr_b32 s53, s53, 8", f"s_mul_i32 s53, s53, {245760-5120}", "s_lshl_b32 s52, s52, 10",
            "s_add_u32 s52, s52, s53", f"s_add_u32 s{54+a}, s52, s7")
    for ks in range(3):
        k.e(f"s_waitcnt vmcnt({(6, 10, 10)[ks]})", "s_barrier")
        for a in range(5):
            for u in range(2):
                k.e(f"ds_read_b64_tr_b16 {v(40+20*ks+4*a+2*u,2)}, v{T2 if ks == 2 else T1} offset:{256*a+10240*u+40960*(ks&1)}")
        if ks == 0: chunk(2)
        for a in range(5):
            k.e(f"s_waitcnt lgkmcnt({2*(4-a)})", f"buffer_store_dwordx4 {v(40+20*ks+4*a,4)}, v{(L16, T0, T3)[ks]}, s[20:23], s{54+a} offen sc1")
        stamp(k, 4 + ks)
    tag_make(k, TG)

OM, OE, NW = 94, 95, 104
def o_addr(k):
    k.e(f"v_lshrrev_b32 v{T0}, 4, v{TK}", f"v_mul_u32_u24 v{T0}, 20480, v{T0}", f"v_and_b32 v{T1}, 15, v{L}",
        f"v_lshl_add_u32 v{OE}, v{T1}, 3, v{T0}", f"v_lshl_add_u32 v{T0}, v{T1}, 4, v{T0}", f"v_lshl_add_u32 v{OM}, v{H}, 8, v{T0}")
    k.e("s_and_b32 s52, s2, 0x3c", "s_xor_b32 s52, s52, s24", "s_mul_i32 s52, s52, 40960", f"s_add_u32 s52, s52, {WS_O}",
        "s_and_b32 s53, s2, 7", "s_lshl_b32 s53, s53, 2", "s_lshr_b32 s54, s2, 6", "s_add_u32 s53, s53, s54",
        "s_lshl_b32 s54, s53, 9", "s_add_u32 s50, s54, s52", "s_lshl_b32 s54, s53, 7", "s_add_u32 s54, s54, s52", "s_add_u32 s51, s54, 16384")
def o_stores(d, e, sm=50):
    return [f"buffer_store_dwordx4 {v(d,4)}, v{OM}, s[20:23], s{sm} offen sc1",
            "s_mov_b32 exec_hi, 0", f"buffer_store_dwordx2 {v(e,2)}, v{OE}, s[20:23], s{sm+1} offen sc1", "s_mov_b64 exec, -1"]
def o_mark(k, both):
    o_addr(k)
    k.e(f"v_mov_b64 {v(NW,2)}, -1", f"v_mov_b64 {v(NW+2,2)}, -1", *o_stores(NW, NW))
    if both: k.e("s_bitcmp1_b32 s2, 2", "s_cselect_b32 s53, 1, -1", f"s_mul_i32 s53, s53, {4*40960}", "s_add_u32 s52, s50, s53", "s_add_u32 s53, s51, s53", *o_stores(NW, NW, 52))

def tag_load(k, d):
    k.e(f"v_mov_b32 v{T0}, 0", f"s_mov_b32 s52, {WS_EP}", f"buffer_load_dword v{d}, v{T0}, s[20:23], s52 offen sc1")
def tag_make(k, d):
    k.e(f"v_readfirstlane_b32 s{TAG}, v{d}", f"s_add_u32 s{TAG}, s{TAG}, 0x9e3779b9")
def misc_init(k):
    k.e(f"v_mov_b32 v20, s{TAG}", f"v_mov_b32 v{T3}, {MISC}", f"ds_write_b32 v{T3}, v20 offset:2048")

def a_loader(k):
    VXO, VWO = 16, 20
    AX, AW = 24, 28
    TG, PL = 30, 31
    D = 32
    vm = VM()
    k.e("s_sub_u32 s31, s24, 4")
    tag_load(k, TG); vm.add("tag")
    srd(k, 16, KWQKV, 640 * 3840)
    k.e("s_lshl_b32 s29, s31, 12", f"s_add_u32 s29, s29, {AB0}",
        "s_mul_i32 s28, s26, 163840", "s_lshl_b32 s52, s27, 7", "s_add_u32 s58, s28, s52", "s_add_u32 s28, s28, 1280",
        "s_lshl_b32 s59, s25, 8", "s_mul_i32 s52, s27, 245760", "s_add_u32 s59, s59, s52")
    k.e(f"v_lshrrev_b32 v{T0}, 3, v{L}", "s_lshl_b32 s52, s31, 5", f"v_add_u32 v{T0}, s52, v{T0}", f"v_mul_u32_u24 v{T0}, 1280, v{T0}",
        f"v_and_b32 v{T1}, 7, v{L}", f"v_lshrrev_b32 v{T2}, 4, v{L}", f"v_xor_b32 v{T1}, v{T1}, v{T2}", f"v_lshl_add_u32 v{VXO}, v{T1}, 4, v{T0}",
        f"v_xor_b32 v{T0}, 64, v{VXO}", f"v_add_u32 v{VXO+1}, {10240-1024}, v{VXO}", f"v_add_u32 v{VXO+2}, {2*(10240-1024)}, v{T0}",
        f"v_add_u32 v{VXO+3}, {3*(10240-1024)}, v{T0}")
    k.e("s_lshl_b32 s52, s31, 4", f"v_add_u32 v{T0}, s52, v{T2}", f"v_mul_u32_u24 v{T0}, 3840, v{T0}",
        f"v_and_b32 v{T1}, 15, v{L}", f"v_lshlrev_b32 v{T3}, 2, v{T2}", f"v_xor_b32 v{T1}, v{T1}, v{T3}", f"v_lshl_add_u32 v{VWO}, v{T1}, 4, v{T0}")
    k.e(f"v_xor_b32 v{T0}, 32, v{VWO}")
    for j in range(1, 4): k.e(f"v_add_u32 v{VWO+j}, {j*(15360-1024)}, v{T0 if j >= 2 else VWO}")
    CP = int(([a[4:] for a in sys.argv if a.startswith("-cp=")] + ["12"])[0])
    nxt = [0]
    def issue_to(q):
        while nxt[0] < min(q, 80):
            st, i = divmod(nxt[0], 8)
            sl = st % 4
            ob = 32768 * (sl & 1) - 65536 * (sl >> 1)
            if i == 0: k.e(f"s_add_i32 m0, s29, {ob}")
            if i == 4: k.e(f"s_add_i32 m0, s29, {ob+16384}")
            if opt("nodma") and st >= 4:
                if i == 0: k.e(f"buffer_load_dwordx4 v{VXO+i}, s[12:15], s58 offen offset:{1024*i} lds"); vm.add(st)
                nxt[0] += 1; continue
            if i < 4: k.e(f"buffer_load_dwordx4 v{VXO+i}, s[12:15], s58 offen offset:{1024*i} lds")
            else: k.e(f"buffer_load_dwordx4 v{VWO+i-4}, s[16:19], s59 offen offset:{1024*(i-4)} lds")
            vm.add(st)
            if i == 7 and st < 9:
                k.e("s_add_u32 s58, s58, 128", "s_add_u32 s59, s59, 245760", "s_cmp_ge_u32 s58, s28",
                    "s_cselect_b32 s52, 1280, 0", "s_cselect_b32 s53, 2457600, 0", "s_sub_u32 s58, s58, s52", "s_sub_u32 s59, s59, s53")
            nxt[0] += 1
    dstamp(k, "S", 2)
    issue_to(8)
    dstamp(k, "S", 3)
    k.e("s_mov_b32 s60, s58", "s_mov_b32 s30, s59", "s_lshr_b32 s61, s31, 1")
    a_table(k, 61, "lt")
    k.e("s_bitcmp1_b32 s31, 0", "s_cselect_b32 s54, s57, s54", "s_cselect_b32 s55, s58, s55")
    a_waddr(k, AW, 54, 55)
    a_xaddr(k, AX, 29)
    k.e("s_mov_b32 s58, s60", "s_mov_b32 s59, s30")
    k.e("s_mul_i32 s4, s26, 20480", "s_lshl_b32 s56, s31, 9", "s_add_u32 s4, s4, s56", f"s_add_u32 s4, s4, {WS_XST}",
        "s_mul_i32 s5, s25, 10240", "s_lshl_b32 s57, s31, 8", "s_add_u32 s5, s5, s57", f"s_add_u32 s5, s5, {WS_WST}",
        "s_lshl_b32 s55, s27, 11", "s_add_u32 s55, s55, s4", "s_lshl_b32 s56, s27, 10", "s_add_u32 s56, s56, s5", f"s_mov_b32 s54, {ONES}")
    dstamp(k, "S", 4)
    issue_to(8 + CP)
    dstamp(k, "S", 5)
    stamp(k, 1)
    if DST == "S":
        k.e(f"s_waitcnt vmcnt({8+CP})"); dstamp(k, "S", 6)
        k.e(f"s_waitcnt vmcnt({7+CP})"); dstamp(k, "S", 7)
        k.e(f"s_waitcnt vmcnt({3+CP})"); dstamp(k, "S", 8)
    k.e(vm.wait(0))
    dstamp(k, "S", 9)
    k.e("s_barrier")
    dstamp(k, "S", 10)
    stamp(k, 2)
    tag_make(k, TG)
    for ks in range(4): k.e(f"ds_read_b128 v[{D+4*ks}:{D+4*ks+3}], v{AX+ks}")
    for ks in range(4):
        for u in range(2): k.e(f"ds_read_b64_tr_b16 v[{D+16+4*ks+2*u}:{D+16+4*ks+2*u+1}], v{AW} offset:{16384+ks*4096+u*1024}")
    SX, SXX, CS = 64, 66, 68
    k.e(f"v_mov_b32 v{SX}, 0", f"v_mov_b32 v{SXX}, 0", f"v_mov_b32 v{CS}, 0",
        f"v_mov_b32 v{SX+1}, s{TAG}", f"v_mov_b32 v{SXX+1}, s{TAG}", f"v_mov_b32 v{CS+1}, s{TAG}",
        f"v_lshlrev_b32 v{T2}, 4, v{TK}", f"v_lshlrev_b32 v{T3}, 3, v{TK}")
    issue_to(16 + CP)
    k.e("s_waitcnt lgkmcnt(0)", vm.wait(1), "s_barrier")
    PX, PW = 70, 71
    def partials():
        for i in range(5):
            k.e(f"buffer_load_dwordx4 v[{D+4*i}:{D+4*i+3}], v{PX}, s[20:23], s{(4,6,7)[i//2]} offen offset:{2048*(i%2)} sc1")
            k.e(f"buffer_load_dwordx2 v[{D+20+2*i}:{D+21+2*i}], v{PW}, s[20:23], s{(5,8)[i//4]} offen offset:{1024*(i%4)} sc1")
    for j in range(2, 10):
        if j < 6:
            for i in range(4 * (j - 2), 4 * (j - 1)):
                issue_to(8 * j + CP + 2 * (i % 4 + 1))
                k.e(f"v_lshlrev_b32 v{T0}, 16, v{D+i}", f"v_and_b32 v{D+i}, 0xffff0000, v{D+i}", f"v_lshlrev_b32 v{T1}, 16, v{D+16+i}", f"v_and_b32 v{D+16+i}, 0xffff0000, v{D+16+i}",
                    f"v_add_f32 v{SX}, v{SX}, v{T0}", f"v_fmac_f32 v{SXX}, v{T0}, v{T0}", f"v_add_f32 v{CS}, v{CS}, v{T1}",
                    f"v_add_f32 v{SX}, v{SX}, v{D+i}", f"v_fmac_f32 v{SXX}, v{D+i}, v{D+i}", f"v_add_f32 v{CS}, v{CS}, v{D+16+i}")
        if j == 5:
            half_sum(k, SX, T0); half_sum(k, SXX, T1); half_sum(k, CS, T0)
            k.e("s_mov_b32 exec_hi, 0", f"buffer_store_dwordx4 v[{SX}:{SX+3}], v{T2}, s[20:23], s55 offen sc1",
                f"buffer_store_dwordx2 v[{CS}:{CS+1}], v{T3}, s[20:23], s56 offen sc1", "s_mov_b64 exec, -1")
            vm.add("st", 2)
        if j == 6:
            k.e(f"v_mul_u32_u24 v{PX}, 10240, v{H}", f"v_lshl_add_u32 v{PX}, v{TK}, 4, v{PX}", f"v_lshrrev_b32 v{PW}, 1, v{PX}",
                "s_add_u32 s6, s4, 4096", "s_add_u32 s7, s4, 8192", "s_add_u32 s8, s5, 4096")
        issue_to(8 * (j + 1) + CP)
        if j == 9:
            partials(); vm.add("pt", 10)
            o_mark(k, True); vm.add("mk", 4)
        k.e(vm.wait(j), "s_barrier")
    misc_init(k)
    k.e("s_mov_b32 s61, 0", vm.wait("pt"))
    k.label("pt_chk")
    k.e(f"v_xor_b32 v{T0}, s{TAG}, v{D+1}")
    for i in range(1, 15, 2):
        k.e(f"v_xor_b32 v{T1}, s{TAG}, v{D+1+2*i}", f"v_xor_b32 v9, s{TAG}, v{D+3+2*i}", f"v_or3_b32 v{T0}, v{T0}, v{T1}, v9")
    k.e(f"v_cmp_ne_u32 vcc, 0, v{T0}", "s_add_u32 s61, s61, 1", f"s_cbranch_vccz {k.lab('pt_ok')}", f"s_cmp_gt_u32 s61, {SPIN_MAX}", f"s_cbranch_scc1 {k.lab('pt_ok')}")
    partials()
    k.e("s_waitcnt vmcnt(0)", f"s_branch {k.lab('pt_chk')}")
    k.label("pt_ok")
    stamp(k, 3)
    if opt("w13a"):
        k.e("s_lshl_b32 s54, s2, 2", "s_add_u32 s54, s54, s31", "s_lshl_b32 s54, s54, 11")
        for m in (KW1, KW3):
            srd(k, 16, m, 640 * 3072)
            for i in range(2): k.e(f"buffer_load_dwordx4 v[84:87], v{L16}, s[16:19], s54 offen offset:{1024*i} ; dummy")
    for i in range(1, 5):
        k.e(f"v_add_f32 v{D}, v{D}, v{D+4*i}", f"v_add_f32 v{D+2}, v{D+2}, v{D+4*i+2}", f"v_add_f32 v{D+20}, v{D+20}, v{D+20+2*i}")
    half_sum(k, D, T0); half_sum(k, D + 2, T1); half_sum(k, D + 20, T2)
    ln_stats(k, D, D + 2, T0, T1, D + 4, D + 5)
    split3(k, D + 20, D + 12, D + 13, T0, T1)
    k.e("s_cmp_lt_u32 s25, 5", f"s_cselect_b32 s52, {f32(CSC)}, {f32(1.0)}", f"v_mul_f32 v{D+5}, s52, v{D+5}",
        f"v_cvt_pk_bf16_f32 v{D+4}, -v{D+4}, -v{D+4}",
        "s_lshl_b32 s52, s31, 7", f"s_add_u32 s52, s52, {MISC}", f"v_lshl_add_u32 v{T0}, v{TK}, 2, s52",
        "s_lshl_b32 s52, s31, 8", f"s_add_u32 s52, s52, {MISC+1024}", f"v_lshl_add_u32 v{T1}, v{TK}, 3, s52",
        f"ds_write_b32 v{T0}, v{D+4}", f"ds_write_b32 v{T0}, v{D+5} offset:512", f"ds_write_b64 v{T1}, v[{D+12}:{D+13}]",
        "s_waitcnt lgkmcnt(0)", "s_barrier")
    stamp(k, 4)
    if UPTO == "A": k.e("s_barrier")

def build():
    k = Kern("mega_kernel", 256, 512, 163840, nvgpr=256, nsgpr=100)
    k.e("s_cmp_ge_u32 s2, 256", f"s_cbranch_scc1 {k.lab('end')}")
    if STAMP:
        k.e("s_memtime s[62:63]", "s_waitcnt lgkmcnt(0)", "s_mov_b32 s94, s62")
        for i in range(1, 30): k.e(f"s_mov_b32 s{64+i}, 0")
    stamp(k, 0)
    k.e("s_load_dwordx16 s[32:47], s[0:1], 0", "s_load_dwordx4 s[48:51], s[0:1], 64")
    if opt("ect"):
        k.e("s_bfe_u32 s54, s2, 0x30003", "s_lshl_b32 exec_lo, 0x01010101, s54", "s_mov_b32 exec_hi, exec_lo")
        code_touch(k, 2, 512)
        k.e("s_mov_b64 exec, -1")
    k.e(f"v_lshrrev_b32 v{T0}, 6, v0", f"v_and_b32 v{L}, 63, v0", f"v_readfirstlane_b32 s24, v{T0}",
        f"v_lshlrev_b32 v{L16}, 4, v{L}", f"v_lshrrev_b32 v{H}, 5, v{L}", f"v_and_b32 v{TK}, 31, v{L}")
    a_map(k)
    k.e("s_waitcnt lgkmcnt(0)")
    dstamp(k, "S", 1)
    WOFF = int(([a[6:] for a in sys.argv if a.startswith("-woff=")] + ["0"])[0]) << 20
    if WOFF: k.e(f"s_add_u32 s{KWS}, s{KWS}, {WOFF}", f"s_addc_u32 s{KWS+1}, s{KWS+1}, 0")
    srd(k, 20, KWS, WS_SRD); srd(k, 12, KX, X_BYTES)
    k.e("s_cmp_ge_u32 s2, 240", f"s_cbranch_scc1 {k.lab('spare')}")
    k.e("s_cmp_lt_u32 s24, 4", f"s_cbranch_scc1 {k.lab('compute')}")
    a_loader(k)
    k.e(f"s_branch {k.lab('a_done')}")
    k.label("spare")
    spare(k)
    k.e(f"s_branch {k.lab('a_done')}")
    k.label("compute")
    if not opt("nocf") and not opt("ect"): code_touch(k, 1, 256)
    srd(k, 16, KWO, 640 * 1280)
    k.e("s_lshl_b32 s54, s2, 2", "s_add_u32 s54, s54, s24", "s_lshl_b32 s54, s54, 10", f"buffer_load_dwordx4 v[244:247], v{L16}, s[16:19], s54 offen ; dummy")
    k.e(f"v_lshlrev_b32 v{T0}, 6, v{L}", "s_mul_i32 s54, s2, 704", f"s_min_u32 s54, s54, {163840-704}", f"s_add_u32 s54, s54, {WS_FB}", "s_mov_b64 exec, 0x7ff",
        f"buffer_load_dword v9, v{T0}, s[20:23], s54 offen sc1 ; dummy", "s_mov_b64 exec, -1")
    a_compute(k)
    k.label("a_done")
    if UPTO != "A":
        import phases
        phases.rest(k)
    k.label("fin")
    stamp_out(k)
    k.label("end")
    k.e("s_endpgm")
    return k

HEADER = open("cdna_kernels/" + NAME + ".s.ref").read().split("; Override launch geometry")[0].rstrip()

if __name__ == "__main__":
    sys.modules["gen2"] = sys.modules["__main__"]
    out = sys.argv[1] if len(sys.argv) > 1 and not sys.argv[1].startswith("-") else "cdna_kernels/" + NAME + ".s"
    n = write_file(out, [build()], HEADER, verbose="-v" in sys.argv)
    print("errors:", n)
```
